```python
import torch

def _softmax(x, axis=-1):
    return torch.softmax(x, dim=axis)
def _gelu(x):
    return torch.nn.functional.gelu(x, approximate="tanh")
def _silu(x):
    return torch.nn.functional.silu(x)
def _sigmoid(x):
    return torch.sigmoid(x)
def _layernorm(x, axis=-1, eps=1e-5):
    m = x.mean(dim=axis, keepdim=True)
    v = x.var(dim=axis, keepdim=True, unbiased=False)
    return (x - m) / torch.sqrt(v + eps)
def _scatter_add(tgt, idx, src, axis=0):
    return tgt.clone().index_add_(axis, idx, src)
def _segment_sum(src, seg, n):
    out = torch.zeros((n,) + src.shape[1:], dtype=src.dtype)
    return out.index_add_(0, seg, src)
def _pad(x, pw):
    flat = tuple(v for pair in reversed(pw) for v in pair)
    return torch.nn.functional.pad(x, flat)

kernel_name = 'sequential_preLN__spectral_fnet__dense_activation_relu__prompt'

def setup_inputs():

    _w = (lambda a: (lambda t: t.to(torch.bfloat16) if t.is_floating_point() else t)(torch.as_tensor(a)))
    def _A_setup():
        B, S, D = 1, 2048, 448
        ns = torch.arange(S)[:, None] * torch.arange(S)[None, :]
        nd = torch.arange(D)[:, None] * torch.arange(D)[None, :]
        Ws_re = torch.cos(-2.0 * torch.pi * ns / S).to(float)
        Ws_im = torch.sin(-2.0 * torch.pi * ns / S).to(float)
        Wd_re = torch.cos(-2.0 * torch.pi * nd / D).to(float)
        Wd_im = torch.sin(-2.0 * torch.pi * nd / D).to(float)
        return {
            "x": _w((lambda *s: torch.randn(*s, dtype=torch.bfloat16) * 0.05)(B, S, D)),
            "dft_seq_re": _w(Ws_re),
            "dft_seq_im": _w(Ws_im),
            "dft_hid_re": _w(Wd_re),
            "dft_hid_im": _w(Wd_im),
        }
    _A_in = _A_setup()

    def _B_setup():
        B, S, D, Dff = 1, 2048, 448, 1792
        return {
            "x": _w((lambda *s: torch.randn(*s, dtype=torch.bfloat16) * 0.05)(B, S, D)),
            "w1": _w((lambda *s: torch.randn(*s, dtype=torch.bfloat16) * 0.4)(D, Dff)),
            "w2": _w((lambda *s: torch.randn(*s, dtype=torch.bfloat16) * 0.4)(Dff, D)),
        }
    _B_in = _B_setup()

    return {
        "A_x": _A_in["x"],
        "A_dft_seq_re": _A_in["dft_seq_re"],
        "A_dft_seq_im": _A_in["dft_seq_im"],
        "A_dft_hid_re": _A_in["dft_hid_re"],
        "A_dft_hid_im": _A_in["dft_hid_im"],
        "B_x": _B_in["x"],
        "B_w1": _B_in["w1"],
        "B_w2": _B_in["w2"],
    }

def reference(A_x, A_dft_seq_re, A_dft_seq_im, A_dft_hid_re, A_dft_hid_im, B_x, B_w1, B_w2):
    def _A_ref(x, dft_seq_re, dft_seq_im, dft_hid_re, dft_hid_im):
        a = torch.einsum("bsd,ed->bse", x, dft_hid_re)
        b = torch.einsum("bsd,ed->bse", x, dft_hid_im)
        y = torch.einsum("ts,bse->bte", dft_seq_re, a) - torch.einsum("ts,bse->bte", dft_seq_im, b)
        return y

    def _B_ref(x, w1, w2):
        h = torch.einsum("bsd,df->bsf", x, w1)
        zero = torch.zeros_like(h)
        h = torch.maximum(h, zero)
        return torch.einsum("bsf,fd->bsd", h, w2)

    x = A_x
    h = x + _A_ref(_layernorm(x, axis=-1), A_dft_seq_re, A_dft_seq_im, A_dft_hid_re, A_dft_hid_im)
    h2 = h + _B_ref(_layernorm(h, axis=-1), B_w1, B_w2)
    return h2
```

```python
import re

def v(i, n=1): return f"v{i}" if n == 1 else f"v[{i}:{i+n-1}]"
def a(i, n=1): return f"a{i}" if n == 1 else f"a[{i}:{i+n-1}]"
def s(i, n=1): return f"s{i}" if n == 1 else f"s[{i}:{i+n-1}]"

_REG = re.compile(r"(?<![\w.])([vas])(?:(\d+)|\[(\d+):(\d+)\])(?![\w])")
def regs_of(tok):
    out = set()
    for m in _REG.finditer(tok):
        k = m.group(1)
        if m.group(2) is not None: out.add((k, int(m.group(2))))
        else:
            for i in range(int(m.group(3)), int(m.group(4)) + 1): out.add((k, i))
    if re.search(r"(?<![\w])vcc(?![\w])", tok): out.add(("s", "vcc"))
    if re.search(r"(?<![\w])exec(_lo|_hi)?(?![\w])", tok): out.add(("s", "exec"))
    if re.search(r"(?<![\w])m0(?![\w])", tok): out.add(("s", "m0"))
    return out

TRANS = ("v_exp_", "v_log_", "v_rcp_", "v_rsq_", "v_sqrt_", "v_sin_", "v_cos_")
class Ins:
    __slots__ = ("text", "op", "kind", "w", "r", "states", "srcc", "comment")
    def __init__(self, text):
        self.text = text
        body = text.split(";")[0].strip()
        parts = body.split(None, 1)
        self.op = op = parts[0]
        rest = parts[1] if len(parts) > 1 else ""
        ops, depth, cur = [], 0, ""
        for ch in rest:
            if ch == "[": depth += 1
            if ch == "]": depth -= 1
            if ch == "," and depth == 0: ops.append(cur.strip()); cur = ""
            else: cur += ch
        if cur.strip(): ops.append(cur.strip())
        self.states = 1
        self.srcc = set()
        R = lambda xs: set().union(*[regs_of(x) for x in xs]) if xs else set()
        if op == "s_nop":
            self.kind = "nop"; self.w = set(); self.r = set(); self.states = int(ops[0], 0) + 1
        elif op.startswith("v_mfma"):
            self.kind = "mfma"; self.w = R(ops[:1]); self.r = R(ops[1:4]); self.srcc = R(ops[3:4])
        elif op.startswith("v_cmp"):
            self.kind = "valu"; self.w = R(ops[:1]); self.r = R(ops[1:])
        elif op.startswith("v_swap") or op.startswith("v_permlane"):
            self.kind = "permlane" if op.startswith("v_permlane") else "valu"
            self.w = R(ops[:2]); self.r = R(ops[:2])
        elif op.startswith("v_readfirstlane") or op.startswith("v_readlane"):
            self.kind = "readlane"; self.w = R(ops[:1]); self.r = R(ops[1:])
        elif op.startswith("v_"):
            self.kind = "trans" if op.startswith(TRANS) else "valu"
            self.w = R(ops[:1]); self.r = R(ops[1:])
            if op.startswith(("v_fmac", "v_dot2c", "v_pk_fmac", "v_mac")) or "d16" in op: self.r |= self.w
            if op.startswith("v_cndmask") and len(ops) == 3: self.r.add(("s", "vcc"))
            if op.startswith(("v_add_co", "v_sub_co", "v_addc_co", "v_subb_co")):
                self.w = R(ops[:2]); self.r = R(ops[2:])
            if "_dpp" in op or " row_" in text or "quad_perm" in text: self.kind = "dpp"
        elif op.startswith("ds_read") or op.startswith("ds_bpermute") or op.startswith("ds_swizzle"):
            self.kind = "ds_read"; self.w = R(ops[:1]); self.r = R(ops[1:])
            if "d16" in op: self.r |= self.w
        elif op.startswith("ds_write"):
            self.kind = "ds_write"; self.w = set(); self.r = R(ops)
        elif op.startswith(("buffer_load", "global_load")):
            if re.search(r"\blds\b", rest):
                self.kind = "dma"; self.w = set(); self.r = R(ops) | {("s", "m0")}
            else:
                self.kind = "vload"; self.w = R(ops[:1]); self.r = R(ops[1:])
        elif op.startswith(("buffer_store", "global_store")):
            self.kind = "vstore"; self.w = set(); self.r = R(ops)
        elif op.startswith(("buffer_atomic", "global_atomic")):
            self.kind = "vstore"; self.w = R(ops[:1]) if "sc0" in rest else set(); self.r = R(ops)
        elif op.startswith("s_"):
            self.kind = "salu"
            if op.startswith(("s_cmp", "s_cbranch", "s_branch", "s_waitcnt", "s_barrier", "s_endpgm", "s_setprio", "s_sleep", "s_bitcmp")):
                self.w = set(); self.r = R(ops)
            else:
                self.w = R(ops[:1]); self.r = R(ops[1:])
                if "saveexec" in op: self.w.add(("s", "exec")); self.r.add(("s", "exec"))
        else:
            self.kind = "other"; self.w = set(); self.r = R(ops)

VALU_KINDS = ("valu", "trans", "dpp", "permlane", "readlane")
def isv(r): return r[0] in ("v", "a")
def iss(r): return r[0] == "s"

def need(p, c):
    n = 0
    pw = p.w
    if p.kind in VALU_KINDS:
        vw = {r for r in pw if isv(r)}
        sw = {r for r in pw if iss(r)}
        if c.kind == "mfma" and vw & c.r: n = max(n, 2)
        if c.kind == "readlane" and vw & c.r: n = max(n, 1)
        if c.kind in ("dpp", "permlane") and vw & c.r: n = max(n, 2)
        if sw:
            if c.kind in ("vload", "vstore", "dma") and sw & c.r: n = max(n, 5)
            if c.kind in VALU_KINDS and sw & c.r: n = max(n, 2)
            if c.kind == "readlane" and sw & c.r: n = max(n, 4)
            if c.kind == "salu" and sw & c.r: n = max(n, 2)
        if p.kind == "trans" and c.kind in VALU_KINDS and c.kind != "trans" and vw & c.r: n = max(n, 1)
        if p.kind == "trans" and c.kind in ("mfma",) and vw & c.r: n = max(n, 2)
    if p.kind == "mfma":
        if c.kind == "mfma":
            if pw & c.srcc:
                n = max(n, 0 if (c.srcc == pw) else 6)
            ab = c.r - c.srcc
            if pw & ab: n = max(n, 8)
            if (pw & c.w) and not (pw & c.srcc): n = max(n, 8)
        else:
            if (pw & c.r) or (pw & c.w): n = max(n, 8)
        if c.kind in VALU_KINDS and (p.srcc & c.w): n = max(n, 3)
    if p.kind == "salu" and ("s", "m0") in pw and c.kind == "dma": n = max(n, 1)
    if p.kind == "vstore" and ("x4" in p.op or "x3" in p.op):
        data = {r for r in p.r if isv(r)}
        if c.w & data: n = max(n, 2)
    return n

class Builder:
    def __init__(self):
        self.items = []
        self.vm = []
        self.lg = []
        self.smem = False
        self.nlabel = 0
    def __call__(self, text, tag=None):
        for line in text.strip("\n").split("\n"):
            line = line.strip()
            if not line or line.startswith(";"):
                continue
            i = Ins(line)
            self.items.append(i)
            if i.kind in ("vload", "vstore", "dma"): self.vm.append(tag)
            if i.kind in ("ds_read", "ds_write"): self.lg.append(tag)
            if i.op.startswith(("s_load", "s_memtime", "s_memrealtime")): self.smem = True
            if i.op == "s_waitcnt":
                m = re.search(r"vmcnt\((\d+)\)", line)
                if m:
                    n = int(m.group(1)); self.vm = self.vm[len(self.vm) - n:] if n < len(self.vm) and n > 0 else ([] if n == 0 else self.vm)
                m = re.search(r"lgkmcnt\((\d+)\)", line)
                if m:
                    n = int(m.group(1))
                    if n == 0: self.lg = []; self.smem = False
                    elif n < len(self.lg): self.lg = self.lg[len(self.lg) - n:]
    def label(self, name): self.items.append(name + ":")
    def raw(self, text): self.items.append(text)
    def comment(self, text): self.items.append("; " + text)
    def newlabel(self, base="L"):
        self.nlabel += 1
        return f"{base}_{self.nlabel}"
    def _count(self, lst, tags):
        if not isinstance(tags, (list, tuple, set)): tags = [tags]
        idx = -1
        for k, t in enumerate(lst):
            if t in tags: idx = k
        return None if idx < 0 else len(lst) - 1 - idx
    def wait_vm(self, tags):
        n = self._count(self.vm, tags)
        if n is None: return
        self(f"s_waitcnt vmcnt({min(n, 63)})")
    def wait_lg(self, tags):
        n = self._count(self.lg, tags)
        if n is None: return
        if self.smem or n > 15: n = 0 if self.smem else 15
        self(f"s_waitcnt lgkmcnt({n})")
    def wait_both(self, vtags, ltags):
        nv = self._count(self.vm, vtags); nl = self._count(self.lg, ltags)
        parts = []
        if nv is not None: parts.append(f"vmcnt({min(nv,63)})")
        if nl is not None: parts.append(f"lgkmcnt({0 if self.smem else min(nl,15)})")
        if parts: self("s_waitcnt " + " ".join(parts))
    def finalize(self, window=12):
        out = []
        hist = []
        nnop = 0
        for it in self.items:
            if isinstance(it, str):
                out.append(it)
                continue
            req = 0
            dist = 0
            for p in reversed(hist):
                nd = need(p, it)
                if nd > dist: req = max(req, nd - dist)
                dist += p.states
                if dist >= window: break
            if req > 0:
                nop = Ins(f"s_nop {req-1}")
                out.append(nop); hist.append(nop); nnop += 1
            out.append(it); hist.append(it)
            if len(hist) > 64: hist = hist[-32:]
        self.nnop = nnop
        txt = []
        for it in out:
            if isinstance(it, str): txt.append(it)
            else: txt.append("    " + it.text)
        return "\n".join(txt) + "\n"
```

```python
from asmb import *
NAME = "sequential_preLN__spectral_fnet__dense_activation_relu__prompt"

S_WG, S_W, S_IDX, S_J = 2, 3, 4, 5
P_X, P_SRE, P_SIM, P_HRE, P_HIM, P_BX, P_W1, P_W2 = 16, 18, 20, 22, 24, 26, 28, 30
P_OUT, P_DBG, P_WS = 32, 34, 36
R_X, R_SRE, R_SIM, R_W1, R_W2, R_WS, R_OUT, R_DBG = 40, 44, 48, 52, 56, 60, 64, 68

X_BYTES = 2048 * 448 * 2
SEQ_BYTES = 2048 * 2048 * 2
W_BYTES = 448 * 1792 * 2
WS_BYTES = 268435456

WS_Z = 0
Z_G = 14 * 32 * 128
WS_CS = 0x200000
WS_PB = 0x400000
PB_G = 7 * 7 * 8192
WS_OWN = 0x2000000
WS_TS = 0x4000000

def srd(b, r, p, nbytes):
    b(f"s_mov_b32 s{r}, s{p}")
    b(f"s_mov_b32 s{r+1}, s{p+1}")
    b(f"s_mov_b32 s{r+2}, {hex(nbytes)}")
    b(f"s_mov_b32 s{r+3}, 0x00020000")

def load_kernargs(b):
    b("s_load_dwordx16 s[16:31], s[0:1], 0")
    b("s_load_dwordx4 s[32:35], s[0:1], 64")
    b("s_load_dwordx2 s[36:37], s[0:1], 80")

def wave_lane(b):
    b("v_lshrrev_b32 v1, 6, v0")
    b("v_and_b32 v0, 63, v0")
    b(f"v_readfirstlane_b32 s{S_W}, v1")

def decode_wg(b):
    b("s_and_b32 s6, s2, 7")
    b("s_lshr_b32 s7, s2, 3")
    b("s_mul_i32 s8, s7, 37")
    b("s_lshr_b32 s8, s8, 8")
    b("s_mul_i32 s9, s8, 7")
    b(f"s_sub_u32 s{S_J}, s7, s9")
    b("s_lshl_b32 s8, s8, 3")
    b(f"s_add_u32 s{S_IDX}, s6, s8")

def all_srds(b):
    srd(b, R_X, P_X, X_BYTES)
    srd(b, R_SRE, P_SRE, SEQ_BYTES)
    srd(b, R_SIM, P_SIM, SEQ_BYTES)
    srd(b, R_W1, P_W1, W_BYTES)
    srd(b, R_W2, P_W2, W_BYTES)
    srd(b, R_WS, P_WS, WS_BYTES)
    srd(b, R_OUT, P_OUT, X_BYTES)
    srd(b, R_DBG, P_DBG, 256)

def kernel_header(name):
    return f".globl {name}\n.p2align 8\n.type {name},@function\n{name}:\n"

def kernel_desc(name, vgpr=512, accum=256, sgpr=102):
    return f""".p2align 6
.amdhsa_kernel {name}
  .amdhsa_next_free_vgpr {vgpr}
  .amdhsa_next_free_sgpr {sgpr}
  .amdhsa_accum_offset {accum}
  .amdhsa_group_segment_fixed_size 0
  .amdhsa_kernarg_size 88
  .amdhsa_user_sgpr_count 2
  .amdhsa_user_sgpr_kernarg_segment_ptr 1
  .amdhsa_system_sgpr_workgroup_id_x 1
  .amdhsa_float_denorm_mode_32 3
.end_amdhsa_kernel
"""

def timestamp(b, slot, sreg=96):
    b(f"s_memrealtime s[{sreg+2*slot}:{sreg+2*slot+1}]")
```

```python
from common import *

XL = 0
STAT1 = 57344

V_C, V_GQ = 1, 2
V_T0, V_T1, V_T2, V_T3 = 3, 4, 5, 6
V_XO = 7
V_WA = 8
V_FO = 10
V_ZO = 11
V_XB = 12
V_SA = 20
V_S0, V_S1, V_Q0, V_Q1 = 24, 25, 26, 27
V_ONE = 28
V_CS = 32
V_ACC = 36
V_AB = 52
V_WD = 84
V_XF = 140
V_F = 172
V_A = 204
V_D2 = 212
V_ZP = 228

def phase1_addr(b):
    b(f"v_and_b32 v{V_C}, 15, v0")
    b(f"v_lshrrev_b32 v{V_GQ}, 4, v0")
    b(f"v_lshrrev_b32 v{V_T0}, 3, v0")
    b(f"v_and_b32 v{V_T1}, 7, v0")
    b(f"v_xor_b32 v{V_T1}, v{V_T1}, v{V_T0}")
    b(f"v_lshlrev_b32 v{V_T1}, 4, v{V_T1}")
    b(f"v_mul_u32_u24 v{V_T0}, 28672, v{V_T0}")
    b(f"v_add_u32 v{V_XO}, v{V_T0}, v{V_T1}")
    b(f"v_and_b32 v{V_T0}, 7, v{V_C}")
    b(f"v_lshrrev_b32 v{V_T1}, 3, v{V_C}")
    b(f"v_lshlrev_b32 v{V_T1}, 10, v{V_T1}")
    b(f"v_lshl_add_u32 v{V_T1}, v{V_T0}, 7, v{V_T1}")
    for par in range(2):
        b(f"v_add_u32 v{V_T2}, {4*par}, v{V_GQ}")
        b(f"v_xor_b32 v{V_T2}, v{V_T2}, v{V_T0}")
        b(f"v_lshl_add_u32 v{V_T3}, v{V_T2}, 4, v{V_T1}")
        for ls in range(4):
            b(f"s_add_u32 s6, s{S_W}, {ls}")
            b("s_and_b32 s6, s6, 3")
            b("s_lshl_b32 s6, s6, 11")
            b(f"v_add_u32 v{V_XB + 2*ls + par}, s6, v{V_T3}")
    b(f"v_lshlrev_b32 v{V_T0}, 5, v{V_GQ}")
    for ls in range(4):
        b(f"s_add_u32 s6, s{S_W}, {ls}")
        b("s_and_b32 s6, s6, 3")
        b("s_lshl_b32 s6, s6, 7")
        b(f"s_add_u32 s6, s6, {STAT1}")
        b(f"v_add_u32 v{V_SA + ls}, s6, v{V_T0}")
    b(f"v_lshlrev_b32 v{V_T0}, 17, v{V_C}")
    b(f"v_lshl_add_u32 v{V_FO}, v{V_GQ}, 3, v{V_T0}")
    b(f"v_mul_u32_u24 v{V_T0}, {Z_G}, v{V_C}")
    b(f"v_lshl_add_u32 v{V_ZO}, v{V_GQ}, 4, v{V_T0}")
    b(f"s_lshr_b32 s6, s{S_W}, 1")
    b(f"s_lshl_b32 s7, s{S_J}, 1")
    b("s_add_u32 s10, s6, s7")
    b(f"s_and_b32 s11, s{S_W}, 1")
    b("s_lshl_b32 s6, s10, 4")
    b("s_lshl_b32 s7, s11, 3")
    b("s_add_u32 s6, s6, s7")
    b(f"v_lshrrev_b32 v{V_T0}, 1, v{V_C}")
    b(f"v_add_u32 v{V_T0}, s6, v{V_T0}")
    b(f"v_and_b32 v{V_T1}, 1, v{V_C}")
    b(f"v_lshl_or_b32 v{V_T2}, v{V_T0}, 1, v{V_T1}")
    b(f"v_mov_b32 v{V_T3}, 224")
    b(f"v_cmp_eq_u32 vcc, 1, v{V_T2}")
    b(f"v_cndmask_b32 v{V_T0}, v{V_T0}, v{V_T3}, vcc")
    b(f"v_mov_b32 v{V_T3}, 0")
    b(f"v_cndmask_b32 v{V_T1}, v{V_T1}, v{V_T3}, vcc")
    b(f"v_mul_u32_u24 v{V_T0}, 896, v{V_T0}")
    b(f"v_lshl_add_u32 v{V_T0}, v{V_GQ}, 4, v{V_T0}")
    b(f"v_mov_b32 v{V_WA+1}, v{V_T1}")
    b(f"v_mov_b32 v{V_WA}, v{V_T0}")
    for r in range(4):
        b(f"v_mov_b32 v{V_ONE + r}, 0x3f803f80")
    for r in range(4):
        b(f"v_mov_b32 v{V_CS + r}, 0")
    for r in range(16):
        b(f"v_mov_b32 v{V_ACC + r}, 0")
    for r in (V_S0, V_S1, V_Q0, V_Q1):
        b(f"v_mov_b32 v{r}, 0")

def phase1_issue(b, xflags=""):
    b(f"v_cmp_eq_u32 vcc, 1, v{V_WA+1}")
    b(f"v_mov_b32 v{V_T0}, s{P_HRE}")
    b(f"v_mov_b32 v{V_T1}, s{P_HIM}")
    b(f"v_cndmask_b32 v{V_T0}, v{V_T0}, v{V_T1}, vcc")
    b(f"v_mov_b32 v{V_T2}, s{P_HRE+1}")
    b(f"v_mov_b32 v{V_T1}, s{P_HIM+1}")
    b(f"v_cndmask_b32 v{V_T2}, v{V_T2}, v{V_T1}, vcc")
    b(f"v_add_co_u32 v{V_WA}, vcc, v{V_T0}, v{V_WA}")
    b(f"v_addc_co_u32 v{V_WA+1}, vcc, 0, v{V_T2}, vcc")
    b(f"s_lshl_b32 s6, s{S_W}, 9")
    b(f"s_add_u32 s6, s6, s{S_IDX}")
    b("s_mul_i32 s12, s6, 896")
    b("s_add_u32 s13, s12, 229376")
    b(f"s_lshl_b32 s14, s{S_W}, 11")
    for ksp in range(7):
        for o2 in range(2):
            b(f"s_add_u32 m0, s14, {XL + o2*1024 + 8064*ksp}")
            b(f"buffer_load_dwordx4 v{V_XO}, s[{R_X}:{R_X+3}], s{12+o2} offen offset:{128*ksp} {xflags} lds", tag=f"x{ksp}")
        for k in (2*ksp, 2*ksp+1):
            b(f"global_load_dwordx4 {v(V_WD + 4*k, 4)}, {v(V_WA, 2)}, off offset:{64*k}", tag=f"x{ksp}")
    for ls in range(4):
        b(f"s_add_u32 s6, s{S_W}, {ls}")
        b("s_and_b32 s6, s6, 3")
        b(f"s_lshl_b32 s{72+ls}, s6, 5")
    for gh in range(2):
        for sg in range(2):
            R = R_SRE if sg == 0 else R_SIM
            for ls in range(4):
                reg = V_F + ((gh*2 + sg)*2 + (ls >> 1))*4 + 2*(ls & 1)
                b(f"s_add_u32 s6, s{72+ls}, {gh*2097152}")
                b(f"buffer_load_dwordx2 {v(reg, 2)}, v{V_FO}, s[{R}:{R+3}], s6 offen", tag="f")
    b("s_mov_b32 exec_lo, 0x00010001")
    b("s_mov_b32 exec_hi, 0x00010001")
    for ls in range(4):
        reg = V_F + ((0*2 + 1)*2 + (ls >> 1))*4 + 2*(ls & 1)
        b(f"s_add_u32 s6, s{72+ls}, 4194304")
        b(f"buffer_load_dwordx2 {v(reg, 2)}, v{V_FO}, s[{R_SRE}:{R_SRE+3}], s6 offen", tag="f")
    b("s_mov_b64 exec, -1")

def phase1_compute(b, zflags="", stages=((0,1),(2,3),(4,5,6))):
    def xread(ks, buf):
        ksp, par = ks >> 1, ks & 1
        for ls in range(4):
            b(f"ds_read_b128 {v(V_XF + 16*buf + 4*ls, 4)}, v{V_XB + 2*ls + par} offset:{XL + ksp*8192}", tag=f"xf{ks}")
    for stg in stages:
        b.wait_vm(f"x{stg[-1]}")
        b("s_barrier")
        kss = [k for p in stg for k in (2*p, 2*p+1)]
        xread(kss[0], kss[0] & 1)
        for n, ks in enumerate(kss):
            buf = ks & 1
            nxt = kss[n+1] if n + 1 < len(kss) else None
            if nxt is not None:
                xread(nxt, nxt & 1)
            b.wait_lg(f"xf{ks}")
            xf = V_XF + 16*buf
            dots = []
            for r in range(4):
                dots.append(f"v_dot2_f32_bf16 v{V_S0 + (r&1)}, v{xf + r}, v{V_ONE}, v{V_S0 + (r&1)}")
                dots.append(f"v_dot2_f32_bf16 v{V_Q0 + (r&1)}, v{xf + r}, v{xf + r}, v{V_Q0 + (r&1)}")
            for ls in range(4):
                b(f"v_mfma_f32_16x16x32_bf16 {v(V_ACC + 4*ls, 4)}, {v(xf + 4*ls, 4)}, {v(V_WD + 4*ks, 4)}, {v(V_ACC + 4*ls, 4)}")
                b(dots[2*ls]); b(dots[2*ls+1])
            b(f"v_mfma_f32_16x16x32_bf16 {v(V_CS, 4)}, {v(V_ONE, 4)}, {v(V_WD + 4*ks, 4)}, {v(V_CS, 4)}")
    b(f"v_add_f32 v{V_S0}, v{V_S0}, v{V_S1}")
    b(f"v_add_f32 v{V_Q0}, v{V_Q0}, v{V_Q1}")
    b(f"v_permlane32_swap_b32 v{V_S0}, v{V_Q0}")
    b(f"v_add_f32 v{V_S0}, v{V_S0}, v{V_Q0}")
    b(f"v_mov_b32 v{V_S1}, v{V_S0}")
    b(f"v_permlane16_swap_b32 v{V_S0}, v{V_S1}")
    b(f"v_add_f32 v{V_S0}, v{V_S0}, v{V_S1}")
    b(f"v_mov_b32 v{V_Q0}, v{V_S0}")
    b(f"v_permlane32_swap_b32 v{V_S0}, v{V_Q0}")
    b(f"v_mul_f32 v{V_S0}, {1.0/448!r}, v{V_S0}".replace(repr(1.0/448), "0x3b124925"))
    b(f"v_mul_f32 v{V_Q0}, 0x3b124925, v{V_Q0}")
    b(f"v_fma_f32 v{V_Q0}, -v{V_S0}, v{V_S0}, v{V_Q0}")
    b(f"v_max_f32 v{V_Q0}, 0, v{V_Q0}")
    b(f"v_add_f32 v{V_Q0}, 0x3727c5ac, v{V_Q0}")
    b(f"v_rsq_f32 v{V_Q0}, v{V_Q0}")
    b(f"v_add_f32 v{V_T0}, v{V_Q0}, v{V_Q0}")
    b(f"v_mul_f32 v{V_T1}, v{V_T0}, v{V_S0}")
    b(f"v_sub_f32 v{V_T1}, 0, v{V_T1}")
    b(f"s_lshl_b32 s6, s{S_W}, 7")
    b(f"s_add_u32 s6, s6, {STAT1}")
    b(f"v_lshl_add_u32 v{V_T2}, v{V_C}, 3, s6")
    b(f"v_mov_b32 v{V_T2+2}, v{V_T0}") if False else None
    assert V_T0 % 2 == 1
    b(f"v_mov_b32 v{V_S0}, v{V_T0}")
    b(f"v_mov_b32 v{V_S1}, v{V_T1}")
    assert V_S0 % 2 == 0 and V_S1 == V_S0 + 1
    b(f"ds_write_b64 v{V_T2}, {v(V_S0, 2)}", tag="st")
    b("s_waitcnt lgkmcnt(0)")
    b("s_barrier")
    for ls in range(4):
        b(f"ds_read_b128 {v(V_AB + 8*ls, 4)}, v{V_SA + ls}", tag=f"ab{ls}")
        b(f"ds_read_b128 {v(V_AB + 8*ls + 4, 4)}, v{V_SA + ls} offset:16", tag=f"ab{ls}")
    for ls in range(4):
        b.wait_lg(f"ab{ls}")
        for r in range(4):
            b(f"v_mul_f32 v{V_AB + 8*ls + 2*r + 1}, v{V_AB + 8*ls + 2*r + 1}, v{V_CS}")
        for r in range(4):
            b(f"v_fma_f32 v{V_ACC + 4*ls + r}, v{V_AB + 8*ls + 2*r}, v{V_ACC + 4*ls + r}, v{V_AB + 8*ls + 2*r + 1}")
        for m in range(2):
            b(f"v_cvt_pk_bf16_f32 v{V_A + 2*ls + m}, v{V_ACC + 4*ls + 2*m}, v{V_ACC + 4*ls + 2*m + 1}")
    b.wait_vm("f")
    for gh in range(2):
        for sg in range(2):
            d = V_D2 + (gh*2 + sg)*4
            f0 = V_F + ((gh*2 + sg)*2 + 0)*4
            b(f"v_mfma_f32_16x16x32_bf16 {v(d,4)}, {v(V_A,4)}, {v(f0,4)}, 0")
        for sg in range(2):
            d = V_D2 + (gh*2 + sg)*4
            f1 = V_F + ((gh*2 + sg)*2 + 1)*4
            b(f"v_mfma_f32_16x16x32_bf16 {v(d,4)}, {v(V_A+4,4)}, {v(f1,4)}, {v(d,4)}")
    b("s_lshl_b32 s6, s10, 12")
    b(f"s_lshl_b32 s7, s{S_IDX}, 7")
    b("s_add_u32 s6, s6, s7")
    b("s_lshl_b32 s7, s11, 6")
    b("s_add_u32 s6, s6, s7")
    b(f"s_add_u32 s6, s6, {WS_Z}")
    b(f"s_add_u32 s7, s6, {16*Z_G}")
    for gh in range(2):
        for r in range(4):
            b(f"v_cvt_pk_bf16_f32 v{V_ZP + 4*gh + r}, v{V_D2 + (gh*2)*4 + r}, v{V_D2 + (gh*2+1)*4 + r}")
        b(f"buffer_store_dwordx4 {v(V_ZP + 4*gh, 4)}, v{V_ZO}, s[{R_WS}:{R_WS+3}], s{6+gh} offen {zflags}", tag="zst")

def cs_job(b, flags=""):
    b("s_sub_u32 s6, s2, 224")
    b("s_lshl_b32 s7, s6, 7")
    b("v_and_b32 v1, 15, v9")
    b("v_lshrrev_b32 v2, 4, v9")
    b("v_mul_u32_u24 v3, 3584, v2")
    b("v_lshl_add_u32 v3, v1, 3, v3")
    for n in range(28):
        b(f"s_add_u32 s8, s7, {n*57344}")
        b(f"buffer_load_dwordx2 {v(16 + 2*n, 2)}, v3, s[{R_W1}:{R_W1+3}], s8 offen", tag=f"c{n}")
    for r in range(4): b(f"v_mov_b32 v{10+r}, 0")
    for n in range(28):
        b.wait_vm(f"c{n}")
        for h in range(2):
            b(f"v_lshlrev_b32 v4, 16, v{16+2*n+h}")
            b(f"v_and_b32 v5, 0xffff0000, v{16+2*n+h}")
            b(f"v_add_f32 v{10+2*h}, v{10+2*h}, v4")
            b(f"v_add_f32 v{11+2*h}, v{11+2*h}, v5")
    b("v_lshlrev_b32 v4, 8, v2")
    b("v_lshl_add_u32 v4, v1, 4, v4")
    b("v_mov_b32 v76, v10"); b("v_mov_b32 v77, v11"); b("v_mov_b32 v78, v12"); b("v_mov_b32 v79, v13")
    b("ds_write_b128 v4, v[76:79]")
    b("s_waitcnt lgkmcnt(0)")
    b("s_barrier")
    b("v_and_b32 v1, 63, v9")
    b("v_lshlrev_b32 v1, 2, v1")
    for n in range(16):
        b(f"ds_read_b32 v{16+n}, v1 offset:{256*n}")
    b("s_waitcnt lgkmcnt(0)")
    for n in range(1, 16):
        b(f"v_add_f32 v16, v16, v{16+n}")
    b("s_lshl_b32 s7, s6, 8")
    b(f"s_add_u32 s7, s7, {WS_CS}")
    b(f"s_cmp_eq_u32 s{S_W}, 0")
    lab = b.newlabel("L_csk")
    b(f"s_cbranch_scc0 {lab}")
    b(f"buffer_store_dword v16, v1, s[{R_WS}:{R_WS+3}], s7 offen {flags}")
    b.label(lab)

def build_k1(name):
    b = Builder()
    b("s_cmp_ge_u32 s2, 252")
    b("s_cbranch_scc1 L_k1_end")
    load_kernargs(b)
    b("v_mov_b32 v9, v0")
    wave_lane(b)
    b("s_cmp_ge_u32 s2, 224")
    b("s_cbranch_scc1 L_k1_cs")
    decode_wg(b)
    phase1_addr(b)
    b("s_waitcnt lgkmcnt(0)")
    all_srds(b)
    phase1_issue(b)
    phase1_compute(b)
    b("s_endpgm")
    b.label("L_k1_cs")
    b("s_waitcnt lgkmcnt(0)")
    all_srds(b)
    cs_job(b)
    b.label("L_k1_end")
    b("s_endpgm")
    txt = b.finalize()
    return kernel_header(name) + txt, b
```

```python
from common import *

HL = 0
RING = 57344
STAT2 = RING + 98304
LDS2 = STAT2 + 512

V_C, V_GQ = 1, 2
V_T = 3
V_ZO = 7
V_MO = 8
V_X1, V_X2 = 9, 10
V_HB = 11
V_HW = 15
V_TR1 = 19
V_MR = 24
V_HRES, V_CS = 24, 40
V_TMP = 56
V_Z = 64
V_P, V_Q, V_PS, V_QS, V_E = 128, 176, 224, 232, 240
V_ACC1 = 128
V_A1 = 192
V_B1 = 224
V_WASC, V_WDESC, V_WDESC0 = 64, 65, 66
V_W2O = 67
V_TR2 = 68
V_S = 70
V_NM = 74
V_RR = 82
V_HA = 90
V_PBO = 94
V_PK = 96
V_A2 = 192
V_ACC2 = 128

S_G0 = 72
S_SEL = 74
S_T1 = 86
S_PI = 90
S_TT = 94
S_MASK = 98
S_RW = 100
S_W1B = 101

def weave(b, mfmas, fillers, per=2, lead=0):
    k = 0
    n = len(mfmas)
    for i, m in enumerate(mfmas):
        b(m)
        want = ((i + 1) * len(fillers) + n - 1) // n if n else len(fillers)
        cnt = 0
        while k < len(fillers) and k < want and cnt < max(per, 1):
            f = fillers[k]; k += 1; cnt += 1
            f() if callable(f) else b(f)
    while k < len(fillers):
        f = fillers[k]; k += 1
        f() if callable(f) else b(f)

def p2_scalars(b):
    b(f"s_and_b32 s6, s{S_W}, 1")
    b("s_lshl_b32 s7, s6, 1")
    for lt in range(4):
        b(f"s_xor_b32 s{S_TT+lt}, s7, {lt}")
    b(f"s_sub_u32 s8, 64, s{S_IDX}")
    b(f"s_cmp_eq_u32 s{S_IDX}, 0")
    b("s_cselect_b32 s8, 32, s8")
    b(f"s_cselect_b32 s{S_G0}, 1, 0")
    for lt in range(4):
        b(f"s_cmp_lt_u32 s{S_TT+lt}, 2")
        b(f"s_cselect_b32 s9, s{S_IDX}, s8")
        b(f"s_and_b32 s12, s{S_TT+lt}, 1")
        b("s_lshl_b32 s12, s12, 10")
        b(f"s_add_u32 s{S_T1+lt}, s9, s12")
    A_n = [0x05040100, 0x07060302, 0x01000504, 0x03020706, 0x80000000, 0x80008000]
    B_n = [0x05040100, 0x07060302, 0x01000504, 0x03020706, 0x00000000, 0x00008000]
    A_0 = [0x0c0c0100, 0x0c0c0302, 0x0c0c0504, 0x0c0c0706, 0x00000000, 0x00008000]
    B_0 = [0x01000c0c, 0x03020c0c, 0x05040c0c, 0x07060c0c, 0x00000000, 0x80000000]
    for k in range(6):
        b(f"s_cmp_eq_u32 s{S_G0}, 1")
        b(f"s_mov_b32 s9, {hex(A_n[k])}")
        b(f"s_mov_b32 s12, {hex(A_0[k])}")
        b("s_cselect_b32 s9, s12, s9")
        b(f"s_mov_b32 s13, {hex(B_n[k])}")
        b(f"s_mov_b32 s12, {hex(B_0[k])}")
        b("s_cselect_b32 s13, s12, s13")
        b("s_cmp_eq_u32 s6, 0")
        b(f"s_cselect_b32 s{S_SEL+k}, s9, s13")
        b(f"s_cselect_b32 s{S_SEL+6+k}, s13, s9")
    b(f"s_lshr_b32 s7, s{S_W}, 1")
    b("s_mul_i32 s7, s7, 7")
    b("s_lshl_b32 s9, s6, 2")
    b("s_add_u32 s9, s9, s7")
    for p in range(3):
        b(f"s_add_u32 s{S_PI+p}, s9, {p}")
    b(f"s_add_u32 s{S_PI+3}, s7, 3")
    b(f"s_cmp_eq_u32 s{S_W}, 0")
    b(f"s_cselect_b32 s{S_MASK}, 0xffff, 0")
    b(f"s_mov_b32 s{S_MASK+1}, 0")
    b(f"s_mul_i32 s{S_RW}, s{S_W}, 24576")
    b(f"s_add_u32 s{S_RW}, s{S_RW}, {RING}")
    b(f"s_lshl_b32 s7, s{S_J}, 9")
    b(f"s_lshl_b32 s9, s{S_W}, 7")
    b(f"s_add_u32 s{S_W1B}, s7, s9")

def p2_addr(b):
    b(f"v_and_b32 v{V_C}, 15, v0")
    b(f"v_lshrrev_b32 v{V_GQ}, 4, v0")
    b(f"v_lshlrev_b32 v{V_T}, 3, v{V_C}")
    b(f"v_lshl_add_u32 v{V_ZO}, v{V_GQ}, 9, v{V_T}")
    b(f"v_lshlrev_b32 v{V_T}, 18, v{V_C}")
    b(f"v_lshl_add_u32 v{V_MO}, v{V_GQ}, 3, v{V_T}")
    b(f"v_mul_u32_u24 v{V_T}, 57344, v{V_C}")
    b(f"v_lshl_add_u32 v{V_X1}, v{V_GQ}, 3, v{V_T}")
    b(f"v_lshlrev_b32 v{V_T+1}, 3, v{V_GQ}")
    b(f"v_sub_u32 v{V_T+1}, 24, v{V_T+1}")
    b(f"v_add_u32 v{V_X2}, v{V_T}, v{V_T+1}")
    b(f"v_lshlrev_b32 v{V_T}, 4, v0")
    for lt in range(4):
        b(f"s_lshl_b32 s6, s{S_TT+lt}, 10")
        b(f"s_add_u32 s6, s6, {HL}")
        b(f"v_add_u32 v{V_HW+lt}, s6, v{V_T}")
        b(f"s_add_u32 s6, s{S_W}, {lt}")
        b("s_and_b32 s6, s6, 3")
        b("s_lshl_b32 s6, s6, 10")
        b(f"s_add_u32 s6, s6, {HL}")
        b(f"v_add_u32 v{V_HB+lt}, s6, v{V_T}")
    b(f"v_lshrrev_b32 v{V_T}, 2, v{V_C}")
    b(f"v_lshl_add_u32 v{V_T}, v{V_GQ}, 2, v{V_T}")
    b(f"v_bfe_u32 v{V_T+1}, v{V_T}, 1, 2")
    b(f"v_and_b32 v{V_T+2}, 3, v0")
    b(f"v_lshlrev_b32 v{V_T+2}, 3, v{V_T+2}")
    b(f"v_lshl_add_u32 v{V_T+2}, v{V_T}, 7, v{V_T+2}")
    for u in range(4):
        b(f"v_xor_b32 v{V_T+3}, {u}, v{V_T+1}")
        b(f"v_lshl_add_u32 v{V_T+3}, v{V_T+3}, 5, v{V_T+2}")
        b(f"v_add_u32 v{V_TR1+u}, s{S_RW}, v{V_T+3}")

def p2_addr_late(b):
    b(f"v_lshrrev_b32 v{V_T}, 3, v0")
    b(f"v_bfe_u32 v{V_T+1}, v{V_T}, 1, 2")
    b(f"v_lshlrev_b32 v{V_T+1}, 1, v{V_T+1}")
    b(f"v_and_b32 v{V_T+2}, 7, v0")
    b(f"v_xor_b32 v{V_T+2}, v{V_T+2}, v{V_T+1}")
    b(f"v_lshlrev_b32 v{V_T+2}, 4, v{V_T+2}")
    return

def w1_voffsets(b, asc, desc, desc0):
    b(f"v_lshrrev_b32 v{V_T}, 3, v0")
    b(f"v_bfe_u32 v{V_T+1}, v{V_T}, 1, 2")
    b(f"v_lshlrev_b32 v{V_T+1}, 1, v{V_T+1}")
    b(f"v_and_b32 v{V_T+2}, 7, v0")
    b(f"v_xor_b32 v{V_T+2}, v{V_T+2}, v{V_T+1}")
    b(f"v_lshlrev_b32 v{V_T+2}, 4, v{V_T+2}")
    b(f"v_mul_u32_u24 v{V_T+1}, 3584, v{V_T}")
    b(f"v_add_u32 v{asc}, v{V_T+1}, v{V_T+2}")
    b(f"v_sub_u32 v{V_T+1}, 7, v{V_T}")
    b(f"v_mul_u32_u24 v{V_T+1}, 3584, v{V_T+1}")
    b(f"v_add_u32 v{desc}, v{V_T+1}, v{V_T+2}")
    b(f"v_sub_u32 v{V_T+1}, 448, v{V_T}")
    b(f"v_mov_b32 v{V_T+3}, 224")
    b(f"v_cmp_eq_u32 vcc, 0, v{V_T}")
    b(f"v_cndmask_b32 v{V_T+1}, v{V_T+1}, v{V_T+3}, vcc")
    b(f"v_mul_u32_u24 v{V_T+1}, 3584, v{V_T+1}")
    b(f"v_add_u32 v{desc0}, v{V_T+1}, v{V_T+2}")

def w1_dma(b, k, asc, desc, desc0, flags=""):
    slot = k % 6
    out = []
    for n in range(4):
        def f(n=n):
            if n < 2:
                d0 = 16*k + 8*n; vo = asc
            elif k == 0 and n == 2:
                d0 = 0; vo = desc0
            else:
                d0 = 441 - 16*k - 8*(n-2); vo = desc
            b(f"s_add_u32 s6, s{S_W1B}, {d0*3584}")
            b(f"s_add_u32 m0, s{S_RW}, {slot*4096 + n*1024}")
            b(f"buffer_load_dwordx4 v{vo}, s[{R_W1}:{R_W1+3}], s6 offen {flags} lds", tag=f"w1_{k}")
        out.append(f)
    return out

def z_loads(b, flags=""):
    for p in range(4):
        b(f"s_lshl_b32 s6, s{S_PI+p}, 12")
        b(f"s_mul_i32 s7, s{S_IDX}, {Z_G}")
        b("s_add_u32 s6, s6, s7")
        if WS_Z: b(f"s_add_u32 s6, s6, {WS_Z}")
        for ks in range(2):
            for j in range(4):
                reg = V_Z + (p*2 + ks)*8 + 2*j
                b(f"buffer_load_dwordx2 {v(reg,2)}, v{V_ZO}, s[{R_WS}:{R_WS+3}], s6 offen offset:{ks*2048 + j*128} {flags}", tag=f"z{p}_{ks}")

def m_loads(b):
    for lt in range(4):
        b(f"s_lshl_b32 s6, s{S_T1+lt}, 12") if False else None
        b(f"s_lshl_b32 s6, s{S_T1+lt}, 12")
        for ks in range(2):
            reg = V_MR + (lt*2 + ks)*4
            b(f"buffer_load_dwordx2 {v(reg,2)}, v{V_MO}, s[{R_SRE}:{R_SRE+3}], s6 offen offset:{32*ks}", tag=f"m{lt}")
            b(f"buffer_load_dwordx2 {v(reg+2,2)}, v{V_MO}, s[{R_SIM}:{R_SIM+3}], s6 offen offset:{32*ks}", tag=f"m{lt}")

def units():
    u = []
    for lt in range(4):
        for p in range(4):
            if p == 3 and lt >= 2: continue
            u.append((p, lt))
    return u
def preg(p, lt): return V_P + (p*4 + lt)*4 if p < 3 else V_PS + lt*4
def qreg(p, lt): return V_Q + (p*4 + lt)*4 if p < 3 else V_QS + lt*4

def x_loads(b):
    for (p, lt) in units():
        b(f"s_mul_i32 s6, s{S_T1+lt}, 896")
        b(f"s_lshl_b32 s7, s{S_PI+p}, 5")
        b("s_add_u32 s8, s6, s7")
        b("s_sub_u32 s9, s6, s7")
        b("s_add_u32 s9, s9, 864")
        b(f"buffer_load_dwordx2 {v(preg(p,lt),2)}, v{V_X1}, s[{R_X}:{R_X+3}], s8 offen", tag=f"xr{p}_{lt}")
        b(f"buffer_load_dwordx3 {v(qreg(p,lt),3)}, v{V_X2}, s[{R_X}:{R_X+3}], s9 offen", tag=f"xr{p}_{lt}")
    for lt in range(4):
        b(f"s_mul_i32 s6, s{S_T1+lt}, 896")
        b("s_add_u32 s6, s6, 448")
        b(f"buffer_load_dword v{V_E + 4*lt}, v{V_X1}, s[{R_X}:{R_X+3}], s6 offen", tag="xe")

def m_build(b):
    for lt in range(4):
        b.wait_vm(f"m{lt}")
        sb = S_SEL + (6 if lt >= 2 else 0)
        for ks in range(2):
            raw = V_MR + (lt*2 + ks)*4
            for pq in range(2):
                for j in range(4):
                    t = V_TMP + (j & 1) + 2*pq
                    b(f"v_perm_b32 v{t}, v{raw + 2 + (j>>1)}, v{raw + (j>>1)}, s{sb + 2*pq + (j&1)}")
                    b(f"v_xor_b32 v{t}, s{sb + 4 + pq}, v{t}")
                    b(f"v_accvgpr_write_b32 a{((lt*2 + ks)*2 + pq)*4 + j}, v{t}")
def mreg(lt, ks, pq): return ((lt*2 + ks)*2 + pq)*4

def x_build(b):
    T = V_TMP
    for (p, lt) in units():
        b.wait_vm(f"xr{p}_{lt}")
        P, Q = preg(p, lt), qreg(p, lt)
        b(f"v_lshlrev_b32 v{T+0}, 16, v{P}")
        b(f"v_and_b32 v{T+1}, 0xffff0000, v{P}")
        b(f"v_lshlrev_b32 v{T+2}, 16, v{P+1}")
        b(f"v_and_b32 v{T+3}, 0xffff0000, v{P+1}")
        b(f"v_lshlrev_b32 v{T+4}, 16, v{Q+2}")
        b(f"v_and_b32 v{T+5}, 0xffff0000, v{Q+1}")
        b(f"v_lshlrev_b32 v{T+6}, 16, v{Q+1}")
        b(f"v_and_b32 v{T+7}, 0xffff0000, v{Q}")
        if p == 0:
            b(f"v_cndmask_b32 v{T+4}, v{T+4}, v{T+0}, s[{S_MASK}:{S_MASK+1}]")
        for r in range(4):
            b(f"v_add_f32 v{P+r}, v{T+r}, v{T+4+r}")
            b(f"v_sub_f32 v{Q+r}, v{T+r}, v{T+4+r}")
    b.wait_vm("xe")
    for lt in range(4):
        E = V_E + 4*lt
        b(f"v_lshlrev_b32 v{E}, 16, v{E}")
        b(f"v_add_f32 v{E}, v{E}, v{E}")
        for r in range(1, 4): b(f"v_mov_b32 v{E+r}, 0")

def step_b(b):
    def swaps(p, ks):
        z = V_Z + (p*2 + ks)*8
        return [f"v_swap_b32 v{z+1}, v{z+2}", f"v_swap_b32 v{z+2}, v{z+4}", f"v_swap_b32 v{z+3}, v{z+6}", f"v_swap_b32 v{z+5}, v{z+6}"]
    for p in range(4):
        for ks in range(2):
            b.wait_vm(f"z{p}_{ks}")
            for sw in swaps(p, ks): b(sw)
    def epi(p, lt):
        P, Q = preg(p, lt), qreg(p, lt)
        T = V_TMP
        fl = []
        for r in range(4):
            fl.append(f"v_add_f32 v{T+r}, v{P+r}, v{Q+r}")
            fl.append(f"v_sub_f32 v{T+4+r}, v{P+r}, v{Q+r}")
        if p == 0:
            fl.append(f"v_cndmask_b32 v{T+0}, v{T+0}, v{P}, s[{S_MASK}:{S_MASK+1}]")
            fl.append(f"v_cndmask_b32 v{T+4}, v{T+4}, v{V_E+4*lt}, s[{S_MASK}:{S_MASK+1}]")
        fl.append(f"v_cvt_pk_bf16_f32 v{P+0}, v{T+0}, v{T+1}")
        fl.append(f"v_cvt_pk_bf16_f32 v{P+1}, v{T+2}, v{T+3}")
        fl.append(f"v_cvt_pk_bf16_f32 v{P+2}, v{T+4}, v{T+5}")
        fl.append(f"v_cvt_pk_bf16_f32 v{P+3}, v{T+6}, v{T+7}")
        def wr():
            b(f"s_lshl_b32 s6, s{S_PI+p}, 12")
            b(f"v_add_u32 v{V_T}, s6, v{V_HW+lt}")
            b(f"ds_write_b128 v{V_T}, {v(P,4)}", tag="hw")
        fl.append(wr)
        return fl
    def mf(p, lt):
        P, Q = preg(p, lt), qreg(p, lt)
        out = []
        for ks in range(2):
            z = V_Z + (p*2 + ks)*8
            out.append(f"v_mfma_f32_16x16x32_bf16 {v(P,4)}, {v(z,4)}, {a(mreg(lt,ks,0),4)}, {v(P,4)}")
            out.append(f"v_mfma_f32_16x16x32_bf16 {v(Q,4)}, {v(z+4,4)}, {a(mreg(lt,ks,1),4)}, {v(Q,4)}")
        return out
    lab = b.newlabel("L_noE")
    b(f"s_cmp_eq_u32 s{S_W}, 0")
    b(f"s_cbranch_scc0 {lab}")
    for ks in range(2):
        for lt in range(4):
            z = V_Z + (0*2 + ks)*8
            b(f"v_mfma_f32_16x16x32_bf16 {v(V_E+4*lt,4)}, {v(z+4,4)}, {a(mreg(lt,ks,0),4)}, {v(V_E+4*lt,4)}")
    b.label(lab)
    us = units()
    prev = None
    for (p, lt) in us:
        fill = epi(*prev) if prev else []
        weave(b, mf(p, lt), fill, per=8)
        prev = (p, lt)
    b("s_nop 7")
    for f in epi(*prev):
        f() if callable(f) else b(f)

def hres_gather(b):
    T = V_T
    for r in range(4):
        A = V_HA + r
        b(f"s_lshl_b32 s6, s{S_J}, 6")
        b(f"s_lshl_b32 s7, s{S_W}, 4")
        b("s_add_u32 s6, s6, s7")
        b(f"s_add_u32 s6, s6, {r}")
        b(f"v_lshl_add_u32 v{T}, v{V_GQ}, 2, s6")
        b(f"v_lshrrev_b32 v{T+1}, 4, v{T}")
        b(f"v_lshlrev_b32 v{T+1}, 12, v{T+1}")
        b(f"v_lshl_add_u32 v{T+1}, v0, 4, v{T+1}")
        b(f"v_add_u32 v{T+1}, {2*r}, v{T+1}")
        b(f"v_sub_u32 v{T+2}, 448, v{T}")
        b(f"v_mov_b32 v{T+3}, 0")
        b(f"v_cmp_eq_u32 vcc, 224, v{T}")
        b(f"v_cndmask_b32 v{T+2}, v{T+2}, v{T+3}, vcc")
        b(f"v_lshrrev_b32 v{T+3}, 4, v{T+2}")
        b(f"v_lshlrev_b32 v{A}, 12, v{T+3}")
        b(f"v_bfe_u32 v{T+3}, v{T+2}, 2, 2")
        b(f"v_lshl_add_u32 v{T+3}, v{T+3}, 4, v{V_C}")
        b(f"v_lshl_add_u32 v{A}, v{T+3}, 4, v{A}")
        b(f"v_and_b32 v{T+3}, 3, v{T+2}")
        b(f"v_lshl_add_u32 v{A}, v{T+3}, 1, v{A}")
        b(f"v_add_u32 v{A}, 8, v{A}")
        b(f"v_cmp_gt_u32 vcc, 224, v{T}")
        b(f"v_cndmask_b32 v{A}, v{A}, v{T+1}, vcc")
    for k in range(16): b(f"v_mov_b32 v{V_HRES+k}, 0")
    for tt in range(4):
        for r in range(4):
            b(f"ds_read_u16_d16_hi v{V_HRES + tt*4 + r}, v{V_HA + r} offset:{HL + tt*1024}", tag="hres")

def cs_loads(b, flags=""):
    b(f"s_lshl_b32 s6, s{S_J}, 10")
    b(f"s_lshl_b32 s7, s{S_W}, 8")
    b("s_add_u32 s6, s6, s7")
    b(f"s_add_u32 s6, s6, {WS_CS}")
    b(f"v_lshlrev_b32 v{V_T}, 4, v{V_GQ}")
    for ft in range(4):
        b(f"buffer_load_dwordx4 {v(V_CS+4*ft,4)}, v{V_T}, s[{R_WS}:{R_WS+3}], s6 offen offset:{64*ft} {flags}", tag="cs")

def w2_setup(b):
    b(f"v_lshrrev_b32 v{V_T}, 3, v0")
    b(f"v_bfe_u32 v{V_T+1}, v{V_T}, 1, 2")
    b(f"v_lshlrev_b32 v{V_T+1}, 1, v{V_T+1}")
    b(f"v_and_b32 v{V_T+2}, 7, v0")
    b(f"v_xor_b32 v{V_T+2}, v{V_T+2}, v{V_T+1}")
    b(f"v_lshlrev_b32 v{V_T+2}, 4, v{V_T+2}")
    b(f"v_mul_u32_u24 v{V_T+1}, 896, v{V_T}")
    b(f"v_add_u32 v{V_W2O}, v{V_T+1}, v{V_T+2}")
    b(f"v_lshrrev_b32 v{V_T}, 2, v{V_C}")
    b(f"v_lshl_add_u32 v{V_T}, v{V_GQ}, 2, v{V_T}")
    b(f"v_bfe_u32 v{V_T+1}, v{V_T}, 1, 2")
    b(f"v_xor_b32 v{V_T+1}, s{S_W}, v{V_T+1}")
    b(f"v_lshlrev_b32 v{V_T+1}, 5, v{V_T+1}")
    b(f"v_lshl_add_u32 v{V_T+1}, v{V_T}, 7, v{V_T+1}")
    b(f"v_and_b32 v{V_T+2}, 3, v0")
    b(f"v_lshl_add_u32 v{V_T+1}, v{V_T+2}, 3, v{V_T+1}")
    b(f"v_add_u32 v{V_TR2}, {RING}, v{V_T+1}")
    b(f"v_add_u32 v{V_TR2+1}, {RING+49152}, v{V_T+1}")
    b(f"v_lshlrev_b32 v{V_PBO}, 4, v0")

S_TAU = 74
S_W2B = 81
def w2_scalars(b):
    for p in range(7):
        b(f"s_add_u32 s6, s{S_J}, {p+1}")
        b("s_cmp_ge_u32 s6, 7")
        b("s_cselect_b32 s7, 7, 0")
        b(f"s_sub_u32 s{S_TAU+p}, s6, s7")
    b(f"s_lshl_b32 s6, s{S_J}, 8")
    b(f"s_lshl_b32 s7, s{S_W}, 6")
    b("s_add_u32 s6, s6, s7")
    b(f"s_mul_i32 s{S_W2B}, s6, 896")

def w2_dma(b, p, flags=""):
    sg = (p + 1) % 3
    out = []
    for n in range(8):
        def f(n=n):
            b(f"s_lshl_b32 s6, s{S_TAU+p}, 7")
            b(f"s_add_u32 s6, s6, s{S_W2B}")
            if n: b(f"s_add_u32 s6, s6, {n*7168}")
            b(f"s_add_u32 m0, s{S_RW}, {sg*8192 + n*1024}")
            b(f"buffer_load_dwordx4 v{V_W2O}, s[{R_W2}:{R_W2+3}], s6 offen {flags} lds", tag=f"w2_{p}")
        out.append(f)
    return out

def gemm1(b, asc, desc, desc0):
    def reads(k):
        buf = k & 1; slot = k % 6
        out = []
        for u in range(4):
            for hh in range(2):
                out.append(lambda u=u, hh=hh: b(f"ds_read_b64_tr_b16 {v(V_A1 + 16*buf + 4*u + 2*hh, 2)}, v{V_TR1+u} offset:{slot*4096 + hh*2048}", tag=f"r{k}"))
        for lt in range(4):
            out.append(lambda lt=lt: b(f"ds_read_b128 {v(V_B1 + 16*buf + 4*lt, 4)}, v{V_HB+lt} offset:{k*4096}", tag=f"r{k}"))
        return out
    for r in range(64): b(f"v_mov_b32 v{V_ACC1+r}, 0")
    for r in range(4): b(f"v_mov_b32 v{V_S+r}, 0")
    b(f"v_mov_b32 v{V_T+3}, 0x3f803f80")
    ONE = V_T + 3
    b.wait_vm("w1_0")
    for f in reads(0): f()
    for k in range(14):
        buf = k & 1
        b.wait_lg(f"r{k}")
        fill = []
        if k + 6 < 14: fill += w1_dma(b, k + 6, asc, desc, desc0)
        if k == 9: fill += w2_dma(b, 0)
        if k == 11: fill += w2_dma(b, 1)
        if k + 1 < 14:
            fill.append(lambda k=k: b.wait_vm(f"w1_{k+1}"))
            fill += reads(k + 1)
        bb = V_B1 + 16*buf
        for r in range(4):
            fill.append(f"v_dot2_f32_bf16 v{V_S + (r&1)}, v{bb + r}, v{ONE}, v{V_S + (r&1)}")
            fill.append(f"v_dot2_f32_bf16 v{V_S + 2 + (r&1)}, v{bb + r}, v{bb + r}, v{V_S + 2 + (r&1)}")
        mf = []
        for lt in range(4):
            for u in range(4):
                d = V_ACC1 + (u*4 + lt)*4
                mf.append(f"v_mfma_f32_16x16x32_bf16 {v(d,4)}, {v(V_A1 + 16*buf + 4*u, 4)}, {v(bb + 4*lt, 4)}, {v(d,4)}")
        weave(b, mf, fill, per=2)

def stats2(b):
    S0, S1, Q0, Q1 = V_S, V_S+1, V_S+2, V_S+3
    b(f"v_add_f32 v{S0}, v{S0}, v{S1}")
    b(f"v_add_f32 v{Q0}, v{Q0}, v{Q1}")
    b(f"v_permlane32_swap_b32 v{S0}, v{Q0}")
    b(f"v_add_f32 v{S0}, v{S0}, v{Q0}")
    b(f"v_mov_b32 v{S1}, v{S0}")
    b(f"v_permlane16_swap_b32 v{S0}, v{S1}")
    b(f"v_add_f32 v{S0}, v{S0}, v{S1}")
    b(f"v_mov_b32 v{Q0}, v{S0}")
    b(f"v_permlane32_swap_b32 v{S0}, v{Q0}")
    b(f"v_mul_f32 v{S0}, 0x3b124925, v{S0}")
    b(f"v_mul_f32 v{Q0}, 0x3b124925, v{Q0}")
    b(f"v_fma_f32 v{Q0}, -v{S0}, v{S0}, v{Q0}")
    b(f"v_max_f32 v{Q0}, 0, v{Q0}")
    b(f"v_mul_f32 v{Q0}, 0x3e800000, v{Q0}")
    b(f"v_add_f32 v{Q0}, 0x3727c5ac, v{Q0}")
    b(f"v_rsq_f32 v{Q0}, v{Q0}")
    b(f"v_sub_f32 v{S0}, 0, v{S0}")
    b(f"v_mul_f32 v{S1}, 0.5, v{Q0}")
    b(f"s_lshl_b32 s6, s{S_W}, 7")
    b(f"s_add_u32 s6, s6, {STAT2}")
    b(f"v_lshl_add_u32 v{V_T}, v{V_C}, 3, s6")
    assert V_S % 2 == 0
    b(f"ds_write_b64 v{V_T}, {v(S0,2)}")
    b("s_waitcnt lgkmcnt(0)")
    b("s_barrier")
    b(f"v_lshlrev_b32 v{V_T}, 3, v{V_C}")
    b(f"v_add_u32 v{V_T}, {STAT2}, v{V_T}")
    for tt in range(4):
        b(f"ds_read_b64 {v(V_RR+2*tt,2)}, v{V_T} offset:{128*tt}", tag="st")
    for lt in range(4):
        b(f"s_add_u32 s6, s{S_W}, {lt}")
        b("s_and_b32 s6, s6, 3")
        b("s_lshl_b32 s6, s6, 7")
        b(f"v_add_u32 v{V_T+1}, s6, v{V_T}")
        b(f"ds_read_b64 {v(V_NM+2*lt,2)}, v{V_T+1}", tag="st")

def gemm1_epi(b):
    b.wait_lg("st")
    b.wait_vm("cs")
    for lt in range(4):
        for fp in range(2):
            for hh in range(2):
                u = 2*fp + hh
                d = V_ACC1 + (u*4 + lt)*4
                for r in range(4):
                    b(f"v_fma_f32 v{d+r}, v{V_NM+2*lt}, v{V_CS + 4*u + r}, v{d+r}")
                pk = V_PK + 4*((lt*2 + fp) & 3) + 2*hh
                b(f"v_cvt_pk_bf16_f32 v{pk}, v{d}, v{d+1}")
                b(f"v_cvt_pk_bf16_f32 v{pk+1}, v{d+2}, v{d+3}")
                b(f"v_pk_max_i16 v{pk}, v{pk}, 0")
                b(f"v_pk_max_i16 v{pk+1}, v{pk+1}, 0")
            pk = V_PK + 4*((lt*2 + fp) & 3)
            b(f"s_lshl_b32 s6, s{S_W}, 13")
            b(f"s_add_u32 s6, s6, {fp*4096}")
            b(f"v_add_u32 v{V_T}, s6, v{V_HB+lt}")
            b(f"ds_write_b128 v{V_T}, {v(pk,4)}")
    b("s_waitcnt lgkmcnt(0)")
    b("s_barrier")

def gemm2(b, mode):
    b(f"v_lshlrev_b32 v{V_T}, 4, v0")
    for k2 in range(8):
        for tt in range(4):
            b(f"ds_read_b128 {a((k2*4 + tt)*4, 4)}, v{V_T} offset:{HL + k2*4096 + tt*1024}", tag=f"hb{k2}")
    def areads(p):
        sg = (p + 1) % 3
        out = []
        for k2 in range(8):
            part = k2 >> 1
            base = V_TR2 + (part >> 1)
            off = (part & 1)*24576 + sg*8192 + (k2 & 1)*4096
            for hh in range(2):
                out.append((k2, lambda k2=k2, hh=hh, base=base, off=off: b(f"ds_read_b64_tr_b16 {v(V_A2 + 4*(k2 & 3) + 2*hh, 2)}, v{base} offset:{off + hh*2048}", tag=f"a{p}_{k2}")))
        return out
    def epi(p):
        acc = V_ACC2 + 16*(p & 1)
        fl = []
        if p < 6:
            pk = V_PK
            for tt in range(4):
                for r in range(4):
                    fl.append(f"v_mul_f32 v{acc+4*tt+r}, v{V_RR+2*tt+1}, v{acc+4*tt+r}")
                fl.append(f"v_cvt_pk_bf16_f32 v{pk+2*tt}, v{acc+4*tt}, v{acc+4*tt+1}")
                fl.append(f"v_cvt_pk_bf16_f32 v{pk+2*tt+1}, v{acc+4*tt+2}, v{acc+4*tt+3}")
            def st(half):
                b(f"s_mul_i32 s6, s{S_IDX}, {PB_G}")
                b(f"s_mul_i32 s7, s{S_J}, {7*8192}")
                b("s_add_u32 s6, s6, s7")
                b(f"s_lshl_b32 s7, s{S_TAU+p}, 13")
                b("s_add_u32 s6, s6, s7")
                b(f"s_lshl_b32 s7, s{S_W}, 11")
                b("s_add_u32 s6, s6, s7")
                b(f"s_add_u32 s6, s6, {WS_PB}")
                b(f"buffer_store_dwordx4 {v(pk+4*half,4)}, v{V_PBO}, s[{R_WS}:{R_WS+3}], s6 offen offset:{1024*half}", tag="pst")
            fl.append(lambda: st(0)); fl.append(lambda: st(1))
        else:
            for tt in range(4):
                for r in range(4):
                    fl.append(f"v_mul_f32 v{acc+4*tt+r}, v{V_RR+2*tt+1}, v{acc+4*tt+r}")
                    fl.append(f"v_fma_f32 v{acc+4*tt+r}, 0.5, v{V_HRES+4*tt+r}, v{acc+4*tt+r}")
            def st():
                b(f"s_mul_i32 s6, s{S_IDX}, {7*16384}")
                b(f"s_lshl_b32 s7, s{S_J}, 14")
                b("s_add_u32 s6, s6, s7")
                b(f"s_lshl_b32 s7, s{S_W}, 12")
                b("s_add_u32 s6, s6, s7")
                b(f"s_add_u32 s6, s6, {WS_OWN}")
                for tt in range(4):
                    b(f"buffer_store_dwordx4 {v(acc+4*tt,4)}, v{V_PBO}, s[{R_WS}:{R_WS+3}], s6 offen offset:{1024*tt}")
            fl.append(st)
        return fl
    prev_epi = []
    for p in range(7):
        acc = V_ACC2 + 16*(p & 1)
        b.wait_vm(f"w2_{p}")
        b("s_waitcnt lgkmcnt(0)") if p > 0 else None
        b("s_barrier")
        ar = areads(p)
        for (k2, f) in ar[:4]: f()
        rest = ar[4:]
        dma = w2_dma(b, p + 2) if p + 2 < 7 else []
        extra = list(prev_epi) + dma
        ei = 0
        for k2 in range(8):
            if p == 0: b.wait_lg([f"hb{k2}", f"a{p}_{k2}"])
            else: b.wait_lg(f"a{p}_{k2}")
            mf = []
            for tt in range(4):
                c = v(acc+4*tt, 4) if k2 else "0"
                mf.append(f"v_mfma_f32_16x16x32_bf16 {v(acc+4*tt,4)}, {v(V_A2 + 4*(k2 & 3), 4)}, {a((k2*4+tt)*4, 4)}, {c}")
            fill = [f for (kk, f) in rest if kk == k2 + 2]
            n_extra = (len(extra) * (k2 + 1) + 7) // 8 - ei
            fill += extra[ei:ei + n_extra]; ei += n_extra
            weave(b, mf, fill, per=8)
        prev_epi = epi(p)
    b("s_nop 7")
    for f in prev_epi:
        f() if callable(f) else b(f)

def build_k2(name):
    b = Builder()
    b("s_cmp_ge_u32 s2, 224")
    b("s_cbranch_scc1 L_k2_end")
    load_kernargs(b)
    wave_lane(b)
    decode_wg(b)
    p2_scalars(b)
    p2_addr(b)
    b("s_waitcnt lgkmcnt(0)")
    all_srds(b)
    z_loads(b)
    m_loads(b)
    x_loads(b)
    ASC, DESC, DESC0 = 7, 8, 9
    w1_voffsets(b, ASC, DESC, DESC0)
    for k in range(6):
        for f in w1_dma(b, k, ASC, DESC, DESC0): f()
    m_build(b)
    cs_loads(b)
    x_build(b)
    step_b(b)
    b("s_waitcnt lgkmcnt(0)")
    b("s_barrier")
    w2_setup(b)
    w2_scalars(b)
    hres_gather(b)
    gemm1(b, ASC, DESC, DESC0)
    stats2(b)
    gemm1_epi(b)
    gemm2(b, "multi")
    b.label("L_k2_end")
    b("s_endpgm")
    txt = b.finalize()
    return kernel_header(name) + txt, b
```

```python
from common import *
def build_k3(name):
    b = Builder()
    b("s_cmp_ge_u32 s2, 224")
    b("s_cbranch_scc1 L_k3_end")
    load_kernargs(b)
    wave_lane(b)
    decode_wg(b)
    b("v_lshlrev_b32 v1, 4, v0")
    b("v_and_b32 v2, 15, v0")
    b("v_lshrrev_b32 v3, 4, v0")
    b("s_waitcnt lgkmcnt(0)")
    all_srds(b)
    b(f"s_mul_i32 s6, s{S_IDX}, {7*16384}")
    b(f"s_lshl_b32 s7, s{S_J}, 14")
    b("s_add_u32 s6, s6, s7")
    b(f"s_lshl_b32 s7, s{S_W}, 12")
    b("s_add_u32 s6, s6, s7")
    b(f"s_add_u32 s6, s6, {WS_OWN}")
    for tt in range(4):
        b(f"buffer_load_dwordx4 {v(16+4*tt,4)}, v1, s[{R_WS}:{R_WS+3}], s6 offen offset:{1024*tt}", tag="own")
    for q in range(6):
        b(f"s_add_u32 s8, s{S_J}, {q+1}")
        b("s_cmp_ge_u32 s8, 7")
        b("s_cselect_b32 s9, 7, 0")
        b("s_sub_u32 s8, s8, s9")
        b(f"s_mul_i32 s6, s{S_IDX}, {PB_G}")
        b(f"s_mul_i32 s7, s8, {7*8192}")
        b("s_add_u32 s6, s6, s7")
        b(f"s_lshl_b32 s7, s{S_J}, 13")
        b("s_add_u32 s6, s6, s7")
        b(f"s_lshl_b32 s7, s{S_W}, 11")
        b("s_add_u32 s6, s6, s7")
        b(f"s_add_u32 s6, s6, {WS_PB}")
        for h in range(2):
            b(f"buffer_load_dwordx4 {v(32+8*q+4*h,4)}, v1, s[{R_WS}:{R_WS+3}], s6 offen offset:{1024*h}", tag=f"p{q}")
    b.wait_vm("own")
    for q in range(6):
        b.wait_vm(f"p{q}")
        for tt in range(4):
            for m in range(2):
                src = 32 + 8*q + 2*tt + m
                b(f"v_lshlrev_b32 v4, 16, v{src}")
                b(f"v_and_b32 v5, 0xffff0000, v{src}")
                b(f"v_add_f32 v{16+4*tt+2*m}, v{16+4*tt+2*m}, v4")
                b(f"v_add_f32 v{16+4*tt+2*m+1}, v{16+4*tt+2*m+1}, v5")
    b("v_mul_u32_u24 v4, 57344, v2")
    b("v_lshl_add_u32 v4, v3, 3, v4")
    b(f"s_sub_u32 s8, 64, s{S_IDX}")
    b(f"s_cmp_eq_u32 s{S_IDX}, 0")
    b("s_cselect_b32 s8, 32, s8")
    b(f"s_lshl_b32 s9, s{S_J}, 7")
    b(f"s_lshl_b32 s7, s{S_W}, 5")
    b("s_add_u32 s9, s9, s7")
    for tt in range(4):
        b(f"v_cvt_pk_bf16_f32 v{8+2*tt}, v{16+4*tt}, v{16+4*tt+1}")
        b(f"v_cvt_pk_bf16_f32 v{9+2*tt}, v{16+4*tt+2}, v{16+4*tt+3}")
        t1 = f"s{S_IDX}" if tt < 2 else "s8"
        b(f"s_add_u32 s6, {t1}, {1024*(tt&1)}")
        b("s_mul_i32 s6, s6, 896")
        b("s_add_u32 s6, s6, s9")
        b(f"buffer_store_dwordx2 {v(8+2*tt,2)}, v4, s[{R_OUT}:{R_OUT+3}], s6 offen")
    b.label("L_k3_end")
    b("s_endpgm")
    txt = b.finalize()
    return kernel_header(name) + txt, b
```

```python
import sys
from common import *
import k1

HEADER = """; FNet block (preLN + 2-D DFT mixing + ReLU FFN) for gfx950, generated by gen/build.py
"""
def assemble(parts):
    s = HEADER
    for name, grid, block, lds, txt, desc in parts:
        s += f"; @launch kernel={name} grid=({grid},1,1) block=({block},1,1) lds={lds}\n"
    s += '.amdgcn_target "amdgcn-amd-amdhsa--gfx950"\n.text\n'
    for p in parts: s += p[4] + "\n"
    s += '.section .rodata,"a"\n'
    for p in parts: s += p[5]
    return s

def build(which):
    parts = []
    if "k1" in which:
        txt, b = k1.build_k1("fnet_p1_kernel")
        parts.append(("fnet_p1_kernel", 252, 256, 58368, txt, kernel_desc("fnet_p1_kernel", 256, 256)))
    if "k2" in which:
        import k2
        txt, b = k2.build_k2("fnet_p2_kernel")
        parts.append(("fnet_p2_kernel", 224, 256, 163840, txt, kernel_desc("fnet_p2_kernel", 512, 256)))
    if "k3" in which:
        import k3
        txt, b = k3.build_k3("fnet_p3_kernel")
        parts.append(("fnet_p3_kernel", 224, 256, 0, txt, kernel_desc("fnet_p3_kernel", 128, 128)))
    return assemble(parts)

if __name__ == "__main__":
    out = sys.argv[1]
    open(out, "w").write(build(sys.argv[2].split(",")))
```

```python
import re

def v(i, n=1): return f"v{i}" if n == 1 else f"v[{i}:{i+n-1}]"
def a(i, n=1): return f"a{i}" if n == 1 else f"a[{i}:{i+n-1}]"
def s(i, n=1): return f"s{i}" if n == 1 else f"s[{i}:{i+n-1}]"

_REG = re.compile(r"(?<![\w.])([vas])(?:(\d+)|\[(\d+):(\d+)\])(?![\w])")
def regs_of(tok):
    out = set()
    for m in _REG.finditer(tok):
        k = m.group(1)
        if m.group(2) is not None: out.add((k, int(m.group(2))))
        else:
            for i in range(int(m.group(3)), int(m.group(4)) + 1): out.add((k, i))
    if re.search(r"(?<![\w])vcc(?![\w])", tok): out.add(("s", "vcc"))
    if re.search(r"(?<![\w])exec(_lo|_hi)?(?![\w])", tok): out.add(("s", "exec"))
    if re.search(r"(?<![\w])m0(?![\w])", tok): out.add(("s", "m0"))
    return out

TRANS = ("v_exp_", "v_log_", "v_rcp_", "v_rsq_", "v_sqrt_", "v_sin_", "v_cos_")
class Ins:
    __slots__ = ("text", "op", "kind", "w", "r", "states", "srcc", "comment")
    def __init__(self, text):
        self.text = text
        body = text.split(";")[0].strip()
        parts = body.split(None, 1)
        self.op = op = parts[0]
        rest = parts[1] if len(parts) > 1 else ""
        ops, depth, cur = [], 0, ""
        for ch in rest:
            if ch == "[": depth += 1
            if ch == "]": depth -= 1
            if ch == "," and depth == 0: ops.append(cur.strip()); cur = ""
            else: cur += ch
        if cur.strip(): ops.append(cur.strip())
        self.states = 1
        self.srcc = set()
        R = lambda xs: set().union(*[regs_of(x) for x in xs]) if xs else set()
        if op == "s_nop":
            self.kind = "nop"; self.w = set(); self.r = set(); self.states = int(ops[0], 0) + 1
        elif op.startswith("v_mfma"):
            self.kind = "mfma"; self.w = R(ops[:1]); self.r = R(ops[1:4]); self.srcc = R(ops[3:4])
        elif op.startswith("v_cmp"):
            self.kind = "valu"; self.w = R(ops[:1]); self.r = R(ops[1:])
        elif op.startswith("v_swap") or op.startswith("v_permlane"):
            self.kind = "permlane" if op.startswith("v_permlane") else "valu"
            self.w = R(ops[:2]); self.r = R(ops[:2])
        elif op.startswith("v_writelane"):
            self.kind = "valu"; self.w = R(ops[:1]); self.r = R(ops)
        elif op.startswith("v_readfirstlane") or op.startswith("v_readlane"):
            self.kind = "readlane"; self.w = R(ops[:1]); self.r = R(ops[1:])
        elif op.startswith("v_"):
            self.kind = "trans" if op.startswith(TRANS) else "valu"
            self.w = R(ops[:1]); self.r = R(ops[1:])
            if op.startswith(("v_fmac", "v_dot2c", "v_pk_fmac", "v_mac")) or "d16" in op: self.r |= self.w
            if op.startswith("v_cndmask") and len(ops) == 3: self.r.add(("s", "vcc"))
            if op.startswith(("v_add_co", "v_sub_co", "v_addc_co", "v_subb_co")):
                self.w = R(ops[:2]); self.r = R(ops[2:])
            if "_dpp" in op or " row_" in text or "quad_perm" in text: self.kind = "dpp"
        elif op.startswith("ds_read") or op.startswith("ds_bpermute") or op.startswith("ds_swizzle"):
            self.kind = "ds_read"; self.w = R(ops[:1]); self.r = R(ops[1:])
            if "d16" in op: self.r |= self.w
        elif op.startswith("ds_write"):
            self.kind = "ds_write"; self.w = set(); self.r = R(ops)
        elif op.startswith(("buffer_load", "global_load")):
            if re.search(r"\blds\b", rest):
                self.kind = "dma"; self.w = set(); self.r = R(ops) | {("s", "m0")}
            else:
                self.kind = "vload"; self.w = R(ops[:1]); self.r = R(ops[1:])
        elif op.startswith(("buffer_store", "global_store")):
            self.kind = "vstore"; self.w = set(); self.r = R(ops)
        elif op.startswith(("buffer_atomic", "global_atomic")):
            self.kind = "vstore"; self.w = R(ops[:1]) if "sc0" in rest else set(); self.r = R(ops)
        elif op.startswith("s_"):
            self.kind = "salu"
            if op.startswith(("s_cmp", "s_cbranch", "s_branch", "s_waitcnt", "s_barrier", "s_endpgm", "s_setprio", "s_sleep", "s_bitcmp")):
                self.w = set(); self.r = R(ops)
            else:
                self.w = R(ops[:1]); self.r = R(ops[1:])
                if "saveexec" in op: self.w.add(("s", "exec")); self.r.add(("s", "exec"))
        else:
            self.kind = "other"; self.w = set(); self.r = R(ops)

VALU_KINDS = ("valu", "trans", "dpp", "permlane", "readlane")
def isv(r): return r[0] in ("v", "a")
def iss(r): return r[0] == "s"

def need(p, c):
    n = 0
    pw = p.w
    if p.kind in VALU_KINDS:
        vw = {r for r in pw if isv(r)}
        sw = {r for r in pw if iss(r)}
        if c.kind == "mfma" and vw & c.r: n = max(n, 2)
        if c.kind == "readlane" and vw & c.r: n = max(n, 1)
        if c.kind in ("dpp", "permlane") and vw & c.r: n = max(n, 2)
        if sw:
            if c.kind in ("vload", "vstore", "dma") and sw & c.r: n = max(n, 5)
            if c.kind in VALU_KINDS and sw & c.r: n = max(n, 2)
            if c.kind == "readlane" and sw & c.r: n = max(n, 4)
            if c.kind == "salu" and sw & c.r: n = max(n, 2)
        if p.kind == "trans" and c.kind in VALU_KINDS and c.kind != "trans" and vw & c.r: n = max(n, 1)
        if p.kind == "trans" and c.kind in ("mfma",) and vw & c.r: n = max(n, 2)
    if p.kind == "mfma":
        if c.kind == "mfma":
            if pw & c.srcc:
                n = max(n, 0 if (c.srcc == pw) else 6)
            ab = c.r - c.srcc
            if pw & ab: n = max(n, 8)
            if (pw & c.w) and not (pw & c.srcc): n = max(n, 8)
        else:
            if (pw & c.r) or (pw & c.w): n = max(n, 8)
        if c.kind in VALU_KINDS and (p.srcc & c.w): n = max(n, 3)
    if p.kind == "salu" and ("s", "m0") in pw and c.kind == "dma": n = max(n, 1)
    if p.kind == "vstore" and ("x4" in p.op or "x3" in p.op):
        data = {r for r in p.r if isv(r)}
        if c.w & data: n = max(n, 2)
    return n

class Builder:
    def __init__(self):
        self.items = []
        self.vm = []
        self.lg = []
        self.smem = False
        self.nlabel = 0
        self.notrack = False
    def __call__(self, text, tag=None, track=True):
        for line in text.strip("\n").split("\n"):
            line = line.strip()
            if not line or line.startswith(";"):
                continue
            i = Ins(line)
            self.items.append(i)
            if not track or self.notrack: continue
            if i.kind in ("vload", "vstore", "dma"): self.vm.append(tag)
            if i.kind in ("ds_read", "ds_write"): self.lg.append(tag)
            if i.op.startswith(("s_load", "s_memtime", "s_memrealtime")): self.smem = True
            if i.op == "s_waitcnt":
                m = re.search(r"vmcnt\((\d+)\)", line)
                if m:
                    n = int(m.group(1)); self.vm = self.vm[len(self.vm) - n:] if n < len(self.vm) and n > 0 else ([] if n == 0 else self.vm)
                m = re.search(r"lgkmcnt\((\d+)\)", line)
                if m:
                    n = int(m.group(1))
                    if n == 0: self.lg = []; self.smem = False
                    elif n < len(self.lg): self.lg = self.lg[len(self.lg) - n:]
    def label(self, name): self.items.append(name + ":")
    def raw(self, text): self.items.append(text)
    def comment(self, text): self.items.append("; " + text)
    def newlabel(self, base="L"):
        self.nlabel += 1
        return f"{base}_{self.nlabel}"
    def _count(self, lst, tags):
        if not isinstance(tags, (list, tuple, set)): tags = [tags]
        idx = -1
        for k, t in enumerate(lst):
            if t in tags: idx = k
        return None if idx < 0 else len(lst) - 1 - idx
    def wait_vm(self, tags):
        n = self._count(self.vm, tags)
        if n is None: return
        self(f"s_waitcnt vmcnt({min(n, 63)})")
    def wait_lg(self, tags):
        n = self._count(self.lg, tags)
        if n is None: return
        if self.smem or n > 15: n = 0 if self.smem else 15
        self(f"s_waitcnt lgkmcnt({n})")
    def wait_both(self, vtags, ltags):
        nv = self._count(self.vm, vtags); nl = self._count(self.lg, ltags)
        parts = []
        if nv is not None: parts.append(f"vmcnt({min(nv,63)})")
        if nl is not None: parts.append(f"lgkmcnt({0 if self.smem else min(nl,15)})")
        if parts: self("s_waitcnt " + " ".join(parts))
    def finalize(self, window=12):
        out = []
        hist = []
        nnop = 0
        for it in self.items:
            if isinstance(it, str):
                out.append(it)
                continue
            req = 0
            dist = 0
            for p in reversed(hist):
                nd = need(p, it)
                if nd > dist: req = max(req, nd - dist)
                dist += p.states
                if dist >= window: break
            if req > 0:
                nop = Ins(f"s_nop {req-1}")
                out.append(nop); hist.append(nop); nnop += 1
            out.append(it); hist.append(it)
            if len(hist) > 64: hist = hist[-32:]
        self.nnop = nnop
        txt = []
        for it in out:
            if isinstance(it, str): txt.append(it)
            else: txt.append("    " + it.text)
        return "\n".join(txt) + "\n"
```

```python
from asmb import *
NAME = "sequential_preLN__spectral_fnet__dense_activation_relu__prompt"

S_WG, S_W, S_IDX, S_J = 2, 3, 4, 5
P_X, P_SRE, P_SIM, P_HRE, P_HIM, P_BX, P_W1, P_W2 = 16, 18, 20, 22, 24, 26, 28, 30
P_OUT, P_DBG, P_WS = 32, 34, 36
R_X, R_SRE, R_SIM, R_W1, R_W2, R_WS, R_OUT, R_DBG = 40, 44, 48, 52, 56, 60, 64, 68

X_BYTES = 2048 * 448 * 2
SEQ_BYTES = 2048 * 2048 * 2
W_BYTES = 448 * 1792 * 2
WS_BYTES = 268435456

WS_Z = 0
Z_G = 14 * 32 * 128
WS_CS = 0x200000
WS_PB = 0x400000
PB_G = 7 * 7 * 8192
WS_OWN = 0x2000000
WS_TS = 0x4000000

def srd(b, r, p, nbytes):
    b(f"s_mov_b32 s{r}, s{p}")
    b(f"s_mov_b32 s{r+1}, s{p+1}")
    b(f"s_mov_b32 s{r+2}, {hex(nbytes)}")
    b(f"s_mov_b32 s{r+3}, 0x00020000")

def load_kernargs(b):
    b("s_load_dwordx16 s[16:31], s[0:1], 0")
    b("s_load_dwordx4 s[32:35], s[0:1], 64")
    b("s_load_dwordx2 s[36:37], s[0:1], 80")

def wave_lane(b):
    b("v_lshrrev_b32 v1, 6, v0")
    b("v_and_b32 v0, 63, v0")
    b(f"v_readfirstlane_b32 s{S_W}, v1")

def decode_wg(b):
    b("s_and_b32 s6, s2, 7")
    b("s_lshr_b32 s7, s2, 3")
    b("s_mul_i32 s8, s7, 37")
    b("s_lshr_b32 s8, s8, 8")
    b("s_mul_i32 s9, s8, 7")
    b(f"s_sub_u32 s{S_J}, s7, s9")
    b("s_lshl_b32 s8, s8, 3")
    b(f"s_add_u32 s{S_IDX}, s6, s8")

def all_srds(b):
    srd(b, R_X, P_X, X_BYTES)
    srd(b, R_SRE, P_SRE, SEQ_BYTES)
    srd(b, R_SIM, P_SIM, SEQ_BYTES)
    srd(b, R_W1, P_W1, W_BYTES)
    srd(b, R_W2, P_W2, W_BYTES)
    srd(b, R_WS, P_WS, WS_BYTES)
    srd(b, R_OUT, P_OUT, X_BYTES)
    srd(b, R_DBG, P_DBG, 256)

def kernel_header(name):
    return f".globl {name}\n.p2align 8\n.type {name},@function\n{name}:\n"

def kernel_desc(name, vgpr=512, accum=256, sgpr=102):
    return f""".p2align 6
.amdhsa_kernel {name}
  .amdhsa_next_free_vgpr {vgpr}
  .amdhsa_next_free_sgpr {sgpr}
  .amdhsa_accum_offset {accum}
  .amdhsa_group_segment_fixed_size 0
  .amdhsa_kernarg_size 88
  .amdhsa_user_sgpr_count 2
  .amdhsa_user_sgpr_kernarg_segment_ptr 1
  .amdhsa_system_sgpr_workgroup_id_x 1
  .amdhsa_float_denorm_mode_32 3
.end_amdhsa_kernel
"""


DIAG = False
TS_REG = 23
def stamp(b, i, reg=None):
    if not DIAG: return
    reg = TS_REG if reg is None else reg
    if i == 0: b(f"v_mov_b32 v{reg}, 0")
    b("s_memrealtime s[14:15]")
    b("s_waitcnt lgkmcnt(0)")
    b(f"v_writelane_b32 v{reg}, s14, {i}")
def stamp_store(b, kidx, reg=None):
    if not DIAG: return
    reg = TS_REG if reg is None else reg
    b(f"s_lshl_b32 s6, s2, 9")
    b(f"s_lshl_b32 s7, s{S_W}, 7")
    b("s_add_u32 s6, s6, s7")
    b(f"s_add_u32 s6, s6, {WS_TS + kidx*0x40000}")
    b("v_lshlrev_b32 v3, 2, v0")
    b("s_mov_b32 exec_hi, 0")
    b(f"buffer_store_dword v{reg}, v3, s[{R_WS}:{R_WS+3}], s6 offen")
    b("s_waitcnt vmcnt(0)")
    b("s_mov_b64 exec, -1")
```

```python
from common import *
import common

XL = 0
STAT1 = 57344

V_C, V_GQ = 1, 2
V_T0, V_T1, V_T2, V_T3 = 3, 4, 5, 6
V_XO = 7
V_WA = 8
V_FO = 10
V_ZO = 11
V_XB = 12
V_SA = 20
V_S0, V_S1, V_Q0, V_Q1 = 24, 25, 26, 27
V_ONE = 28
V_CS = 32
V_ACC = 36
V_AB = 52
V_WD = 84
V_XF = 140
V_F = 172
V_A = 204
V_D2 = 212
V_ZP = 228

def phase1_addr(b):
    b(f"v_and_b32 v{V_C}, 15, v0")
    b(f"v_lshrrev_b32 v{V_GQ}, 4, v0")
    b(f"v_lshrrev_b32 v{V_T0}, 3, v0")
    b(f"v_and_b32 v{V_T1}, 7, v0")
    b(f"v_xor_b32 v{V_T1}, v{V_T1}, v{V_T0}")
    b(f"v_lshlrev_b32 v{V_T1}, 4, v{V_T1}")
    b(f"v_mul_u32_u24 v{V_T0}, 28672, v{V_T0}")
    b(f"v_add_u32 v{V_XO}, v{V_T0}, v{V_T1}")
    b(f"v_and_b32 v{V_T0}, 7, v{V_C}")
    b(f"v_lshrrev_b32 v{V_T1}, 3, v{V_C}")
    b(f"v_lshlrev_b32 v{V_T1}, 10, v{V_T1}")
    b(f"v_lshl_add_u32 v{V_T1}, v{V_T0}, 7, v{V_T1}")
    for par in range(2):
        b(f"v_add_u32 v{V_T2}, {4*par}, v{V_GQ}")
        b(f"v_xor_b32 v{V_T2}, v{V_T2}, v{V_T0}")
        b(f"v_lshl_add_u32 v{V_T3}, v{V_T2}, 4, v{V_T1}")
        for ls in range(4):
            b(f"s_add_u32 s6, s{S_W}, {ls}")
            b("s_and_b32 s6, s6, 3")
            b("s_lshl_b32 s6, s6, 11")
            b(f"v_add_u32 v{V_XB + 2*ls + par}, s6, v{V_T3}")
    b(f"v_lshlrev_b32 v{V_T0}, 5, v{V_GQ}")
    for ls in range(4):
        b(f"s_add_u32 s6, s{S_W}, {ls}")
        b("s_and_b32 s6, s6, 3")
        b("s_lshl_b32 s6, s6, 7")
        b(f"s_add_u32 s6, s6, {STAT1}")
        b(f"v_add_u32 v{V_SA + ls}, s6, v{V_T0}")
    b(f"v_lshlrev_b32 v{V_T0}, 17, v{V_C}")
    b(f"v_lshl_add_u32 v{V_FO}, v{V_GQ}, 3, v{V_T0}")
    b(f"v_mul_u32_u24 v{V_T0}, {Z_G}, v{V_C}")
    b(f"v_lshl_add_u32 v{V_ZO}, v{V_GQ}, 4, v{V_T0}")
    b(f"s_lshr_b32 s6, s{S_W}, 1")
    b(f"s_lshl_b32 s7, s{S_J}, 1")
    b("s_add_u32 s10, s6, s7")
    b(f"s_and_b32 s11, s{S_W}, 1")
    b("s_lshl_b32 s6, s10, 4")
    b("s_lshl_b32 s7, s11, 3")
    b("s_add_u32 s6, s6, s7")
    b(f"v_lshrrev_b32 v{V_T0}, 1, v{V_C}")
    b(f"v_add_u32 v{V_T0}, s6, v{V_T0}")
    b(f"v_and_b32 v{V_T1}, 1, v{V_C}")
    b(f"v_lshl_or_b32 v{V_T2}, v{V_T0}, 1, v{V_T1}")
    b(f"v_mov_b32 v{V_T3}, 224")
    b(f"v_cmp_eq_u32 vcc, 1, v{V_T2}")
    b(f"v_cndmask_b32 v{V_T0}, v{V_T0}, v{V_T3}, vcc")
    b(f"v_mov_b32 v{V_T3}, 0")
    b(f"v_cndmask_b32 v{V_T1}, v{V_T1}, v{V_T3}, vcc")
    b(f"v_mul_u32_u24 v{V_T0}, 896, v{V_T0}")
    b(f"v_lshl_add_u32 v{V_T0}, v{V_GQ}, 4, v{V_T0}")
    b(f"v_mov_b32 v{V_WA+1}, v{V_T1}")
    b(f"v_mov_b32 v{V_WA}, v{V_T0}")
    for r in range(4):
        b(f"v_mov_b32 v{V_ONE + r}, 0x3f803f80")
    for r in range(4):
        b(f"v_mov_b32 v{V_CS + r}, 0")
    for r in range(16):
        b(f"v_mov_b32 v{V_ACC + r}, 0")
    for r in (V_S0, V_S1, V_Q0, V_Q1):
        b(f"v_mov_b32 v{r}, 0")

def phase1_issue(b, xflags=""):
    b(f"v_cmp_eq_u32 vcc, 1, v{V_WA+1}")
    b(f"v_mov_b32 v{V_T0}, s{P_HRE}")
    b(f"v_mov_b32 v{V_T1}, s{P_HIM}")
    b(f"v_cndmask_b32 v{V_T0}, v{V_T0}, v{V_T1}, vcc")
    b(f"v_mov_b32 v{V_T2}, s{P_HRE+1}")
    b(f"v_mov_b32 v{V_T1}, s{P_HIM+1}")
    b(f"v_cndmask_b32 v{V_T2}, v{V_T2}, v{V_T1}, vcc")
    b(f"v_add_co_u32 v{V_WA}, vcc, v{V_T0}, v{V_WA}")
    b(f"v_addc_co_u32 v{V_WA+1}, vcc, 0, v{V_T2}, vcc")
    b(f"s_lshl_b32 s6, s{S_W}, 9")
    b(f"s_add_u32 s6, s6, s{S_IDX}")
    b("s_mul_i32 s12, s6, 896")
    b("s_add_u32 s13, s12, 229376")
    b(f"s_lshl_b32 s14, s{S_W}, 11")
    for ksp in range(7):
        for o2 in range(2):
            b(f"s_add_u32 m0, s14, {XL + o2*1024 + 8064*ksp}")
            b(f"buffer_load_dwordx4 v{V_XO}, s[{R_X}:{R_X+3}], s{12+o2} offen offset:{128*ksp} {xflags} lds", tag=f"x{ksp}")
        for k in (2*ksp, 2*ksp+1):
            b(f"global_load_dwordx4 {v(V_WD + 4*k, 4)}, {v(V_WA, 2)}, off offset:{64*k}", tag=f"x{ksp}")
    for ls in range(4):
        b(f"s_add_u32 s6, s{S_W}, {ls}")
        b("s_and_b32 s6, s6, 3")
        b(f"s_lshl_b32 s{72+ls}, s6, 5")
    for gh in range(2):
        for sg in range(2):
            R = R_SRE if sg == 0 else R_SIM
            for ls in range(4):
                reg = V_F + ((gh*2 + sg)*2 + (ls >> 1))*4 + 2*(ls & 1)
                b(f"s_add_u32 s6, s{72+ls}, {gh*2097152}")
                b(f"buffer_load_dwordx2 {v(reg, 2)}, v{V_FO}, s[{R}:{R+3}], s6 offen", tag="f")
    b("s_mov_b32 exec_lo, 0x00010001")
    b("s_mov_b32 exec_hi, 0x00010001")
    for ls in range(4):
        reg = V_F + ((0*2 + 1)*2 + (ls >> 1))*4 + 2*(ls & 1)
        b(f"s_add_u32 s6, s{72+ls}, 4194304")
        b(f"buffer_load_dwordx2 {v(reg, 2)}, v{V_FO}, s[{R_SRE}:{R_SRE+3}], s6 offen", tag="f")
    b("s_mov_b64 exec, -1")

def phase1_compute(b, zflags="", stages=((0,1),(2,3),(4,5,6))):
    def xread(ks, buf):
        ksp, par = ks >> 1, ks & 1
        for ls in range(4):
            b(f"ds_read_b128 {v(V_XF + 16*buf + 4*ls, 4)}, v{V_XB + 2*ls + par} offset:{XL + ksp*8192}", tag=f"xf{ks}")
    for stg in stages:
        b.wait_vm(f"x{stg[-1]}")
        b("s_barrier")
        stamp(b, 3 + stages.index(stg), 240)
        kss = [k for p in stg for k in (2*p, 2*p+1)]
        xread(kss[0], kss[0] & 1)
        for n, ks in enumerate(kss):
            buf = ks & 1
            nxt = kss[n+1] if n + 1 < len(kss) else None
            if nxt is not None:
                xread(nxt, nxt & 1)
            b.wait_lg(f"xf{ks}")
            xf = V_XF + 16*buf
            dots = []
            for r in range(4):
                dots.append(f"v_dot2_f32_bf16 v{V_S0 + (r&1)}, v{xf + r}, v{V_ONE}, v{V_S0 + (r&1)}")
                dots.append(f"v_dot2_f32_bf16 v{V_Q0 + (r&1)}, v{xf + r}, v{xf + r}, v{V_Q0 + (r&1)}")
            for ls in range(4):
                b(f"v_mfma_f32_16x16x32_bf16 {v(V_ACC + 4*ls, 4)}, {v(xf + 4*ls, 4)}, {v(V_WD + 4*ks, 4)}, {v(V_ACC + 4*ls, 4)}")
                b(dots[2*ls]); b(dots[2*ls+1])
            b(f"v_mfma_f32_16x16x32_bf16 {v(V_CS, 4)}, {v(V_ONE, 4)}, {v(V_WD + 4*ks, 4)}, {v(V_CS, 4)}")
    stamp(b, 6, 240)
    b(f"v_add_f32 v{V_S0}, v{V_S0}, v{V_S1}")
    b(f"v_add_f32 v{V_Q0}, v{V_Q0}, v{V_Q1}")
    b(f"v_permlane32_swap_b32 v{V_S0}, v{V_Q0}")
    b(f"v_add_f32 v{V_S0}, v{V_S0}, v{V_Q0}")
    b(f"v_mov_b32 v{V_S1}, v{V_S0}")
    b(f"v_permlane16_swap_b32 v{V_S0}, v{V_S1}")
    b(f"v_add_f32 v{V_S0}, v{V_S0}, v{V_S1}")
    b(f"v_mov_b32 v{V_Q0}, v{V_S0}")
    b(f"v_permlane32_swap_b32 v{V_S0}, v{V_Q0}")
    b(f"v_mul_f32 v{V_S0}, {1.0/448!r}, v{V_S0}".replace(repr(1.0/448), "0x3b124925"))
    b(f"v_mul_f32 v{V_Q0}, 0x3b124925, v{V_Q0}")
    b(f"v_fma_f32 v{V_Q0}, -v{V_S0}, v{V_S0}, v{V_Q0}")
    b(f"v_max_f32 v{V_Q0}, 0, v{V_Q0}")
    b(f"v_add_f32 v{V_Q0}, 0x3727c5ac, v{V_Q0}")
    b(f"v_rsq_f32 v{V_Q0}, v{V_Q0}")
    b(f"v_add_f32 v{V_T0}, v{V_Q0}, v{V_Q0}")
    b(f"v_mul_f32 v{V_T1}, v{V_T0}, v{V_S0}")
    b(f"v_sub_f32 v{V_T1}, 0, v{V_T1}")
    b(f"s_lshl_b32 s6, s{S_W}, 7")
    b(f"s_add_u32 s6, s6, {STAT1}")
    b(f"v_lshl_add_u32 v{V_T2}, v{V_C}, 3, s6")
    b(f"v_mov_b32 v{V_T2+2}, v{V_T0}") if False else None
    assert V_T0 % 2 == 1
    b(f"v_mov_b32 v{V_S0}, v{V_T0}")
    b(f"v_mov_b32 v{V_S1}, v{V_T1}")
    assert V_S0 % 2 == 0 and V_S1 == V_S0 + 1
    b(f"ds_write_b64 v{V_T2}, {v(V_S0, 2)}", tag="st")
    b("s_waitcnt lgkmcnt(0)")
    b("s_barrier")
    for ls in range(4):
        b(f"ds_read_b128 {v(V_AB + 8*ls, 4)}, v{V_SA + ls}", tag=f"ab{ls}")
        b(f"ds_read_b128 {v(V_AB + 8*ls + 4, 4)}, v{V_SA + ls} offset:16", tag=f"ab{ls}")
    for ls in range(4):
        b.wait_lg(f"ab{ls}")
        for r in range(4):
            b(f"v_mul_f32 v{V_AB + 8*ls + 2*r + 1}, v{V_AB + 8*ls + 2*r + 1}, v{V_CS}")
        for r in range(4):
            b(f"v_fma_f32 v{V_ACC + 4*ls + r}, v{V_AB + 8*ls + 2*r}, v{V_ACC + 4*ls + r}, v{V_AB + 8*ls + 2*r + 1}")
        for m in range(2):
            b(f"v_cvt_pk_bf16_f32 v{V_A + 2*ls + m}, v{V_ACC + 4*ls + 2*m}, v{V_ACC + 4*ls + 2*m + 1}")
    b.wait_vm("f")
    stamp(b, 7, 240)
    for gh in range(2):
        for sg in range(2):
            d = V_D2 + (gh*2 + sg)*4
            f0 = V_F + ((gh*2 + sg)*2 + 0)*4
            b(f"v_mfma_f32_16x16x32_bf16 {v(d,4)}, {v(V_A,4)}, {v(f0,4)}, 0")
        for sg in range(2):
            d = V_D2 + (gh*2 + sg)*4
            f1 = V_F + ((gh*2 + sg)*2 + 1)*4
            b(f"v_mfma_f32_16x16x32_bf16 {v(d,4)}, {v(V_A+4,4)}, {v(f1,4)}, {v(d,4)}")
    b("s_lshl_b32 s6, s10, 12")
    b(f"s_lshl_b32 s7, s{S_IDX}, 7")
    b("s_add_u32 s6, s6, s7")
    b("s_lshl_b32 s7, s11, 6")
    b("s_add_u32 s6, s6, s7")
    b(f"s_add_u32 s6, s6, {WS_Z}")
    b(f"s_add_u32 s7, s6, {16*Z_G}")
    for gh in range(2):
        for r in range(4):
            b(f"v_cvt_pk_bf16_f32 v{V_ZP + 4*gh + r}, v{V_D2 + (gh*2)*4 + r}, v{V_D2 + (gh*2+1)*4 + r}")
        b(f"buffer_store_dwordx4 {v(V_ZP + 4*gh, 4)}, v{V_ZO}, s[{R_WS}:{R_WS+3}], s{6+gh} offen {zflags}", tag="zst")

def cs_job(b, flags=""):
    b("s_sub_u32 s6, s2, 224")
    b("s_lshl_b32 s7, s6, 7")
    b("v_and_b32 v1, 15, v9")
    b("v_lshrrev_b32 v2, 4, v9")
    b("v_mul_u32_u24 v3, 3584, v2")
    b("v_lshl_add_u32 v3, v1, 3, v3")
    for n in range(28):
        b(f"s_add_u32 s8, s7, {n*57344}")
        b(f"buffer_load_dwordx2 {v(16 + 2*n, 2)}, v3, s[{R_W1}:{R_W1+3}], s8 offen", tag=f"c{n}")
    for r in range(4): b(f"v_mov_b32 v{10+r}, 0")
    for n in range(28):
        b.wait_vm(f"c{n}")
        for h in range(2):
            b(f"v_lshlrev_b32 v4, 16, v{16+2*n+h}")
            b(f"v_and_b32 v5, 0xffff0000, v{16+2*n+h}")
            b(f"v_add_f32 v{10+2*h}, v{10+2*h}, v4")
            b(f"v_add_f32 v{11+2*h}, v{11+2*h}, v5")
    b("v_lshlrev_b32 v4, 8, v2")
    b("v_lshl_add_u32 v4, v1, 4, v4")
    b("v_mov_b32 v76, v10"); b("v_mov_b32 v77, v11"); b("v_mov_b32 v78, v12"); b("v_mov_b32 v79, v13")
    b("ds_write_b128 v4, v[76:79]")
    b("s_waitcnt lgkmcnt(0)")
    b("s_barrier")
    b("v_and_b32 v1, 63, v9")
    b("v_lshlrev_b32 v1, 2, v1")
    for n in range(16):
        b(f"ds_read_b32 v{16+n}, v1 offset:{256*n}")
    b("s_waitcnt lgkmcnt(0)")
    for n in range(1, 16):
        b(f"v_add_f32 v16, v16, v{16+n}")
    b("s_lshl_b32 s7, s6, 8")
    b(f"s_add_u32 s7, s7, {WS_CS}")
    b(f"s_cmp_eq_u32 s{S_W}, 0")
    lab = b.newlabel("L_csk")
    b(f"s_cbranch_scc0 {lab}")
    b(f"buffer_store_dword v16, v1, s[{R_WS}:{R_WS+3}], s7 offen {flags}")
    b.label(lab)

def build_k1(name):
    b = Builder()
    b("s_cmp_ge_u32 s2, 252")
    b("s_cbranch_scc1 L_k1_end")
    load_kernargs(b)
    b("v_mov_b32 v9, v0")
    wave_lane(b)
    b("s_cmp_ge_u32 s2, 224")
    b("s_cbranch_scc1 L_k1_cs")
    decode_wg(b)
    stamp(b, 0, 240)
    phase1_addr(b)
    b("s_waitcnt lgkmcnt(0)")
    all_srds(b)
    stamp(b, 1, 240)
    phase1_issue(b)
    stamp(b, 2, 240)
    phase1_compute(b)
    stamp(b, 8, 240)
    if common.DIAG: b("s_waitcnt vmcnt(0)")
    stamp(b, 9, 240)
    stamp_store(b, 0, 240)
    b("s_endpgm")
    b.label("L_k1_cs")
    b("s_waitcnt lgkmcnt(0)")
    all_srds(b)
    cs_job(b)
    b.label("L_k1_end")
    b("s_endpgm")
    txt = b.finalize()
    return kernel_header(name) + txt, b
```

```python
from common import *
import common

HL = 0
RING = 57344
STAT2 = RING + 98304
LDS2 = STAT2 + 512

V_C, V_GQ = 1, 2
V_T = 3
V_ZO = 7
V_MO = 8
V_X1, V_X2 = 9, 10
V_HB = 11
V_HW = 15
V_TR1 = 19
V_MR = 24
V_HRES, V_CS = 24, 40
V_TMP = 56
V_Z = 64
V_P, V_Q, V_PS, V_QS, V_E = 128, 176, 224, 232, 240
V_ACC1 = 128
V_A1 = 192
V_B1 = 224
V_WASC, V_WDESC, V_WDESC0 = 64, 65, 66
V_W2O = 67
V_TR2 = 68
V_S = 70
V_NM = 74
V_RR = 82
V_HA = 90
V_PBO = 94
V_PK = 96
V_A2 = 192
V_ACC2 = 128

S_G0 = 72
S_SEL = 74
S_T1 = 86
S_PI = 90
S_TT = 94
S_MASK = 98
S_RW = 100
S_W1B = 101

DFT = 'bf16'
PERSIST = False

def weave(b, mfmas, fillers, per=2, lead=0):
    k = 0
    n = len(mfmas)
    for i, m in enumerate(mfmas):
        b(m)
        want = ((i + 1) * len(fillers) + n - 1) // n if n else len(fillers)
        cnt = 0
        while k < len(fillers) and k < want and cnt < max(per, 1):
            f = fillers[k]; k += 1; cnt += 1
            f() if callable(f) else b(f)
    while k < len(fillers):
        f = fillers[k]; k += 1
        f() if callable(f) else b(f)

def p2_scalars(b):
    b(f"s_and_b32 s6, s{S_W}, 1")
    b("s_lshl_b32 s7, s6, 1")
    for lt in range(4):
        b(f"s_xor_b32 s{S_TT+lt}, s7, {lt}")
    b(f"s_sub_u32 s8, 64, s{S_IDX}")
    b(f"s_cmp_eq_u32 s{S_IDX}, 0")
    b("s_cselect_b32 s8, 32, s8")
    b(f"s_cselect_b32 s{S_G0}, 1, 0")
    for lt in range(4):
        b(f"s_cmp_lt_u32 s{S_TT+lt}, 2")
        b(f"s_cselect_b32 s9, s{S_IDX}, s8")
        b(f"s_and_b32 s12, s{S_TT+lt}, 1")
        b("s_lshl_b32 s12, s12, 10")
        b(f"s_add_u32 s{S_T1+lt}, s9, s12")
    A_n = [0x05040100, 0x07060302, 0x01000504, 0x03020706, 0x80000000, 0x80008000]
    B_n = [0x05040100, 0x07060302, 0x01000504, 0x03020706, 0x00000000, 0x00008000]
    A_0 = [0x0c0c0100, 0x0c0c0302, 0x0c0c0504, 0x0c0c0706, 0x00000000, 0x00008000]
    B_0 = [0x01000c0c, 0x03020c0c, 0x05040c0c, 0x07060c0c, 0x00000000, 0x80000000]
    for k in range(0 if PERSIST else 6):
        b(f"s_cmp_eq_u32 s{S_G0}, 1")
        b(f"s_mov_b32 s9, {hex(A_n[k])}")
        b(f"s_mov_b32 s12, {hex(A_0[k])}")
        b("s_cselect_b32 s9, s12, s9")
        b(f"s_mov_b32 s13, {hex(B_n[k])}")
        b(f"s_mov_b32 s12, {hex(B_0[k])}")
        b("s_cselect_b32 s13, s12, s13")
        b("s_cmp_eq_u32 s6, 0")
        b(f"s_cselect_b32 s{S_SEL+k}, s9, s13")
        b(f"s_cselect_b32 s{S_SEL+6+k}, s13, s9")
    b(f"s_lshr_b32 s7, s{S_W}, 1")
    b("s_mul_i32 s7, s7, 7")
    b("s_lshl_b32 s9, s6, 2")
    b("s_add_u32 s9, s9, s7")
    for p in range(3):
        b(f"s_add_u32 s{S_PI+p}, s9, {p}")
    b(f"s_add_u32 s{S_PI+3}, s7, 3")
    b(f"s_cmp_eq_u32 s{S_W}, 0")
    b(f"s_cselect_b32 s{S_MASK}, 0xffff, 0")
    b(f"s_mov_b32 s{S_MASK+1}, 0")
    if not PERSIST: ring_scalars(b)

def ring_scalars(b):
    b(f"s_mul_i32 s{S_RW}, s{S_W}, 24576")
    b(f"s_add_u32 s{S_RW}, s{S_RW}, {RING}")
    b(f"s_lshl_b32 s7, s{S_J}, 9")
    b(f"s_lshl_b32 s9, s{S_W}, 7")
    b(f"s_add_u32 s{S_W1B}, s7, s9")

def p2_addr(b):
    b(f"v_and_b32 v{V_C}, 15, v0")
    b(f"v_lshrrev_b32 v{V_GQ}, 4, v0")
    b(f"v_lshlrev_b32 v{V_T}, 3, v{V_C}")
    b(f"v_lshl_add_u32 v{V_ZO}, v{V_GQ}, 9, v{V_T}")
    if not PERSIST:
        b(f"v_lshlrev_b32 v{V_T}, 18, v{V_C}")
        b(f"v_lshl_add_u32 v{V_MO}, v{V_GQ}, 3, v{V_T}")
    b(f"v_mul_u32_u24 v{V_T}, 57344, v{V_C}")
    b(f"v_lshl_add_u32 v{V_X1}, v{V_GQ}, 3, v{V_T}")
    b(f"v_lshlrev_b32 v{V_T+1}, 3, v{V_GQ}")
    b(f"v_sub_u32 v{V_T+1}, 24, v{V_T+1}")
    b(f"v_add_u32 v{V_X2}, v{V_T}, v{V_T+1}")
    b(f"v_lshlrev_b32 v{V_T}, 4, v0")
    for lt in range(4):
        b(f"s_lshl_b32 s6, s{S_TT+lt}, 10")
        b(f"s_add_u32 s6, s6, {HL}")
        b(f"v_add_u32 v{V_HW+lt}, s6, v{V_T}")
        b(f"s_add_u32 s6, s{S_W}, {lt}")
        b("s_and_b32 s6, s6, 3")
        b("s_lshl_b32 s6, s6, 10")
        b(f"s_add_u32 s6, s6, {HL}")
        b(f"v_add_u32 v{V_HB+lt}, s6, v{V_T}")
    b(f"v_lshrrev_b32 v{V_T}, 2, v{V_C}")
    b(f"v_lshl_add_u32 v{V_T}, v{V_GQ}, 2, v{V_T}")
    b(f"v_bfe_u32 v{V_T+1}, v{V_T}, 1, 2")
    b(f"v_and_b32 v{V_T+2}, 3, v0")
    b(f"v_lshlrev_b32 v{V_T+2}, 3, v{V_T+2}")
    b(f"v_lshl_add_u32 v{V_T+2}, v{V_T}, 7, v{V_T+2}")
    for u in range(4):
        b(f"v_xor_b32 v{V_T+3}, {u}, v{V_T+1}")
        b(f"v_lshl_add_u32 v{V_T+3}, v{V_T+3}, 5, v{V_T+2}")
        b(f"v_add_u32 v{V_TR1+u}, s{S_RW}, v{V_T+3}")

def p2_addr_late(b):
    b(f"v_lshrrev_b32 v{V_T}, 3, v0")
    b(f"v_bfe_u32 v{V_T+1}, v{V_T}, 1, 2")
    b(f"v_lshlrev_b32 v{V_T+1}, 1, v{V_T+1}")
    b(f"v_and_b32 v{V_T+2}, 7, v0")
    b(f"v_xor_b32 v{V_T+2}, v{V_T+2}, v{V_T+1}")
    b(f"v_lshlrev_b32 v{V_T+2}, 4, v{V_T+2}")
    return

def w1_voffsets(b, asc, desc, desc0):
    b(f"v_lshrrev_b32 v{V_T}, 3, v0")
    b(f"v_bfe_u32 v{V_T+1}, v{V_T}, 1, 2")
    b(f"v_lshlrev_b32 v{V_T+1}, 1, v{V_T+1}")
    b(f"v_and_b32 v{V_T+2}, 7, v0")
    b(f"v_xor_b32 v{V_T+2}, v{V_T+2}, v{V_T+1}")
    b(f"v_lshlrev_b32 v{V_T+2}, 4, v{V_T+2}")
    b(f"v_mul_u32_u24 v{V_T+1}, 3584, v{V_T}")
    b(f"v_add_u32 v{asc}, v{V_T+1}, v{V_T+2}")
    b(f"v_sub_u32 v{V_T+1}, 7, v{V_T}")
    b(f"v_mul_u32_u24 v{V_T+1}, 3584, v{V_T+1}")
    b(f"v_add_u32 v{desc}, v{V_T+1}, v{V_T+2}")
    b(f"v_sub_u32 v{V_T+1}, 448, v{V_T}")
    b(f"v_mov_b32 v{V_T+3}, 224")
    b(f"v_cmp_eq_u32 vcc, 0, v{V_T}")
    b(f"v_cndmask_b32 v{V_T+1}, v{V_T+1}, v{V_T+3}, vcc")
    b(f"v_mul_u32_u24 v{V_T+1}, 3584, v{V_T+1}")
    b(f"v_add_u32 v{desc0}, v{V_T+1}, v{V_T+2}")

def w1_dma(b, k, asc, desc, desc0, flags=""):
    slot = k % 6
    out = []
    for n in range(4):
        def f(n=n):
            if n < 2:
                d0 = 16*k + 8*n; vo = asc
            elif k == 0 and n == 2:
                d0 = 0; vo = desc0
            else:
                d0 = 441 - 16*k - 8*(n-2); vo = desc
            b(f"s_add_u32 s6, s{S_W1B}, {d0*3584}")
            b(f"s_add_u32 m0, s{S_RW}, {slot*4096 + n*1024}")
            b(f"buffer_load_dwordx4 v{vo}, s[{R_W1}:{R_W1+3}], s6 offen {flags} lds", tag=f"w1_{k}")
        out.append(f)
    return out

def z_loads(b, flags=""):
    for p in range(4):
        b(f"s_lshl_b32 s6, s{S_PI+p}, 12")
        b(f"s_mul_i32 s7, s{S_IDX}, {Z_G}")
        b("s_add_u32 s6, s6, s7")
        if WS_Z: b(f"s_add_u32 s6, s6, {WS_Z}")
        for ks in range(2):
            for j in range(4):
                reg = V_Z + (p*2 + ks)*8 + 2*j
                b(f"buffer_load_dwordx2 {v(reg,2)}, v{V_ZO}, s[{R_WS}:{R_WS+3}], s6 offen offset:{ks*2048 + j*128} {flags}", tag=f"z{p}_{ks}")

def m_loads(b):
    for lt in range(4):
        b(f"s_lshl_b32 s6, s{S_T1+lt}, 12") if False else None
        b(f"s_lshl_b32 s6, s{S_T1+lt}, 12")
        for ks in range(2):
            reg = V_MR + (lt*2 + ks)*4
            b(f"buffer_load_dwordx2 {v(reg,2)}, v{V_MO}, s[{R_SRE}:{R_SRE+3}], s6 offen offset:{32*ks}", tag=f"m{lt}")
            b(f"buffer_load_dwordx2 {v(reg+2,2)}, v{V_MO}, s[{R_SIM}:{R_SIM+3}], s6 offen offset:{32*ks}", tag=f"m{lt}")

def units():
    u = []
    for lt in range(4):
        for p in range(4):
            if p == 3 and lt >= 2: continue
            u.append((p, lt))
    return u
def preg(p, lt): return V_P + (p*4 + lt)*4 if p < 3 else V_PS + lt*4
def qreg(p, lt): return V_Q + (p*4 + lt)*4 if p < 3 else V_QS + lt*4

def x_loads(b):
    for (p, lt) in units():
        b(f"s_mul_i32 s6, s{S_T1+lt}, 896")
        b(f"s_lshl_b32 s7, s{S_PI+p}, 5")
        b("s_add_u32 s8, s6, s7")
        b("s_sub_u32 s9, s6, s7")
        b("s_add_u32 s9, s9, 864")
        b(f"buffer_load_dwordx2 {v(preg(p,lt),2)}, v{V_X1}, s[{R_X}:{R_X+3}], s8 offen", tag=f"xr{p}_{lt}")
        b(f"buffer_load_dwordx3 {v(qreg(p,lt),3)}, v{V_X2}, s[{R_X}:{R_X+3}], s9 offen", tag=f"xr{p}_{lt}")
    for lt in range(4):
        b(f"s_mul_i32 s6, s{S_T1+lt}, 896")
        b("s_add_u32 s6, s6, 448")
        b(f"buffer_load_dword v{V_E + 4*lt}, v{V_X1}, s[{R_X}:{R_X+3}], s6 offen", tag="xe")

def m_build(b):
    for lt in range(4):
        b.wait_vm(f"m{lt}")
        sb = S_SEL + (6 if lt >= 2 else 0)
        for ks in range(2):
            raw = V_MR + (lt*2 + ks)*4
            for pq in range(2):
                for j in range(4):
                    t = V_TMP + (j & 1) + 2*pq
                    b(f"v_perm_b32 v{t}, v{raw + 2 + (j>>1)}, v{raw + (j>>1)}, s{sb + 2*pq + (j&1)}")
                    b(f"v_xor_b32 v{t}, s{sb + 4 + pq}, v{t}")
                    b(f"v_accvgpr_write_b32 a{((lt*2 + ks)*2 + pq)*4 + j}, v{t}")
def mreg(lt, ks, pq): return ((lt*2 + ks)*2 + pq)*4

def x_build(b):
    T = V_TMP
    for (p, lt) in units():
        b.wait_vm(f"xr{p}_{lt}")
        P, Q = preg(p, lt), qreg(p, lt)
        b(f"v_lshlrev_b32 v{T+0}, 16, v{P}")
        b(f"v_and_b32 v{T+1}, 0xffff0000, v{P}")
        b(f"v_lshlrev_b32 v{T+2}, 16, v{P+1}")
        b(f"v_and_b32 v{T+3}, 0xffff0000, v{P+1}")
        b(f"v_lshlrev_b32 v{T+4}, 16, v{Q+2}")
        b(f"v_and_b32 v{T+5}, 0xffff0000, v{Q+1}")
        b(f"v_lshlrev_b32 v{T+6}, 16, v{Q+1}")
        b(f"v_and_b32 v{T+7}, 0xffff0000, v{Q}")
        if p == 0:
            b(f"v_cndmask_b32 v{T+4}, v{T+4}, v{T+0}, s[{S_MASK}:{S_MASK+1}]")
        for r in range(4):
            b(f"v_add_f32 v{P+r}, v{T+r}, v{T+4+r}")
            b(f"v_sub_f32 v{Q+r}, v{T+r}, v{T+4+r}")
    b.wait_vm("xe")
    for lt in range(4):
        E = V_E + 4*lt
        b(f"v_lshlrev_b32 v{E}, 16, v{E}")
        b(f"v_add_f32 v{E}, v{E}, v{E}")
        for r in range(1, 4): b(f"v_mov_b32 v{E+r}, 0")

def step_b(b):
    def swaps(p, ks):
        z = V_Z + (p*2 + ks)*8
        return [f"v_swap_b32 v{z+1}, v{z+2}", f"v_swap_b32 v{z+2}, v{z+4}", f"v_swap_b32 v{z+3}, v{z+6}", f"v_swap_b32 v{z+5}, v{z+6}"]
    for p in range(4):
        for ks in range(2):
            b.wait_vm(f"z{p}_{ks}")
            for sw in swaps(p, ks): b(sw)
    def epi(p, lt):
        P, Q = preg(p, lt), qreg(p, lt)
        T = V_TMP
        fl = []
        for r in range(4):
            fl.append(f"v_add_f32 v{T+r}, v{P+r}, v{Q+r}")
            fl.append(f"v_sub_f32 v{T+4+r}, v{P+r}, v{Q+r}")
        if p == 0:
            fl.append(f"v_cndmask_b32 v{T+0}, v{T+0}, v{P}, s[{S_MASK}:{S_MASK+1}]")
            fl.append(f"v_cndmask_b32 v{T+4}, v{T+4}, v{V_E+4*lt}, s[{S_MASK}:{S_MASK+1}]")
        fl.append(f"v_cvt_pk_bf16_f32 v{P+0}, v{T+0}, v{T+1}")
        fl.append(f"v_cvt_pk_bf16_f32 v{P+1}, v{T+2}, v{T+3}")
        fl.append(f"v_cvt_pk_bf16_f32 v{P+2}, v{T+4}, v{T+5}")
        fl.append(f"v_cvt_pk_bf16_f32 v{P+3}, v{T+6}, v{T+7}")
        def wr():
            b(f"s_lshl_b32 s6, s{S_PI+p}, 12")
            b(f"v_add_u32 v{V_T}, s6, v{V_HW+lt}")
            b(f"ds_write_b128 v{V_T}, {v(P,4)}", tag="hw")
        fl.append(wr)
        return fl
    def mf(p, lt):
        P, Q = preg(p, lt), qreg(p, lt)
        out = []
        for ks in range(2):
            z = V_Z + (p*2 + ks)*8
            out.append(f"v_mfma_f32_16x16x32_{DFT} {v(P,4)}, {v(z,4)}, {a(mreg(lt,ks,0),4)}, {v(P,4)}")
            out.append(f"v_mfma_f32_16x16x32_{DFT} {v(Q,4)}, {v(z+4,4)}, {a(mreg(lt,ks,1),4)}, {v(Q,4)}")
        return out
    lab = b.newlabel("L_noE")
    b(f"s_cmp_eq_u32 s{S_W}, 0")
    b(f"s_cbranch_scc0 {lab}")
    for ks in range(2):
        for lt in range(4):
            z = V_Z + (0*2 + ks)*8
            b(f"v_mfma_f32_16x16x32_{DFT} {v(V_E+4*lt,4)}, {v(z+4,4)}, {a(mreg(lt,ks,0),4)}, {v(V_E+4*lt,4)}")
    b.label(lab)
    us = units()
    prev = None
    for (p, lt) in us:
        fill = epi(*prev) if prev else []
        weave(b, mf(p, lt), fill, per=8)
        prev = (p, lt)
    b("s_nop 7")
    for f in epi(*prev):
        f() if callable(f) else b(f)

def hres_gather(b):
    T = V_T
    for r in range(4):
        A = V_HA + r
        b(f"s_lshl_b32 s6, s{S_J}, 6")
        b(f"s_lshl_b32 s7, s{S_W}, 4")
        b("s_add_u32 s6, s6, s7")
        b(f"s_add_u32 s6, s6, {r}")
        b(f"v_lshl_add_u32 v{T}, v{V_GQ}, 2, s6")
        b(f"v_lshrrev_b32 v{T+1}, 4, v{T}")
        b(f"v_lshlrev_b32 v{T+1}, 12, v{T+1}")
        b(f"v_lshl_add_u32 v{T+1}, v0, 4, v{T+1}")
        b(f"v_add_u32 v{T+1}, {2*r}, v{T+1}")
        b(f"v_sub_u32 v{T+2}, 448, v{T}")
        b(f"v_mov_b32 v{T+3}, 0")
        b(f"v_cmp_eq_u32 vcc, 224, v{T}")
        b(f"v_cndmask_b32 v{T+2}, v{T+2}, v{T+3}, vcc")
        b(f"v_lshrrev_b32 v{T+3}, 4, v{T+2}")
        b(f"v_lshlrev_b32 v{A}, 12, v{T+3}")
        b(f"v_bfe_u32 v{T+3}, v{T+2}, 2, 2")
        b(f"v_lshl_add_u32 v{T+3}, v{T+3}, 4, v{V_C}")
        b(f"v_lshl_add_u32 v{A}, v{T+3}, 4, v{A}")
        b(f"v_and_b32 v{T+3}, 3, v{T+2}")
        b(f"v_lshl_add_u32 v{A}, v{T+3}, 1, v{A}")
        b(f"v_add_u32 v{A}, 8, v{A}")
        b(f"v_cmp_gt_u32 vcc, 224, v{T}")
        b(f"v_cndmask_b32 v{A}, v{A}, v{T+1}, vcc")
    for k in range(16): b(f"v_mov_b32 v{V_HRES+k}, 0")
    for tt in range(4):
        for r in range(4):
            b(f"ds_read_u16_d16_hi v{V_HRES + tt*4 + r}, v{V_HA + r} offset:{HL + tt*1024}", tag="hres")

def cs_loads(b, flags=""):
    b(f"s_lshl_b32 s6, s{S_J}, 10")
    b(f"s_lshl_b32 s7, s{S_W}, 8")
    b("s_add_u32 s6, s6, s7")
    b(f"s_add_u32 s6, s6, {WS_CS}")
    b(f"v_lshlrev_b32 v{V_T}, 4, v{V_GQ}")
    for ft in range(4):
        b(f"buffer_load_dwordx4 {v(V_CS+4*ft,4)}, v{V_T}, s[{R_WS}:{R_WS+3}], s6 offen offset:{64*ft} {flags}", tag="cs")

def w2_setup(b):
    b(f"v_lshrrev_b32 v{V_T}, 3, v0")
    b(f"v_bfe_u32 v{V_T+1}, v{V_T}, 1, 2")
    b(f"v_lshlrev_b32 v{V_T+1}, 1, v{V_T+1}")
    b(f"v_and_b32 v{V_T+2}, 7, v0")
    b(f"v_xor_b32 v{V_T+2}, v{V_T+2}, v{V_T+1}")
    b(f"v_lshlrev_b32 v{V_T+2}, 4, v{V_T+2}")
    b(f"v_mul_u32_u24 v{V_T+1}, 896, v{V_T}")
    b(f"v_add_u32 v{V_W2O}, v{V_T+1}, v{V_T+2}")
    b(f"v_lshrrev_b32 v{V_T}, 2, v{V_C}")
    b(f"v_lshl_add_u32 v{V_T}, v{V_GQ}, 2, v{V_T}")
    b(f"v_bfe_u32 v{V_T+1}, v{V_T}, 1, 2")
    b(f"v_xor_b32 v{V_T+1}, s{S_W}, v{V_T+1}")
    b(f"v_lshlrev_b32 v{V_T+1}, 5, v{V_T+1}")
    b(f"v_lshl_add_u32 v{V_T+1}, v{V_T}, 7, v{V_T+1}")
    b(f"v_and_b32 v{V_T+2}, 3, v0")
    b(f"v_lshl_add_u32 v{V_T+1}, v{V_T+2}, 3, v{V_T+1}")
    b(f"v_add_u32 v{V_TR2}, {RING}, v{V_T+1}")
    b(f"v_add_u32 v{V_TR2+1}, {RING+49152}, v{V_T+1}")
    b(f"v_lshlrev_b32 v{V_PBO}, 4, v0")

S_TAU = 74
S_W2B = 81
def w2_scalars(b):
    for p in range(7):
        b(f"s_add_u32 s6, s{S_J}, {p+1}")
        b("s_cmp_ge_u32 s6, 7")
        b("s_cselect_b32 s7, 7, 0")
        b(f"s_sub_u32 s{S_TAU+p}, s6, s7")
    b(f"s_lshl_b32 s6, s{S_J}, 8")
    b(f"s_lshl_b32 s7, s{S_W}, 6")
    b("s_add_u32 s6, s6, s7")
    b(f"s_mul_i32 s{S_W2B}, s6, 896")

def w2_dma(b, p, flags=""):
    sg = (p + 1) % 3
    out = []
    for n in range(8):
        def f(n=n):
            b(f"s_lshl_b32 s6, s{S_TAU+p}, 7")
            b(f"s_add_u32 s6, s6, s{S_W2B}")
            if n: b(f"s_add_u32 s6, s6, {n*7168}")
            b(f"s_add_u32 m0, s{S_RW}, {sg*8192 + n*1024}")
            b(f"buffer_load_dwordx4 v{V_W2O}, s[{R_W2}:{R_W2+3}], s6 offen {flags} lds", tag=f"w2_{p}")
        out.append(f)
    return out

def gemm1(b, asc, desc, desc0):
    def reads(k):
        buf = k & 1; slot = k % 6
        out = []
        for u in range(4):
            for hh in range(2):
                out.append(lambda u=u, hh=hh: b(f"ds_read_b64_tr_b16 {v(V_A1 + 16*buf + 4*u + 2*hh, 2)}, v{V_TR1+u} offset:{slot*4096 + hh*2048}", tag=f"r{k}"))
        for lt in range(4):
            out.append(lambda lt=lt: b(f"ds_read_b128 {v(V_B1 + 16*buf + 4*lt, 4)}, v{V_HB+lt} offset:{k*4096}", tag=f"r{k}"))
        return out
    for r in range(64): b(f"v_mov_b32 v{V_ACC1+r}, 0")
    for r in range(4): b(f"v_mov_b32 v{V_S+r}, 0")
    b(f"v_mov_b32 v{V_T+3}, 0x3f803f80")
    ONE = V_T + 3
    b.wait_vm("w1_0")
    for f in reads(0): f()
    for k in range(14):
        buf = k & 1
        b.wait_lg(f"r{k}")
        fill = []
        if k + 6 < 14: fill += w1_dma(b, k + 6, asc, desc, desc0)
        if k == 9: fill += w2_dma(b, 0)
        if k == 11: fill += w2_dma(b, 1)
        if k + 1 < 14:
            fill.append(lambda k=k: b.wait_vm(f"w1_{k+1}"))
            fill += reads(k + 1)
        bb = V_B1 + 16*buf
        for r in range(4):
            fill.append(f"v_dot2_f32_bf16 v{V_S + (r&1)}, v{bb + r}, v{ONE}, v{V_S + (r&1)}")
            fill.append(f"v_dot2_f32_bf16 v{V_S + 2 + (r&1)}, v{bb + r}, v{bb + r}, v{V_S + 2 + (r&1)}")
        mf = []
        for lt in range(4):
            for u in range(4):
                d = V_ACC1 + (u*4 + lt)*4
                mf.append(f"v_mfma_f32_16x16x32_bf16 {v(d,4)}, {v(V_A1 + 16*buf + 4*u, 4)}, {v(bb + 4*lt, 4)}, {v(d,4)}")
        weave(b, mf, fill, per=2)

def stats2(b):
    S0, S1, Q0, Q1 = V_S, V_S+1, V_S+2, V_S+3
    b(f"v_add_f32 v{S0}, v{S0}, v{S1}")
    b(f"v_add_f32 v{Q0}, v{Q0}, v{Q1}")
    b(f"v_permlane32_swap_b32 v{S0}, v{Q0}")
    b(f"v_add_f32 v{S0}, v{S0}, v{Q0}")
    b(f"v_mov_b32 v{S1}, v{S0}")
    b(f"v_permlane16_swap_b32 v{S0}, v{S1}")
    b(f"v_add_f32 v{S0}, v{S0}, v{S1}")
    b(f"v_mov_b32 v{Q0}, v{S0}")
    b(f"v_permlane32_swap_b32 v{S0}, v{Q0}")
    b(f"v_mul_f32 v{S0}, 0x3b124925, v{S0}")
    b(f"v_mul_f32 v{Q0}, 0x3b124925, v{Q0}")
    b(f"v_fma_f32 v{Q0}, -v{S0}, v{S0}, v{Q0}")
    b(f"v_max_f32 v{Q0}, 0, v{Q0}")
    b(f"v_mul_f32 v{Q0}, 0x3e800000, v{Q0}")
    b(f"v_add_f32 v{Q0}, 0x3727c5ac, v{Q0}")
    b(f"v_rsq_f32 v{Q0}, v{Q0}")
    b(f"v_sub_f32 v{S0}, 0, v{S0}")
    b(f"v_mul_f32 v{S1}, 0.5, v{Q0}")
    b(f"s_lshl_b32 s6, s{S_W}, 7")
    b(f"s_add_u32 s6, s6, {STAT2}")
    b(f"v_lshl_add_u32 v{V_T}, v{V_C}, 3, s6")
    assert V_S % 2 == 0
    b(f"ds_write_b64 v{V_T}, {v(S0,2)}")
    b("s_waitcnt lgkmcnt(0)")
    b("s_barrier")
    b(f"v_lshlrev_b32 v{V_T}, 3, v{V_C}")
    b(f"v_add_u32 v{V_T}, {STAT2}, v{V_T}")
    for tt in range(4):
        b(f"ds_read_b64 {v(V_RR+2*tt,2)}, v{V_T} offset:{128*tt}", tag="st")
    for lt in range(4):
        b(f"s_add_u32 s6, s{S_W}, {lt}")
        b("s_and_b32 s6, s6, 3")
        b("s_lshl_b32 s6, s6, 7")
        b(f"v_add_u32 v{V_T+1}, s6, v{V_T}")
        b(f"ds_read_b64 {v(V_NM+2*lt,2)}, v{V_T+1}", tag="st")

def gemm1_epi(b):
    b.wait_lg("st")
    b.wait_vm("cs")
    for lt in range(4):
        for fp in range(2):
            for hh in range(2):
                u = 2*fp + hh
                d = V_ACC1 + (u*4 + lt)*4
                for r in range(4):
                    b(f"v_fma_f32 v{d+r}, v{V_NM+2*lt}, v{V_CS + 4*u + r}, v{d+r}")
                pk = V_PK + 4*((lt*2 + fp) & 3) + 2*hh
                b(f"v_cvt_pk_bf16_f32 v{pk}, v{d}, v{d+1}")
                b(f"v_cvt_pk_bf16_f32 v{pk+1}, v{d+2}, v{d+3}")
                b(f"v_pk_max_i16 v{pk}, v{pk}, 0")
                b(f"v_pk_max_i16 v{pk+1}, v{pk+1}, 0")
            pk = V_PK + 4*((lt*2 + fp) & 3)
            b(f"s_lshl_b32 s6, s{S_W}, 13")
            b(f"s_add_u32 s6, s6, {fp*4096}")
            b(f"v_add_u32 v{V_T}, s6, v{V_HB+lt}")
            b(f"ds_write_b128 v{V_T}, {v(pk,4)}")
    b("s_waitcnt lgkmcnt(0)")
    b("s_barrier")

def gemm2(b, mode):
    b(f"v_lshlrev_b32 v{V_T}, 4, v0")
    for k2 in range(8):
        for tt in range(4):
            b(f"ds_read_b128 {a((k2*4 + tt)*4, 4)}, v{V_T} offset:{HL + k2*4096 + tt*1024}", tag=f"hb{k2}")
    def areads(p):
        sg = (p + 1) % 3
        out = []
        for k2 in range(8):
            part = k2 >> 1
            base = V_TR2 + (part >> 1)
            off = (part & 1)*24576 + sg*8192 + (k2 & 1)*4096
            for hh in range(2):
                out.append((k2, lambda k2=k2, hh=hh, base=base, off=off: b(f"ds_read_b64_tr_b16 {v(V_A2 + 4*(k2 & 3) + 2*hh, 2)}, v{base} offset:{off + hh*2048}", tag=f"a{p}_{k2}")))
        return out
    def epi(p):
        acc = V_ACC2 + 16*(p & 1)
        fl = []
        if p < 6:
            pk = V_PK
            for tt in range(4):
                for r in range(4):
                    fl.append(f"v_mul_f32 v{acc+4*tt+r}, v{V_RR+2*tt+1}, v{acc+4*tt+r}")
                fl.append(f"v_cvt_pk_bf16_f32 v{pk+2*tt}, v{acc+4*tt}, v{acc+4*tt+1}")
                fl.append(f"v_cvt_pk_bf16_f32 v{pk+2*tt+1}, v{acc+4*tt+2}, v{acc+4*tt+3}")
            def st(half):
                b(f"s_mul_i32 s6, s{S_IDX}, {PB_G}")
                b(f"s_mul_i32 s7, s{S_J}, {7*8192}")
                b("s_add_u32 s6, s6, s7")
                b(f"s_lshl_b32 s7, s{S_TAU+p}, 13")
                b("s_add_u32 s6, s6, s7")
                b(f"s_lshl_b32 s7, s{S_W}, 11")
                b("s_add_u32 s6, s6, s7")
                b(f"s_add_u32 s6, s6, {WS_PB}")
                b(f"buffer_store_dwordx4 {v(pk+4*half,4)}, v{V_PBO}, s[{R_WS}:{R_WS+3}], s6 offen offset:{1024*half} {'sc1' if PERSIST else ''}", tag="pst")
            fl.append(lambda: st(0)); fl.append(lambda: st(1))
        else:
            for tt in range(4):
                for r in range(4):
                    fl.append(f"v_mul_f32 v{acc+4*tt+r}, v{V_RR+2*tt+1}, v{acc+4*tt+r}")
                    fl.append(f"v_fma_f32 v{acc+4*tt+r}, 0.5, v{V_HRES+4*tt+r}, v{acc+4*tt+r}")
            def st():
                b(f"s_mul_i32 s6, s{S_IDX}, {7*16384}")
                b(f"s_lshl_b32 s7, s{S_J}, 14")
                b("s_add_u32 s6, s6, s7")
                b(f"s_lshl_b32 s7, s{S_W}, 12")
                b("s_add_u32 s6, s6, s7")
                b(f"s_add_u32 s6, s6, {WS_OWN}")
                for tt in range(4):
                    b(f"buffer_store_dwordx4 {v(acc+4*tt,4)}, v{V_PBO}, s[{R_WS}:{R_WS+3}], s6 offen offset:{1024*tt}")
            fl.append(st)
        return fl
    prev_epi = []
    for p in range(7):
        acc = V_ACC2 + 16*(p & 1)
        b.wait_vm(f"w2_{p}")
        b("s_waitcnt lgkmcnt(0)") if p > 0 else None
        b("s_barrier")
        ar = areads(p)
        for (k2, f) in ar[:4]: f()
        rest = ar[4:]
        dma = w2_dma(b, p + 2) if p + 2 < 7 else []
        extra = list(prev_epi) + dma
        ei = 0
        for k2 in range(8):
            if p == 0: b.wait_lg([f"hb{k2}", f"a{p}_{k2}"])
            else: b.wait_lg(f"a{p}_{k2}")
            mf = []
            for tt in range(4):
                c = v(acc+4*tt, 4) if k2 else "0"
                mf.append(f"v_mfma_f32_16x16x32_bf16 {v(acc+4*tt,4)}, {v(V_A2 + 4*(k2 & 3), 4)}, {a((k2*4+tt)*4, 4)}, {c}")
            fill = [f for (kk, f) in rest if kk == k2 + 2]
            n_extra = (len(extra) * (k2 + 1) + 7) // 8 - ei
            fill += extra[ei:ei + n_extra]; ei += n_extra
            weave(b, mf, fill, per=8)
        prev_epi = epi(p) if not (PERSIST and p == 6) else []
    if PERSIST: return
    b("s_nop 7")
    for f in prev_epi:
        f() if callable(f) else b(f)

def build_k2(name):
    b = Builder()
    b("s_cmp_ge_u32 s2, 224")
    b("s_cbranch_scc1 L_k2_end")
    load_kernargs(b)
    wave_lane(b)
    decode_wg(b)
    stamp(b, 0)
    p2_scalars(b)
    p2_addr(b)
    b("s_waitcnt lgkmcnt(0)")
    all_srds(b)
    stamp(b, 1)
    z_loads(b)
    m_loads(b)
    x_loads(b)
    ASC, DESC, DESC0 = 7, 8, 9
    w1_voffsets(b, ASC, DESC, DESC0)
    for k in range(6):
        for f in w1_dma(b, k, ASC, DESC, DESC0): f()
    stamp(b, 2)
    m_build(b)
    stamp(b, 3)
    cs_loads(b)
    x_build(b)
    stamp(b, 4)
    step_b(b)
    b("s_waitcnt lgkmcnt(0)")
    stamp(b, 5)
    b("s_barrier")
    w2_setup(b)
    w2_scalars(b)
    hres_gather(b)
    stamp(b, 6)
    gemm1(b, ASC, DESC, DESC0)
    stamp(b, 7)
    stats2(b)
    gemm1_epi(b)
    stamp(b, 8)
    gemm2(b, "multi")
    stamp(b, 9)
    if common.DIAG: b("s_waitcnt vmcnt(0)")
    stamp(b, 10)
    stamp_store(b, 1)
    b.label("L_k2_end")
    b("s_endpgm")
    txt = b.finalize()
    return kernel_header(name) + txt, b
```

```python
from common import *
import common
def build_k3(name):
    b = Builder()
    b("s_cmp_ge_u32 s2, 224")
    b("s_cbranch_scc1 L_k3_end")
    load_kernargs(b)
    wave_lane(b)
    decode_wg(b)
    stamp(b, 0, 100)
    b("v_lshlrev_b32 v1, 4, v0")
    b("v_and_b32 v2, 15, v0")
    b("v_lshrrev_b32 v3, 4, v0")
    b("s_waitcnt lgkmcnt(0)")
    all_srds(b)
    b(f"s_mul_i32 s6, s{S_IDX}, {7*16384}")
    b(f"s_lshl_b32 s7, s{S_J}, 14")
    b("s_add_u32 s6, s6, s7")
    b(f"s_lshl_b32 s7, s{S_W}, 12")
    b("s_add_u32 s6, s6, s7")
    b(f"s_add_u32 s6, s6, {WS_OWN}")
    for tt in range(4):
        b(f"buffer_load_dwordx4 {v(16+4*tt,4)}, v1, s[{R_WS}:{R_WS+3}], s6 offen offset:{1024*tt}", tag="own")
    for q in range(6):
        b(f"s_add_u32 s8, s{S_J}, {q+1}")
        b("s_cmp_ge_u32 s8, 7")
        b("s_cselect_b32 s9, 7, 0")
        b("s_sub_u32 s8, s8, s9")
        b(f"s_mul_i32 s6, s{S_IDX}, {PB_G}")
        b(f"s_mul_i32 s7, s8, {7*8192}")
        b("s_add_u32 s6, s6, s7")
        b(f"s_lshl_b32 s7, s{S_J}, 13")
        b("s_add_u32 s6, s6, s7")
        b(f"s_lshl_b32 s7, s{S_W}, 11")
        b("s_add_u32 s6, s6, s7")
        b(f"s_add_u32 s6, s6, {WS_PB}")
        for h in range(2):
            b(f"buffer_load_dwordx4 {v(32+8*q+4*h,4)}, v1, s[{R_WS}:{R_WS+3}], s6 offen offset:{1024*h}", tag=f"p{q}")
    stamp(b, 1, 100)
    b.wait_vm("own")
    stamp(b, 2, 100)
    for q in range(6):
        b.wait_vm(f"p{q}")
        for tt in range(4):
            for m in range(2):
                src = 32 + 8*q + 2*tt + m
                b(f"v_lshlrev_b32 v4, 16, v{src}")
                b(f"v_and_b32 v5, 0xffff0000, v{src}")
                b(f"v_add_f32 v{16+4*tt+2*m}, v{16+4*tt+2*m}, v4")
                b(f"v_add_f32 v{16+4*tt+2*m+1}, v{16+4*tt+2*m+1}, v5")
    b("v_mul_u32_u24 v4, 57344, v2")
    b("v_lshl_add_u32 v4, v3, 3, v4")
    b(f"s_sub_u32 s8, 64, s{S_IDX}")
    b(f"s_cmp_eq_u32 s{S_IDX}, 0")
    b("s_cselect_b32 s8, 32, s8")
    b(f"s_lshl_b32 s9, s{S_J}, 7")
    b(f"s_lshl_b32 s7, s{S_W}, 5")
    b("s_add_u32 s9, s9, s7")
    for tt in range(4):
        b(f"v_cvt_pk_bf16_f32 v{8+2*tt}, v{16+4*tt}, v{16+4*tt+1}")
        b(f"v_cvt_pk_bf16_f32 v{9+2*tt}, v{16+4*tt+2}, v{16+4*tt+3}")
        t1 = f"s{S_IDX}" if tt < 2 else "s8"
        b(f"s_add_u32 s6, {t1}, {1024*(tt&1)}")
        b("s_mul_i32 s6, s6, 896")
        b("s_add_u32 s6, s6, s9")
        b(f"buffer_store_dwordx2 {v(8+2*tt,2)}, v4, s[{R_OUT}:{R_OUT+3}], s6 offen")
    stamp(b, 3, 100)
    if common.DIAG: b("s_waitcnt vmcnt(0)")
    stamp(b, 4, 100)
    stamp_store(b, 2, 100)
    b.label("L_k3_end")
    b("s_endpgm")
    txt = b.finalize()
    return kernel_header(name) + txt, b
```

```python
from common import *
import common
import k2 as K2
from k2 import weave, units, preg, qreg, mreg

XL = 0
XRS = 912
RING = 58368
FX = RING
MX = RING + 8192
STAT = RING + 98304
LDS_TOTAL = STAT + 512
K2.HL = XL; K2.RING = RING; K2.STAT2 = STAT

WS_CNT = 0x210000
WS_FL = 0x220000

V_C, V_GQ = 1, 2
T0, T1, T2, T3 = 3, 4, 5, 6
V_XO = 7
V_ZO = 11
V_XB = 12
V_SA = 20
V_S0, V_S1, V_Q0, V_Q1 = 24, 25, 26, 27
V_ONE = 28
V_CS1 = 32
V_ACC = 36
V_AB = 52
V_WD = 84
V_XF = 140
V_F = 172
V_A = 204
V_D2 = 212
V_ZP = 228
V_AUX = 236
V_PF = 240

S_PI1, S_HF = 10, 11

def fbits(x):
    import struct
    return hex(struct.unpack("<I", struct.pack("<f", x))[0])

def p1_addr(b):
    b(f"v_and_b32 v{V_C}, 15, v0")
    b(f"v_lshrrev_b32 v{V_GQ}, 4, v0")
    b(f"v_lshrrev_b32 v{T0}, 3, v0")
    b(f"v_and_b32 v{T1}, 7, v0")
    b(f"v_xor_b32 v{T1}, v{T1}, v{T0}")
    b(f"v_lshlrev_b32 v{T1}, 4, v{T1}")
    b(f"v_mul_u32_u24 v{T0}, 28672, v{T0}")
    b(f"v_add_u32 v{V_XO}, v{T0}, v{T1}")

def p1_addr2(b):
    b(f"v_and_b32 v{T0}, 7, v{V_C}")
    b(f"v_lshrrev_b32 v{T1}, 3, v{V_C}")
    b(f"v_lshlrev_b32 v{T1}, 10, v{T1}")
    b(f"v_lshl_add_u32 v{T1}, v{T0}, 7, v{T1}")
    for par in range(2):
        b(f"v_add_u32 v{T2}, {4*par}, v{V_GQ}")
        b(f"v_xor_b32 v{T2}, v{T2}, v{T0}")
        b(f"v_lshl_add_u32 v{T3}, v{T2}, 4, v{T1}")
        for ls in range(4):
            b(f"s_add_u32 s6, s{S_W}, {ls}")
            b("s_and_b32 s6, s6, 3")
            b("s_lshl_b32 s6, s6, 11")
            b(f"v_add_u32 v{V_XB + 2*ls + par}, s6, v{T3}")
    b(f"v_lshlrev_b32 v{T0}, 5, v{V_GQ}")
    for ls in range(4):
        b(f"s_add_u32 s6, s{S_W}, {ls}")
        b("s_and_b32 s6, s6, 3")
        b("s_lshl_b32 s6, s6, 7")
        b(f"s_add_u32 s6, s6, {STAT}")
        b(f"v_add_u32 v{V_SA + ls}, s6, v{T0}")
    b(f"v_mul_u32_u24 v{T0}, {Z_G}, v{V_C}")
    b(f"v_lshl_add_u32 v{V_ZO}, v{V_GQ}, 4, v{T0}")
    for r in range(4): b(f"v_mov_b32 v{V_ONE + r}, 0x3f803f80")
    for r in range(4): b(f"v_mov_b32 v{V_CS1 + r}, 0")
    for r in range(16): b(f"v_mov_b32 v{V_ACC + r}, 0")
    for r in (V_S0, V_S1, V_Q0, V_Q1): b(f"v_mov_b32 v{r}, 0")

def x_dma(b, flags=""):
    b(f"s_lshl_b32 s6, s{S_W}, 9")
    b(f"s_add_u32 s6, s6, s{S_IDX}")
    b("s_mul_i32 s12, s6, 896")
    b("s_add_u32 s13, s12, 229376")
    b(f"s_lshl_b32 s14, s{S_W}, 11")
    for ksp in range(7):
        for o2 in range(2):
            b(f"s_add_u32 m0, s14, {XL + o2*1024 + 8064*ksp}")
            b(f"buffer_load_dwordx4 v{V_XO}, s[{R_X}:{R_X+3}], s{12+o2} offen offset:{128*ksp} {flags} lds", tag=f"x{ksp}")

def w_prefetch(b):
    b(f"s_mul_i32 s6, s2, 7168")
    b(f"s_lshl_b32 s7, s{S_W}, 10")
    b("s_add_u32 s6, s6, s7")
    b(f"v_lshlrev_b32 v{V_AUX}, 4, v0")
    for n in range(2):
        b(f"buffer_load_dwordx4 {v(V_PF + 8*n, 4)}, v{V_AUX}, s[{R_W1}:{R_W1+3}], s6 offen", tag="pf")
        b(f"buffer_load_dwordx4 {v(V_PF + 8*n + 4, 4)}, v{V_AUX}, s[{R_W2}:{R_W2+3}], s6 offen", tag="pf")
        if n == 0: b("s_add_u32 s6, s6, 4096")

def sync_init(b):
    b(f"s_mul_i32 s6, s{S_IDX}, 7")
    b(f"s_add_u32 s6, s6, s{S_J}")
    b("s_lshl_b32 s6, s6, 2")
    b(f"s_add_u32 s6, s6, s{S_W}")
    b("s_lshl_b32 s6, s6, 7")
    b(f"s_add_u32 s6, s6, {WS_FL}")
    b(f"v_mov_b32 v{V_AUX+1}, 0")
    b(f"v_lshlrev_b32 v{V_AUX+2}, 2, v0")
    b("s_mov_b64 exec, 0xff")
    b(f"buffer_store_dword v{V_AUX+1}, v{V_AUX+2}, s[{R_WS}:{R_WS+3}], s6 offen sc1", tag="fz")
    b("s_mov_b64 exec, -1")

def cnt_zero(b):
    lab = b.newlabel("L_nocz")
    b.notrack = True
    b("s_cmp_lt_u32 s2, 16")
    b(f"s_cbranch_scc0 {lab}")
    b(f"s_cmp_eq_u32 s{S_W}, 0")
    b(f"s_cbranch_scc0 {lab}")
    b("s_lshl_b32 s6, s2, 8")
    b(f"s_add_u32 s6, s6, {WS_CNT}")
    b(f"v_mov_b32 v{V_AUX+1}, 0")
    b("s_mov_b64 exec, 1")
    b(f"buffer_store_dword v{V_AUX+1}, v{V_AUX+1}, s[{R_WS}:{R_WS+3}], s6 offen sc1")
    b("s_mov_b64 exec, -1")
    b.label(lab)
    b.notrack = False

def cnt_announce(b, younger):
    lab = b.newlabel("L_noca")
    b.notrack = True
    b("s_cmp_lt_u32 s2, 16")
    b(f"s_cbranch_scc0 {lab}")
    b(f"s_cmp_eq_u32 s{S_W}, 0")
    b(f"s_cbranch_scc0 {lab}")
    b(f"s_waitcnt vmcnt({younger})")
    b(f"v_mov_b32 v{T0}, 1")
    b(f"v_mov_b32 v{T1}, 0")
    b("s_mov_b64 exec, 1")
    b(f"buffer_atomic_add v{T0}, v{T1}, s[{R_DBG}:{R_DBG+3}], 0 offen sc1")
    b("s_mov_b64 exec, -1")
    b.label(lab)
    b.notrack = False

def wd_gen(b):
    E, X, STEP, K2c, C0, C1, C2 = V_AB, V_AB+1, V_AB+2, V_AB+3, V_AB+4, V_AB+5, V_AB+6
    OFF = V_AB + 12
    b(f"s_lshr_b32 s6, s{S_W}, 1")
    b(f"s_lshl_b32 s7, s{S_J}, 1")
    b(f"s_add_u32 s{S_PI1}, s6, s7")
    b(f"s_and_b32 s{S_HF}, s{S_W}, 1")
    b(f"s_lshl_b32 s6, s{S_PI1}, 4")
    b(f"s_lshl_b32 s7, s{S_HF}, 3")
    b("s_add_u32 s6, s6, s7")
    b(f"v_lshrrev_b32 v{T0}, 1, v{V_C}")
    b(f"v_add_u32 v{T0}, s6, v{T0}")
    b(f"v_and_b32 v{T1}, 1, v{V_C}")
    b(f"v_lshl_or_b32 v{T2}, v{T0}, 1, v{T1}")
    b(f"v_mov_b32 v{T3}, 224")
    b(f"v_cmp_eq_u32 vcc, 1, v{T2}")
    b(f"v_cndmask_b32 v{T0}, v{T0}, v{T3}, vcc")
    b(f"v_mov_b32 v{T3}, 0")
    b(f"v_cndmask_b32 v{T1}, v{T1}, v{T3}, vcc")
    b(f"v_cvt_f32_u32 v{OFF}, v{T1}")
    b(f"v_mul_f32 v{OFF}, 0x3e800000, v{OFF}")
    b(f"v_cvt_f32_u32 v{E}, v{T0}")
    b(f"v_mul_f32 v{E}, 0x3b124925, v{E}")
    b(f"v_mul_u32_u24 v{T1}, 4682, v{T0}")
    b(f"v_lshrrev_b32 v{T1}, 16, v{T1}")
    b(f"v_mul_u32_u24 v{T1}, 14, v{T1}")
    b(f"v_sub_u32 v{T1}, v{T0}, v{T1}")
    b(f"v_cvt_f32_u32 v{STEP}, v{T1}")
    b(f"v_mul_f32 v{STEP}, {fbits(1.0/14)}, v{STEP}")
    b(f"v_mul_u32_u24 v{T1}, v{V_GQ}, v{T0}")
    b(f"v_mul_u32_u24 v{T2}, 1171, v{T1}")
    b(f"v_lshrrev_b32 v{T2}, 16, v{T2}")
    b(f"v_mul_u32_u24 v{T2}, 56, v{T2}")
    b(f"v_sub_u32 v{T1}, v{T1}, v{T2}")
    b(f"v_cvt_f32_u32 v{X}, v{T1}")
    b(f"v_fma_f32 v{X}, v{X}, {fbits(1.0/56)}, v{OFF}".replace(fbits(1.0/56), "s6")) if False else None
    b(f"s_mov_b32 s6, {fbits(1.0/56)}")
    b(f"v_fma_f32 v{X}, v{X}, s6, v{OFF}")
    b(f"v_cos_f32 v{K2c}, v{E}")
    b("s_nop 0")
    b(f"v_add_f32 v{K2c}, v{K2c}, v{K2c}")
    C = [V_AB + 4 + i for i in range(8)]
    for ks in range(14):
        b(f"v_add_f32 v{T0}, v{X}, v{E}")
        b(f"v_cos_f32 v{C[0]}, v{X}")
        b(f"v_cos_f32 v{C[1]}, v{T0}")
        if ks < 13:
            b(f"v_add_f32 v{X}, v{X}, v{STEP}")
            b(f"v_fract_f32 v{X}, v{X}")
        for n in range(2, 8):
            b(f"v_fma_f32 v{C[n]}, v{K2c}, v{C[n-1]}, -v{C[n-2]}")
            if n % 2 == 1 and n >= 3:
                b(f"v_cvt_pk_bf16_f32 v{V_WD + 4*ks + (n-3)//2}, v{C[n-3]}, v{C[n-2]}")
        b(f"v_cvt_pk_bf16_f32 v{V_WD + 4*ks + 3}, v{C[6]}, v{C[7]}")

def f_gen(b):
    S1 = V_AB
    G = V_AB + 4
    X = V_AB + 5
    CO = V_AB + 8
    SI = V_AB + 12
    PK = V_AB + 16
    AD = V_AB + 20
    b(f"s_lshl_b32 s6, s{S_W}, 4")
    b(f"v_lshl_add_u32 v{T0}, v{V_GQ}, 2, s6")
    b(f"v_cvt_f32_u32 v{T0}, v{T0}")
    b(f"v_mul_f32 v{T0}, 0x3c800000, v{T0}")
    b(f"v_mov_b32 v{S1}, v{T0}")
    for q in range(1, 4): b(f"v_add_f32 v{S1+q}, 0x3c800000, v{S1+q-1}")
    b(f"s_lshl_b32 s6, s{S_W}, 9")
    b(f"s_add_u32 s6, s6, {FX}")
    b(f"v_lshl_add_u32 v{AD}, v0, 3, s6")
    b(f"v_cmp_eq_u32 vcc, 0, v{V_C}")
    b(f"s_mov_b64 s[12:13], vcc") if False else None
    for gh in range(2):
        b(f"v_add_u32 v{T0}, {16*gh}, v{V_C}")
        b(f"v_cvt_f32_u32 v{G}, v{T0}")
        for q in range(4):
            b(f"v_mul_f32 v{X}, v{G}, v{S1+q}")
            b(f"v_cos_f32 v{CO+q}, v{X}")
            b(f"v_sin_f32 v{SI+q}, -v{X}")
        b(f"v_cvt_pk_f16_f32 v{PK}, v{CO}, v{CO+1}")
        b(f"v_cvt_pk_f16_f32 v{PK+1}, v{CO+2}, v{CO+3}")
        b(f"v_cvt_pk_f16_f32 v{PK+2}, v{SI}, v{SI+1}")
        b(f"v_cvt_pk_f16_f32 v{PK+3}, v{SI+2}, v{SI+3}")
        if gh == 0:
            b(f"v_mov_b32 v{T1}, 0xbc003c00")
            b(f"v_cmp_eq_u32 vcc, 0, v{V_C}")
            b(f"v_cndmask_b32 v{PK+2}, v{PK+2}, v{T1}, vcc")
            b(f"v_cndmask_b32 v{PK+3}, v{PK+3}, v{T1}, vcc")
        b(f"ds_write_b64 v{AD}, {v(PK,2)} offset:{(gh*2+0)*2048}")
        b(f"ds_write_b64 v{AD}, {v(PK+2,2)} offset:{(gh*2+1)*2048}")

def f_read(b):
    for ls in range(4):
        b(f"s_add_u32 s6, s{S_W}, {ls}")
        b("s_and_b32 s6, s6, 3")
        b("s_lshl_b32 s6, s6, 9")
        b(f"s_add_u32 s6, s6, {FX}")
        b(f"v_lshl_add_u32 v{T0}, v0, 3, s6")
        for gh in range(2):
            for sg in range(2):
                reg = V_F + ((gh*2 + sg)*2 + (ls >> 1))*4 + 2*(ls & 1)
                b(f"ds_read_b64 {v(reg,2)}, v{T0} offset:{(gh*2+sg)*2048}", tag="f")

S_T1B = 76
def m_gen(b):
    X, DX, CO, SI, PK = V_AB, V_AB+1, V_AB+2, V_AB+3, V_AB+4
    P, Q, AD = V_AB+8, V_AB+12, V_AB+16
    b(f"s_sub_u32 s8, 64, s{S_IDX}")
    b(f"s_cmp_eq_u32 s{S_IDX}, 0")
    b("s_cselect_b32 s8, 32, s8")
    b(f"s_cmp_lt_u32 s{S_W}, 2")
    b(f"s_cselect_b32 s8, s{S_IDX}, s8")
    b(f"s_and_b32 s9, s{S_W}, 1")
    b("s_lshl_b32 s9, s9, 10")
    b("s_add_u32 s8, s8, s9")
    b(f"v_lshl_add_u32 v{T0}, v{V_C}, 6, s8")
    b(f"v_cvt_f32_u32 v{DX}, v{T0}")
    b(f"v_mul_f32 v{DX}, 0x3a000000, v{DX}")
    selP = [0x03020100, 0x03020100, 0x0c0c0100, 0x01000c0c]
    selQ = [0x01000302, 0x01000302, 0x0c0c0302, 0x03020c0c]
    sgnQ = [0x80000000, 0x00008000, 0, 0]
    neg = [0, 0x80000000, 0, 0]
    def pick(dst, tbl):
        b(f"s_cmp_lt_u32 s{S_W}, 2")
        b(f"s_mov_b32 s9, {hex(tbl[0])}"); b(f"s_mov_b32 s12, {hex(tbl[1])}")
        b("s_cselect_b32 s9, s9, s12")
        b(f"s_mov_b32 s13, {hex(tbl[2])}"); b(f"s_mov_b32 s12, {hex(tbl[3])}")
        b("s_cselect_b32 s13, s13, s12")
        b(f"s_cmp_eq_u32 s{S_IDX}, 0")
        b(f"s_cselect_b32 s{dst}, s13, s9")
    pick(72, selP); pick(73, selQ); pick(74, sgnQ); pick(75, neg)
    b(f"v_xor_b32 v{DX}, s75, v{DX}")
    b(f"s_lshl_b32 s6, s{S_W}, 12")
    b(f"s_add_u32 s6, s6, {MX}")
    b(f"v_lshl_add_u32 v{AD}, v0, 4, s6")
    for ks in range(2):
        b(f"v_lshlrev_b32 v{T0}, 2, v{V_GQ}")
        if ks: b(f"v_add_u32 v{T0}, 16, v{T0}")
        b(f"v_cvt_f32_u32 v{T0}, v{T0}")
        b(f"v_mul_f32 v{X}, v{T0}, v{DX}")
        for j in range(4):
            b(f"v_cos_f32 v{CO}, v{X}")
            b(f"v_sin_f32 v{SI}, v{X}")
            if j < 3: b(f"v_add_f32 v{X}, v{X}, v{DX}")
            else: b("s_nop 0")
            b(f"v_cvt_pk_f16_f32 v{PK}, v{CO}, v{SI}")
            b(f"v_perm_b32 v{P+j}, v{PK}, v{PK}, s72")
            b(f"v_perm_b32 v{Q+j}, v{PK}, v{PK}, s73")
            b(f"v_xor_b32 v{Q+j}, s74, v{Q+j}")
        b(f"ds_write_b128 v{AD}, {v(P,4)} offset:{(ks*2+0)*1024}")
        b(f"ds_write_b128 v{AD}, {v(Q,4)} offset:{(ks*2+1)*1024}")

def m_read(b):
    b(f"s_and_b32 s7, s{S_W}, 1")
    b("s_lshl_b32 s7, s7, 1")
    for lt in range(4):
        b(f"s_xor_b32 s6, s7, {lt}")
        b("s_lshl_b32 s6, s6, 12")
        b(f"s_add_u32 s6, s6, {MX}")
        b(f"v_lshl_add_u32 v{T0}, v0, 4, s6")
        for ks in range(2):
            for pq in range(2):
                b(f"ds_read_b128 {a(mreg(lt,ks,pq),4)}, v{T0} offset:{(ks*2+pq)*1024}", tag="m")

def p1_compute(b, stages=((0,1),(2,3),(4,5,6)), after_x=None, pre_store=None):
    def xread(ks, buf):
        ksp, par = ks >> 1, ks & 1
        for ls in range(4):
            b(f"ds_read_b128 {v(V_XF + 16*buf + 4*ls, 4)}, v{V_XB + 2*ls + par} offset:{XL + ksp*8192}", tag=f"xf{ks}")
    first = True
    for si, stg in enumerate(stages):
        b.wait_vm(f"x{stg[-1]}")
        if first: b("s_waitcnt lgkmcnt(0)")
        b("s_barrier")
        stamp(b, 3 + si)
        if first:
            f_read(b); m_read(b)
            first = False
        kss = [k for p in stg for k in (2*p, 2*p+1)]
        xread(kss[0], kss[0] & 1)
        for n, ks in enumerate(kss):
            buf = ks & 1
            nxt = kss[n+1] if n + 1 < len(kss) else None
            if nxt is not None: xread(nxt, nxt & 1)
            b.wait_lg(f"xf{ks}")
            xf = V_XF + 16*buf
            dots = []
            for r in range(4):
                dots.append(f"v_dot2_f32_bf16 v{V_S0 + (r&1)}, v{xf + r}, v{V_ONE}, v{V_S0 + (r&1)}")
                dots.append(f"v_dot2_f32_bf16 v{V_Q0 + (r&1)}, v{xf + r}, v{xf + r}, v{V_Q0 + (r&1)}")
            for ls in range(4):
                b(f"v_mfma_f32_16x16x32_bf16 {v(V_ACC + 4*ls, 4)}, {v(xf + 4*ls, 4)}, {v(V_WD + 4*ks, 4)}, {v(V_ACC + 4*ls, 4)}")
                b(dots[2*ls]); b(dots[2*ls+1])
            b(f"v_mfma_f32_16x16x32_bf16 {v(V_CS1, 4)}, {v(V_ONE, 4)}, {v(V_WD + 4*ks, 4)}, {v(V_CS1, 4)}")
    stamp(b, 6)
    b(f"v_add_f32 v{V_S0}, v{V_S0}, v{V_S1}")
    b(f"v_add_f32 v{V_Q0}, v{V_Q0}, v{V_Q1}")
    b(f"v_permlane32_swap_b32 v{V_S0}, v{V_Q0}")
    b(f"v_add_f32 v{V_S0}, v{V_S0}, v{V_Q0}")
    b(f"v_mov_b32 v{V_S1}, v{V_S0}")
    b(f"v_permlane16_swap_b32 v{V_S0}, v{V_S1}")
    b(f"v_add_f32 v{V_S0}, v{V_S0}, v{V_S1}")
    b(f"v_mov_b32 v{V_Q0}, v{V_S0}")
    b(f"v_permlane32_swap_b32 v{V_S0}, v{V_Q0}")
    b(f"v_mul_f32 v{V_S0}, 0x3b124925, v{V_S0}")
    b(f"v_mul_f32 v{V_Q0}, 0x3b124925, v{V_Q0}")
    b(f"v_fma_f32 v{V_Q0}, -v{V_S0}, v{V_S0}, v{V_Q0}")
    b(f"v_max_f32 v{V_Q0}, 0, v{V_Q0}")
    b(f"v_add_f32 v{V_Q0}, 0x3727c5ac, v{V_Q0}")
    b(f"v_rsq_f32 v{V_Q0}, v{V_Q0}")
    b(f"s_lshl_b32 s6, s{S_W}, 7")
    b(f"s_add_u32 s6, s6, {STAT}")
    b(f"v_lshl_add_u32 v{T2}, v{V_C}, 3, s6")
    b(f"v_mul_f32 v{V_S1}, v{V_Q0}, v{V_S0}")
    b(f"v_add_f32 v{V_S0}, v{V_Q0}, v{V_Q0}")
    b(f"v_mul_f32 v{V_S1}, -2.0, v{V_S1}")
    b(f"ds_write_b64 v{T2}, {v(V_S0, 2)}", tag="st")
    b("s_waitcnt lgkmcnt(0)")
    b("s_barrier")
    for ls in range(4):
        b(f"ds_read_b128 {v(V_AB + 8*ls, 4)}, v{V_SA + ls}", tag=f"ab{ls}")
        b(f"ds_read_b128 {v(V_AB + 8*ls + 4, 4)}, v{V_SA + ls} offset:16", tag=f"ab{ls}")
    if after_x: after_x()
    for ls in range(4):
        b.wait_lg(f"ab{ls}")
        for r in range(4):
            b(f"v_mul_f32 v{V_AB + 8*ls + 2*r + 1}, v{V_AB + 8*ls + 2*r + 1}, v{V_CS1}")
        for r in range(4):
            b(f"v_fma_f32 v{V_ACC + 4*ls + r}, v{V_AB + 8*ls + 2*r}, v{V_ACC + 4*ls + r}, v{V_AB + 8*ls + 2*r + 1}")
        for m in range(2):
            b(f"v_cvt_pk_f16_f32 v{V_A + 2*ls + m}, v{V_ACC + 4*ls + 2*m}, v{V_ACC + 4*ls + 2*m + 1}")
    stamp(b, 7)
    if pre_store: pre_store()
    for gh in range(2):
        for sg in range(2):
            d = V_D2 + (gh*2 + sg)*4
            b(f"v_mfma_f32_16x16x32_f16 {v(d,4)}, {v(V_A,4)}, {v(V_F + ((gh*2+sg)*2)*4,4)}, 0")
        for sg in range(2):
            d = V_D2 + (gh*2 + sg)*4
            b(f"v_mfma_f32_16x16x32_f16 {v(d,4)}, {v(V_A+4,4)}, {v(V_F + ((gh*2+sg)*2+1)*4,4)}, {v(d,4)}")
    b(f"s_lshl_b32 s6, s{S_PI1}, 12")
    b(f"s_lshl_b32 s7, s{S_IDX}, 7")
    b("s_add_u32 s6, s6, s7")
    b(f"s_lshl_b32 s7, s{S_HF}, 6")
    b("s_add_u32 s6, s6, s7")
    if WS_Z: b(f"s_add_u32 s6, s6, {WS_Z}")
    b(f"s_add_u32 s7, s6, {16*Z_G}")
    for gh in range(2):
        for r in range(4):
            b(f"v_cvt_pk_f16_f32 v{V_ZP + 4*gh + r}, v{V_D2 + (gh*2)*4 + r}, v{V_D2 + (gh*2+1)*4 + r}")
        b(f"buffer_store_dwordx4 {v(V_ZP + 4*gh, 4)}, v{V_ZO}, s[{R_WS}:{R_WS+3}], s{6+gh} offen sc1", tag="zst")

def xres_dma(b):
    b(f"s_sub_u32 s8, 64, s{S_IDX}")
    b(f"s_cmp_eq_u32 s{S_IDX}, 0")
    b("s_cselect_b32 s8, 32, s8")
    b(f"s_cmp_lt_u32 s{S_W}, 2")
    b(f"s_cselect_b32 s8, s{S_IDX}, s8")
    b(f"s_and_b32 s9, s{S_W}, 1")
    b("s_lshl_b32 s9, s9, 10")
    b("s_add_u32 s8, s8, s9")
    b("s_mul_i32 s8, s8, 896")
    b(f"s_mul_i32 s9, s{S_W}, {16*XRS}")
    b(f"v_lshlrev_b32 v{V_AUX}, 4, v0")
    b("s_mov_b32 exec_hi, 0x00ffffff")
    for c in range(16):
        b(f"s_add_u32 m0, s9, {XL + c*XRS}")
        b(f"s_add_u32 s6, s8, {c*57344}")
        b(f"buffer_load_dwordx4 v{V_AUX}, s[{R_X}:{R_X+3}], s6 offen lds", tag="xres")
    b("s_mov_b32 exec_hi, -1")

def dbg_load(b, reg):
    b(f"v_mov_b32 v{reg}, 0")
    b(f"buffer_load_dword v{reg}, v{reg}, s[{R_DBG}:{R_DBG+3}], 0 offen sc1", tag="dbg")

def arrive(b, reg):
    lab = b.newlabel("L_arr")
    b.notrack = True
    b(f"s_cmp_eq_u32 s{S_W}, 0")
    b(f"s_cbranch_scc0 {lab}")
    l2 = b.newlabel("L_chk"); l3 = b.newlabel("L_chkd")
    b(f"v_mov_b32 v{T1}, 0")
    b("s_mov_b32 s12, 0")
    b(f"v_readfirstlane_b32 s13, v{reg}")
    b("s_cmp_eq_u32 s13, 16")
    b(f"s_cbranch_scc1 {l3}")
    b.label(l2)
    b(f"buffer_load_dword v{T0}, v{T1}, s[{R_DBG}:{R_DBG+3}], 0 offen sc1")
    b("s_waitcnt vmcnt(0)")
    b(f"v_readfirstlane_b32 s13, v{T0}")
    b("s_add_u32 s12, s12, 1")
    b("s_cmp_ge_u32 s12, 0x100000")
    b(f"s_cbranch_scc1 {l3}")
    b("s_cmp_eq_u32 s13, 16")
    b(f"s_cbranch_scc0 {l2}")
    b.label(l3)
    b("s_and_b32 s6, s2, 15")
    b("s_lshl_b32 s6, s6, 8")
    b(f"s_add_u32 s6, s6, {WS_CNT}")
    b(f"v_mov_b32 v{T0}, 1")
    b("s_mov_b64 exec, 1")
    b(f"buffer_atomic_add v{T0}, v{T1}, s[{R_WS}:{R_WS+3}], s6 offen sc1")
    b("s_mov_b64 exec, -1")
    b.label(lab)
    b.notrack = False

def poll_barrier(b):
    lab = b.newlabel("L_nopoll")
    b.notrack = True
    b(f"s_cmp_eq_u32 s{S_W}, 0")
    b(f"s_cbranch_scc0 {lab}")
    l2 = b.newlabel("L_poll"); l3 = b.newlabel("L_polld")
    b(f"v_and_b32 v{T1}, 15, v0")
    b(f"v_mov_b32 v{T2}, 16")
    b(f"v_mov_b32 v{T3}, 15")
    b(f"v_cmp_gt_u32 vcc, 12, v{T1}")
    b(f"v_cndmask_b32 v{T2}, v{T3}, v{T2}, vcc")
    b(f"v_lshlrev_b32 v{T1}, 8, v{T1}")
    b(f"s_mov_b32 s6, {WS_CNT}")
    b("s_mov_b32 s12, 0")
    b.label(l2)
    b(f"buffer_load_dword v{T0}, v{T1}, s[{R_WS}:{R_WS+3}], s6 offen sc1")
    b("s_add_u32 s12, s12, 1")
    b("s_cmp_ge_u32 s12, 0x100000")
    b(f"s_cbranch_scc1 {l3}")
    b("s_waitcnt vmcnt(0)")
    b(f"v_cmp_eq_u32 vcc, v{T0}, v{T2}")
    b("s_nop 1")
    b("s_cmp_eq_u64 vcc, exec")
    b(f"s_cbranch_scc0 {l2}")
    b.label(l3)
    b("s_waitcnt vmcnt(0)")
    b.label(lab)
    b.notrack = False
    b("s_barrier")

def x_init(b):
    T = K2.V_TMP
    us = units()
    def rd(p, lt):
        P, Q = preg(p, lt), qreg(p, lt)
        b(f"s_lshl_b32 s6, s{K2.S_TT+lt}, 4")
        b(f"s_mul_i32 s6, s6, {XRS}")
        b(f"s_lshl_b32 s7, s{K2.S_PI+p}, 5")
        b("s_add_u32 s8, s6, s7")
        b("s_sub_u32 s9, s6, s7")
        b(f"v_add_u32 v{T0}, s8, v{K2.V_X1}")
        b(f"v_add_u32 v{T1}, s9, v{K2.V_X2}")
        b(f"ds_read_b64 {v(P,2)}, v{T0} offset:{XL}", tag=f"xr{p}_{lt}")
        b(f"ds_read_b64 {v(Q,2)}, v{T1} offset:{XL}", tag=f"xr{p}_{lt}")
        b(f"ds_read_b32 v{Q+2}, v{T1} offset:{XL+8}", tag=f"xr{p}_{lt}")
    def build(p, lt):
        P, Q = preg(p, lt), qreg(p, lt)
        b(f"v_lshlrev_b32 v{T+0}, 16, v{P}")
        b(f"v_and_b32 v{T+1}, 0xffff0000, v{P}")
        b(f"v_lshlrev_b32 v{T+2}, 16, v{P+1}")
        b(f"v_and_b32 v{T+3}, 0xffff0000, v{P+1}")
        b(f"v_lshlrev_b32 v{T+4}, 16, v{Q+2}")
        b(f"v_and_b32 v{T+5}, 0xffff0000, v{Q+1}")
        b(f"v_lshlrev_b32 v{T+6}, 16, v{Q+1}")
        b(f"v_and_b32 v{T+7}, 0xffff0000, v{Q}")
        if p == 0:
            b(f"v_cndmask_b32 v{T+4}, v{T+4}, v{T+0}, s[{K2.S_MASK}:{K2.S_MASK+1}]")
        for r in range(4):
            b(f"v_add_f32 v{P+r}, v{T+r}, v{T+4+r}")
            b(f"v_sub_f32 v{Q+r}, v{T+r}, v{T+4+r}")
    for lt in range(4):
        b(f"s_lshl_b32 s6, s{K2.S_TT+lt}, 4")
        b(f"s_mul_i32 s6, s6, {XRS}")
        b(f"v_add_u32 v{T0}, s6, v{K2.V_X1}")
        b(f"ds_read_b32 v{K2.V_E + 4*lt}, v{T0} offset:{XL+448}", tag="xe")
    D = 4
    for i in range(min(D, len(us))): rd(*us[i])
    for i, u in enumerate(us):
        b.wait_lg(f"xr{u[0]}_{u[1]}")
        build(*u)
        if i + D < len(us): rd(*us[i + D])
    b.wait_lg("xe")
    for lt in range(4):
        E = K2.V_E + 4*lt
        b(f"v_lshlrev_b32 v{E}, 16, v{E}")
        b(f"v_add_f32 v{E}, v{E}, v{E}")
        for r in range(1, 4): b(f"v_mov_b32 v{E+r}, 0")

def x_addr(b):
    b(f"v_mul_u32_u24 v{T0}, {XRS}, v{V_C}")
    b(f"v_lshl_add_u32 v{K2.V_X1}, v{V_GQ}, 3, v{T0}")
    b(f"v_lshlrev_b32 v{T1}, 3, v{V_GQ}")
    b(f"v_sub_u32 v{T1}, 888, v{T1}")
    b(f"v_add_u32 v{K2.V_X2}, v{T0}, v{T1}")

def final_reduce(b):
    acc = K2.V_ACC2 + 16*(6 & 1)
    b("s_nop 7")
    for tt in range(4):
        for r in range(4):
            b(f"v_mul_f32 v{acc+4*tt+r}, v{K2.V_RR+2*tt+1}, v{acc+4*tt+r}")
            b(f"v_fma_f32 v{acc+4*tt+r}, 0.5, v{K2.V_HRES+4*tt+r}, v{acc+4*tt+r}")
    b("s_waitcnt vmcnt(0)")
    stamp(b, 11)
    b(f"v_add_u32 v{T0}, s{S_J}, v0")
    b(f"v_add_u32 v{T0}, 1, v{T0}")
    b(f"v_subrev_u32 v{T1}, 7, v{T0}")
    b(f"v_cmp_le_u32 vcc, 7, v{T0}")
    b(f"v_cndmask_b32 v{T0}, v{T0}, v{T1}, vcc")
    b(f"s_mul_i32 s6, s{S_IDX}, 7")
    b(f"v_add_u32 v{T0}, s6, v{T0}")
    b(f"v_lshlrev_b32 v{T0}, 9, v{T0}")
    b(f"s_lshl_b32 s6, s{S_W}, 7")
    b(f"s_lshl_b32 s7, s{S_J}, 2")
    b("s_add_u32 s6, s6, s7")
    b(f"s_add_u32 s6, s6, {WS_FL}")
    b(f"v_mov_b32 v{T1}, 1")
    b("s_mov_b64 exec, 0x3f")
    b(f"buffer_store_dword v{T1}, v{T0}, s[{R_WS}:{R_WS+3}], s6 offen sc1")
    b("s_mov_b64 exec, -1")
    b(f"s_mul_i32 s6, s{S_IDX}, 7")
    b(f"s_add_u32 s6, s6, s{S_J}")
    b("s_lshl_b32 s6, s6, 2")
    b(f"s_add_u32 s6, s6, s{S_W}")
    b("s_lshl_b32 s6, s6, 7")
    b(f"s_add_u32 s6, s6, {WS_FL}")
    b(f"v_lshlrev_b32 v{T1}, 2, v0")
    b(f"s_lshl_b32 s7, 1, s{S_J}")
    b("s_xor_b32 s8, s7, 0x7f")
    b("s_mov_b32 s9, 0")
    l2 = b.newlabel("L_fp"); l3 = b.newlabel("L_fpd")
    b("s_mov_b32 s12, 0")
    b("s_mov_b64 exec, s[8:9]")
    b.label(l2)
    b(f"buffer_load_dword v{T0}, v{T1}, s[{R_WS}:{R_WS+3}], s6 offen sc1")
    b("s_add_u32 s12, s12, 1")
    b("s_cmp_ge_u32 s12, 0x100000")
    b(f"s_cbranch_scc1 {l3}")
    b("s_waitcnt vmcnt(0)")
    b(f"v_cmp_eq_u32 vcc, 1, v{T0}")
    b("s_nop 1")
    b("s_cmp_eq_u64 vcc, exec")
    b(f"s_cbranch_scc0 {l2}")
    b.label(l3)
    b("s_waitcnt vmcnt(0)")
    b("s_mov_b64 exec, -1")
    b.vm = []
    stamp(b, 12)
    PR = 160
    for q in range(6):
        b(f"s_add_u32 s8, s{S_J}, {q+1}")
        b("s_cmp_ge_u32 s8, 7")
        b("s_cselect_b32 s9, 7, 0")
        b("s_sub_u32 s8, s8, s9")
        b(f"s_mul_i32 s6, s{S_IDX}, {PB_G}")
        b(f"s_mul_i32 s7, s8, {7*8192}")
        b("s_add_u32 s6, s6, s7")
        b(f"s_lshl_b32 s7, s{S_J}, 13")
        b("s_add_u32 s6, s6, s7")
        b(f"s_lshl_b32 s7, s{S_W}, 11")
        b("s_add_u32 s6, s6, s7")
        b(f"s_add_u32 s6, s6, {WS_PB}")
        for h in range(2):
            b(f"buffer_load_dwordx4 {v(PR+8*q+4*h,4)}, v{K2.V_PBO}, s[{R_WS}:{R_WS+3}], s6 offen offset:{1024*h} sc1", tag=f"p{q}")
    for q in range(6):
        b.wait_vm(f"p{q}")
        for tt in range(4):
            for m in range(2):
                src = PR + 8*q + 2*tt + m
                b(f"v_lshlrev_b32 v{T0}, 16, v{src}")
                b(f"v_and_b32 v{T1}, 0xffff0000, v{src}")
                b(f"v_add_f32 v{acc+4*tt+2*m}, v{acc+4*tt+2*m}, v{T0}")
                b(f"v_add_f32 v{acc+4*tt+2*m+1}, v{acc+4*tt+2*m+1}, v{T1}")
    stamp(b, 13)
    b(f"v_mul_u32_u24 v{T0}, 57344, v{V_C}")
    b(f"v_lshl_add_u32 v{T0}, v{V_GQ}, 3, v{T0}")
    b(f"s_sub_u32 s8, 64, s{S_IDX}")
    b(f"s_cmp_eq_u32 s{S_IDX}, 0")
    b("s_cselect_b32 s8, 32, s8")
    b(f"s_lshl_b32 s9, s{S_J}, 7")
    b(f"s_lshl_b32 s7, s{S_W}, 5")
    b("s_add_u32 s9, s9, s7")
    for tt in range(4):
        b(f"v_cvt_pk_bf16_f32 v{PR+2*tt}, v{acc+4*tt}, v{acc+4*tt+1}")
        b(f"v_cvt_pk_bf16_f32 v{PR+1+2*tt}, v{acc+4*tt+2}, v{acc+4*tt+3}")
        t1 = f"s{S_IDX}" if tt < 2 else "s8"
        b(f"s_add_u32 s6, {t1}, {1024*(tt&1)}")
        b("s_mul_i32 s6, s6, 896")
        b("s_add_u32 s6, s6, s9")
        b(f"buffer_store_dwordx2 {v(PR+2*tt,2)}, v{T0}, s[{R_OUT}:{R_OUT+3}], s6 offen")


def build_pk(name):
    import k1
    K2.DFT = "f16"; K2.PERSIST = True
    common.TS_REG = 8
    b = Builder()
    b("s_cmp_ge_u32 s2, 252")
    b("s_cbranch_scc1 L_end")
    load_kernargs(b)
    b("v_mov_b32 v9, v0")
    wave_lane(b)
    b("s_cmp_ge_u32 s2, 224")
    b("s_cbranch_scc1 L_cs")
    decode_wg(b)
    p1_addr(b)
    b("s_waitcnt lgkmcnt(0)")
    all_srds(b)
    stamp(b, 0)
    cnt_zero(b)
    x_dma(b)
    w_prefetch(b)
    sync_init(b)
    stamp(b, 1)
    p1_addr2(b)
    wd_gen(b)
    cnt_announce(b, 19)
    f_gen(b)
    m_gen(b)
    stamp(b, 2)
    p1_compute(b, pre_store=lambda: dbg_load(b, 10))
    stamp(b, 8)
    K2.ring_scalars(b)
    xres_dma(b)
    K2.w1_voffsets(b, 237, 238, 239)
    for k in range(6):
        for f in K2.w1_dma(b, k, 237, 238, 239): f()
    b.wait_vm(["zst", "dbg"])
    b("s_barrier")
    arrive(b, 10)
    stamp(b, 9)
    K2.p2_scalars(b)
    K2.p2_addr(b)
    x_addr(b)
    b.wait_vm("xres")
    b("s_barrier")
    x_init(b)
    stamp(b, 10)
    poll_barrier(b)
    stamp(b, 14)
    K2.z_loads(b, "sc1")
    K2.cs_loads(b, "sc1")
    K2.step_b(b)
    b("s_waitcnt lgkmcnt(0)")
    stamp(b, 15)
    b("s_barrier")
    K2.w2_setup(b)
    K2.w2_scalars(b)
    K2.w1_voffsets(b, 56, 57, 58)
    K2.hres_gather(b)
    stamp(b, 16)
    K2.gemm1(b, 56, 57, 58)
    stamp(b, 17)
    K2.stats2(b)
    K2.gemm1_epi(b)
    stamp(b, 18)
    K2.gemm2(b, "persist")
    stamp(b, 19)
    final_reduce(b)
    stamp(b, 20)
    if common.DIAG: b("s_waitcnt vmcnt(0)")
    stamp(b, 21)
    stamp_store(b, 0)
    b("s_endpgm")
    b.label("L_cs")
    b("s_waitcnt lgkmcnt(0)")
    all_srds(b)
    dbg_load(b, 90)
    k1.cs_job(b, "sc1")
    b("s_waitcnt vmcnt(0)")
    b("s_barrier")
    arrive(b, 90)
    b.label("L_end")
    b("s_endpgm")
    txt = b.finalize()
    return kernel_header(name) + txt, b
```

```python
import sys
from common import *
import k1

HEADER = """; FNet block (preLN + 2-D DFT mixing + ReLU FFN) for gfx950, generated by gen/build.py
"""
def assemble(parts):
    s = HEADER
    for name, grid, block, lds, txt, desc in parts:
        s += f"; @launch kernel={name} grid=({grid},1,1) block=({block},1,1) lds={lds}\n"
    s += '.amdgcn_target "amdgcn-amd-amdhsa--gfx950"\n.text\n'
    for p in parts: s += p[4] + "\n"
    s += '.section .rodata,"a"\n'
    for p in parts: s += p[5]
    return s

def build(which):
    parts = []
    if "k1" in which:
        txt, b = k1.build_k1("fnet_p1_kernel")
        parts.append(("fnet_p1_kernel", 252, 256, 58368, txt, kernel_desc("fnet_p1_kernel", 256, 256)))
    if "k2" in which:
        import k2
        txt, b = k2.build_k2("fnet_p2_kernel")
        parts.append(("fnet_p2_kernel", 224, 256, 163840, txt, kernel_desc("fnet_p2_kernel", 512, 256)))
    if "k3" in which:
        import k3
        txt, b = k3.build_k3("fnet_p3_kernel")
        parts.append(("fnet_p3_kernel", 224, 256, 0, txt, kernel_desc("fnet_p3_kernel", 128, 128)))
    if "pk" in which:
        import pk
        nm = NAME + "_kernel"
        txt, b = pk.build_pk(nm)
        s = HEADER + f"; @launch grid=(252,1,1) block=(256,1,1) lds={pk.LDS_TOTAL}\n"
        s += '.amdgcn_target "amdgcn-amd-amdhsa--gfx950"\n.text\n' + txt + '\n.section .rodata,"a"\n' + kernel_desc(nm, 512, 256)
        return s
    return assemble(parts)

if __name__ == "__main__":
    out = sys.argv[1]
    import common
    if len(sys.argv) > 3 and "diag" in sys.argv[3]: common.DIAG = True
    open(out, "w").write(build(sys.argv[2].split(",")))
```

```python
from asmb import *
import common
from common import NAME, kernel_header, kernel_desc, X_BYTES, W_BYTES, WS_BYTES, Z_G, PB_G
import struct

def fbits(x): return hex(struct.unpack("<I", struct.pack("<f", x))[0])

class Cfg:
    diag = False
    w_prefetch = True
    xflags = ""
    x_now1dma = False
    x_now2dma = False
    x_noreads = False
    x_nobar2 = False
    x_nostore = False
    fine = False
    cyc = False
    finef = False
    x_noguard = False
    ring0 = 18
    buf4 = True
    fineb = False
cfg = Cfg()

WS_Z = 0
WS_CS = 0x200000
WS_CNT = 0x210000
WS_FL = 0x220000
WS_PB = 0x400000
WS_TS = 0x4000000

XL = 0
XRS = 928
RING = 64 * XRS
FX = RING
MX = RING + 8192
STAT = RING + 98304
LDS_TOTAL = STAT + 768

S_WG, S_W, S_IDX, S_J = 2, 3, 4, 5
P_X, P_W1, P_W2, P_OUT, P_DBG, P_WS = 16, 28, 30, 32, 34, 36
R_X, R_W1, R_W2, R_WS, R_OUT, R_DBG = 40, 44, 48, 52, 56, 60
S_TT = 16
S_PI = 20
S_ZL = 24
S_RW = 28
S_W1B = 29
S_Z0, S_Z1 = 30, 31
S_DIAG = 32
S_M1 = 34
S_MASK = 64
S_W2 = 66
S_PB = 73
S_IN = 79
S_XR = 85
S_O = 86
S_P32 = 90
S_TMP = 94
S_HWB = 94
S_N32 = 98
S_CSO = 97

V_C, V_GQ, V_TS = 1, 2, 58
T = 4
V_HB = 12
V_TR1 = 16
V_W1O = 20
V_W2O = 24
V_TR2 = 28
V_L16 = 30
V_ZO = 31
V_CSA = 31
V_HW = 32
V_HWS = 36
V_HA = 38
V_SEL1, V_SEL2, V_NSEL2 = 42, 46, 50
V_XA = 54
V_AUX = 3
V_TR2H = 59
V_NEG = 60
V_GT = 4
V_WD = 64
V_XF = 120
V_ACC = 152
V_SS = 168
V_QQ = 172
V_CS1 = 176
V_ONE = 180
V_F = 184
V_XB = 216
V_SA = 224
V_XO = 228
V_ZO1 = 229
V_G = 230
V_AB = V_XF
V_A = V_WD
V_D2 = V_WD + 8
V_ZP = V_WD + 24
A_PF = 128
A_S0 = 128
V_Z = 64
V_P, V_Q, V_PS, V_QS, V_E = 128, 176, 224, 232, 240
V_ACC1 = 128
V_A1 = 192
V_B1 = 224
V_CS = 64
V_HRES = 80
V_PK = 96
V_NM = 112
V_RR = 120
V_S2 = 42
V_Q2 = 46
V_ONE2 = 50
V_A2 = 192
V_ACC2 = 128
V_IN = 160

def stamp(b, i, force=False):
    if not cfg.diag: return
    if cfg.fine and not force and i != 0 and not getattr(b, "finezone", False): return
    if i == 0 and not getattr(b, "tsinit", False):
        b(f"v_mov_b32 v{V_TS}, 0"); b.tsinit = True
        if cfg.fine: return
    b("s_memtime s[14:15]" if cfg.cyc else "s_memrealtime s[14:15]")
    b("s_waitcnt lgkmcnt(0)")
    b(f"v_writelane_b32 v{V_TS}, s14, {i}")
def stamp_store(b):
    if not cfg.diag: return
    b("s_waitcnt vmcnt(0)")
    stamp(b, 31, True)
    b("s_lshl_b32 s6, s2, 9")
    b(f"s_lshl_b32 s7, s{S_W}, 7")
    b("s_add_u32 s6, s6, s7")
    b(f"s_add_u32 s6, s6, {WS_TS}")
    b(f"v_lshlrev_b32 v{T}, 2, v0")
    b("s_mov_b32 exec_hi, 0")
    b(f"buffer_store_dword v{V_TS}, v{T}, s[{R_WS}:{R_WS+3}], s6 offen")
    b("s_waitcnt vmcnt(0)")
    b("s_mov_b64 exec, -1")

def srd(b, r, p, nbytes):
    b(f"s_mov_b32 s{r}, s{p}")
    b(f"s_mov_b32 s{r+1}, s{p+1}")
    b(f"s_mov_b32 s{r+2}, {hex(nbytes)}")
    b(f"s_mov_b32 s{r+3}, 0x00020000")

def emit(b, f):
    f() if callable(f) else b(f)

def weave(b, mfmas, fillers, per=2):
    k = 0; n = len(mfmas)
    for i, m in enumerate(mfmas):
        b(m)
        want = ((i + 1) * len(fillers) + n - 1) // n
        cnt = 0
        while k < len(fillers) and k < want and cnt < per:
            emit(b, fillers[k]); k += 1; cnt += 1
    while k < len(fillers):
        emit(b, fillers[k]); k += 1

class Rec:
    def __init__(self): self.l = []
    def __call__(self, s, tag=None, track=True):
        assert tag is None
        self.l.append(s)
def record(fn, *args):
    r = Rec(); fn(r, *args)
    out = []; i = 0; l = r.l
    while i < len(l):
        if l[i].startswith("s_cmp"):
            j = i + 1
            while j < len(l) and l[j].startswith(("s_cselect", "s_mov")): j += 1
            out.append("\n".join(l[i:j])); i = j
        else:
            out.append(l[i]); i += 1
    return out

def spread(b, main, extra, every):
    k = 0
    for i, m in enumerate(main):
        emit(b, m)
        if (i + 1) % every == 0 and k < len(extra):
            emit(b, extra[k]); k += 1
    while k < len(extra):
        emit(b, extra[k]); k += 1

MF = "v_mfma_f32_16x16x32_bf16"
MH = "v_mfma_f32_16x16x32_f16"

def decode(b):
    b("s_and_b32 s6, s2, 7")
    b("s_lshr_b32 s7, s2, 3")
    b("s_mul_i32 s8, s7, 37")
    b("s_lshr_b32 s8, s8, 8")
    b("s_mul_i32 s9, s8, 7")
    b(f"s_sub_u32 s{S_J}, s7, s9")
    b("s_lshl_b32 s8, s8, 3")
    b(f"s_add_u32 s{S_IDX}, s6, s8")

def rot(b, dst, ls, shift):
    if ls == 0:
        b(f"s_lshl_b32 s{dst}, s{S_W}, {shift}")
    else:
        b(f"s_add_u32 s{dst}, s{S_W}, {ls}")
        b(f"s_and_b32 s{dst}, s{dst}, 3")
        b(f"s_lshl_b32 s{dst}, s{dst}, {shift}")

def p1_addr(b):
    t = T
    b(f"v_and_b32 v{V_C}, 15, v0")
    b(f"v_lshrrev_b32 v{V_GQ}, 4, v0")
    b(f"v_lshlrev_b32 v{V_L16}, 4, v0")
    b(f"v_lshrrev_b32 v{t}, 3, v0")
    b(f"v_and_b32 v{t+1}, 7, v0")
    b(f"v_xor_b32 v{t+1}, v{t+1}, v{t}")
    b(f"v_lshlrev_b32 v{t+1}, 4, v{t+1}")
    b(f"v_mul_u32_u24 v{V_XO}, 28672, v{t}")
    b(f"v_add_u32 v{V_XO}, v{V_XO}, v{t+1}")
    b(f"s_lshl_b32 s6, s{S_W}, 9")
    b(f"s_add_u32 s6, s6, s{S_IDX}")
    b("s_mul_i32 s12, s6, 896")
    b("s_add_u32 s13, s12, 229376")
    b(f"s_lshl_b32 s11, s{S_W}, 11")

def x_dma(b):
    for ksp in range(7):
        for o2 in range(2):
            b(f"s_add_u32 m0, s11, {XL + o2*1024 + 8064*ksp}")
            b(f"buffer_load_dwordx4 v{V_XO}, s[{R_X}:{R_X+3}], s{12+o2} offen offset:{128*ksp} {cfg.xflags} lds", tag=f"x{ksp}")

def p1_addr2(b):
    t = T
    b(f"v_and_b32 v{t}, 7, v{V_C}")
    b(f"v_lshrrev_b32 v{t+1}, 3, v{V_C}")
    b(f"v_lshlrev_b32 v{t+1}, 10, v{t+1}")
    b(f"v_lshl_add_u32 v{t+1}, v{t}, 7, v{t+1}")
    for par in range(2):
        b(f"v_add_u32 v{t+2}, {4*par}, v{V_GQ}") if par else b(f"v_mov_b32 v{t+2}, v{V_GQ}")
        b(f"v_xor_b32 v{t+2}, v{t+2}, v{t}")
        b(f"v_lshl_add_u32 v{t+3+par}, v{t+2}, 4, v{t+1}")
    b(f"v_lshlrev_b32 v{t+5}, 4, v{V_GQ}")
    for ls in range(4):
        rot(b, 6, ls, 11)
        b(f"v_add_u32 v{V_XB + 2*ls}, s6, v{t+3}")
        b(f"v_add_u32 v{V_XB + 2*ls + 1}, s6, v{t+4}")
        b("s_lshr_b32 s6, s6, 5")
        b(f"s_add_u32 s6, s6, {STAT}")
        b(f"v_add_u32 v{V_SA + ls}, s6, v{t+5}")
    b(f"v_mul_u32_u24 v{V_ZO1}, {Z_G}, v{V_C}")
    b(f"v_lshl_add_u32 v{V_ZO1}, v{V_GQ}, 4, v{V_ZO1}")
    b(f"v_mov_b32 v{V_ONE}, 0x3f803f80")
    for r in range(1, 4): b(f"v_mov_b32 v{V_ONE + r}, v{V_ONE}")
    b(f"v_lshrrev_b32 v{t}, 2, v{V_C}")
    b(f"v_cmp_eq_u32 s[{S_TMP}:{S_TMP+1}], v{t}, v{V_GQ}")
    b(f"v_and_b32 v{t}, 3, v{V_C}")
    for r in range(1, 4):
        b(f"v_cmp_eq_u32 s[{S_TMP+2*r}:{S_TMP+2*r+1}], {r}, v{t}")

def move_masks(b):
    for k in range(8): b(f"s_mov_b32 s{S_DIAG+k}, s{S_TMP+k}")

def wd_setup(b):
    t = T
    E, X, STEP, K2 = V_G, V_G+1, V_G+2, V_G+3
    b(f"s_lshr_b32 s6, s{S_W}, 1")
    b(f"s_lshl_b32 s7, s{S_J}, 1")
    b("s_add_u32 s8, s6, s7")
    b(f"s_and_b32 s9, s{S_W}, 1")
    b("s_lshl_b32 s6, s8, 12")
    b(f"s_lshl_b32 s7, s{S_IDX}, 7")
    b("s_add_u32 s6, s6, s7")
    b("s_lshl_b32 s7, s9, 6")
    b(f"s_add_u32 s{S_TMP+6}, s6, s7") if False else b("s_add_u32 s10, s6, s7")
    b("s_lshl_b32 s6, s8, 4")
    b("s_lshl_b32 s7, s9, 3")
    b("s_add_u32 s6, s6, s7")
    b(f"v_lshrrev_b32 v{t}, 1, v{V_C}")
    b(f"v_add_u32 v{t}, s6, v{t}")
    b(f"v_and_b32 v{t+1}, 1, v{V_C}")
    b(f"v_lshl_or_b32 v{t+2}, v{t}, 1, v{t+1}")
    b(f"v_mov_b32 v{t+3}, 224")
    b(f"v_cmp_eq_u32 vcc, 1, v{t+2}")
    b(f"v_mov_b32 v{t+4}, 0")
    b(f"v_cndmask_b32 v{t}, v{t}, v{t+3}, vcc")
    b(f"v_cndmask_b32 v{t+1}, v{t+1}, v{t+4}, vcc")
    b(f"v_cvt_f32_u32 v{t+5}, v{t+1}")
    b(f"v_mul_f32 v{t+5}, 0x3e800000, v{t+5}")
    b(f"v_cvt_f32_u32 v{E}, v{t}")
    b(f"v_mul_f32 v{E}, 0x3b124925, v{E}")
    b(f"v_mul_u32_u24 v{t+1}, 4682, v{t}")
    b(f"v_lshrrev_b32 v{t+1}, 16, v{t+1}")
    b(f"v_mul_u32_u24 v{t+1}, 14, v{t+1}")
    b(f"v_sub_u32 v{t+1}, v{t}, v{t+1}")
    b(f"v_cvt_f32_u32 v{STEP}, v{t+1}")
    b(f"v_mul_f32 v{STEP}, {fbits(1.0/14)}, v{STEP}")
    b(f"v_mul_u32_u24 v{t+1}, v{V_GQ}, v{t}")
    b(f"v_mul_u32_u24 v{t+2}, 1171, v{t+1}")
    b(f"v_lshrrev_b32 v{t+2}, 16, v{t+2}")
    b(f"v_mul_u32_u24 v{t+2}, 56, v{t+2}")
    b(f"v_sub_u32 v{t+1}, v{t+1}, v{t+2}")
    b(f"v_cvt_f32_u32 v{X}, v{t+1}")
    b(f"v_mul_f32 v{X}, {fbits(1.0/56)}, v{X}")
    b(f"v_cos_f32 v{K2}, v{E}")
    b(f"v_add_f32 v{X}, v{X}, v{t+5}")
    b(f"v_add_f32 v{K2}, v{K2}, v{K2}")

def wd_gen(b):
    E, X, STEP, K2 = V_G, V_G+1, V_G+2, V_G+3
    C = [V_G + 4 + i for i in range(8)]
    X1 = V_G + 12
    for ks in range(14):
        b(f"v_cos_f32 v{C[0]}, v{X}")
        b(f"v_add_f32 v{X1}, v{X}, v{E}")
        b(f"v_cos_f32 v{C[1]}, v{X1}")
        if ks < 13:
            b(f"v_add_f32 v{X}, v{X}, v{STEP}")
            b(f"v_fract_f32 v{X}, v{X}")
        else:
            b("s_nop 0")
        if ks > 0:
            c = "0" if ks == 1 else v(V_CS1, 4)
            b(f"{MF} {v(V_CS1,4)}, {v(V_ONE,4)}, {v(V_WD + 4*(ks-1),4)}, {c}")
        for n in range(2, 8):
            b(f"v_fma_f32 v{C[n]}, v{K2}, v{C[n-1]}, -v{C[n-2]}")
            if n % 2 == 1:
                b(f"v_cvt_pk_bf16_f32 v{V_WD + 4*ks + (n-3)//2}, v{C[n-3]}, v{C[n-2]}")
        b(f"v_cvt_pk_bf16_f32 v{V_WD + 4*ks + 3}, v{C[6]}, v{C[7]}")
    b("s_nop 0")
    b(f"{MF} {v(V_CS1,4)}, {v(V_ONE,4)}, {v(V_WD + 4*13,4)}, {v(V_CS1,4)}")

def f_gen(b):
    t = T
    S1, G, X, CO, SI, PK, AD = V_G, V_G+4, V_G+5, V_G+8, V_G+12, V_G+16, V_G+20
    b(f"s_lshl_b32 s6, s{S_W}, 4")
    b(f"v_lshl_add_u32 v{t}, v{V_GQ}, 2, s6")
    b(f"v_cvt_f32_u32 v{t}, v{t}")
    b(f"v_mul_f32 v{S1}, 0x3c800000, v{t}")
    for q in range(1, 4): b(f"v_add_f32 v{S1+q}, 0x3c800000, v{S1+q-1}")
    b(f"s_lshl_b32 s6, s{S_W}, 9")
    b(f"s_add_u32 s6, s6, {FX}")
    b(f"v_lshl_add_u32 v{AD}, v0, 3, s6")
    b(f"v_cvt_f32_u32 v{G}, v{V_C}")
    b(f"v_mov_b32 v{t+1}, 0xbc003c00")
    b(f"v_cmp_eq_u32 vcc, 0, v{V_C}")
    for gh in range(2):
        if gh: b(f"v_add_f32 v{G}, 0x41800000, v{G}")
        for q in range(4):
            b(f"v_mul_f32 v{X+(q&1)}, v{G}, v{S1+q}")
            b(f"v_cos_f32 v{CO+q}, v{X+(q&1)}")
            b(f"v_sin_f32 v{SI+q}, -v{X+(q&1)}")
        b(f"v_cvt_pk_f16_f32 v{PK}, v{CO}, v{CO+1}")
        b(f"v_cvt_pk_f16_f32 v{PK+1}, v{CO+2}, v{CO+3}")
        b(f"v_cvt_pk_f16_f32 v{PK+2}, v{SI}, v{SI+1}")
        b(f"v_cvt_pk_f16_f32 v{PK+3}, v{SI+2}, v{SI+3}")
        if gh == 0:
            b(f"v_cndmask_b32 v{PK+2}, v{PK+2}, v{t+1}, vcc")
            b(f"v_cndmask_b32 v{PK+3}, v{PK+3}, v{t+1}, vcc")
        b(f"ds_write_b64 v{AD}, {v(PK,2)} offset:{(gh*2+0)*2048}")
        b(f"ds_write_b64 v{AD}, {v(PK+2,2)} offset:{(gh*2+1)*2048}")

def fm_addr(b):
    for ls in range(4):
        rot(b, 6, ls, 9)
        b(f"s_add_u32 s6, s6, {FX}")
        b(f"v_lshl_add_u32 v{V_G+ls}, v0, 3, s6")
    for lt in range(4):
        b(f"s_lshl_b32 s6, s{S_TT+lt}, 12")
        b(f"s_add_u32 s6, s6, {MX}")
        b(f"v_add_u32 v{V_G+4+lt}, s6, v{V_L16}")

def f_read(b):
    out = []
    for ls in range(4):
        for gh in range(2):
            for sg in range(2):
                reg = V_F + ((gh*2 + sg)*2 + (ls >> 1))*4 + 2*(ls & 1)
                out.append(lambda reg=reg, ls=ls, o=(gh*2+sg)*2048: b(f"ds_read_b64 {v(reg,2)}, v{V_G+ls} offset:{o}", tag="f"))
    return out

def mreg(lt, ks, pq): return ((lt*2 + ks)*2 + pq)*4

def t0_of_tt(b, dst, tt_sreg):
    b(f"s_sub_u32 s{dst}, 64, s{S_IDX}")
    b(f"s_cmp_eq_u32 s{S_IDX}, 0")
    b(f"s_cselect_b32 s{dst}, 32, s{dst}")
    b(f"s_cmp_lt_u32 s{tt_sreg}, 2")
    b(f"s_cselect_b32 s{dst}, s{S_IDX}, s{dst}")
    b(f"s_and_b32 s9, s{tt_sreg}, 1")
    b("s_lshl_b32 s9, s9, 10")
    b(f"s_add_u32 s{dst}, s{dst}, s9")

def m_gen(b):
    t = T
    X, DX, CO, SI, PK, P, Q, AD = V_G, V_G+1, V_G+2, V_G+3, V_G+4, V_G+8, V_G+12, V_G+16
    t0_of_tt(b, 8, S_W)
    b(f"s_mul_i32 s{S_XR}, s8, 896")
    b(f"v_lshl_add_u32 v{t}, v{V_C}, 6, s8")
    b(f"v_cvt_f32_u32 v{DX}, v{t}")
    b(f"v_mul_f32 v{DX}, 0x3a000000, v{DX}")
    selP = [0x03020100, 0x03020100, 0x0c0c0100, 0x01000c0c]
    selQ = [0x01000302, 0x01000302, 0x0c0c0302, 0x03020c0c]
    sgnQ = [0x80000000, 0x00008000, 0, 0]
    neg = [0, 0x80000000, 0, 0]
    def pick(dst, tbl):
        b(f"s_cmp_lt_u32 s{S_W}, 2")
        b(f"s_cselect_b32 s9, {hex(tbl[0])}, 0") if False else None
        b(f"s_mov_b32 s9, {hex(tbl[0])}"); b(f"s_mov_b32 s12, {hex(tbl[1])}")
        b("s_cselect_b32 s9, s9, s12")
        b(f"s_mov_b32 s13, {hex(tbl[2])}"); b(f"s_mov_b32 s12, {hex(tbl[3])}")
        b("s_cselect_b32 s13, s13, s12")
        b(f"s_cmp_eq_u32 s{S_IDX}, 0")
        b(f"s_cselect_b32 s{dst}, s13, s9")
    pick(S_TMP, selP); pick(S_TMP+1, selQ); pick(S_TMP+2, sgnQ); pick(S_TMP+3, neg)
    b(f"v_xor_b32 v{DX}, s{S_TMP+3}, v{DX}")
    b(f"s_lshl_b32 s6, s{S_W}, 12")
    b(f"s_add_u32 s6, s6, {MX}")
    b(f"v_add_u32 v{AD}, s6, v{V_L16}")
    b(f"v_lshlrev_b32 v{t}, 2, v{V_GQ}")
    b(f"v_cvt_f32_u32 v{t}, v{t}")
    for ks in range(2):
        if ks: b(f"v_add_f32 v{t}, 0x41800000, v{t}")
        b(f"v_mul_f32 v{X}, v{t}, v{DX}")
        for j in range(4):
            b(f"v_cos_f32 v{CO}, v{X}")
            b(f"v_sin_f32 v{SI}, v{X}")
            b(f"v_add_f32 v{X}, v{X}, v{DX}")
            b(f"v_cvt_pk_f16_f32 v{PK}, v{CO}, v{SI}")
            b(f"v_perm_b32 v{P+j}, v{PK}, v{PK}, s{S_TMP}")
            b(f"v_perm_b32 v{Q+j}, v{PK}, v{PK}, s{S_TMP+1}")
            b(f"v_xor_b32 v{Q+j}, s{S_TMP+2}, v{Q+j}")
        b(f"ds_write_b128 v{AD}, {v(P,4)} offset:{(ks*2+0)*1024}")
        b(f"ds_write_b128 v{AD}, {v(Q,4)} offset:{(ks*2+1)*1024}")

def m_read(b):
    out = []
    for lt in range(4):
        for ks in range(2):
            for pq in range(2):
                out.append(lambda lt=lt, ks=ks, pq=pq: b(f"ds_read_b128 {a(mreg(lt,ks,pq),4)}, v{V_G+4+lt} offset:{(ks*2+pq)*1024}", tag="m"))
    return out

def prefill_start(b):
    for r in range(4): b(f"v_mov_b32 v{V_NEG+r}, -1")
    b(f"s_add_u32 s7, s10, {16*Z_G}")
    b(f"buffer_store_dwordx4 {v(V_NEG,4)}, v{V_ZO1}, s[{R_WS}:{R_WS+3}], s10 offen sc1", tag="pre")
    b(f"buffer_store_dwordx4 {v(V_NEG,4)}, v{V_ZO1}, s[{R_WS}:{R_WS+3}], s7 offen sc1", tag="pre")
    own_line(b, 6)
    b(f"v_mov_b32 v{T}, 0")
    b("s_mov_b64 exec, 1")
    b(f"buffer_store_dword v{T}, v{T}, s[{R_WS}:{R_WS+3}], s6 offen sc1", tag="pre")
    b("s_mov_b64 exec, -1")

def arrive0(b):
    lab = b.newlabel("L_arr")
    b.notrack = True
    b(f"s_cmp_eq_u32 s{S_W}, 0")
    b(f"s_cbranch_scc0 {lab}")
    b("s_and_b32 s6, s2, 3")
    b("s_lshl_b32 s6, s6, 6")
    b(f"v_mov_b32 v{T}, 1")
    b(f"v_mov_b32 v{T+1}, 0")
    b("s_mov_b64 exec, 1")
    b(f"buffer_atomic_add v{T}, v{T+1}, s[{R_DBG}:{R_DBG+3}], s6 offen sc1")
    b("s_mov_b64 exec, -1")
    b.label(lab)
    b.notrack = False

V_B0 = 229 + 25
def b0_load(b, reg):
    b(f"v_and_b32 v{reg}, 3, v0")
    b(f"v_lshlrev_b32 v{reg}, 6, v{reg}")
    b(f"buffer_load_dword v{reg}, v{reg}, s[{R_DBG}:{R_DBG+3}], 0 offen sc1", tag="b0")

def b0_check(b, reg):
    b.wait_vm("b0")
    l2 = b.newlabel("L_b0"); l3 = b.newlabel("L_b0d")
    b("s_mov_b32 s12, 0")
    b.label(l2)
    b.notrack = True
    b(f"v_cmp_gt_u32 vcc, 63, v{reg}")
    b("s_cmp_eq_u64 vcc, 0")
    b(f"s_cbranch_scc1 {l3}")
    b("s_add_u32 s12, s12, 1")
    b("s_cmp_ge_u32 s12, 0x10000")
    b(f"s_cbranch_scc1 {l3}")
    b(f"v_and_b32 v{reg}, 3, v0")
    b(f"v_lshlrev_b32 v{reg}, 6, v{reg}")
    b(f"buffer_load_dword v{reg}, v{reg}, s[{R_DBG}:{R_DBG+3}], 0 offen sc1")
    b("s_waitcnt vmcnt(0)")
    b(f"s_branch {l2}")
    b.label(l3)
    b.notrack = False

def guarded(b, regs, reload, name):
    t0 = V_GT
    n = len(regs)
    def tree():
        b(f"v_max3_u32 v{t0}, v{regs[0]}, v{regs[1]}, v{regs[2]}")
        i = 3
        while i + 1 < n:
            b(f"v_max3_u32 v{t0}, v{t0}, v{regs[i]}, v{regs[i+1]}"); i += 2
        if i < n: b(f"v_max_u32 v{t0}, v{t0}, v{regs[i]}")
        b(f"v_cmp_eq_u32 vcc, -1, v{t0}")
        b("s_cmp_eq_u64 vcc, 0")
    slow = b.newlabel("L_slow"); back = b.newlabel("L_back")
    if cfg.x_noguard: return
    tree()
    b(f"s_cbranch_scc0 {slow}")
    b.label(back)
    b.slow.append((slow, back, reload, tree))

def emit_slow(b):
    for (slow, back, reload, tree) in b.slow:
        loop = b.newlabel("L_sl")
        b.label(slow)
        b.notrack = True
        b("s_mov_b32 s12, 0")
        b.label(loop)
        reload()
        b("s_waitcnt vmcnt(0)")
        tree()
        b(f"s_cbranch_scc1 {back}")
        b("s_add_u32 s12, s12, 1")
        b("s_cmp_lt_u32 s12, 0x4000")
        b(f"s_cbranch_scc1 {loop}")
        b(f"s_branch {back}")
        b.notrack = False

def w_prefetch(b):
    b("s_mul_i32 s6, s2, 7168")
    b(f"s_lshl_b32 s7, s{S_W}, 10")
    b("s_add_u32 s6, s6, s7")
    b("s_add_u32 s7, s6, 4096")
    for n in range(2):
        b(f"buffer_load_dwordx4 {a(A_PF + 8*n, 4)}, v{V_L16}, s[{R_W1}:{R_W1+3}], s{6+n} offen", tag="pf")
        b(f"buffer_load_dwordx4 {a(A_PF + 8*n + 4, 4)}, v{V_L16}, s[{R_W2}:{R_W2+3}], s{6+n} offen", tag="pf")

def own_line(b, dst):
    b(f"s_mul_i32 s{dst}, s{S_IDX}, 7")
    b(f"s_add_u32 s{dst}, s{dst}, s{S_J}")
    b(f"s_lshl_b32 s{dst}, s{dst}, 2")
    b(f"s_add_u32 s{dst}, s{dst}, s{S_W}")
    b(f"s_lshl_b32 s{dst}, s{dst}, 7")
    b(f"s_add_u32 s{dst}, s{dst}, {WS_FL}")

def p2_scalars(b):
    b(f"s_and_b32 s6, s{S_W}, 1")
    b("s_lshl_b32 s7, s6, 1")
    for lt in range(4): b(f"s_xor_b32 s{S_TT+lt}, s7, {lt}")
    b(f"s_lshr_b32 s7, s{S_W}, 1")
    b("s_mul_i32 s7, s7, 7")
    b("s_lshl_b32 s9, s6, 2")
    b("s_add_u32 s9, s9, s7")
    b(f"s_mov_b32 s{S_PI}, s9")
    for p in range(1, 3): b(f"s_add_u32 s{S_PI+p}, s9, {p}")
    b(f"s_add_u32 s{S_PI+3}, s7, 3")
    b(f"s_mul_i32 s7, s{S_IDX}, {Z_G}")
    for p in range(4):
        b(f"s_lshl_b32 s8, s{S_PI+p}, 12")
        b(f"s_add_u32 s{S_ZL+p}, s7, s8")
        b(f"s_lshl_b32 s{S_P32+p}, s{S_PI+p}, 5")
    b(f"s_cmp_eq_u32 s{S_W}, 0")
    b(f"s_cselect_b32 s{S_MASK}, 0xffff, 0")
    b(f"s_mov_b32 s{S_MASK+1}, 0")
    b(f"s_mul_i32 s{S_RW}, s{S_W}, 24576")
    b(f"s_add_u32 s{S_RW}, s{S_RW}, {RING}")
    b(f"s_lshl_b32 s7, s{S_J}, 9")
    b(f"s_lshl_b32 s9, s{S_W}, 7")
    b(f"s_add_u32 s{S_W1B}, s7, s9")
    b(f"s_mov_b32 s{S_Z0}, s10")
    b(f"s_add_u32 s{S_Z1}, s10, {16*Z_G}")

def inbox_scalars(b):
    b(f"s_mul_i32 s11, s{S_IDX}, {PB_G}")
    b(f"s_lshl_b32 s7, s{S_W}, 11")
    b("s_add_u32 s11, s11, s7")
    b(f"s_add_u32 s11, s11, {WS_PB}")
    b(f"s_lshl_b32 s13, s{S_J}, 13")
    b("s_add_u32 s13, s13, s11")
    for p in range(6):
        b(f"s_add_u32 s6, s{S_J}, {p+1}")
        b("s_sub_u32 s7, s6, 7")
        b("s_min_u32 s6, s6, s7")
        b(f"s_mul_i32 s7, s6, {7*8192}")
        b(f"s_add_u32 s{S_IN+p}, s13, s7")

def p2_scalars_late(b):
    b(f"s_lshl_b32 s{S_HWB}, s{S_W}, 13")
    b(f"s_lshl_b32 s6, s{S_J}, 8")
    b(f"s_lshl_b32 s7, s{S_W}, 6")
    b("s_add_u32 s6, s6, s7")
    b("s_mul_i32 s10, s6, 896")
    b(f"s_mul_i32 s11, s{S_IDX}, {PB_G}")
    b(f"s_lshl_b32 s7, s{S_W}, 11")
    b("s_add_u32 s11, s11, s7")
    b(f"s_add_u32 s11, s11, {WS_PB}")
    b(f"s_mul_i32 s12, s{S_J}, {7*8192}")
    b("s_add_u32 s12, s12, s11")
    for p in range(7):
        b(f"s_add_u32 s6, s{S_J}, {p+1}")
        b("s_sub_u32 s7, s6, 7")
        b("s_min_u32 s6, s6, s7")
        b("s_lshl_b32 s7, s6, 7")
        b(f"s_add_u32 s{S_W2+p}, s10, s7")
        if p < 6:
            b("s_lshl_b32 s7, s6, 13")
            b(f"s_add_u32 s{S_PB+p}, s12, s7")
    b(f"s_lshl_b32 s10, s{S_J}, 7")
    b(f"s_lshl_b32 s7, s{S_W}, 5")
    b("s_add_u32 s10, s10, s7")
    b(f"s_sub_u32 s8, 64, s{S_IDX}")
    b(f"s_cmp_eq_u32 s{S_IDX}, 0")
    b("s_cselect_b32 s8, 32, s8")
    for tt in range(4):
        src = f"s{S_IDX}" if tt < 2 else "s8"
        b(f"s_add_u32 s6, {src}, {1024*(tt&1)}")
        b("s_mul_i32 s6, s6, 896")
        b(f"s_add_u32 s{S_O+tt}, s6, s10")

def p2_addr(b):
    t = T
    for p in range(4): b(f"s_sub_u32 s{S_N32+p}, 864, s{S_P32+p}")
    b(f"v_lshlrev_b32 v{t}, 3, v{V_C}")
    b(f"v_lshl_add_u32 v{V_ZO}, v{V_GQ}, 9, v{t}")
    b(f"s_lshl_b32 s7, s{S_PI}, 12")
    b(f"s_lshl_b32 s8, s{S_PI+3}, 12")
    for lt in range(4):
        b(f"s_lshl_b32 s6, s{S_TT+lt}, 10")
        b("s_add_u32 s9, s6, s7")
        b(f"v_add_u32 v{V_HW+lt}, s9, v{V_L16}")
        if lt < 2:
            b("s_add_u32 s9, s6, s8")
            b(f"v_add_u32 v{V_HWS+lt}, s9, v{V_L16}")
        rot(b, 6, lt, 10)
        b(f"v_add_u32 v{V_HB+lt}, s6, v{V_L16}")
    b(f"v_lshrrev_b32 v{t}, 2, v{V_C}")
    b(f"v_lshl_add_u32 v{t}, v{V_GQ}, 2, v{t}")
    b(f"v_bfe_u32 v{t+1}, v{t}, 1, 2")
    b(f"v_and_b32 v{t+2}, 3, v0")
    b(f"v_lshlrev_b32 v{t+2}, 3, v{t+2}")
    b(f"v_lshl_add_u32 v{t+2}, v{t}, 7, v{t+2}")
    b(f"v_add_u32 v{t+4}, s{S_RW}, v{t+2}")
    for u in range(4):
        b(f"v_xor_b32 v{t+3}, {u}, v{t+1}")
        b(f"v_lshl_add_u32 v{V_TR1+u}, v{t+3}, 5, v{t+4}")
    b(f"v_xor_b32 v{t+3}, s{S_W}, v{t+1}")
    b(f"v_lshl_add_u32 v{t+3}, v{t+3}, 5, v{t+2}")
    b(f"v_add_u32 v{V_TR2}, {RING}, v{t+3}")
    b(f"v_add_u32 v{V_TR2+1}, {RING+49152}, v{t+3}")
    b(f"v_mov_b32 v{V_TR2H}, v{t+3}")
    b(f"v_lshrrev_b32 v{t}, 3, v0")
    b(f"v_bfe_u32 v{t+1}, v{t}, 1, 2")
    b(f"v_lshlrev_b32 v{t+1}, 1, v{t+1}")
    b(f"v_and_b32 v{t+2}, 7, v0")
    b(f"v_xor_b32 v{t+2}, v{t+2}, v{t+1}")
    b(f"v_lshlrev_b32 v{t+2}, 4, v{t+2}")
    b(f"v_mul_u32_u24 v{t+1}, 3584, v{t}")
    b(f"v_add_u32 v{V_W1O}, v{t+1}, v{t+2}")
    b(f"v_add_u32 v{V_W1O+1}, {8*3584 - 1024}, v{V_W1O}")
    b(f"v_sub_u32 v{t+3}, v{t+2}, v{t+1}")
    b(f"v_add_u32 v{V_W1O+2}, {15*3584 - 2048 + 4096}, v{t+3}")
    b(f"v_add_u32 v{V_W1O+3}, {7*3584 - 3072 + 4096}, v{t+3}")
    b(f"v_sub_u32 v{t+3}, 448, v{t}")
    b(f"v_mov_b32 v{t+4}, 224")
    b(f"v_cmp_eq_u32 vcc, 0, v{t}")
    b(f"v_mul_u32_u24 v{t+1}, 896, v{t}")
    b(f"v_cndmask_b32 v{t+3}, v{t+3}, v{t+4}, vcc")
    b(f"v_mul_u32_u24 v{t+3}, 3584, v{t+3}")
    b(f"v_add_u32 v{t+3}, v{t+3}, v{t+2}")
    b(f"v_subrev_u32 v{V_AUX}, 2048, v{t+3}")
    b(f"v_add_u32 v{V_W2O}, v{t+1}, v{t+2}")
    for n in range(1, 4):
        b(f"v_add_u32 v{V_W2O+n}, {n*(8*896 - 1024)}, v{V_W2O}")
    b(f"v_mul_u32_u24 v{t}, {XRS}, v{V_C}")
    b(f"v_lshl_add_u32 v{t}, v{V_GQ}, 4, v{t}")
    for lt in range(4):
        b(f"s_mul_i32 s6, s{S_TT+lt}, {16*XRS}")
        b(f"v_add_u32 v{V_XA+lt}, s6, v{t}")
    b(f"v_lshlrev_b32 v{t}, 3, v{V_GQ}")
    b(f"v_sub_u32 v{t+1}, v{V_C}, v{t}")
    b(f"v_sub_u32 v{t+2}, 16, v{V_C}")
    b(f"v_sub_u32 v{t+2}, v{t+2}, v{t}")
    b(f"v_mov_b32 v{t+3}, 0x3f80")
    b(f"v_mov_b32 v{t+4}, 0x3f800000")
    b(f"v_mov_b32 v{t+5}, 0")
    for (dst, src) in ((V_SEL1, t+1), (V_SEL2, t+2)):
        for m in range(4):
            b(f"v_cmp_eq_u32 vcc, {2*m}, v{src}")
            b(f"v_cmp_eq_u32 s[6:7], {2*m+1}, v{src}")
            b(f"v_cndmask_b32 v{dst+m}, v{t+5}, v{t+3}, vcc")
            b(f"v_cndmask_b32 v{dst+m}, v{dst+m}, v{t+4}, s[6:7]")
    for m in range(4):
        b(f"v_xor_b32 v{V_NSEL2+m}, 0x80008000, v{V_SEL2+m}")

def hres_addr(b):
    t = T
    b(f"s_lshl_b32 s6, s{S_J}, 6")
    b(f"s_lshl_b32 s7, s{S_W}, 4")
    b("s_add_u32 s6, s6, s7")
    b(f"v_lshl_add_u32 v{t+4}, v{V_GQ}, 2, s6")
    b("s_lshl_b32 s6, s6, 8")
    b(f"v_add_u32 v{t+5}, s6, v{V_L16}")
    for r in range(4):
        A = V_HA + r
        b(f"v_add_u32 v{t}, {r}, v{t+4}") if r else b(f"v_mov_b32 v{t}, v{t+4}")
        b(f"v_sub_u32 v{t+2}, 448, v{t}")
        b(f"v_mov_b32 v{t+3}, 0")
        b(f"v_cmp_eq_u32 vcc, 224, v{t}")
        b(f"v_add_u32 v{t+1}, {2*r}, v{t+5}")
        b(f"v_cndmask_b32 v{t+2}, v{t+2}, v{t+3}, vcc")
        b(f"v_lshrrev_b32 v{t+3}, 4, v{t+2}")
        b(f"v_lshlrev_b32 v{A}, 12, v{t+3}")
        b(f"v_bfe_u32 v{t+3}, v{t+2}, 2, 2")
        b(f"v_lshl_add_u32 v{t+3}, v{t+3}, 4, v{V_C}")
        b(f"v_lshl_add_u32 v{A}, v{t+3}, 4, v{A}")
        b(f"v_and_b32 v{t+3}, 3, v{t+2}")
        b(f"v_lshl_add_u32 v{A}, v{t+3}, 1, v{A}")
        b(f"v_cmp_gt_u32 vcc, 224, v{t}")
        b(f"v_add_u32 v{A}, 8, v{A}")
        b(f"v_cndmask_b32 v{A}, v{A}, v{t+1}, vcc")

def p1_loop(b, stages=((0,1),(2,3),(4,5,6))):
    def xread(ks):
        ksp, par, buf = ks >> 1, ks & 1, ks & 1
        return [(lambda ls=ls: b(f"ds_read_b128 {v(V_XF + 16*buf + 4*ls, 4)}, v{V_XB + 2*ls + par} offset:{XL + ksp*8192}", tag=f"xf{ks}")) for ls in range(4)]
    for si, stg in enumerate(stages):
        b.wait_vm([f"x{stg[-1]}", "pre"])
        if si == 0: b("s_waitcnt lgkmcnt(0)")
        b("s_barrier")
        if si == 0: arrive0(b)
        stamp(b, 3 + si)
        kss = [k for p in stg for k in (2*p, 2*p+1)]
        for f in xread(kss[0]): f()
        if si == 0:
            fm = f_read(b) + m_read(b)
        for n, ks in enumerate(kss):
            nxt = kss[n+1] if n + 1 < len(kss) else None
            b.wait_lg(f"xf{ks}")
            xf = V_XF + 16*(ks & 1)
            wd = v(V_WD + 4*ks, 4)
            z = ks == 0
            mf = [f"{MF} {v(V_QQ,4)}, {v(xf,4)}, {v(xf,4)}, {'0' if z else v(V_QQ,4)}",
                  f"{MF} {v(V_SS,4)}, {v(V_ONE,4)}, {v(xf,4)}, {'0' if z else v(V_SS,4)}"]
            for ls in range(4):
                mf.append(f"{MF} {v(V_ACC + 4*ls, 4)}, {v(xf + 4*ls, 4)}, {wd}, {'0' if z else v(V_ACC + 4*ls, 4)}")
            fill = xread(nxt) if nxt is not None else []
            fill = fill + fm[:6]; fm = fm[6:]
            weave(b, mf, fill, per=2)

def stats_core(b, SS, QQ, scale4):
    b(f"v_cndmask_b32 v{QQ}, v{QQ}, v{QQ+1}, s[{S_M1}:{S_M1+1}]")
    b(f"v_mul_f32 v{SS}, 0x3b124925, v{SS}")
    b(f"v_cndmask_b32 v{QQ}, v{QQ}, v{QQ+2}, s[{S_M1+2}:{S_M1+3}]")
    b(f"v_cndmask_b32 v{QQ}, v{QQ}, v{QQ+3}, s[{S_M1+4}:{S_M1+5}]")
    b(f"v_mul_f32 v{QQ}, 0x3b124925, v{QQ}")
    b(f"v_fma_f32 v{QQ}, -v{SS}, v{SS}, v{QQ}")
    b(f"v_max_f32 v{QQ}, 0, v{QQ}")
    if scale4:
        b(f"v_mul_f32 v{QQ}, 0x3e800000, v{QQ}")
    b(f"v_add_f32 v{QQ}, 0x3727c5ac, v{QQ}")
    b(f"v_rsq_f32 v{QQ}, v{QQ}")

def p1_tail(b):
    t = T
    stamp(b, 6)
    stats_core(b, V_SS, V_QQ, False)
    b(f"s_lshl_b32 s6, s{S_W}, 6")
    b(f"s_add_u32 s6, s6, {STAT}")
    b(f"v_lshl_add_u32 v{t}, v{V_C}, 2, s6")
    b(f"v_mul_f32 v{V_SS}, v{V_QQ}, v{V_SS}")
    b(f"v_add_f32 v{V_QQ}, v{V_QQ}, v{V_QQ}")
    b(f"v_mul_f32 v{V_SS}, -2.0, v{V_SS}")
    b(f"s_mov_b64 exec, s[{S_DIAG}:{S_DIAG+1}]")
    b(f"ds_write_b32 v{t}, v{V_QQ}")
    b(f"ds_write_b32 v{t}, v{V_SS} offset:256")
    b("s_mov_b64 exec, -1")
    b("s_waitcnt lgkmcnt(0)")
    b("s_barrier")
    for ls in range(4):
        b(f"ds_read_b128 {v(V_AB + 8*ls, 4)}, v{V_SA + ls}", tag=f"ab{ls}")
        b(f"ds_read_b128 {v(V_AB + 8*ls + 4, 4)}, v{V_SA + ls} offset:256", tag=f"ab{ls}")
    for ls in range(4):
        b.wait_lg(f"ab{ls}")
        al, be, ac = V_AB + 8*ls, V_AB + 8*ls + 4, V_ACC + 4*ls
        for h in range(2):
            b(f"v_pk_mul_f32 {v(be+2*h,2)}, {v(be+2*h,2)}, {v(V_CS1,2)} op_sel_hi:[1,0]")
        for h in range(2):
            b(f"v_pk_fma_f32 {v(ac+2*h,2)}, {v(al+2*h,2)}, {v(ac+2*h,2)}, {v(be+2*h,2)}")
        for h in range(2):
            b(f"v_cvt_pk_f16_f32 v{V_A + 2*ls + h}, v{ac+2*h}, v{ac+2*h+1}")
    stamp(b, 7)
    for gh in range(2):
        for sg in range(2):
            d = V_D2 + (gh*2 + sg)*4
            b(f"{MH} {v(d,4)}, {v(V_A,4)}, {v(V_F + ((gh*2+sg)*2)*4,4)}, 0")
    for gh in range(2):
        for sg in range(2):
            d = V_D2 + (gh*2 + sg)*4
            b(f"{MH} {v(d,4)}, {v(V_A+4,4)}, {v(V_F + ((gh*2+sg)*2+1)*4,4)}, {v(d,4)}")
    for gh in range(2):
        for r in range(4):
            b(f"v_cvt_pk_f16_f32 v{V_ZP + 4*gh + r}, v{V_D2 + (gh*2)*4 + r}, v{V_D2 + (gh*2+1)*4 + r}")
        b(f"buffer_store_dwordx4 {v(V_ZP + 4*gh, 4)}, v{V_ZO1}, s[{R_WS}:{R_WS+3}], s{S_Z0+gh} offen sc1", tag="zst")

def xres_dma(b):
    out = []
    def pre():
        b(f"s_mul_i32 s9, s{S_W}, {16*XRS}")
        b(f"v_lshrrev_b32 v{T}, 1, v0")
        b(f"v_mul_u32_u24 v{T}, {XRS}, v{T}")
        b(f"v_and_b32 v{T+1}, 1, v0")
        b(f"v_lshl_add_u32 v{T}, v{T+1}, 4, v{T}")
        b(f"v_add_u32 v{T}, s9, v{T}")
        for r in range(4): b(f"v_mov_b32 v{T+4+r}, 0")
        b("s_mov_b32 exec_hi, 0")
        b(f"ds_write_b128 v{T}, {v(T+4,4)} offset:{XL+896}")
        b("s_mov_b32 exec_hi, 0x00ffffff")
    pre()
    for c in range(16):
        b(f"s_add_u32 m0, s9, {XL + c*XRS}")
        b(f"s_add_u32 s6, s{S_XR}, {c*57344}")
        b(f"buffer_load_dwordx4 v{V_L16}, s[{R_X}:{R_X+3}], s6 offen lds", tag="xres")
    b("s_mov_b32 exec_hi, -1")

def w1_dma(b, k):
    slot = k % 6
    def hdr():
        b(f"s_add_u32 m0, s{S_RW}, {slot*4096}")
        b(f"s_add_u32 s95, s{S_W1B}, {16*k*3584}") if k else b(f"s_mov_b32 s95, s{S_W1B}")
    def hdr2():
        b(f"s_add_u32 s96, s{S_W1B}, {(433 - 16*k)*3584 - 4096}")
    out = [hdr]
    for n in range(4):
        def f(n=n):
            if n < 2: vo, so = V_W1O + n, "s95"
            elif k == 0 and n == 2: vo, so = V_AUX, f"s{S_W1B}"
            else: vo, so = V_W1O + n, "s96"
            off = f" offset:{1024*n}" if n else ""
            b(f"buffer_load_dwordx4 v{vo}, s[{R_W1}:{R_W1+3}], {so} offen{off} lds", tag=f"w1_{k}")
        out.append(f)
        if n == 0: out.append(hdr2)
    return out

def units():
    return [(p, lt) for lt in range(4) for p in range(4) if not (p == 3 and lt >= 2)]
def preg(p, lt): return V_P + (p*4 + lt)*4 if p < 3 else V_PS + lt*4
def qreg(p, lt): return V_Q + (p*4 + lt)*4 if p < 3 else V_QS + lt*4

A_W = 64
def x_init(b, extra=()):
    us = units()
    AD = T
    def rd(i):
        p, lt = us[i]; w = A_W + 8*(i & 3)
        return [f"v_add_u32 v{AD + 2*(i&1)}, s{S_P32+p}, v{V_XA+lt}",
                f"v_add_u32 v{AD + 2*(i&1) + 1}, s{S_N32+p}, v{V_XA+lt}",
                lambda: b(f"ds_read_b128 {a(w,4)}, v{AD + 2*(i&1)} offset:{XL}", tag=f"xw{i}"),
                lambda: b(f"ds_read_b128 {a(w+4,4)}, v{AD + 2*(i&1) + 1} offset:{XL}", tag=f"xw{i}")]
    for lt in range(4):
        b(f"ds_read_b32 v{V_E + 4*lt}, v{V_XA+lt} offset:{XL+448}", tag="xe")
    for i in range(3):
        for f in rd(i): emit(b, f)
    extra = list(extra)
    for i, (p, lt) in enumerate(us):
        b.wait_lg(f"xw{i}")
        w = A_W + 8*(i & 3); P, Q = preg(p, lt), qreg(p, lt)
        mf = [f"{MF} {v(P,4)}, {v(V_SEL1,4)}, {a(w,4)}, 0",
              f"{MF} {v(Q,4)}, {v(V_SEL1,4)}, {a(w,4)}, 0",
              f"{MF} {v(P,4)}, {v(V_SEL2,4)}, {a(w+4,4)}, {v(P,4)}",
              f"{MF} {v(Q,4)}, {v(V_NSEL2,4)}, {a(w+4,4)}, {v(Q,4)}"]
        fill = rd(i+3) if i + 3 < len(us) else []
        ne = (len(extra) + len(us) - i - 1) // (len(us) - i)
        fill = extra[:ne] + fill; extra = extra[ne:]
        weave(b, mf, fill, per=2)
    b("s_nop 7")
    b(f"v_mov_b32 v{T+1}, 0")
    for lt in range(4):
        P, Q, E = preg(0, lt), qreg(0, lt), V_E + 4*lt
        b(f"v_add_f32 v{T}, v{P}, v{P}")
        b(f"v_cndmask_b32 v{Q}, v{Q}, v{T+1}, s[{S_MASK}:{S_MASK+1}]")
        b(f"v_cndmask_b32 v{P}, v{P}, v{T}, s[{S_MASK}:{S_MASK+1}]")
        b(f"v_lshlrev_b32 v{E}, 16, v{E}")
        b(f"v_add_f32 v{E}, v{E}, v{E}")

def z_load(b, p):
    for ks in range(2):
        for j in range(4):
            reg = V_Z + (p*2 + ks)*8 + 2*j
            b(f"buffer_load_dwordx2 {v(reg,2)}, v{V_ZO}, s[{R_WS}:{R_WS+3}], s{S_ZL+p} offen offset:{ks*2048 + j*128} sc1", tag=f"z{p}_{ks}")
def z_list(b):
    out = []
    for p in range(4):
        for ks in range(2):
            for j in range(4):
                reg = V_Z + (p*2 + ks)*8 + 2*j
                out.append(lambda p=p, ks=ks, j=j, reg=reg: b(f"buffer_load_dwordx2 {v(reg,2)}, v{V_ZO}, s[{R_WS}:{R_WS+3}], s{S_ZL+p} offen offset:{ks*2048 + j*128} sc1", tag=f"z{p}_{ks}"))
    return out

def pb_prefill(b):
    out = []
    for q in range(6):
        for h in range(2):
            out.append(lambda q=q, h=h: b(f"buffer_store_dwordx4 {v(V_NEG,4)}, v{V_L16}, s[{R_WS}:{R_WS+3}], s{S_IN+q} offen offset:{1024*h} sc1", tag="pbpre"))
    return out

def step_b(b, ring=()):
    def swaps(p, ks):
        z = V_Z + (p*2 + ks)*8
        return [f"v_swap_b32 v{z+1}, v{z+2}", f"v_swap_b32 v{z+2}, v{z+4}", f"v_swap_b32 v{z+3}, v{z+6}", f"v_swap_b32 v{z+5}, v{z+6}"]
    def epi(p, lt):
        P, Q = preg(p, lt), qreg(p, lt)
        fl = []
        for r in range(4):
            fl.append(f"v_add_f32 v{T+r}, v{P+r}, v{Q+r}")
            fl.append(f"v_sub_f32 v{T+4+r}, v{P+r}, v{Q+r}")
        if p == 0:
            fl.append(f"v_cndmask_b32 v{T}, v{T}, v{P}, s[{S_MASK}:{S_MASK+1}]")
            fl.append(f"v_cndmask_b32 v{T+4}, v{T+4}, v{V_E+4*lt}, s[{S_MASK}:{S_MASK+1}]")
        fl.append(f"v_cvt_pk_bf16_f32 v{P+0}, v{T+0}, v{T+1}")
        fl.append(f"v_cvt_pk_bf16_f32 v{P+1}, v{T+2}, v{T+3}")
        fl.append(f"v_cvt_pk_bf16_f32 v{P+2}, v{T+4}, v{T+5}")
        fl.append(f"v_cvt_pk_bf16_f32 v{P+3}, v{T+6}, v{T+7}")
        if p < 3:
            fl.append(lambda: b(f"ds_write_b128 v{V_HW+lt}, {v(P,4)} offset:{XL + p*4096}", tag="hw"))
        else:
            fl.append(lambda: b(f"ds_write_b128 v{V_HWS+lt}, {v(P,4)} offset:{XL}", tag="hw"))
        return fl
    def mf(p, lt):
        P, Q = preg(p, lt), qreg(p, lt)
        out = []
        for ks in range(2):
            z = V_Z + (p*2 + ks)*8
            out.append(f"{MH} {v(P,4)}, {v(z,4)}, {a(mreg(lt,ks,0),4)}, {v(P,4)}")
            out.append(f"{MH} {v(Q,4)}, {v(z+4,4)}, {a(mreg(lt,ks,1),4)}, {v(Q,4)}")
        return out
    order = [(p, lt) for p in range(4) for lt in range(4) if not (p == 3 and lt >= 2)]
    done = []
    pre = list(ring) + pb_prefill(b)
    per_unit = (len(pre) + 11) // 12
    for (p, lt) in order:
        if lt == 0:
            b.wait_vm(f"z{p}_1")
            if cfg.fineb: stamp(b, 24 + p, True)
            guarded(b, [V_Z + p*16 + i for i in range(16)], lambda p=p: z_load(b, p), f"z{p}")
            for ks in range(2):
                for sw in swaps(p, ks): b(sw)
            if p == 0:
                lab = b.newlabel("L_noE")
                b(f"s_cmp_eq_u32 s{S_W}, 0")
                b(f"s_cbranch_scc0 {lab}")
                for ks in range(2):
                    for l2 in range(4):
                        z = V_Z + ks*8
                        b(f"{MH} {v(V_E+4*l2,4)}, {v(z+4,4)}, {a(mreg(l2,ks,0),4)}, {v(V_E+4*l2,4)}")
                b.label(lab)
        fl = epi(*done[-2]) if len(done) >= 2 else []
        if len(done) >= 1:
            ex = pre[:per_unit]; pre = pre[per_unit:]
            mix = []
            for i in range(max(len(fl), len(ex))):
                if i < len(ex): mix.append(ex[i])
                if 3*i < len(fl): mix += fl[3*i:3*i+3]
            mix += fl[3*max(len(fl), len(ex)):]
            fl = mix
        weave(b, mf(p, lt), fl, per=5)
        done.append((p, lt))
    for f in epi(*done[-2]): emit(b, f)
    for f in epi(*done[-1]): emit(b, f)
    for f in pre: f()

def slab_buf(p):
    return {0: 1, 1: 2, 2: 0, 3: 1, 4: "H", 5: 2, 6: 0}[p]

def w2_dma(b, p):
    sg = slab_buf(p)
    out = []
    for hf in range(2):
        def hdr(hf=hf):
            if sg == "H": b(f"s_add_u32 m0, s{S_HWB}, {XL + hf*4096}")
            else: b(f"s_add_u32 m0, s{S_RW}, {sg*8192 + hf*4096}")
            if hf: b(f"s_add_u32 s95, s{S_W2+p}, {32*896}")
        out.append(hdr)
        for n in range(4):
            def f(n=n, hf=hf):
                so = "s95" if hf else f"s{S_W2+p}"
                off = f" offset:{1024*n}" if n else ""
                b(f"buffer_load_dwordx4 v{V_W2O+n}, s[{R_W2}:{R_W2+3}], {so} offen{off} lds", tag=f"w2_{p}")
            out.append(f)
    return out

def cs_loads(b):
    out = []
    def hdr():
        b(f"s_lshl_b32 s6, s{S_J}, 10")
        b(f"s_lshl_b32 s7, s{S_W}, 8")
        b("s_add_u32 s6, s6, s7")
        b(f"s_add_u32 s{S_CSO}, s6, {WS_CS}")
        b(f"v_lshlrev_b32 v{V_CSA}, 4, v{V_GQ}")
    hdr()
    cs_reload(b)

def cs_reload(b):
    for ft in range(4):
        b(f"buffer_load_dwordx4 {v(V_CS+4*ft,4)}, v{V_CSA}, s[{R_WS}:{R_WS+3}], s{S_CSO} offen offset:{64*ft} sc1", tag="cs")

def gemm1(b):
    def reads(k):
        buf = k & 1; slot = k % 6
        out = []
        for lt in range(4):
            out.append(lambda lt=lt: b(f"ds_read_b128 {v(V_B1 + 16*buf + 4*lt, 4)}, v{V_HB+lt} offset:{XL + k*4096}", tag=f"r{k}"))
        for u in range(4):
            for hh in range(2):
                out.append(lambda u=u, hh=hh: b(f"ds_read_b64_tr_b16 {v(V_A1 + 16*buf + 4*u + 2*hh, 2)}, v{V_TR1+u} offset:{slot*4096 + hh*2048}", tag=f"r{k}"))
        return out
    late = record(hres_addr) + record(p2_scalars_late) + record(epi_addr) + record(flag_setup)
    b.wait_vm("w1_0")
    for f in reads(0): f()
    hres = []
    for k in range(16): hres.append(f"v_mov_b32 v{V_HRES+k}, 0")
    for tt in range(4):
        for r in range(4):
            hres.append(lambda tt=tt, r=r: b(f"ds_read_u16_d16_hi v{V_HRES + tt*4 + r}, v{V_HA + r} offset:{XL + tt*1024}", tag="hres"))
    for k in range(14):
        buf = k & 1
        b.wait_lg(f"r{k}")
        fill = []
        if k + 1 < 14:
            fill.append(lambda k=k: b.wait_vm(f"w1_{k+1}"))
            if not cfg.x_noreads: fill += reads(k + 1)
        if k + 6 < 14 and not cfg.x_now1dma: fill += w1_dma(b, k + 6)
        if cfg.fine: stamp(b, k)
        if k in (8, 9): fill += w2_dma(b, 0)[5*(k-8):5*(k-8)+5] if False else []
        if k == 9: fill += w2_dma(b, 0)
        if k == 11: fill += w2_dma(b, 1)
        if k in (8, 10): fill += hres[16*(k == 10) + 0:16*(k == 10) + 16]
        if k < 8:
            n = (len(late) + 7 - k) // (8 - k); n = min(n, 14)
            fill += late[:n]; late = late[n:]
        if k == 8: fill += late; late = []
        if k == 9: fill.append(lambda: ready_set(b))
        if k == 12: fill.append(lambda: ready_load(b))
        bb = V_B1 + 16*buf
        z = k == 0
        mf = [f"{MF} {v(V_Q2,4)}, {v(bb,4)}, {v(bb,4)}, {'0' if z else v(V_Q2,4)}",
              f"{MF} {v(V_S2,4)}, {v(V_ONE2,4)}, {v(bb,4)}, {'0' if z else v(V_S2,4)}"]
        for lt in range(4):
            for u in range(4):
                d = V_ACC1 + (u*4 + lt)*4
                mf.append(f"{MF} {v(d,4)}, {v(V_A1 + 16*buf + 4*u, 4)}, {v(bb + 4*lt, 4)}, {'0' if z else v(d,4)}")
        if k == 13:
            st = Builder();
            def stats_fill():
                lst = []
                class Rec:
                    def __call__(self, s, **kw): lst.append(s)
                stats_core(Rec(), V_S2, V_Q2, True)
                lst.append(f"s_lshl_b32 s6, s{S_W}, 6")
                lst.append(f"s_add_u32 s6, s6, {STAT}")
                lst.append(f"v_lshl_add_u32 v{T}, v{V_C}, 2, s6")
                lst.append(f"v_sub_f32 v{V_S2}, 0, v{V_S2}")
                lst.append(f"v_mul_f32 v{V_Q2}, 0.5, v{V_Q2}")
                lst.append(f"s_mov_b64 exec, s[{S_DIAG}:{S_DIAG+1}]")
                return lst
            sf = stats_fill()
            for m in mf[:6]: b(m)
            weave(b, mf[6:], sf[:-1], per=2)
            b(sf[-1])
            b(f"ds_write_b32 v{T}, v{V_S2}")
            b(f"ds_write_b32 v{T}, v{V_S2} offset:256")
            b(f"ds_write_b32 v{T}, v{V_Q2} offset:512")
            b("s_mov_b64 exec, -1")
        else:
            weave(b, mf, fill, per=2)

def slab_read(b, p, k2, dst, tagp):
    sg = slab_buf(p)
    part = k2 >> 1
    if sg == "H":
        base = V_TR2H; off = XL + part*8192 + (k2 & 1)*4096
    else:
        base = V_TR2 + (part >> 1)
        off = (part & 1)*24576 + sg*8192 + (k2 & 1)*4096
    return [(lambda hh=hh: b(f"ds_read_b64_tr_b16 {dst(2*hh)}, v{base} offset:{off + hh*2048}", tag=tagp)) for hh in range(2)]

V_NA = 54
V_SR = 36
def epi_addr(b):
    b(f"s_lshl_b32 s6, s{S_W}, 13")
    for l2 in range(4): b(f"v_add_u32 v{V_NA+l2}, s6, v{V_HB+l2}")
    b(f"v_lshlrev_b32 v{V_SR}, 2, v{V_C}")
    b(f"v_add_u32 v{V_SR}, {STAT}, v{V_SR}")
    b(f"s_lshl_b32 s6, s{S_W}, 6")
    b(f"v_add_u32 v{V_SR+1}, s6, v{V_SR}")

def gemm1_epi(b):
    ready_check(b)
    b.wait_vm("w2_0")
    b("s_waitcnt lgkmcnt(0)")
    b("s_barrier")
    for lt in range(4):
        b(f"ds_read_b32 v{V_NM+2*lt}, v{V_SR+1} offset:{64*lt}", tag="nm")
    for tt in range(4):
        b(f"ds_read_b32 v{V_RR+tt}, v{V_SR} offset:{512 + 64*tt}", tag="rr")
    extra = []
    for k2 in range(8):
        extra += slab_read(b, 0, k2, lambda o, k2=k2: a(A_S0 + 4*k2 + o, 2), "s0")
    dm = w2_dma(b, 2)
    b.wait_vm("cs")
    guarded(b, [V_CS + i for i in range(16)], lambda: cs_reload(b), "cs")
    b.wait_lg("nm")
    main = []
    for lt in range(4):
        for fp in range(2):
            pk = V_PK + 4*((lt*2 + fp) & 3)
            for hh in range(2):
                d = V_ACC1 + ((2*fp + hh)*4 + lt)*4
                for h in range(2):
                    main.append(f"v_pk_fma_f32 {v(d+2*h,2)}, {v(V_CS+4*(2*fp+hh)+2*h,2)}, {v(V_NM+2*lt,2)}, {v(d+2*h,2)} op_sel_hi:[1,0,1]")
            for hh in range(2):
                d = V_ACC1 + ((2*fp + hh)*4 + lt)*4
                main.append(f"v_cvt_pk_bf16_f32 v{pk+2*hh}, v{d}, v{d+1}")
                main.append(f"v_cvt_pk_bf16_f32 v{pk+2*hh+1}, v{d+2}, v{d+3}")
            for q in range(4):
                main.append(f"v_pk_max_i16 v{pk+q}, v{pk+q}, 0")
            main.append(lambda lt=lt, fp=fp, pk=pk: b(f"ds_write_b128 v{V_NA+lt}, {v(pk,4)} offset:{XL + fp*4096}", tag="hidw"))
    ex = []
    for i in range(16):
        ex.append(extra[i])
        if i < len(dm): ex.append(dm[i])
    spread(b, main, ex, 4)
    b("s_waitcnt lgkmcnt(0)")
    b("s_barrier")

def gemm2(b):
    hb = []
    for k2 in range(8):
        for tt in range(4):
            hb.append((k2, lambda k2=k2, tt=tt: b(f"ds_read_b128 {a((k2*4 + tt)*4, 4)}, v{V_L16} offset:{XL + k2*4096 + tt*1024}", tag=f"hb{k2}")))
    def aread(p, k2):
        if p == 0: return []
        return slab_read(b, p, k2, lambda o: v(V_A2 + 4*(k2 & 3) + o, 2), f"a{p}_{k2}")
    def aop(p, k2):
        return a(A_S0 + 4*k2, 4) if p == 0 else v(V_A2 + 4*(k2 & 3), 4)
    def epi(p):
        acc = V_ACC2 + 16*(p & 1)
        pk = V_PK + 8*(p & 1)
        fl = []
        for tt in range(4):
            fl.append(f"v_cvt_pk_bf16_f32 v{pk+2*tt}, v{acc+4*tt}, v{acc+4*tt+1}")
            fl.append(f"v_cvt_pk_bf16_f32 v{pk+2*tt+1}, v{acc+4*tt+2}, v{acc+4*tt+3}")
            if tt & 1:
                h = tt >> 1
                fl.append(lambda h=h: b(f"buffer_store_dwordx4 {v(pk+4*h,4)}, v{V_L16}, s[{R_WS}:{R_WS+3}], s{S_PB+p} offen offset:{1024*h} sc1", tag=f"pst{p}") if not cfg.x_nostore else None)
        return fl
    def mfs(p, k2):
        acc = V_ACC2 + 16*(p & 1)
        return [f"{MF} {v(acc+4*tt,4)}, {aop(p, k2)}, {a((k2*4+tt)*4, 4)}, {v(acc+4*tt, 4) if k2 else '0'}" for tt in range(4)]
    plan = {0: 3, 1: 4, 2: 5, 3: 6}
    for (k2, f) in hb[:8]: f()
    dm = w2_dma(b, plan[0]) if not cfg.x_now2dma else []
    pending = list(dm)
    for p in range(7):
        if cfg.fine: stamp(b, 24 + p)
        ei = 0
        for k2 in range(6):
            b.wait_lg([f"hb{k2}", f"a{p}_{k2}"])
            fill = aread(p, k2 + 2)
            if p == 0: fill += [f for (kk, f) in hb if kk == k2 + 2]
            k0 = 0 if p == 0 else 1
            if k2 >= k0:
                n_extra = (len(pending) * (k2 + 1 - k0) + (5 - k0)) // (6 - k0) - ei
                fill += pending[ei:ei + n_extra]; ei += n_extra
            weave(b, mfs(p, k2), fill, per=2)
        pending = []
        if p < 6:
            b.wait_vm(f"w2_{p+1}")
            b("s_waitcnt lgkmcnt(0)")
            if not cfg.x_nobar2: b("s_barrier")
            fill = aread(p + 1, 0) + aread(p + 1, 1)
            dm = w2_dma(b, plan[p+1]) if (p + 1 in plan and not cfg.x_now2dma) else []
            weave(b, mfs(p, 6) + mfs(p, 7), fill + dm[:2], per=1)
            pending += dm[2:] + epi(p)
        else:
            b.wait_lg([f"a{p}_6", f"a{p}_7"])
            for m in mfs(p, 6) + mfs(p, 7): b(m)

def flag_setup(b):
    t = T
    b(f"v_add_u32 v{t}, s{S_J}, v0")
    b(f"v_add_u32 v{t}, 1, v{t}")
    b(f"v_subrev_u32 v{t+1}, 7, v{t}")
    b(f"v_cmp_le_u32 vcc, 7, v{t}")
    b(f"s_mul_i32 s6, s{S_IDX}, 7")
    b(f"v_cndmask_b32 v{t}, v{t}, v{t+1}, vcc")
    b(f"v_add_u32 v{t}, s6, v{t}")
    b(f"v_lshlrev_b32 v{t}, 9, v{t}")
    b(f"s_lshl_b32 s6, s{S_W}, 7")
    b(f"s_add_u32 s6, s6, {WS_FL}")
    b(f"v_add_u32 v{t+6}, s6, v{t}")
    own_line(b, 13)
    b(f"v_mov_b32 v{t+5}, 1")
    b(f"v_mov_b32 v{t+4}, 0")

def ready_set(b):
    b.wait_vm("pbpre")
    b("s_mov_b64 exec, 1")
    b(f"buffer_store_dword v{T+5}, v{T+4}, s[{R_WS}:{R_WS+3}], s13 offen sc1", tag="rdy")
    b("s_mov_b64 exec, -1")

def ready_load(b):
    b("s_mov_b64 exec, 0x3f")
    b(f"buffer_load_dword v{T+7}, v{T+6}, s[{R_WS}:{R_WS+3}], 0 offen sc1", tag="rdl")
    b("s_mov_b64 exec, -1")

def ready_check(b):
    b.wait_vm("rdl")
    l2 = b.newlabel("L_rd"); l3 = b.newlabel("L_rdd")
    b.notrack = True
    b("s_mov_b32 s12, 0")
    b("s_mov_b64 exec, 0x3f")
    b.label(l2)
    b(f"v_cmp_ne_u32 vcc, 1, v{T+7}")
    b("s_cmp_eq_u64 vcc, 0")
    b(f"s_cbranch_scc1 {l3}")
    b("s_add_u32 s12, s12, 1")
    b("s_cmp_ge_u32 s12, 0x10000")
    b(f"s_cbranch_scc1 {l3}")
    b(f"buffer_load_dword v{T+7}, v{T+6}, s[{R_WS}:{R_WS+3}], 0 offen sc1")
    b("s_waitcnt vmcnt(0)")
    b(f"s_branch {l2}")
    b.label(l3)
    b("s_mov_b64 exec, -1")
    b.notrack = False

def final_reduce(b):
    t = T
    acc = V_ACC2
    def load(q):
        for h in range(2):
            b(f"buffer_load_dwordx4 {v(V_IN+8*q+4*h,4)}, v{V_L16}, s[{R_WS}:{R_WS+3}], s{S_IN+q} offen offset:{1024*h} sc1", tag=f"p{q}")
    for q in (5, 4, 3, 2, 1, 0): load(q)
    b(f"v_mul_u32_u24 v{t+4}, 57344, v{V_C}")
    b(f"v_lshl_add_u32 v{t+4}, v{V_GQ}, 3, v{t+4}")
    stamp(b, 20)
    for q in (5, 4, 3, 2, 1, 0):
        b.wait_vm(f"p{q}")
        guarded(b, [V_IN + 8*q + i for i in range(8)], lambda q=q: load(q), f"p{q}")
        if cfg.finef: stamp(b, 24 + q, True)
        for tt in range(4):
            for m in range(2):
                src = V_IN + 8*q + 2*tt + m
                tt2 = t + 2*((2*tt + m) & 1)
                b(f"v_lshlrev_b32 v{tt2}, 16, v{src}")
                b(f"v_and_b32 v{tt2+1}, 0xffff0000, v{src}")
                b(f"v_pk_add_f32 {v(acc+4*tt+2*m,2)}, {v(acc+4*tt+2*m,2)}, {v(tt2,2)}")
    stamp(b, 22)
    for tt in range(4):
        for r in range(4):
            b(f"v_mul_f32 v{acc+4*tt+r}, v{V_RR+tt}, v{acc+4*tt+r}")
        for m in range(2):
            b(f"v_pk_fma_f32 {v(acc+4*tt+2*m,2)}, {v(V_HRES+4*tt+2*m,2)}, 0.5, {v(acc+4*tt+2*m,2)} op_sel_hi:[1,0,1]")
        b(f"v_cvt_pk_bf16_f32 v{V_IN+2*tt}, v{acc+4*tt}, v{acc+4*tt+1}")
        b(f"v_cvt_pk_bf16_f32 v{V_IN+1+2*tt}, v{acc+4*tt+2}, v{acc+4*tt+3}")
        b(f"buffer_store_dwordx2 {v(V_IN+2*tt,2)}, v{t+4}, s[{R_OUT}:{R_OUT+3}], s{S_O+tt} offen")

def cs_job(b):
    b("s_sub_u32 s6, s2, 224")
    b("s_lshl_b32 s7, s6, 7")
    b("v_and_b32 v1, 15, v9")
    b("v_lshrrev_b32 v2, 4, v9")
    b("v_mul_u32_u24 v3, 3584, v2")
    b("v_lshl_add_u32 v3, v1, 3, v3")
    b("v_and_b32 v6, 63, v9")
    b("v_lshlrev_b32 v6, 2, v6")
    b("v_mov_b32 v7, -1")
    b("s_lshl_b32 s9, s6, 8")
    b(f"s_add_u32 s9, s9, {WS_CS}")
    b(f"buffer_store_dword v7, v6, s[{R_WS}:{R_WS+3}], s9 offen sc1", tag="cspre")
    for n in range(28):
        b(f"s_add_u32 s8, s7, {n*57344}")
        b(f"buffer_load_dwordx2 {v(16 + 2*n, 2)}, v3, s[{R_W1}:{R_W1+3}], s8 offen", tag=f"c{n}")
    b.wait_vm("cspre")
    b("s_barrier")
    arrive0(b)
    b("s_sub_u32 s6, s2, 224")
    for r in range(4): b(f"v_mov_b32 v{76+r}, 0")
    for n in range(28):
        b.wait_vm(f"c{n}")
        for h in range(2):
            b(f"v_lshlrev_b32 v4, 16, v{16+2*n+h}")
            b(f"v_and_b32 v5, 0xffff0000, v{16+2*n+h}")
            b(f"v_pk_add_f32 {v(76+2*h,2)}, {v(76+2*h,2)}, v[4:5]")
    b("v_lshlrev_b32 v4, 8, v2")
    b("v_lshl_add_u32 v4, v1, 4, v4")
    b("ds_write_b128 v4, v[76:79]")
    b("s_waitcnt lgkmcnt(0)")
    b("s_barrier")
    b("v_and_b32 v1, 63, v9")
    b("v_lshlrev_b32 v1, 2, v1")
    for n in range(16): b(f"ds_read_b32 v{16+n}, v1 offset:{256*n}")
    b("s_waitcnt lgkmcnt(0)")
    for n in range(1, 16): b(f"v_add_f32 v16, v16, v{16+n}")
    b("s_lshl_b32 s7, s6, 8")
    b(f"s_add_u32 s7, s7, {WS_CS}")
    b(f"s_cmp_eq_u32 s{S_W}, 0")
    lab = b.newlabel("L_csk")
    b(f"s_cbranch_scc0 {lab}")
    b(f"buffer_store_dword v16, v1, s[{R_WS}:{R_WS+3}], s7 offen sc1", track=False)
    b.label(lab)

def build(name):
    b = Builder()
    b.slow = []
    b("s_cmp_ge_u32 s2, 252")
    b("s_cbranch_scc1 L_end")
    b("s_load_dwordx2 s[16:17], s[0:1], 0")
    b("s_load_dwordx8 s[28:35], s[0:1], 48")
    b("s_load_dwordx2 s[36:37], s[0:1], 80")
    b("v_mov_b32 v9, v0")
    b("v_lshrrev_b32 v1, 6, v0")
    b("v_and_b32 v0, 63, v0")
    b(f"v_readfirstlane_b32 s{S_W}, v1")
    b("s_cmp_ge_u32 s2, 224")
    b("s_cbranch_scc1 L_cs")
    decode(b)
    p1_addr(b)
    p1_addr2(b)
    wd_setup(b)
    b("s_waitcnt lgkmcnt(0)")
    srd(b, R_X, P_X, X_BYTES)
    srd(b, R_WS, P_WS, WS_BYTES)
    prefill_start(b)
    x_dma(b)
    srd(b, R_W1, P_W1, W_BYTES); srd(b, R_W2, P_W2, W_BYTES)
    srd(b, R_OUT, P_OUT, X_BYTES); srd(b, R_DBG, P_DBG, 256)
    stamp(b, 0)
    move_masks(b)
    if cfg.w_prefetch: w_prefetch(b)
    p2_scalars(b)
    stamp(b, 1)
    wd_gen(b)
    f_gen(b)
    m_gen(b)
    fm_addr(b)
    stamp(b, 2)
    p1_loop(b)
    p1_tail(b)
    stamp(b, 8)
    xres_dma(b)
    b0_load(b, V_B0)
    stamp(b, 9)
    ring = []
    for k in range(6): ring += w1_dma(b, k)
    pa = record(p2_addr)
    cut = next(i for i, s_ in enumerate(pa) if s_.startswith(f"v_add_u32 v{V_W2O}, "))
    i0_ = next(i for i, s_ in enumerate(pa) if s_.startswith(f"v_lshrrev_b32 v{T}, 3, v0"))
    dma_part = pa[i0_:cut+4]
    rest = pa[:i0_] + pa[cut+4:] + record(inbox_scalars)
    for s_ in dma_part + rest: b(s_)
    b.wait_vm("xres")
    b("s_waitcnt lgkmcnt(0)")
    b("s_barrier")
    stamp(b, 10)
    b0_check(b, V_B0)
    x_init(b, extra=z_list(b))
    b(f"v_mov_b32 v{V_ONE2}, 0x3f803f80")
    for r in range(1, 4): b(f"v_mov_b32 v{V_ONE2+r}, v{V_ONE2}")
    stamp(b, 11)
    b("s_barrier")
    stamp(b, 14)
    step_b(b, ring)
    cs_loads(b)
    b("s_waitcnt lgkmcnt(0)")
    stamp(b, 15)
    b("s_barrier")
    b.finezone = True
    gemm1(b)
    stamp(b, 17)
    gemm1_epi(b)
    stamp(b, 18)
    gemm2(b)
    stamp(b, 19)
    b.finezone = False
    final_reduce(b)
    stamp(b, 23)
    stamp_store(b)
    b("s_endpgm")
    b.label("L_cs")
    b("s_waitcnt lgkmcnt(0)")
    srd(b, R_W1, P_W1, W_BYTES); srd(b, R_WS, P_WS, WS_BYTES); srd(b, R_DBG, P_DBG, 256)
    cs_job(b)
    b("s_endpgm")
    emit_slow(b)
    b.label("L_end")
    b("s_endpgm")
    txt = b.finalize()
    s = f"""; FNet block (pre-LN, 2-D DFT mixing as a 64x32 two-step transform, ReLU FFN) - one persistent launch
; kernarg: A_x, dft_seq_re, dft_seq_im, dft_hid_re, dft_hid_im, B_x, B_w1, B_w2, out, debug, ws
; @launch grid=(252,1,1) block=(256,1,1) lds={LDS_TOTAL}
.amdgcn_target "amdgcn-amd-amdhsa--gfx950"
.text
""" + kernel_header(name) + txt + '\n.section .rodata,"a"\n' + kernel_desc(name, 512, 256)
    return s, b

if __name__ == "__main__":
    import sys
    for o in sys.argv[2:]:
        if o == "diag": cfg.diag = True
        elif "=" in o:
            k, val = o.split("=", 1)
            setattr(cfg, k, eval(val))
    s, b = build(NAME + "_kernel")
    open(sys.argv[1], "w").write(s)
    n = sum(1 for i in b.items if not isinstance(i, str))
    print("instructions", n, "auto nops", b.nnop)
```

```python
from asmb import *
import common
from common import NAME, kernel_header, kernel_desc, X_BYTES, W_BYTES, WS_BYTES, Z_G, PB_G
import struct

def fbits(x): return hex(struct.unpack("<I", struct.pack("<f", x))[0])

class Cfg:
    diag = False
    w_prefetch = True
    xflags = ""
    x_now1dma = False
    x_now2dma = False
    x_noreads = False
    x_nobar2 = False
    x_nostore = False
    fine = False
    cyc = False
    code_bytes = 26*1024
    code_pf = True
    finef = False
    x_noguard = False
    ring0 = 18
    buf4 = True
    fineb = False
cfg = Cfg()

WS_Z = 0
WS_CS = 0x200000
WS_CNT = 0x210000
WS_FL = 0x220000
WS_PB = 0x400000
WS_TS = 0x4000000

XL = 0
XRS = 928
RING = 64 * XRS
FX = RING
MX = RING + 8192
STAT = RING + 98304
LDS_TOTAL = STAT + 768

S_WG, S_W, S_IDX, S_J = 2, 3, 4, 5
P_X, P_W1, P_W2, P_OUT, P_DBG, P_WS = 16, 28, 30, 32, 34, 36
R_X, R_W1, R_W2, R_WS, R_OUT, R_DBG = 40, 44, 48, 52, 56, 60
S_TT = 16
S_PI = 20
S_ZL = 24
S_RW = 28
S_W1B = 29
S_Z0, S_Z1 = 30, 31
S_DIAG = 32
S_M1 = 34
S_MASK = 64
S_W2 = 66
S_PB = 73
S_IN = 79
S_XR = 85
S_O = 86
S_P32 = 90
S_TMP = 94
S_HWB = 94
S_N32 = 98
S_CSO = 97

V_C, V_GQ, V_TS = 1, 2, 58
T = 4
V_HB = 12
V_TR1 = 16
V_W1O = 20
V_W2O = 24
V_TR2 = 28
V_L16 = 30
V_ZO = 31
V_CSA = 31
V_HW = 32
V_HWS = 36
V_HA = 38
V_SEL1, V_SEL2, V_NSEL2 = 42, 46, 50
V_XA = 54
V_AUX = 3
V_TR2H = 59
V_NEG = 60
V_GT = 4
V_WD = 64
V_XF = 120
V_ACC = 152
V_SS = 168
V_QQ = 172
V_CS1 = 176
V_ONE = 180
V_F = 184
V_XB = 216
V_SA = 224
V_XO = 228
V_ZO1 = 229
V_G = 230
V_AB = V_XF
V_A = V_WD
V_D2 = V_WD + 8
V_ZP = V_WD + 24
A_PF = 128
A_S0 = 128
V_Z = 64
V_P, V_Q, V_PS, V_QS, V_E = 128, 176, 224, 232, 240
V_ACC1 = 128
V_A1 = 192
V_B1 = 224
V_CS = 64
V_HRES = 80
V_PK = 96
V_NM = 112
V_RR = 120
V_S2 = 42
V_Q2 = 46
V_ONE2 = 50
V_A2 = 192
V_ACC2 = 128
V_IN = 160

def stamp(b, i, force=False):
    if not cfg.diag: return
    if cfg.fine and not force and i != 0 and not getattr(b, "finezone", False): return
    if i == 0 and not getattr(b, "tsinit", False):
        b(f"v_mov_b32 v{V_TS}, 0"); b.tsinit = True
        if cfg.fine: return
    b("s_memtime s[14:15]" if cfg.cyc else "s_memrealtime s[14:15]")
    b("s_waitcnt lgkmcnt(0)")
    b(f"v_writelane_b32 v{V_TS}, s14, {i}")
def stamp_store(b):
    if not cfg.diag: return
    b("s_waitcnt vmcnt(0)")
    stamp(b, 31, True)
    b("s_lshl_b32 s6, s2, 9")
    b(f"s_lshl_b32 s7, s{S_W}, 7")
    b("s_add_u32 s6, s6, s7")
    b(f"s_add_u32 s6, s6, {WS_TS}")
    b(f"v_lshlrev_b32 v{T}, 2, v0")
    b("s_mov_b32 exec_hi, 0")
    b(f"buffer_store_dword v{V_TS}, v{T}, s[{R_WS}:{R_WS+3}], s6 offen")
    b("s_waitcnt vmcnt(0)")
    b("s_mov_b64 exec, -1")

def srd(b, r, p, nbytes):
    b(f"s_mov_b32 s{r}, s{p}")
    b(f"s_mov_b32 s{r+1}, s{p+1}")
    b(f"s_mov_b32 s{r+2}, {hex(nbytes)}")
    b(f"s_mov_b32 s{r+3}, 0x00020000")

def emit(b, f):
    f() if callable(f) else b(f)

def weave(b, mfmas, fillers, per=2):
    k = 0; n = len(mfmas)
    for i, m in enumerate(mfmas):
        b(m)
        want = ((i + 1) * len(fillers) + n - 1) // n
        cnt = 0
        while k < len(fillers) and k < want and cnt < per:
            emit(b, fillers[k]); k += 1; cnt += 1
    while k < len(fillers):
        emit(b, fillers[k]); k += 1

class Rec:
    def __init__(self): self.l = []
    def __call__(self, s, tag=None, track=True):
        assert tag is None
        self.l.append(s)
def record(fn, *args):
    r = Rec(); fn(r, *args)
    out = []; i = 0; l = r.l
    while i < len(l):
        if l[i].startswith("s_cmp"):
            j = i + 1
            while j < len(l) and l[j].startswith(("s_cselect", "s_mov")): j += 1
            out.append("\n".join(l[i:j])); i = j
        else:
            out.append(l[i]); i += 1
    return out

def spread(b, main, extra, every):
    k = 0
    for i, m in enumerate(main):
        emit(b, m)
        if (i + 1) % every == 0 and k < len(extra):
            emit(b, extra[k]); k += 1
    while k < len(extra):
        emit(b, extra[k]); k += 1

MF = "v_mfma_f32_16x16x32_bf16"
MH = "v_mfma_f32_16x16x32_f16"

def decode(b):
    b("s_and_b32 s6, s2, 7")
    b("s_lshr_b32 s7, s2, 3")
    b("s_mul_i32 s8, s7, 37")
    b("s_lshr_b32 s8, s8, 8")
    b("s_mul_i32 s9, s8, 7")
    b(f"s_sub_u32 s{S_J}, s7, s9")
    b("s_lshl_b32 s8, s8, 3")
    b(f"s_add_u32 s{S_IDX}, s6, s8")

def rot(b, dst, ls, shift):
    if ls == 0:
        b(f"s_lshl_b32 s{dst}, s{S_W}, {shift}")
    else:
        b(f"s_add_u32 s{dst}, s{S_W}, {ls}")
        b(f"s_and_b32 s{dst}, s{dst}, 3")
        b(f"s_lshl_b32 s{dst}, s{dst}, {shift}")

def p1_addr(b):
    t = T
    b(f"v_and_b32 v{V_C}, 15, v0")
    b(f"v_lshrrev_b32 v{V_GQ}, 4, v0")
    b(f"v_lshlrev_b32 v{V_L16}, 4, v0")
    b(f"v_lshrrev_b32 v{t}, 3, v0")
    b(f"v_and_b32 v{t+1}, 7, v0")
    b(f"v_xor_b32 v{t+1}, v{t+1}, v{t}")
    b(f"v_lshlrev_b32 v{t+1}, 4, v{t+1}")
    b(f"v_mul_u32_u24 v{V_XO}, 28672, v{t}")
    b(f"v_add_u32 v{V_XO}, v{V_XO}, v{t+1}")
    b(f"s_lshl_b32 s6, s{S_W}, 9")
    b(f"s_add_u32 s6, s6, s{S_IDX}")
    b("s_mul_i32 s12, s6, 896")
    b("s_add_u32 s13, s12, 229376")
    b(f"s_lshl_b32 s11, s{S_W}, 11")

def x_dma(b):
    for ksp in range(7):
        for o2 in range(2):
            b(f"s_add_u32 m0, s11, {XL + o2*1024 + 8064*ksp}")
            b(f"buffer_load_dwordx4 v{V_XO}, s[{R_X}:{R_X+3}], s{12+o2} offen offset:{128*ksp} {cfg.xflags} lds", tag=f"x{ksp}")

def p1_addr2(b):
    t = T
    b(f"v_and_b32 v{t}, 7, v{V_C}")
    b(f"v_lshrrev_b32 v{t+1}, 3, v{V_C}")
    b(f"v_lshlrev_b32 v{t+1}, 10, v{t+1}")
    b(f"v_lshl_add_u32 v{t+1}, v{t}, 7, v{t+1}")
    for par in range(2):
        b(f"v_add_u32 v{t+2}, {4*par}, v{V_GQ}") if par else b(f"v_mov_b32 v{t+2}, v{V_GQ}")
        b(f"v_xor_b32 v{t+2}, v{t+2}, v{t}")
        b(f"v_lshl_add_u32 v{t+3+par}, v{t+2}, 4, v{t+1}")
    b(f"v_lshlrev_b32 v{t+5}, 4, v{V_GQ}")
    for ls in range(4):
        rot(b, 6, ls, 11)
        b(f"v_add_u32 v{V_XB + 2*ls}, s6, v{t+3}")
        b(f"v_add_u32 v{V_XB + 2*ls + 1}, s6, v{t+4}")
        b("s_lshr_b32 s6, s6, 5")
        b(f"s_add_u32 s6, s6, {STAT}")
        b(f"v_add_u32 v{V_SA + ls}, s6, v{t+5}")
    b(f"v_mul_u32_u24 v{V_ZO1}, {Z_G}, v{V_C}")
    b(f"v_lshl_add_u32 v{V_ZO1}, v{V_GQ}, 4, v{V_ZO1}")
    b(f"v_mov_b32 v{V_ONE}, 0x3f803f80")
    for r in range(1, 4): b(f"v_mov_b32 v{V_ONE + r}, v{V_ONE}")
    b(f"v_lshrrev_b32 v{t}, 2, v{V_C}")
    b(f"v_cmp_eq_u32 s[{S_TMP}:{S_TMP+1}], v{t}, v{V_GQ}")
    b(f"v_and_b32 v{t}, 3, v{V_C}")
    for r in range(1, 4):
        b(f"v_cmp_eq_u32 s[{S_TMP+2*r}:{S_TMP+2*r+1}], {r}, v{t}")

def move_masks(b):
    for k in range(8): b(f"s_mov_b32 s{S_DIAG+k}, s{S_TMP+k}")

def wd_setup(b):
    t = T
    E, X, STEP, K2 = V_G, V_G+1, V_G+2, V_G+3
    b(f"s_lshr_b32 s6, s{S_W}, 1")
    b(f"s_lshl_b32 s7, s{S_J}, 1")
    b("s_add_u32 s8, s6, s7")
    b(f"s_and_b32 s9, s{S_W}, 1")
    b("s_lshl_b32 s6, s8, 12")
    b(f"s_lshl_b32 s7, s{S_IDX}, 7")
    b("s_add_u32 s6, s6, s7")
    b("s_lshl_b32 s7, s9, 6")
    b(f"s_add_u32 s{S_TMP+6}, s6, s7") if False else b("s_add_u32 s10, s6, s7")
    b("s_lshl_b32 s6, s8, 4")
    b("s_lshl_b32 s7, s9, 3")
    b("s_add_u32 s6, s6, s7")
    b(f"v_lshrrev_b32 v{t}, 1, v{V_C}")
    b(f"v_add_u32 v{t}, s6, v{t}")
    b(f"v_and_b32 v{t+1}, 1, v{V_C}")
    b(f"v_lshl_or_b32 v{t+2}, v{t}, 1, v{t+1}")
    b(f"v_mov_b32 v{t+3}, 224")
    b(f"v_cmp_eq_u32 vcc, 1, v{t+2}")
    b(f"v_mov_b32 v{t+4}, 0")
    b(f"v_cndmask_b32 v{t}, v{t}, v{t+3}, vcc")
    b(f"v_cndmask_b32 v{t+1}, v{t+1}, v{t+4}, vcc")
    b(f"v_cvt_f32_u32 v{t+5}, v{t+1}")
    b(f"v_mul_f32 v{t+5}, 0x3e800000, v{t+5}")
    b(f"v_cvt_f32_u32 v{E}, v{t}")
    b(f"v_mul_f32 v{E}, 0x3b124925, v{E}")
    b(f"v_mul_u32_u24 v{t+1}, 4682, v{t}")
    b(f"v_lshrrev_b32 v{t+1}, 16, v{t+1}")
    b(f"v_mul_u32_u24 v{t+1}, 14, v{t+1}")
    b(f"v_sub_u32 v{t+1}, v{t}, v{t+1}")
    b(f"v_cvt_f32_u32 v{STEP}, v{t+1}")
    b(f"v_mul_f32 v{STEP}, {fbits(1.0/14)}, v{STEP}")
    b(f"v_mul_u32_u24 v{t+1}, v{V_GQ}, v{t}")
    b(f"v_mul_u32_u24 v{t+2}, 1171, v{t+1}")
    b(f"v_lshrrev_b32 v{t+2}, 16, v{t+2}")
    b(f"v_mul_u32_u24 v{t+2}, 56, v{t+2}")
    b(f"v_sub_u32 v{t+1}, v{t+1}, v{t+2}")
    b(f"v_cvt_f32_u32 v{X}, v{t+1}")
    b(f"v_mul_f32 v{X}, {fbits(1.0/56)}, v{X}")
    b(f"v_cos_f32 v{K2}, v{E}")
    b(f"v_add_f32 v{X}, v{X}, v{t+5}")
    b(f"v_add_f32 v{K2}, v{K2}, v{K2}")

def wd_gen(b):
    E, X, STEP, K2 = V_G, V_G+1, V_G+2, V_G+3
    C = [V_G + 4 + i for i in range(8)]
    X1 = V_G + 12
    for ks in range(14):
        b(f"v_cos_f32 v{C[0]}, v{X}")
        b(f"v_add_f32 v{X1}, v{X}, v{E}")
        b(f"v_cos_f32 v{C[1]}, v{X1}")
        if ks < 13:
            b(f"v_add_f32 v{X}, v{X}, v{STEP}")
            b(f"v_fract_f32 v{X}, v{X}")
        else:
            b("s_nop 0")
        if ks > 0:
            c = "0" if ks == 1 else v(V_CS1, 4)
            b(f"{MF} {v(V_CS1,4)}, {v(V_ONE,4)}, {v(V_WD + 4*(ks-1),4)}, {c}")
        for n in range(2, 8):
            b(f"v_fma_f32 v{C[n]}, v{K2}, v{C[n-1]}, -v{C[n-2]}")
            if n % 2 == 1:
                b(f"v_cvt_pk_bf16_f32 v{V_WD + 4*ks + (n-3)//2}, v{C[n-3]}, v{C[n-2]}")
        b(f"v_cvt_pk_bf16_f32 v{V_WD + 4*ks + 3}, v{C[6]}, v{C[7]}")
    b("s_nop 0")
    b(f"{MF} {v(V_CS1,4)}, {v(V_ONE,4)}, {v(V_WD + 4*13,4)}, {v(V_CS1,4)}")

def f_gen(b):
    t = T
    S1, G, X, CO, SI, PK, AD = V_G, V_G+4, V_G+5, V_G+8, V_G+12, V_G+16, V_G+20
    b(f"s_lshl_b32 s6, s{S_W}, 4")
    b(f"v_lshl_add_u32 v{t}, v{V_GQ}, 2, s6")
    b(f"v_cvt_f32_u32 v{t}, v{t}")
    b(f"v_mul_f32 v{S1}, 0x3c800000, v{t}")
    for q in range(1, 4): b(f"v_add_f32 v{S1+q}, 0x3c800000, v{S1+q-1}")
    b(f"s_lshl_b32 s6, s{S_W}, 9")
    b(f"s_add_u32 s6, s6, {FX}")
    b(f"v_lshl_add_u32 v{AD}, v0, 3, s6")
    b(f"v_cvt_f32_u32 v{G}, v{V_C}")
    b(f"v_mov_b32 v{t+1}, 0xbc003c00")
    b(f"v_cmp_eq_u32 vcc, 0, v{V_C}")
    for gh in range(2):
        if gh: b(f"v_add_f32 v{G}, 0x41800000, v{G}")
        for q in range(4):
            b(f"v_mul_f32 v{X+(q&1)}, v{G}, v{S1+q}")
            b(f"v_cos_f32 v{CO+q}, v{X+(q&1)}")
            b(f"v_sin_f32 v{SI+q}, -v{X+(q&1)}")
        b(f"v_cvt_pk_f16_f32 v{PK}, v{CO}, v{CO+1}")
        b(f"v_cvt_pk_f16_f32 v{PK+1}, v{CO+2}, v{CO+3}")
        b(f"v_cvt_pk_f16_f32 v{PK+2}, v{SI}, v{SI+1}")
        b(f"v_cvt_pk_f16_f32 v{PK+3}, v{SI+2}, v{SI+3}")
        if gh == 0:
            b(f"v_cndmask_b32 v{PK+2}, v{PK+2}, v{t+1}, vcc")
            b(f"v_cndmask_b32 v{PK+3}, v{PK+3}, v{t+1}, vcc")
        b(f"ds_write_b64 v{AD}, {v(PK,2)} offset:{(gh*2+0)*2048}")
        b(f"ds_write_b64 v{AD}, {v(PK+2,2)} offset:{(gh*2+1)*2048}")

def fm_addr(b):
    for ls in range(4):
        rot(b, 6, ls, 9)
        b(f"s_add_u32 s6, s6, {FX}")
        b(f"v_lshl_add_u32 v{V_G+ls}, v0, 3, s6")
    for lt in range(4):
        b(f"s_lshl_b32 s6, s{S_TT+lt}, 12")
        b(f"s_add_u32 s6, s6, {MX}")
        b(f"v_add_u32 v{V_G+4+lt}, s6, v{V_L16}")

def f_read(b):
    out = []
    for ls in range(4):
        for gh in range(2):
            for sg in range(2):
                reg = V_F + ((gh*2 + sg)*2 + (ls >> 1))*4 + 2*(ls & 1)
                out.append(lambda reg=reg, ls=ls, o=(gh*2+sg)*2048: b(f"ds_read_b64 {v(reg,2)}, v{V_G+ls} offset:{o}", tag="f"))
    return out

def mreg(lt, ks, pq): return ((lt*2 + ks)*2 + pq)*4

def t0_of_tt(b, dst, tt_sreg):
    b(f"s_sub_u32 s{dst}, 64, s{S_IDX}")
    b(f"s_cmp_eq_u32 s{S_IDX}, 0")
    b(f"s_cselect_b32 s{dst}, 32, s{dst}")
    b(f"s_cmp_lt_u32 s{tt_sreg}, 2")
    b(f"s_cselect_b32 s{dst}, s{S_IDX}, s{dst}")
    b(f"s_and_b32 s9, s{tt_sreg}, 1")
    b("s_lshl_b32 s9, s9, 10")
    b(f"s_add_u32 s{dst}, s{dst}, s9")

def m_gen(b):
    t = T
    X, DX, CO, SI, PK, P, Q, AD = V_G, V_G+1, V_G+2, V_G+3, V_G+4, V_G+8, V_G+12, V_G+16
    t0_of_tt(b, 8, S_W)
    b(f"s_mul_i32 s{S_XR}, s8, 896")
    b(f"v_lshl_add_u32 v{t}, v{V_C}, 6, s8")
    b(f"v_cvt_f32_u32 v{DX}, v{t}")
    b(f"v_mul_f32 v{DX}, 0x3a000000, v{DX}")
    selP = [0x03020100, 0x03020100, 0x0c0c0100, 0x01000c0c]
    selQ = [0x01000302, 0x01000302, 0x0c0c0302, 0x03020c0c]
    sgnQ = [0x80000000, 0x00008000, 0, 0]
    neg = [0, 0x80000000, 0, 0]
    def pick(dst, tbl):
        b(f"s_cmp_lt_u32 s{S_W}, 2")
        b(f"s_cselect_b32 s9, {hex(tbl[0])}, 0") if False else None
        b(f"s_mov_b32 s9, {hex(tbl[0])}"); b(f"s_mov_b32 s12, {hex(tbl[1])}")
        b("s_cselect_b32 s9, s9, s12")
        b(f"s_mov_b32 s13, {hex(tbl[2])}"); b(f"s_mov_b32 s12, {hex(tbl[3])}")
        b("s_cselect_b32 s13, s13, s12")
        b(f"s_cmp_eq_u32 s{S_IDX}, 0")
        b(f"s_cselect_b32 s{dst}, s13, s9")
    pick(S_TMP, selP); pick(S_TMP+1, selQ); pick(S_TMP+2, sgnQ); pick(S_TMP+3, neg)
    b(f"v_xor_b32 v{DX}, s{S_TMP+3}, v{DX}")
    b(f"s_lshl_b32 s6, s{S_W}, 12")
    b(f"s_add_u32 s6, s6, {MX}")
    b(f"v_add_u32 v{AD}, s6, v{V_L16}")
    b(f"v_lshlrev_b32 v{t}, 2, v{V_GQ}")
    b(f"v_cvt_f32_u32 v{t}, v{t}")
    for ks in range(2):
        if ks: b(f"v_add_f32 v{t}, 0x41800000, v{t}")
        b(f"v_mul_f32 v{X}, v{t}, v{DX}")
        for j in range(4):
            b(f"v_cos_f32 v{CO}, v{X}")
            b(f"v_sin_f32 v{SI}, v{X}")
            b(f"v_add_f32 v{X}, v{X}, v{DX}")
            b(f"v_cvt_pk_f16_f32 v{PK}, v{CO}, v{SI}")
            b(f"v_perm_b32 v{P+j}, v{PK}, v{PK}, s{S_TMP}")
            b(f"v_perm_b32 v{Q+j}, v{PK}, v{PK}, s{S_TMP+1}")
            b(f"v_xor_b32 v{Q+j}, s{S_TMP+2}, v{Q+j}")
        b(f"ds_write_b128 v{AD}, {v(P,4)} offset:{(ks*2+0)*1024}")
        b(f"ds_write_b128 v{AD}, {v(Q,4)} offset:{(ks*2+1)*1024}")

def m_read(b):
    out = []
    for lt in range(4):
        for ks in range(2):
            for pq in range(2):
                out.append(lambda lt=lt, ks=ks, pq=pq: b(f"ds_read_b128 {a(mreg(lt,ks,pq),4)}, v{V_G+4+lt} offset:{(ks*2+pq)*1024}", tag="m"))
    return out

def prefill_start(b):
    for r in range(4): b(f"v_mov_b32 v{V_NEG+r}, -1")
    b(f"s_add_u32 s7, s10, {16*Z_G}")
    b(f"buffer_store_dwordx4 {v(V_NEG,4)}, v{V_ZO1}, s[{R_WS}:{R_WS+3}], s10 offen sc1", tag="pre")
    b(f"buffer_store_dwordx4 {v(V_NEG,4)}, v{V_ZO1}, s[{R_WS}:{R_WS+3}], s7 offen sc1", tag="pre")
    own_line(b, 6)
    b(f"v_mov_b32 v{T}, 0")
    b("s_mov_b64 exec, 1")
    b(f"buffer_store_dword v{T}, v{T}, s[{R_WS}:{R_WS+3}], s6 offen sc1", tag="pre")
    b("s_mov_b64 exec, -1")

def arrive0(b):
    lab = b.newlabel("L_arr")
    b.notrack = True
    b(f"s_cmp_eq_u32 s{S_W}, 0")
    b(f"s_cbranch_scc0 {lab}")
    b("s_and_b32 s6, s2, 3")
    b("s_lshl_b32 s6, s6, 6")
    b(f"v_mov_b32 v{T}, 1")
    b(f"v_mov_b32 v{T+1}, 0")
    b("s_mov_b64 exec, 1")
    b(f"buffer_atomic_add v{T}, v{T+1}, s[{R_DBG}:{R_DBG+3}], s6 offen sc1")
    b("s_mov_b64 exec, -1")
    b.label(lab)
    b.notrack = False

V_B0 = 229 + 25
def b0_load(b, reg):
    b(f"v_and_b32 v{reg}, 3, v0")
    b(f"v_lshlrev_b32 v{reg}, 6, v{reg}")
    b(f"buffer_load_dword v{reg}, v{reg}, s[{R_DBG}:{R_DBG+3}], 0 offen sc1", tag="b0")

def b0_check(b, reg):
    b.wait_vm("b0")
    l2 = b.newlabel("L_b0"); l3 = b.newlabel("L_b0d")
    b("s_mov_b32 s12, 0")
    b.label(l2)
    b.notrack = True
    b(f"v_cmp_gt_u32 vcc, 63, v{reg}")
    b("s_cmp_eq_u64 vcc, 0")
    b(f"s_cbranch_scc1 {l3}")
    b("s_add_u32 s12, s12, 1")
    b("s_cmp_ge_u32 s12, 0x10000")
    b(f"s_cbranch_scc1 {l3}")
    b(f"v_and_b32 v{reg}, 3, v0")
    b(f"v_lshlrev_b32 v{reg}, 6, v{reg}")
    b(f"buffer_load_dword v{reg}, v{reg}, s[{R_DBG}:{R_DBG+3}], 0 offen sc1")
    b("s_waitcnt vmcnt(0)")
    b(f"s_branch {l2}")
    b.label(l3)
    b.notrack = False

def guarded(b, regs, reload, name):
    t0 = V_GT
    n = len(regs)
    def tree():
        b(f"v_max3_u32 v{t0}, v{regs[0]}, v{regs[1]}, v{regs[2]}")
        i = 3
        while i + 1 < n:
            b(f"v_max3_u32 v{t0}, v{t0}, v{regs[i]}, v{regs[i+1]}"); i += 2
        if i < n: b(f"v_max_u32 v{t0}, v{t0}, v{regs[i]}")
        b(f"v_cmp_eq_u32 vcc, -1, v{t0}")
        b("s_cmp_eq_u64 vcc, 0")
    slow = b.newlabel("L_slow"); back = b.newlabel("L_back")
    if cfg.x_noguard: return
    tree()
    b(f"s_cbranch_scc0 {slow}")
    b.label(back)
    b.slow.append((slow, back, reload, tree))

def emit_slow(b):
    for (slow, back, reload, tree) in b.slow:
        loop = b.newlabel("L_sl")
        b.label(slow)
        b.notrack = True
        b("s_mov_b32 s12, 0")
        b.label(loop)
        reload()
        b("s_waitcnt vmcnt(0)")
        tree()
        b(f"s_cbranch_scc1 {back}")
        b("s_add_u32 s12, s12, 1")
        b("s_cmp_lt_u32 s12, 0x4000")
        b(f"s_cbranch_scc1 {loop}")
        b(f"s_branch {back}")
        b.notrack = False

def w_prefetch(b):
    b("s_mul_i32 s6, s2, 7168")
    b(f"s_lshl_b32 s7, s{S_W}, 10")
    b("s_add_u32 s6, s6, s7")
    b("s_add_u32 s7, s6, 4096")
    for n in range(2):
        b(f"buffer_load_dwordx4 {a(A_PF + 8*n, 4)}, v{V_L16}, s[{R_W1}:{R_W1+3}], s{6+n} offen", tag="pf")
        b(f"buffer_load_dwordx4 {a(A_PF + 8*n + 4, 4)}, v{V_L16}, s[{R_W2}:{R_W2+3}], s{6+n} offen", tag="pf")

def own_line(b, dst):
    b(f"s_mul_i32 s{dst}, s{S_IDX}, 7")
    b(f"s_add_u32 s{dst}, s{dst}, s{S_J}")
    b(f"s_lshl_b32 s{dst}, s{dst}, 2")
    b(f"s_add_u32 s{dst}, s{dst}, s{S_W}")
    b(f"s_lshl_b32 s{dst}, s{dst}, 7")
    b(f"s_add_u32 s{dst}, s{dst}, {WS_FL}")

def p2_scalars(b):
    b(f"s_and_b32 s6, s{S_W}, 1")
    b("s_lshl_b32 s7, s6, 1")
    for lt in range(4): b(f"s_xor_b32 s{S_TT+lt}, s7, {lt}")
    b(f"s_lshr_b32 s7, s{S_W}, 1")
    b("s_mul_i32 s7, s7, 7")
    b("s_lshl_b32 s9, s6, 2")
    b("s_add_u32 s9, s9, s7")
    b(f"s_mov_b32 s{S_PI}, s9")
    for p in range(1, 3): b(f"s_add_u32 s{S_PI+p}, s9, {p}")
    b(f"s_add_u32 s{S_PI+3}, s7, 3")
    b(f"s_mul_i32 s7, s{S_IDX}, {Z_G}")
    for p in range(4):
        b(f"s_lshl_b32 s8, s{S_PI+p}, 12")
        b(f"s_add_u32 s{S_ZL+p}, s7, s8")
        b(f"s_lshl_b32 s{S_P32+p}, s{S_PI+p}, 5")
    b(f"s_cmp_eq_u32 s{S_W}, 0")
    b(f"s_cselect_b32 s{S_MASK}, 0xffff, 0")
    b(f"s_mov_b32 s{S_MASK+1}, 0")
    b(f"s_mul_i32 s{S_RW}, s{S_W}, 24576")
    b(f"s_add_u32 s{S_RW}, s{S_RW}, {RING}")
    b(f"s_lshl_b32 s7, s{S_J}, 9")
    b(f"s_lshl_b32 s9, s{S_W}, 7")
    b(f"s_add_u32 s{S_W1B}, s7, s9")
    b(f"s_mov_b32 s{S_Z0}, s10")
    b(f"s_add_u32 s{S_Z1}, s10, {16*Z_G}")

def inbox_scalars(b):
    b(f"s_mul_i32 s11, s{S_IDX}, {PB_G}")
    b(f"s_lshl_b32 s7, s{S_W}, 11")
    b("s_add_u32 s11, s11, s7")
    b(f"s_add_u32 s11, s11, {WS_PB}")
    b(f"s_lshl_b32 s13, s{S_J}, 13")
    b("s_add_u32 s13, s13, s11")
    for p in range(6):
        b(f"s_add_u32 s6, s{S_J}, {p+1}")
        b("s_sub_u32 s7, s6, 7")
        b("s_min_u32 s6, s6, s7")
        b(f"s_mul_i32 s7, s6, {7*8192}")
        b(f"s_add_u32 s{S_IN+p}, s13, s7")

def p2_scalars_late(b):
    b(f"s_lshl_b32 s{S_HWB}, s{S_W}, 13")
    b(f"s_lshl_b32 s6, s{S_J}, 8")
    b(f"s_lshl_b32 s7, s{S_W}, 6")
    b("s_add_u32 s6, s6, s7")
    b("s_mul_i32 s10, s6, 896")
    b(f"s_mul_i32 s11, s{S_IDX}, {PB_G}")
    b(f"s_lshl_b32 s7, s{S_W}, 11")
    b("s_add_u32 s11, s11, s7")
    b(f"s_add_u32 s11, s11, {WS_PB}")
    b(f"s_mul_i32 s12, s{S_J}, {7*8192}")
    b("s_add_u32 s12, s12, s11")
    for p in range(7):
        b(f"s_add_u32 s6, s{S_J}, {p+1}")
        b("s_sub_u32 s7, s6, 7")
        b("s_min_u32 s6, s6, s7")
        b("s_lshl_b32 s7, s6, 7")
        b(f"s_add_u32 s{S_W2+p}, s10, s7")
        if p < 6:
            b("s_lshl_b32 s7, s6, 13")
            b(f"s_add_u32 s{S_PB+p}, s12, s7")
    b(f"s_lshl_b32 s10, s{S_J}, 7")
    b(f"s_lshl_b32 s7, s{S_W}, 5")
    b("s_add_u32 s10, s10, s7")
    b(f"s_sub_u32 s8, 64, s{S_IDX}")
    b(f"s_cmp_eq_u32 s{S_IDX}, 0")
    b("s_cselect_b32 s8, 32, s8")
    for tt in range(4):
        src = f"s{S_IDX}" if tt < 2 else "s8"
        b(f"s_add_u32 s6, {src}, {1024*(tt&1)}")
        b("s_mul_i32 s6, s6, 896")
        b(f"s_add_u32 s{S_O+tt}, s6, s10")

def p2_addr(b):
    t = T
    for p in range(4): b(f"s_sub_u32 s{S_N32+p}, 864, s{S_P32+p}")
    b(f"v_lshlrev_b32 v{t}, 3, v{V_C}")
    b(f"v_lshl_add_u32 v{V_ZO}, v{V_GQ}, 9, v{t}")
    b(f"s_lshl_b32 s7, s{S_PI}, 12")
    b(f"s_lshl_b32 s8, s{S_PI+3}, 12")
    for lt in range(4):
        b(f"s_lshl_b32 s6, s{S_TT+lt}, 10")
        b("s_add_u32 s9, s6, s7")
        b(f"v_add_u32 v{V_HW+lt}, s9, v{V_L16}")
        if lt < 2:
            b("s_add_u32 s9, s6, s8")
            b(f"v_add_u32 v{V_HWS+lt}, s9, v{V_L16}")
        rot(b, 6, lt, 10)
        b(f"v_add_u32 v{V_HB+lt}, s6, v{V_L16}")
    b(f"v_lshrrev_b32 v{t}, 2, v{V_C}")
    b(f"v_lshl_add_u32 v{t}, v{V_GQ}, 2, v{t}")
    b(f"v_bfe_u32 v{t+1}, v{t}, 1, 2")
    b(f"v_and_b32 v{t+2}, 3, v0")
    b(f"v_lshlrev_b32 v{t+2}, 3, v{t+2}")
    b(f"v_lshl_add_u32 v{t+2}, v{t}, 7, v{t+2}")
    b(f"v_add_u32 v{t+4}, s{S_RW}, v{t+2}")
    for u in range(4):
        b(f"v_xor_b32 v{t+3}, {u}, v{t+1}")
        b(f"v_lshl_add_u32 v{V_TR1+u}, v{t+3}, 5, v{t+4}")
    b(f"v_xor_b32 v{t+3}, s{S_W}, v{t+1}")
    b(f"v_lshl_add_u32 v{t+3}, v{t+3}, 5, v{t+2}")
    b(f"v_add_u32 v{V_TR2}, {RING}, v{t+3}")
    b(f"v_add_u32 v{V_TR2+1}, {RING+49152}, v{t+3}")
    b(f"v_mov_b32 v{V_TR2H}, v{t+3}")
    b(f"v_lshrrev_b32 v{t}, 3, v0")
    b(f"v_bfe_u32 v{t+1}, v{t}, 1, 2")
    b(f"v_lshlrev_b32 v{t+1}, 1, v{t+1}")
    b(f"v_and_b32 v{t+2}, 7, v0")
    b(f"v_xor_b32 v{t+2}, v{t+2}, v{t+1}")
    b(f"v_lshlrev_b32 v{t+2}, 4, v{t+2}")
    b(f"v_mul_u32_u24 v{t+1}, 3584, v{t}")
    b(f"v_add_u32 v{V_W1O}, v{t+1}, v{t+2}")
    b(f"v_add_u32 v{V_W1O+1}, {8*3584 - 1024}, v{V_W1O}")
    b(f"v_sub_u32 v{t+3}, v{t+2}, v{t+1}")
    b(f"v_add_u32 v{V_W1O+2}, {15*3584 - 2048 + 4096}, v{t+3}")
    b(f"v_add_u32 v{V_W1O+3}, {7*3584 - 3072 + 4096}, v{t+3}")
    b(f"v_sub_u32 v{t+3}, 448, v{t}")
    b(f"v_mov_b32 v{t+4}, 224")
    b(f"v_cmp_eq_u32 vcc, 0, v{t}")
    b(f"v_mul_u32_u24 v{t+1}, 896, v{t}")
    b(f"v_cndmask_b32 v{t+3}, v{t+3}, v{t+4}, vcc")
    b(f"v_mul_u32_u24 v{t+3}, 3584, v{t+3}")
    b(f"v_add_u32 v{t+3}, v{t+3}, v{t+2}")
    b(f"v_subrev_u32 v{V_AUX}, 2048, v{t+3}")
    b(f"v_add_u32 v{V_W2O}, v{t+1}, v{t+2}")
    for n in range(1, 4):
        b(f"v_add_u32 v{V_W2O+n}, {n*(8*896 - 1024)}, v{V_W2O}")
    b(f"v_mul_u32_u24 v{t}, {XRS}, v{V_C}")
    b(f"v_lshl_add_u32 v{t}, v{V_GQ}, 4, v{t}")
    for lt in range(4):
        b(f"s_mul_i32 s6, s{S_TT+lt}, {16*XRS}")
        b(f"v_add_u32 v{V_XA+lt}, s6, v{t}")
    b(f"v_lshlrev_b32 v{t}, 3, v{V_GQ}")
    b(f"v_sub_u32 v{t+1}, v{V_C}, v{t}")
    b(f"v_sub_u32 v{t+2}, 16, v{V_C}")
    b(f"v_sub_u32 v{t+2}, v{t+2}, v{t}")
    b(f"v_mov_b32 v{t+3}, 0x3f80")
    b(f"v_mov_b32 v{t+4}, 0x3f800000")
    b(f"v_mov_b32 v{t+5}, 0")
    for (dst, src) in ((V_SEL1, t+1), (V_SEL2, t+2)):
        for m in range(4):
            b(f"v_cmp_eq_u32 vcc, {2*m}, v{src}")
            b(f"v_cmp_eq_u32 s[6:7], {2*m+1}, v{src}")
            b(f"v_cndmask_b32 v{dst+m}, v{t+5}, v{t+3}, vcc")
            b(f"v_cndmask_b32 v{dst+m}, v{dst+m}, v{t+4}, s[6:7]")
    for m in range(4):
        b(f"v_xor_b32 v{V_NSEL2+m}, 0x80008000, v{V_SEL2+m}")

def hres_addr(b):
    t = T
    b(f"s_lshl_b32 s6, s{S_J}, 6")
    b(f"s_lshl_b32 s7, s{S_W}, 4")
    b("s_add_u32 s6, s6, s7")
    b(f"v_lshl_add_u32 v{t+4}, v{V_GQ}, 2, s6")
    b("s_lshl_b32 s6, s6, 8")
    b(f"v_add_u32 v{t+5}, s6, v{V_L16}")
    for r in range(4):
        A = V_HA + r
        b(f"v_add_u32 v{t}, {r}, v{t+4}") if r else b(f"v_mov_b32 v{t}, v{t+4}")
        b(f"v_sub_u32 v{t+2}, 448, v{t}")
        b(f"v_mov_b32 v{t+3}, 0")
        b(f"v_cmp_eq_u32 vcc, 224, v{t}")
        b(f"v_add_u32 v{t+1}, {2*r}, v{t+5}")
        b(f"v_cndmask_b32 v{t+2}, v{t+2}, v{t+3}, vcc")
        b(f"v_lshrrev_b32 v{t+3}, 4, v{t+2}")
        b(f"v_lshlrev_b32 v{A}, 12, v{t+3}")
        b(f"v_bfe_u32 v{t+3}, v{t+2}, 2, 2")
        b(f"v_lshl_add_u32 v{t+3}, v{t+3}, 4, v{V_C}")
        b(f"v_lshl_add_u32 v{A}, v{t+3}, 4, v{A}")
        b(f"v_and_b32 v{t+3}, 3, v{t+2}")
        b(f"v_lshl_add_u32 v{A}, v{t+3}, 1, v{A}")
        b(f"v_cmp_gt_u32 vcc, 224, v{t}")
        b(f"v_add_u32 v{A}, 8, v{A}")
        b(f"v_cndmask_b32 v{A}, v{A}, v{t+1}, vcc")

def p1_loop(b, stages=((0,1),(2,3),(4,5,6))):
    def xread(ks):
        ksp, par, buf = ks >> 1, ks & 1, ks & 1
        return [(lambda ls=ls: b(f"ds_read_b128 {v(V_XF + 16*buf + 4*ls, 4)}, v{V_XB + 2*ls + par} offset:{XL + ksp*8192}", tag=f"xf{ks}")) for ls in range(4)]
    for si, stg in enumerate(stages):
        b.wait_vm([f"x{stg[-1]}", "pre"])
        if si == 0: b("s_waitcnt lgkmcnt(0)")
        b("s_barrier")
        if si == 0: arrive0(b)
        stamp(b, 3 + si)
        kss = [k for p in stg for k in (2*p, 2*p+1)]
        for f in xread(kss[0]): f()
        if si == 0:
            fm = f_read(b) + m_read(b)
        for n, ks in enumerate(kss):
            nxt = kss[n+1] if n + 1 < len(kss) else None
            b.wait_lg(f"xf{ks}")
            xf = V_XF + 16*(ks & 1)
            wd = v(V_WD + 4*ks, 4)
            z = ks == 0
            mf = [f"{MF} {v(V_QQ,4)}, {v(xf,4)}, {v(xf,4)}, {'0' if z else v(V_QQ,4)}",
                  f"{MF} {v(V_SS,4)}, {v(V_ONE,4)}, {v(xf,4)}, {'0' if z else v(V_SS,4)}"]
            for ls in range(4):
                mf.append(f"{MF} {v(V_ACC + 4*ls, 4)}, {v(xf + 4*ls, 4)}, {wd}, {'0' if z else v(V_ACC + 4*ls, 4)}")
            fill = xread(nxt) if nxt is not None else []
            fill = fill + fm[:6]; fm = fm[6:]
            weave(b, mf, fill, per=2)

def stats_core(b, SS, QQ, scale4):
    b(f"v_cndmask_b32 v{QQ}, v{QQ}, v{QQ+1}, s[{S_M1}:{S_M1+1}]")
    b(f"v_mul_f32 v{SS}, 0x3b124925, v{SS}")
    b(f"v_cndmask_b32 v{QQ}, v{QQ}, v{QQ+2}, s[{S_M1+2}:{S_M1+3}]")
    b(f"v_cndmask_b32 v{QQ}, v{QQ}, v{QQ+3}, s[{S_M1+4}:{S_M1+5}]")
    b(f"v_mul_f32 v{QQ}, 0x3b124925, v{QQ}")
    b(f"v_fma_f32 v{QQ}, -v{SS}, v{SS}, v{QQ}")
    b(f"v_max_f32 v{QQ}, 0, v{QQ}")
    if scale4:
        b(f"v_mul_f32 v{QQ}, 0x3e800000, v{QQ}")
    b(f"v_add_f32 v{QQ}, 0x3727c5ac, v{QQ}")
    b(f"v_rsq_f32 v{QQ}, v{QQ}")

def p1_tail(b):
    t = T
    stamp(b, 6)
    stats_core(b, V_SS, V_QQ, False)
    b(f"s_lshl_b32 s6, s{S_W}, 6")
    b(f"s_add_u32 s6, s6, {STAT}")
    b(f"v_lshl_add_u32 v{t}, v{V_C}, 2, s6")
    b(f"v_mul_f32 v{V_SS}, v{V_QQ}, v{V_SS}")
    b(f"v_add_f32 v{V_QQ}, v{V_QQ}, v{V_QQ}")
    b(f"v_mul_f32 v{V_SS}, -2.0, v{V_SS}")
    b(f"s_mov_b64 exec, s[{S_DIAG}:{S_DIAG+1}]")
    b(f"ds_write_b32 v{t}, v{V_QQ}")
    b(f"ds_write_b32 v{t}, v{V_SS} offset:256")
    b("s_mov_b64 exec, -1")
    b("s_waitcnt lgkmcnt(0)")
    b("s_barrier")
    for ls in range(4):
        b(f"ds_read_b128 {v(V_AB + 8*ls, 4)}, v{V_SA + ls}", tag=f"ab{ls}")
        b(f"ds_read_b128 {v(V_AB + 8*ls + 4, 4)}, v{V_SA + ls} offset:256", tag=f"ab{ls}")
    for ls in range(4):
        b.wait_lg(f"ab{ls}")
        al, be, ac = V_AB + 8*ls, V_AB + 8*ls + 4, V_ACC + 4*ls
        for h in range(2):
            b(f"v_pk_mul_f32 {v(be+2*h,2)}, {v(be+2*h,2)}, {v(V_CS1,2)} op_sel_hi:[1,0]")
        for h in range(2):
            b(f"v_pk_fma_f32 {v(ac+2*h,2)}, {v(al+2*h,2)}, {v(ac+2*h,2)}, {v(be+2*h,2)}")
        for h in range(2):
            b(f"v_cvt_pk_f16_f32 v{V_A + 2*ls + h}, v{ac+2*h}, v{ac+2*h+1}")
    stamp(b, 7)
    for gh in range(2):
        for sg in range(2):
            d = V_D2 + (gh*2 + sg)*4
            b(f"{MH} {v(d,4)}, {v(V_A,4)}, {v(V_F + ((gh*2+sg)*2)*4,4)}, 0")
    for gh in range(2):
        for sg in range(2):
            d = V_D2 + (gh*2 + sg)*4
            b(f"{MH} {v(d,4)}, {v(V_A+4,4)}, {v(V_F + ((gh*2+sg)*2+1)*4,4)}, {v(d,4)}")
    for gh in range(2):
        for r in range(4):
            b(f"v_cvt_pk_f16_f32 v{V_ZP + 4*gh + r}, v{V_D2 + (gh*2)*4 + r}, v{V_D2 + (gh*2+1)*4 + r}")
        b(f"buffer_store_dwordx4 {v(V_ZP + 4*gh, 4)}, v{V_ZO1}, s[{R_WS}:{R_WS+3}], s{S_Z0+gh} offen sc1", tag="zst")

def xres_dma(b):
    out = []
    def pre():
        b(f"s_mul_i32 s9, s{S_W}, {16*XRS}")
        b(f"v_lshrrev_b32 v{T}, 1, v0")
        b(f"v_mul_u32_u24 v{T}, {XRS}, v{T}")
        b(f"v_and_b32 v{T+1}, 1, v0")
        b(f"v_lshl_add_u32 v{T}, v{T+1}, 4, v{T}")
        b(f"v_add_u32 v{T}, s9, v{T}")
        for r in range(4): b(f"v_mov_b32 v{T+4+r}, 0")
        b("s_mov_b32 exec_hi, 0")
        b(f"ds_write_b128 v{T}, {v(T+4,4)} offset:{XL+896}")
        b("s_mov_b32 exec_hi, 0x00ffffff")
    pre()
    for c in range(16):
        b(f"s_add_u32 m0, s9, {XL + c*XRS}")
        b(f"s_add_u32 s6, s{S_XR}, {c*57344}")
        b(f"buffer_load_dwordx4 v{V_L16}, s[{R_X}:{R_X+3}], s6 offen lds", tag="xres")
    b("s_mov_b32 exec_hi, -1")

def w1_dma(b, k):
    slot = k % 6
    def hdr():
        b(f"s_add_u32 m0, s{S_RW}, {slot*4096}")
        b(f"s_add_u32 s95, s{S_W1B}, {16*k*3584}") if k else b(f"s_mov_b32 s95, s{S_W1B}")
    def hdr2():
        b(f"s_add_u32 s96, s{S_W1B}, {(433 - 16*k)*3584 - 4096}")
    out = [hdr]
    for n in range(4):
        def f(n=n):
            if n < 2: vo, so = V_W1O + n, "s95"
            elif k == 0 and n == 2: vo, so = V_AUX, f"s{S_W1B}"
            else: vo, so = V_W1O + n, "s96"
            off = f" offset:{1024*n}" if n else ""
            b(f"buffer_load_dwordx4 v{vo}, s[{R_W1}:{R_W1+3}], {so} offen{off} lds", tag=f"w1_{k}")
        out.append(f)
        if n == 0: out.append(hdr2)
    return out

def units():
    return [(p, lt) for lt in range(4) for p in range(4) if not (p == 3 and lt >= 2)]
def preg(p, lt): return V_P + (p*4 + lt)*4 if p < 3 else V_PS + lt*4
def qreg(p, lt): return V_Q + (p*4 + lt)*4 if p < 3 else V_QS + lt*4

A_W = 64
def x_init(b, extra=()):
    us = units()
    AD = T
    def rd(i):
        p, lt = us[i]; w = A_W + 8*(i & 3)
        return [f"v_add_u32 v{AD + 2*(i&1)}, s{S_P32+p}, v{V_XA+lt}",
                f"v_add_u32 v{AD + 2*(i&1) + 1}, s{S_N32+p}, v{V_XA+lt}",
                lambda: b(f"ds_read_b128 {a(w,4)}, v{AD + 2*(i&1)} offset:{XL}", tag=f"xw{i}"),
                lambda: b(f"ds_read_b128 {a(w+4,4)}, v{AD + 2*(i&1) + 1} offset:{XL}", tag=f"xw{i}")]
    for lt in range(4):
        b(f"ds_read_b32 v{V_E + 4*lt}, v{V_XA+lt} offset:{XL+448}", tag="xe")
    for i in range(3):
        for f in rd(i): emit(b, f)
    extra = list(extra)
    for i, (p, lt) in enumerate(us):
        b.wait_lg(f"xw{i}")
        w = A_W + 8*(i & 3); P, Q = preg(p, lt), qreg(p, lt)
        mf = [f"{MF} {v(P,4)}, {v(V_SEL1,4)}, {a(w,4)}, 0",
              f"{MF} {v(Q,4)}, {v(V_SEL1,4)}, {a(w,4)}, 0",
              f"{MF} {v(P,4)}, {v(V_SEL2,4)}, {a(w+4,4)}, {v(P,4)}",
              f"{MF} {v(Q,4)}, {v(V_NSEL2,4)}, {a(w+4,4)}, {v(Q,4)}"]
        fill = rd(i+3) if i + 3 < len(us) else []
        ne = (len(extra) + len(us) - i - 1) // (len(us) - i)
        fill = extra[:ne] + fill; extra = extra[ne:]
        weave(b, mf, fill, per=2)
    b("s_nop 7")
    b(f"v_mov_b32 v{T+1}, 0")
    for lt in range(4):
        P, Q, E = preg(0, lt), qreg(0, lt), V_E + 4*lt
        b(f"v_add_f32 v{T}, v{P}, v{P}")
        b(f"v_cndmask_b32 v{Q}, v{Q}, v{T+1}, s[{S_MASK}:{S_MASK+1}]")
        b(f"v_cndmask_b32 v{P}, v{P}, v{T}, s[{S_MASK}:{S_MASK+1}]")
        b(f"v_lshlrev_b32 v{E}, 16, v{E}")
        b(f"v_add_f32 v{E}, v{E}, v{E}")

def z_load(b, p):
    for ks in range(2):
        for j in range(4):
            reg = V_Z + (p*2 + ks)*8 + 2*j
            b(f"buffer_load_dwordx2 {v(reg,2)}, v{V_ZO}, s[{R_WS}:{R_WS+3}], s{S_ZL+p} offen offset:{ks*2048 + j*128} sc1", tag=f"z{p}_{ks}")
def z_list(b):
    out = []
    for p in range(4):
        for ks in range(2):
            for j in range(4):
                reg = V_Z + (p*2 + ks)*8 + 2*j
                out.append(lambda p=p, ks=ks, j=j, reg=reg: b(f"buffer_load_dwordx2 {v(reg,2)}, v{V_ZO}, s[{R_WS}:{R_WS+3}], s{S_ZL+p} offen offset:{ks*2048 + j*128} sc1", tag=f"z{p}_{ks}"))
    return out

def pb_prefill(b):
    out = []
    for q in range(6):
        for h in range(2):
            out.append(lambda q=q, h=h: b(f"buffer_store_dwordx4 {v(V_NEG,4)}, v{V_L16}, s[{R_WS}:{R_WS+3}], s{S_IN+q} offen offset:{1024*h} sc1", tag="pbpre"))
    return out

def step_b(b, ring=()):
    def swaps(p, ks):
        z = V_Z + (p*2 + ks)*8
        return [f"v_swap_b32 v{z+1}, v{z+2}", f"v_swap_b32 v{z+2}, v{z+4}", f"v_swap_b32 v{z+3}, v{z+6}", f"v_swap_b32 v{z+5}, v{z+6}"]
    def epi(p, lt):
        P, Q = preg(p, lt), qreg(p, lt)
        fl = []
        for r in range(4):
            fl.append(f"v_add_f32 v{T+r}, v{P+r}, v{Q+r}")
            fl.append(f"v_sub_f32 v{T+4+r}, v{P+r}, v{Q+r}")
        if p == 0:
            fl.append(f"v_cndmask_b32 v{T}, v{T}, v{P}, s[{S_MASK}:{S_MASK+1}]")
            fl.append(f"v_cndmask_b32 v{T+4}, v{T+4}, v{V_E+4*lt}, s[{S_MASK}:{S_MASK+1}]")
        fl.append(f"v_cvt_pk_bf16_f32 v{P+0}, v{T+0}, v{T+1}")
        fl.append(f"v_cvt_pk_bf16_f32 v{P+1}, v{T+2}, v{T+3}")
        fl.append(f"v_cvt_pk_bf16_f32 v{P+2}, v{T+4}, v{T+5}")
        fl.append(f"v_cvt_pk_bf16_f32 v{P+3}, v{T+6}, v{T+7}")
        if p < 3:
            fl.append(lambda: b(f"ds_write_b128 v{V_HW+lt}, {v(P,4)} offset:{XL + p*4096}", tag="hw"))
        else:
            fl.append(lambda: b(f"ds_write_b128 v{V_HWS+lt}, {v(P,4)} offset:{XL}", tag="hw"))
        return fl
    def mf(p, lt):
        P, Q = preg(p, lt), qreg(p, lt)
        out = []
        for ks in range(2):
            z = V_Z + (p*2 + ks)*8
            out.append(f"{MH} {v(P,4)}, {v(z,4)}, {a(mreg(lt,ks,0),4)}, {v(P,4)}")
            out.append(f"{MH} {v(Q,4)}, {v(z+4,4)}, {a(mreg(lt,ks,1),4)}, {v(Q,4)}")
        return out
    order = [(p, lt) for p in range(4) for lt in range(4) if not (p == 3 and lt >= 2)]
    done = []
    pre = list(ring) + pb_prefill(b)
    per_unit = (len(pre) + 11) // 12
    for (p, lt) in order:
        if lt == 0:
            b.wait_vm(f"z{p}_1")
            if cfg.fineb: stamp(b, 24 + p, True)
            guarded(b, [V_Z + p*16 + i for i in range(16)], lambda p=p: z_load(b, p), f"z{p}")
            for ks in range(2):
                for sw in swaps(p, ks): b(sw)
            if p == 0:
                lab = b.newlabel("L_noE")
                b(f"s_cmp_eq_u32 s{S_W}, 0")
                b(f"s_cbranch_scc0 {lab}")
                for ks in range(2):
                    for l2 in range(4):
                        z = V_Z + ks*8
                        b(f"{MH} {v(V_E+4*l2,4)}, {v(z+4,4)}, {a(mreg(l2,ks,0),4)}, {v(V_E+4*l2,4)}")
                b.label(lab)
        fl = epi(*done[-2]) if len(done) >= 2 else []
        if len(done) >= 1:
            ex = pre[:per_unit]; pre = pre[per_unit:]
            mix = []
            for i in range(max(len(fl), len(ex))):
                if i < len(ex): mix.append(ex[i])
                if 3*i < len(fl): mix += fl[3*i:3*i+3]
            mix += fl[3*max(len(fl), len(ex)):]
            fl = mix
        weave(b, mf(p, lt), fl, per=5)
        done.append((p, lt))
    for f in epi(*done[-2]): emit(b, f)
    for f in epi(*done[-1]): emit(b, f)
    for f in pre: f()

def slab_buf(p):
    return {0: 1, 1: 2, 2: 0, 3: 1, 4: "H", 5: 2, 6: 0}[p]

def w2_dma(b, p):
    sg = slab_buf(p)
    out = []
    for hf in range(2):
        def hdr(hf=hf):
            if sg == "H": b(f"s_add_u32 m0, s{S_HWB}, {XL + hf*4096}")
            else: b(f"s_add_u32 m0, s{S_RW}, {sg*8192 + hf*4096}")
            if hf: b(f"s_add_u32 s95, s{S_W2+p}, {32*896}")
        out.append(hdr)
        for n in range(4):
            def f(n=n, hf=hf):
                so = "s95" if hf else f"s{S_W2+p}"
                off = f" offset:{1024*n}" if n else ""
                b(f"buffer_load_dwordx4 v{V_W2O+n}, s[{R_W2}:{R_W2+3}], {so} offen{off} lds", tag=f"w2_{p}")
            out.append(f)
    return out

def cs_loads(b):
    out = []
    def hdr():
        b(f"s_lshl_b32 s6, s{S_J}, 10")
        b(f"s_lshl_b32 s7, s{S_W}, 8")
        b("s_add_u32 s6, s6, s7")
        b(f"s_add_u32 s{S_CSO}, s6, {WS_CS}")
        b(f"v_lshlrev_b32 v{V_CSA}, 4, v{V_GQ}")
    hdr()
    cs_reload(b)

def cs_reload(b):
    for ft in range(4):
        b(f"buffer_load_dwordx4 {v(V_CS+4*ft,4)}, v{V_CSA}, s[{R_WS}:{R_WS+3}], s{S_CSO} offen offset:{64*ft} sc1", tag="cs")

def gemm1(b):
    def reads(k):
        buf = k & 1; slot = k % 6
        out = []
        for lt in range(4):
            out.append(lambda lt=lt: b(f"ds_read_b128 {v(V_B1 + 16*buf + 4*lt, 4)}, v{V_HB+lt} offset:{XL + k*4096}", tag=f"r{k}"))
        for u in range(4):
            for hh in range(2):
                out.append(lambda u=u, hh=hh: b(f"ds_read_b64_tr_b16 {v(V_A1 + 16*buf + 4*u + 2*hh, 2)}, v{V_TR1+u} offset:{slot*4096 + hh*2048}", tag=f"r{k}"))
        return out
    late = record(hres_addr) + record(p2_scalars_late) + record(epi_addr) + record(flag_setup)
    b.wait_vm("w1_0")
    for f in reads(0): f()
    hres = []
    for k in range(16): hres.append(f"v_mov_b32 v{V_HRES+k}, 0")
    for tt in range(4):
        for r in range(4):
            hres.append(lambda tt=tt, r=r: b(f"ds_read_u16_d16_hi v{V_HRES + tt*4 + r}, v{V_HA + r} offset:{XL + tt*1024}", tag="hres"))
    for k in range(14):
        buf = k & 1
        b.wait_lg(f"r{k}")
        fill = []
        if k + 1 < 14:
            fill.append(lambda k=k: b.wait_vm(f"w1_{k+1}"))
            if not cfg.x_noreads: fill += reads(k + 1)
        if k + 6 < 14 and not cfg.x_now1dma: fill += w1_dma(b, k + 6)
        if cfg.fine: stamp(b, k)
        if k in (8, 9): fill += w2_dma(b, 0)[5*(k-8):5*(k-8)+5] if False else []
        if k == 9: fill += w2_dma(b, 0)
        if k == 11: fill += w2_dma(b, 1)
        if k in (8, 10): fill += hres[16*(k == 10) + 0:16*(k == 10) + 16]
        if k < 8:
            n = (len(late) + 7 - k) // (8 - k); n = min(n, 14)
            fill += late[:n]; late = late[n:]
        if k == 8: fill += late; late = []
        if k == 9: fill.append(lambda: ready_set(b))
        if k == 12: fill.append(lambda: ready_load(b))
        bb = V_B1 + 16*buf
        z = k == 0
        mf = [f"{MF} {v(V_Q2,4)}, {v(bb,4)}, {v(bb,4)}, {'0' if z else v(V_Q2,4)}",
              f"{MF} {v(V_S2,4)}, {v(V_ONE2,4)}, {v(bb,4)}, {'0' if z else v(V_S2,4)}"]
        for lt in range(4):
            for u in range(4):
                d = V_ACC1 + (u*4 + lt)*4
                mf.append(f"{MF} {v(d,4)}, {v(V_A1 + 16*buf + 4*u, 4)}, {v(bb + 4*lt, 4)}, {'0' if z else v(d,4)}")
        if k == 13:
            st = Builder();
            def stats_fill():
                lst = []
                class Rec:
                    def __call__(self, s, **kw): lst.append(s)
                stats_core(Rec(), V_S2, V_Q2, True)
                lst.append(f"s_lshl_b32 s6, s{S_W}, 6")
                lst.append(f"s_add_u32 s6, s6, {STAT}")
                lst.append(f"v_lshl_add_u32 v{T}, v{V_C}, 2, s6")
                lst.append(f"v_sub_f32 v{V_S2}, 0, v{V_S2}")
                lst.append(f"v_mul_f32 v{V_Q2}, 0.5, v{V_Q2}")
                lst.append(f"s_mov_b64 exec, s[{S_DIAG}:{S_DIAG+1}]")
                return lst
            sf = stats_fill()
            for m in mf[:6]: b(m)
            weave(b, mf[6:], sf[:-1], per=2)
            b(sf[-1])
            b(f"ds_write_b32 v{T}, v{V_S2}")
            b(f"ds_write_b32 v{T}, v{V_S2} offset:256")
            b(f"ds_write_b32 v{T}, v{V_Q2} offset:512")
            b("s_mov_b64 exec, -1")
        else:
            weave(b, mf, fill, per=2)

def slab_read(b, p, k2, dst, tagp):
    sg = slab_buf(p)
    part = k2 >> 1
    if sg == "H":
        base = V_TR2H; off = XL + part*8192 + (k2 & 1)*4096
    else:
        base = V_TR2 + (part >> 1)
        off = (part & 1)*24576 + sg*8192 + (k2 & 1)*4096
    return [(lambda hh=hh: b(f"ds_read_b64_tr_b16 {dst(2*hh)}, v{base} offset:{off + hh*2048}", tag=tagp)) for hh in range(2)]

V_NA = 54
V_SR = 36
def epi_addr(b):
    b(f"s_lshl_b32 s6, s{S_W}, 13")
    for l2 in range(4): b(f"v_add_u32 v{V_NA+l2}, s6, v{V_HB+l2}")
    b(f"v_lshlrev_b32 v{V_SR}, 2, v{V_C}")
    b(f"v_add_u32 v{V_SR}, {STAT}, v{V_SR}")
    b(f"s_lshl_b32 s6, s{S_W}, 6")
    b(f"v_add_u32 v{V_SR+1}, s6, v{V_SR}")

def gemm1_epi(b):
    ready_check(b)
    b.wait_vm("w2_0")
    b("s_waitcnt lgkmcnt(0)")
    b("s_barrier")
    for lt in range(4):
        b(f"ds_read_b32 v{V_NM+2*lt}, v{V_SR+1} offset:{64*lt}", tag="nm")
    for tt in range(4):
        b(f"ds_read_b32 v{V_RR+tt}, v{V_SR} offset:{512 + 64*tt}", tag="rr")
    extra = []
    for k2 in range(8):
        extra += slab_read(b, 0, k2, lambda o, k2=k2: a(A_S0 + 4*k2 + o, 2), "s0")
    dm = w2_dma(b, 2)
    b.wait_vm("cs")
    guarded(b, [V_CS + i for i in range(16)], lambda: cs_reload(b), "cs")
    b.wait_lg("nm")
    main = []
    for lt in range(4):
        for fp in range(2):
            pk = V_PK + 4*((lt*2 + fp) & 3)
            for hh in range(2):
                d = V_ACC1 + ((2*fp + hh)*4 + lt)*4
                for h in range(2):
                    main.append(f"v_pk_fma_f32 {v(d+2*h,2)}, {v(V_CS+4*(2*fp+hh)+2*h,2)}, {v(V_NM+2*lt,2)}, {v(d+2*h,2)} op_sel_hi:[1,0,1]")
            for hh in range(2):
                d = V_ACC1 + ((2*fp + hh)*4 + lt)*4
                main.append(f"v_cvt_pk_bf16_f32 v{pk+2*hh}, v{d}, v{d+1}")
                main.append(f"v_cvt_pk_bf16_f32 v{pk+2*hh+1}, v{d+2}, v{d+3}")
            for q in range(4):
                main.append(f"v_pk_max_i16 v{pk+q}, v{pk+q}, 0")
            main.append(lambda lt=lt, fp=fp, pk=pk: b(f"ds_write_b128 v{V_NA+lt}, {v(pk,4)} offset:{XL + fp*4096}", tag="hidw"))
    ex = []
    for i in range(16):
        ex.append(extra[i])
        if i < len(dm): ex.append(dm[i])
    spread(b, main, ex, 4)
    b("s_waitcnt lgkmcnt(0)")
    b("s_barrier")

def gemm2(b):
    hb = []
    for k2 in range(8):
        for tt in range(4):
            hb.append((k2, lambda k2=k2, tt=tt: b(f"ds_read_b128 {a((k2*4 + tt)*4, 4)}, v{V_L16} offset:{XL + k2*4096 + tt*1024}", tag=f"hb{k2}")))
    def aread(p, k2):
        if p == 0: return []
        return slab_read(b, p, k2, lambda o: v(V_A2 + 4*(k2 & 3) + o, 2), f"a{p}_{k2}")
    def aop(p, k2):
        return a(A_S0 + 4*k2, 4) if p == 0 else v(V_A2 + 4*(k2 & 3), 4)
    def epi(p):
        acc = V_ACC2 + 16*(p & 1)
        pk = V_PK + 8*(p & 1)
        fl = []
        for tt in range(4):
            fl.append(f"v_cvt_pk_bf16_f32 v{pk+2*tt}, v{acc+4*tt}, v{acc+4*tt+1}")
            fl.append(f"v_cvt_pk_bf16_f32 v{pk+2*tt+1}, v{acc+4*tt+2}, v{acc+4*tt+3}")
            if tt & 1:
                h = tt >> 1
                fl.append(lambda h=h: b(f"buffer_store_dwordx4 {v(pk+4*h,4)}, v{V_L16}, s[{R_WS}:{R_WS+3}], s{S_PB+p} offen offset:{1024*h} sc1", tag=f"pst{p}") if not cfg.x_nostore else None)
        return fl
    def mfs(p, k2):
        acc = V_ACC2 + 16*(p & 1)
        return [f"{MF} {v(acc+4*tt,4)}, {aop(p, k2)}, {a((k2*4+tt)*4, 4)}, {v(acc+4*tt, 4) if k2 else '0'}" for tt in range(4)]
    plan = {0: 3, 1: 4, 2: 5, 3: 6}
    for (k2, f) in hb[:8]: f()
    dm = w2_dma(b, plan[0]) if not cfg.x_now2dma else []
    pending = list(dm)
    for p in range(7):
        if cfg.fine: stamp(b, 24 + p)
        ei = 0
        for k2 in range(6):
            b.wait_lg([f"hb{k2}", f"a{p}_{k2}"])
            fill = aread(p, k2 + 2)
            if p == 0: fill += [f for (kk, f) in hb if kk == k2 + 2]
            k0 = 0 if p == 0 else 1
            if k2 >= k0:
                n_extra = (len(pending) * (k2 + 1 - k0) + (5 - k0)) // (6 - k0) - ei
                fill += pending[ei:ei + n_extra]; ei += n_extra
            weave(b, mfs(p, k2), fill, per=2)
        pending = []
        if p < 6:
            b.wait_vm(f"w2_{p+1}")
            b("s_waitcnt lgkmcnt(0)")
            if not cfg.x_nobar2: b("s_barrier")
            fill = aread(p + 1, 0) + aread(p + 1, 1)
            dm = w2_dma(b, plan[p+1]) if (p + 1 in plan and not cfg.x_now2dma) else []
            weave(b, mfs(p, 6) + mfs(p, 7), fill + dm[:2], per=1)
            pending += dm[2:] + epi(p)
        else:
            b.wait_lg([f"a{p}_6", f"a{p}_7"])
            for m in mfs(p, 6) + mfs(p, 7): b(m)

def flag_setup(b):
    t = T
    b(f"v_add_u32 v{t}, s{S_J}, v0")
    b(f"v_add_u32 v{t}, 1, v{t}")
    b(f"v_subrev_u32 v{t+1}, 7, v{t}")
    b(f"v_cmp_le_u32 vcc, 7, v{t}")
    b(f"s_mul_i32 s6, s{S_IDX}, 7")
    b(f"v_cndmask_b32 v{t}, v{t}, v{t+1}, vcc")
    b(f"v_add_u32 v{t}, s6, v{t}")
    b(f"v_lshlrev_b32 v{t}, 9, v{t}")
    b(f"s_lshl_b32 s6, s{S_W}, 7")
    b(f"s_add_u32 s6, s6, {WS_FL}")
    b(f"v_add_u32 v{t+6}, s6, v{t}")
    own_line(b, 13)
    b(f"v_mov_b32 v{t+5}, 1")
    b(f"v_mov_b32 v{t+4}, 0")

def ready_set(b):
    b.wait_vm("pbpre")
    b("s_mov_b64 exec, 1")
    b(f"buffer_store_dword v{T+5}, v{T+4}, s[{R_WS}:{R_WS+3}], s13 offen sc1", tag="rdy")
    b("s_mov_b64 exec, -1")

def ready_load(b):
    b("s_mov_b64 exec, 0x3f")
    b(f"buffer_load_dword v{T+7}, v{T+6}, s[{R_WS}:{R_WS+3}], 0 offen sc1", tag="rdl")
    b("s_mov_b64 exec, -1")

def ready_check(b):
    b.wait_vm("rdl")
    l2 = b.newlabel("L_rd"); l3 = b.newlabel("L_rdd")
    b.notrack = True
    b("s_mov_b32 s12, 0")
    b("s_mov_b64 exec, 0x3f")
    b.label(l2)
    b(f"v_cmp_ne_u32 vcc, 1, v{T+7}")
    b("s_cmp_eq_u64 vcc, 0")
    b(f"s_cbranch_scc1 {l3}")
    b("s_add_u32 s12, s12, 1")
    b("s_cmp_ge_u32 s12, 0x10000")
    b(f"s_cbranch_scc1 {l3}")
    b(f"buffer_load_dword v{T+7}, v{T+6}, s[{R_WS}:{R_WS+3}], 0 offen sc1")
    b("s_waitcnt vmcnt(0)")
    b(f"s_branch {l2}")
    b.label(l3)
    b("s_mov_b64 exec, -1")
    b.notrack = False

def final_reduce(b):
    t = T
    acc = V_ACC2
    def load(q):
        for h in range(2):
            b(f"buffer_load_dwordx4 {v(V_IN+8*q+4*h,4)}, v{V_L16}, s[{R_WS}:{R_WS+3}], s{S_IN+q} offen offset:{1024*h} sc1", tag=f"p{q}")
    for q in (5, 4, 3, 2, 1, 0): load(q)
    b(f"v_mul_u32_u24 v{t+4}, 57344, v{V_C}")
    b(f"v_lshl_add_u32 v{t+4}, v{V_GQ}, 3, v{t+4}")
    stamp(b, 20)
    for q in (5, 4, 3, 2, 1, 0):
        b.wait_vm(f"p{q}")
        guarded(b, [V_IN + 8*q + i for i in range(8)], lambda q=q: load(q), f"p{q}")
        if cfg.finef: stamp(b, 24 + q, True)
        for tt in range(4):
            for m in range(2):
                src = V_IN + 8*q + 2*tt + m
                tt2 = t + 2*((2*tt + m) & 1)
                b(f"v_lshlrev_b32 v{tt2}, 16, v{src}")
                b(f"v_and_b32 v{tt2+1}, 0xffff0000, v{src}")
                b(f"v_pk_add_f32 {v(acc+4*tt+2*m,2)}, {v(acc+4*tt+2*m,2)}, {v(tt2,2)}")
    stamp(b, 22)
    for tt in range(4):
        for r in range(4):
            b(f"v_mul_f32 v{acc+4*tt+r}, v{V_RR+tt}, v{acc+4*tt+r}")
        for m in range(2):
            b(f"v_pk_fma_f32 {v(acc+4*tt+2*m,2)}, {v(V_HRES+4*tt+2*m,2)}, 0.5, {v(acc+4*tt+2*m,2)} op_sel_hi:[1,0,1]")
        b(f"v_cvt_pk_bf16_f32 v{V_IN+2*tt}, v{acc+4*tt}, v{acc+4*tt+1}")
        b(f"v_cvt_pk_bf16_f32 v{V_IN+1+2*tt}, v{acc+4*tt+2}, v{acc+4*tt+3}")
        b(f"buffer_store_dwordx2 {v(V_IN+2*tt,2)}, v{t+4}, s[{R_OUT}:{R_OUT+3}], s{S_O+tt} offen")

def cs_job(b):
    b("s_sub_u32 s6, s2, 224")
    b("s_lshl_b32 s7, s6, 7")
    b("v_and_b32 v1, 15, v9")
    b("v_lshrrev_b32 v2, 4, v9")
    b("v_mul_u32_u24 v3, 3584, v2")
    b("v_lshl_add_u32 v3, v1, 3, v3")
    b("v_and_b32 v6, 63, v9")
    b("v_lshlrev_b32 v6, 2, v6")
    b("v_mov_b32 v7, -1")
    b("s_lshl_b32 s9, s6, 8")
    b(f"s_add_u32 s9, s9, {WS_CS}")
    b(f"buffer_store_dword v7, v6, s[{R_WS}:{R_WS+3}], s9 offen sc1", tag="cspre")
    for n in range(28):
        b(f"s_add_u32 s8, s7, {n*57344}")
        b(f"buffer_load_dwordx2 {v(16 + 2*n, 2)}, v3, s[{R_W1}:{R_W1+3}], s8 offen", tag=f"c{n}")
    b.wait_vm("cspre")
    b("s_barrier")
    arrive0(b)
    b("s_sub_u32 s6, s2, 224")
    for r in range(4): b(f"v_mov_b32 v{76+r}, 0")
    for n in range(28):
        b.wait_vm(f"c{n}")
        for h in range(2):
            b(f"v_lshlrev_b32 v4, 16, v{16+2*n+h}")
            b(f"v_and_b32 v5, 0xffff0000, v{16+2*n+h}")
            b(f"v_pk_add_f32 {v(76+2*h,2)}, {v(76+2*h,2)}, v[4:5]")
    b("v_lshlrev_b32 v4, 8, v2")
    b("v_lshl_add_u32 v4, v1, 4, v4")
    b("ds_write_b128 v4, v[76:79]")
    b("s_waitcnt lgkmcnt(0)")
    b("s_barrier")
    b("v_and_b32 v1, 63, v9")
    b("v_lshlrev_b32 v1, 2, v1")
    for n in range(16): b(f"ds_read_b32 v{16+n}, v1 offset:{256*n}")
    b("s_waitcnt lgkmcnt(0)")
    for n in range(1, 16): b(f"v_add_f32 v16, v16, v{16+n}")
    b("s_lshl_b32 s7, s6, 8")
    b(f"s_add_u32 s7, s7, {WS_CS}")
    b(f"s_cmp_eq_u32 s{S_W}, 0")
    lab = b.newlabel("L_csk")
    b(f"s_cbranch_scc0 {lab}")
    b(f"buffer_store_dword v16, v1, s[{R_WS}:{R_WS+3}], s7 offen sc1", track=False)
    b.label(lab)

def build(name):
    b = Builder()
    b.slow = []
    b("s_cmp_ge_u32 s2, 252")
    b("s_cbranch_scc1 L_end")
    b("s_load_dwordx2 s[16:17], s[0:1], 0")
    b("s_load_dwordx8 s[28:35], s[0:1], 48")
    b("s_load_dwordx2 s[36:37], s[0:1], 80")
    if cfg.code_pf:
        b("s_getpc_b64 s[6:7]")
        b.label("L_pc")
        b("v_lshlrev_b32 v2, 7, v0")
        b("v_mov_b32 v5, s7")
        b("v_add_co_u32 v4, vcc, s6, v2")
        b("v_addc_co_u32 v5, vcc, 0, v5, vcc")
        b(f"v_cmp_gt_u32 vcc, L_code_end-L_pc, v2")
        b("s_and_saveexec_b64 s[8:9], vcc")
        lab = b.newlabel("L_nopf")
        b(f"s_cbranch_execz {lab}")
        b(f"global_load_dword {a(255)}, v[4:5], off", track=False)
        b.label(lab)
        b("s_mov_b64 exec, s[8:9]")
    b("v_mov_b32 v9, v0")
    b("v_lshrrev_b32 v1, 6, v0")
    b("v_and_b32 v0, 63, v0")
    b(f"v_readfirstlane_b32 s{S_W}, v1")
    b("s_cmp_ge_u32 s2, 224")
    b("s_cbranch_scc1 L_cs")
    decode(b)
    p1_addr(b)
    p1_addr2(b)
    wd_setup(b)
    b("s_waitcnt lgkmcnt(0)")
    srd(b, R_X, P_X, X_BYTES)
    srd(b, R_WS, P_WS, WS_BYTES)
    prefill_start(b)
    x_dma(b)
    srd(b, R_W1, P_W1, W_BYTES); srd(b, R_W2, P_W2, W_BYTES)
    srd(b, R_OUT, P_OUT, X_BYTES); srd(b, R_DBG, P_DBG, 256)
    stamp(b, 0)
    move_masks(b)
    if cfg.w_prefetch: w_prefetch(b)
    p2_scalars(b)
    stamp(b, 1)
    wd_gen(b)
    f_gen(b)
    m_gen(b)
    fm_addr(b)
    stamp(b, 2)
    p1_loop(b)
    p1_tail(b)
    stamp(b, 8)
    xres_dma(b)
    b0_load(b, V_B0)
    stamp(b, 9)
    ring = []
    for k in range(6): ring += w1_dma(b, k)
    pa = record(p2_addr)
    cut = next(i for i, s_ in enumerate(pa) if s_.startswith(f"v_add_u32 v{V_W2O}, "))
    i0_ = next(i for i, s_ in enumerate(pa) if s_.startswith(f"v_lshrrev_b32 v{T}, 3, v0"))
    dma_part = pa[i0_:cut+4]
    rest = pa[:i0_] + pa[cut+4:] + record(inbox_scalars)
    for s_ in dma_part + rest: b(s_)
    b.wait_vm("xres")
    b("s_waitcnt lgkmcnt(0)")
    b("s_barrier")
    stamp(b, 10)
    b0_check(b, V_B0)
    x_init(b, extra=z_list(b))
    b(f"v_mov_b32 v{V_ONE2}, 0x3f803f80")
    for r in range(1, 4): b(f"v_mov_b32 v{V_ONE2+r}, v{V_ONE2}")
    stamp(b, 11)
    b("s_barrier")
    stamp(b, 14)
    step_b(b, ring)
    cs_loads(b)
    b("s_waitcnt lgkmcnt(0)")
    stamp(b, 15)
    b("s_barrier")
    b.finezone = True
    gemm1(b)
    stamp(b, 17)
    gemm1_epi(b)
    stamp(b, 18)
    gemm2(b)
    stamp(b, 19)
    b.finezone = False
    final_reduce(b)
    stamp(b, 23)
    stamp_store(b)
    b("s_endpgm")
    b.label("L_cs")
    b("s_waitcnt lgkmcnt(0)")
    srd(b, R_W1, P_W1, W_BYTES); srd(b, R_WS, P_WS, WS_BYTES); srd(b, R_DBG, P_DBG, 256)
    cs_job(b)
    b("s_endpgm")
    emit_slow(b)
    b.label("L_end")
    b.label("L_code_end")
    b("s_endpgm")
    txt = b.finalize()
    s = f"""; FNet block (pre-LN, 2-D DFT mixing as a 64x32 two-step transform, ReLU FFN) - one persistent launch
; kernarg: A_x, dft_seq_re, dft_seq_im, dft_hid_re, dft_hid_im, B_x, B_w1, B_w2, out, debug, ws
; @launch grid=(252,1,1) block=(256,1,1) lds={LDS_TOTAL}
.amdgcn_target "amdgcn-amd-amdhsa--gfx950"
.text
""" + kernel_header(name) + txt + '\n.section .rodata,"a"\n' + kernel_desc(name, 512, 256)
    return s, b

if __name__ == "__main__":
    import sys
    for o in sys.argv[2:]:
        if o == "diag": cfg.diag = True
        elif "=" in o:
            k, val = o.split("=", 1)
            setattr(cfg, k, eval(val))
    s, b = build(NAME + "_kernel")
    open(sys.argv[1], "w").write(s)
    n = sum(1 for i in b.items if not isinstance(i, str))
    print("instructions", n, "auto nops", b.nnop)
```

```python
from asmb import *
import common
from common import NAME, kernel_header, kernel_desc, X_BYTES, W_BYTES, WS_BYTES, Z_G, PB_G
import struct

def fbits(x): return hex(struct.unpack("<I", struct.pack("<f", x))[0])

class Cfg:
    diag = False
    w_prefetch = True
    xflags = ""
    x_now1dma = False
    x_now2dma = False
    x_noreads = False
    x_nobar2 = False
    x_nostore = False
    fine = False
    cyc = False
    pre_at = 'loop'
    x_z4 = False
    x_noring = False
    x_nopre = False
    code_bytes = 26*1024
    code_pf = True
    finef = False
    x_noguard = False
    ring0 = 18
    buf4 = True
    fineb = False
cfg = Cfg()

WS_Z = 0
WS_CS = 0x200000
WS_CNT = 0x210000
WS_FL = 0x220000
WS_PB = 0x400000
WS_TS = 0x4000000

XL = 0
XRS = 928
RING = 64 * XRS
FX = RING
MX = RING + 8192
STAT = RING + 98304
LDS_TOTAL = STAT + 768

S_WG, S_W, S_IDX, S_J = 2, 3, 4, 5
P_X, P_W1, P_W2, P_OUT, P_DBG, P_WS = 16, 28, 30, 32, 34, 36
R_X, R_W1, R_W2, R_WS, R_OUT, R_DBG = 40, 44, 48, 52, 56, 60
S_TT = 16
S_PI = 20
S_ZL = 24
S_RW = 28
S_W1B = 29
S_Z0, S_Z1 = 30, 31
S_DIAG = 32
S_M1 = 34
S_MASK = 64
S_W2 = 66
S_PB = 73
S_IN = 79
S_XR = 85
S_O = 86
S_P32 = 90
S_TMP = 94
S_HWB = 94
S_N32 = 98
S_CSO = 97

V_C, V_GQ, V_TS = 1, 2, 58
T = 4
V_HB = 12
V_TR1 = 16
V_W1O = 20
V_W2O = 24
V_TR2 = 28
V_L16 = 30
V_ZO = 31
V_CSA = 31
V_HW = 32
V_HWS = 36
V_HA = 38
V_SEL1, V_SEL2, V_NSEL2 = 42, 46, 50
V_XA = 54
V_AUX = 3
V_TR2H = 59
V_NEG = 60
V_GT = 4
V_WD = 64
V_XF = 120
V_ACC = 152
V_SS = 168
V_QQ = 172
V_CS1 = 176
V_ONE = 180
V_F = 184
V_XB = 216
V_SA = 224
V_XO = 228
V_ZO1 = 229
V_G = 230
V_AB = V_XF
V_A = V_WD
V_D2 = V_WD + 8
V_ZP = V_WD + 24
A_PF = 128
A_S0 = 128
V_Z = 64
V_P, V_Q, V_PS, V_QS, V_E = 128, 176, 224, 232, 240
V_ACC1 = 128
V_A1 = 192
V_B1 = 224
V_CS = 64
V_HRES = 80
V_PK = 96
V_NM = 112
V_RR = 120
V_S2 = 42
V_Q2 = 46
V_ONE2 = 50
V_A2 = 192
V_ACC2 = 128
V_IN = 160

def stamp(b, i, force=False):
    if not cfg.diag: return
    if cfg.fine and not force and i != 0 and not getattr(b, "finezone", False): return
    if i == 0 and not getattr(b, "tsinit", False):
        b(f"v_mov_b32 v{V_TS}, 0"); b.tsinit = True
        if cfg.fine: return
    b("s_memtime s[14:15]" if cfg.cyc else "s_memrealtime s[14:15]")
    b("s_waitcnt lgkmcnt(0)")
    b(f"v_writelane_b32 v{V_TS}, s14, {i}")
def stamp_store(b):
    if not cfg.diag: return
    b("s_waitcnt vmcnt(0)")
    stamp(b, 31, True)
    b("s_lshl_b32 s6, s2, 9")
    b(f"s_lshl_b32 s7, s{S_W}, 7")
    b("s_add_u32 s6, s6, s7")
    b(f"s_add_u32 s6, s6, {WS_TS}")
    b(f"v_lshlrev_b32 v{T}, 2, v0")
    b("s_mov_b32 exec_hi, 0")
    b(f"buffer_store_dword v{V_TS}, v{T}, s[{R_WS}:{R_WS+3}], s6 offen")
    b("s_waitcnt vmcnt(0)")
    b("s_mov_b64 exec, -1")

def srd(b, r, p, nbytes):
    b(f"s_mov_b32 s{r}, s{p}")
    b(f"s_mov_b32 s{r+1}, s{p+1}")
    b(f"s_mov_b32 s{r+2}, {hex(nbytes)}")
    b(f"s_mov_b32 s{r+3}, 0x00020000")

def emit(b, f):
    f() if callable(f) else b(f)

def weave(b, mfmas, fillers, per=2):
    k = 0; n = len(mfmas)
    for i, m in enumerate(mfmas):
        b(m)
        want = ((i + 1) * len(fillers) + n - 1) // n
        cnt = 0
        while k < len(fillers) and k < want and cnt < per:
            emit(b, fillers[k]); k += 1; cnt += 1
    while k < len(fillers):
        emit(b, fillers[k]); k += 1

class Rec:
    def __init__(self): self.l = []
    def __call__(self, s, tag=None, track=True):
        assert tag is None
        self.l.append(s)
def record(fn, *args):
    r = Rec(); fn(r, *args)
    out = []; i = 0; l = r.l
    while i < len(l):
        if l[i].startswith("s_cmp"):
            j = i + 1
            while j < len(l) and l[j].startswith(("s_cselect", "s_mov")): j += 1
            out.append("\n".join(l[i:j])); i = j
        else:
            out.append(l[i]); i += 1
    return out

def spread(b, main, extra, every):
    k = 0
    for i, m in enumerate(main):
        emit(b, m)
        if (i + 1) % every == 0 and k < len(extra):
            emit(b, extra[k]); k += 1
    while k < len(extra):
        emit(b, extra[k]); k += 1

def sched(b, mfmas, first=(), vm=(), misc=(), vm_from=0, vm_to=None, misc_from=0, cap=2):
    n = len(mfmas)
    slots = [[] for _ in range(n)]
    first = list(first); vm = list(vm); misc = list(misc)
    if vm_to is None: vm_to = n
    vpos = []
    if vm:
        span = vm_to - vm_from
        for i, (pre, op) in enumerate(vm):
            g = vm_from + min(span - 1, (i * span) // len(vm) + (1 if pre else 0))
            if vpos and g <= vpos[-1]: g = min(n - 1, vpos[-1] + 1)
            vpos.append(g)
            gp = max(0, g - 1)
            if vpos[:-1] and gp < vpos[-2]: gp = vpos[-2]
            slots[gp] += [("vm", x) for x in pre]
            slots[g].append(("vm", op))
    g = 0
    for f in first:
        while g < n - 1 and len(slots[g]) >= cap: g += 1
        slots[g].append(("first", f))
        if len(slots[g]) >= (cap if len(first) > n else 1 + sum(1 for t, _ in slots[g] if t == "vm")): g = min(n - 1, g + 1)
    free = [max(0, cap - len(slots[g])) if g >= misc_from else 0 for g in range(n)]
    tot = sum(free)
    k = 0; acc = 0
    for g in range(n):
        if k >= len(misc): break
        acc += free[g]
        want = len(misc) if tot == 0 else min(len(misc), -(-acc * len(misc) // tot)) if tot < len(misc) else (acc * len(misc) + tot - 1) // tot
        take = 0
        while k < len(misc) and k < want and (take < free[g] or tot < len(misc)):
            slots[g].append(("misc", misc[k])); k += 1; take += 1
            if tot < len(misc) and take >= free[g] + 1: break
    rest = misc[k:]
    for g in range(n):
        b(mfmas[g])
        for t, x in sorted(slots[g], key=lambda e: {"first": 0, "misc": 1, "vm": 2}[e[0]]): emit(b, x)
    for x in rest: emit(b, x)

def groups(closures_with_hdr):
    return closures_with_hdr

MF = "v_mfma_f32_16x16x32_bf16"
MH = "v_mfma_f32_16x16x32_f16"

def decode(b):
    b("s_and_b32 s6, s2, 7")
    b("s_lshr_b32 s7, s2, 3")
    b("s_mul_i32 s8, s7, 37")
    b("s_lshr_b32 s8, s8, 8")
    b("s_mul_i32 s9, s8, 7")
    b(f"s_sub_u32 s{S_J}, s7, s9")
    b("s_lshl_b32 s8, s8, 3")
    b(f"s_add_u32 s{S_IDX}, s6, s8")

def rot(b, dst, ls, shift):
    if ls == 0:
        b(f"s_lshl_b32 s{dst}, s{S_W}, {shift}")
    else:
        b(f"s_add_u32 s{dst}, s{S_W}, {ls}")
        b(f"s_and_b32 s{dst}, s{dst}, 3")
        b(f"s_lshl_b32 s{dst}, s{dst}, {shift}")

def p1_addr(b):
    t = T
    b(f"v_and_b32 v{V_C}, 15, v0")
    b(f"v_lshrrev_b32 v{V_GQ}, 4, v0")
    b(f"v_lshlrev_b32 v{V_L16}, 4, v0")
    b(f"v_lshrrev_b32 v{t}, 3, v0")
    b(f"v_and_b32 v{t+1}, 7, v0")
    b(f"v_xor_b32 v{t+1}, v{t+1}, v{t}")
    b(f"v_lshlrev_b32 v{t+1}, 4, v{t+1}")
    b(f"v_mul_u32_u24 v{V_XO}, 28672, v{t}")
    b(f"v_add_u32 v{V_XO}, v{V_XO}, v{t+1}")
    b(f"s_lshl_b32 s6, s{S_W}, 9")
    b(f"s_add_u32 s6, s6, s{S_IDX}")
    b("s_mul_i32 s12, s6, 896")
    b("s_add_u32 s13, s12, 229376")
    b(f"s_lshl_b32 s11, s{S_W}, 11")

def x_dma(b):
    for ksp in range(7):
        for o2 in range(2):
            b(f"s_add_u32 m0, s11, {XL + o2*1024 + 8064*ksp}")
            b(f"buffer_load_dwordx4 v{V_XO}, s[{R_X}:{R_X+3}], s{12+o2} offen offset:{128*ksp} {cfg.xflags} lds", tag=f"x{ksp}")

def p1_addr2(b):
    t = T
    b(f"v_and_b32 v{t}, 7, v{V_C}")
    b(f"v_lshrrev_b32 v{t+1}, 3, v{V_C}")
    b(f"v_lshlrev_b32 v{t+1}, 10, v{t+1}")
    b(f"v_lshl_add_u32 v{t+1}, v{t}, 7, v{t+1}")
    for par in range(2):
        b(f"v_add_u32 v{t+2}, {4*par}, v{V_GQ}") if par else b(f"v_mov_b32 v{t+2}, v{V_GQ}")
        b(f"v_xor_b32 v{t+2}, v{t+2}, v{t}")
        b(f"v_lshl_add_u32 v{t+3+par}, v{t+2}, 4, v{t+1}")
    b(f"v_lshlrev_b32 v{t+5}, 4, v{V_GQ}")
    for ls in range(4):
        rot(b, 6, ls, 11)
        b(f"v_add_u32 v{V_XB + 2*ls}, s6, v{t+3}")
        b(f"v_add_u32 v{V_XB + 2*ls + 1}, s6, v{t+4}")
        b("s_lshr_b32 s6, s6, 5")
        b(f"s_add_u32 s6, s6, {STAT}")
        b(f"v_add_u32 v{V_SA + ls}, s6, v{t+5}")
    b(f"v_mul_u32_u24 v{V_ZO1}, {Z_G}, v{V_C}")
    b(f"v_lshl_add_u32 v{V_ZO1}, v{V_GQ}, 4, v{V_ZO1}")
    b(f"v_mov_b32 v{V_ONE}, 0x3f803f80")
    for r in range(1, 4): b(f"v_mov_b32 v{V_ONE + r}, v{V_ONE}")
    b(f"v_lshrrev_b32 v{t}, 2, v{V_C}")
    b(f"v_cmp_eq_u32 s[{S_TMP}:{S_TMP+1}], v{t}, v{V_GQ}")
    b(f"v_and_b32 v{t}, 3, v{V_C}")
    for r in range(1, 4):
        b(f"v_cmp_eq_u32 s[{S_TMP+2*r}:{S_TMP+2*r+1}], {r}, v{t}")

def move_masks(b):
    for k in range(8): b(f"s_mov_b32 s{S_DIAG+k}, s{S_TMP+k}")

def wd_setup(b):
    t = T
    E, X, STEP, K2 = V_G, V_G+1, V_G+2, V_G+3
    b(f"s_lshr_b32 s6, s{S_W}, 1")
    b(f"s_lshl_b32 s7, s{S_J}, 1")
    b("s_add_u32 s8, s6, s7")
    b(f"s_and_b32 s9, s{S_W}, 1")
    b("s_lshl_b32 s6, s8, 12")
    b(f"s_lshl_b32 s7, s{S_IDX}, 7")
    b("s_add_u32 s6, s6, s7")
    b("s_lshl_b32 s7, s9, 6")
    b(f"s_add_u32 s{S_TMP+6}, s6, s7") if False else b("s_add_u32 s10, s6, s7")
    b("s_lshl_b32 s6, s8, 4")
    b("s_lshl_b32 s7, s9, 3")
    b("s_add_u32 s6, s6, s7")
    b(f"v_lshrrev_b32 v{t}, 1, v{V_C}")
    b(f"v_add_u32 v{t}, s6, v{t}")
    b(f"v_and_b32 v{t+1}, 1, v{V_C}")
    b(f"v_lshl_or_b32 v{t+2}, v{t}, 1, v{t+1}")
    b(f"v_mov_b32 v{t+3}, 224")
    b(f"v_cmp_eq_u32 vcc, 1, v{t+2}")
    b(f"v_mov_b32 v{t+4}, 0")
    b(f"v_cndmask_b32 v{t}, v{t}, v{t+3}, vcc")
    b(f"v_cndmask_b32 v{t+1}, v{t+1}, v{t+4}, vcc")
    b(f"v_cvt_f32_u32 v{t+5}, v{t+1}")
    b(f"v_mul_f32 v{t+5}, 0x3e800000, v{t+5}")
    b(f"v_cvt_f32_u32 v{E}, v{t}")
    b(f"v_mul_f32 v{E}, 0x3b124925, v{E}")
    b(f"v_mul_u32_u24 v{t+1}, 4682, v{t}")
    b(f"v_lshrrev_b32 v{t+1}, 16, v{t+1}")
    b(f"v_mul_u32_u24 v{t+1}, 14, v{t+1}")
    b(f"v_sub_u32 v{t+1}, v{t}, v{t+1}")
    b(f"v_cvt_f32_u32 v{STEP}, v{t+1}")
    b(f"v_mul_f32 v{STEP}, {fbits(1.0/14)}, v{STEP}")
    b(f"v_mul_u32_u24 v{t+1}, v{V_GQ}, v{t}")
    b(f"v_mul_u32_u24 v{t+2}, 1171, v{t+1}")
    b(f"v_lshrrev_b32 v{t+2}, 16, v{t+2}")
    b(f"v_mul_u32_u24 v{t+2}, 56, v{t+2}")
    b(f"v_sub_u32 v{t+1}, v{t+1}, v{t+2}")
    b(f"v_cvt_f32_u32 v{X}, v{t+1}")
    b(f"v_mul_f32 v{X}, {fbits(1.0/56)}, v{X}")
    b(f"v_cos_f32 v{K2}, v{E}")
    b(f"v_add_f32 v{X}, v{X}, v{t+5}")
    b(f"v_add_f32 v{K2}, v{K2}, v{K2}")

def wd_gen(b):
    E, X, STEP, K2 = V_G, V_G+1, V_G+2, V_G+3
    C = [V_G + 4 + i for i in range(8)]
    X1 = V_G + 12
    for ks in range(14):
        b(f"v_cos_f32 v{C[0]}, v{X}")
        b(f"v_add_f32 v{X1}, v{X}, v{E}")
        b(f"v_cos_f32 v{C[1]}, v{X1}")
        if ks < 13:
            b(f"v_add_f32 v{X}, v{X}, v{STEP}")
            b(f"v_fract_f32 v{X}, v{X}")
        else:
            b("s_nop 0")
        if ks > 0:
            c = "0" if ks == 1 else v(V_CS1, 4)
            b(f"{MF} {v(V_CS1,4)}, {v(V_ONE,4)}, {v(V_WD + 4*(ks-1),4)}, {c}")
        for n in range(2, 8):
            b(f"v_fma_f32 v{C[n]}, v{K2}, v{C[n-1]}, -v{C[n-2]}")
            if n % 2 == 1:
                b(f"v_cvt_pk_bf16_f32 v{V_WD + 4*ks + (n-3)//2}, v{C[n-3]}, v{C[n-2]}")
        b(f"v_cvt_pk_bf16_f32 v{V_WD + 4*ks + 3}, v{C[6]}, v{C[7]}")
    b("s_nop 0")
    b(f"{MF} {v(V_CS1,4)}, {v(V_ONE,4)}, {v(V_WD + 4*13,4)}, {v(V_CS1,4)}")

def f_gen(b):
    t = T
    S1, G, X, CO, SI, PK, AD = V_G, V_G+4, V_G+5, V_G+8, V_G+12, V_G+16, V_G+20
    b(f"s_lshl_b32 s6, s{S_W}, 4")
    b(f"v_lshl_add_u32 v{t}, v{V_GQ}, 2, s6")
    b(f"v_cvt_f32_u32 v{t}, v{t}")
    b(f"v_mul_f32 v{S1}, 0x3c800000, v{t}")
    for q in range(1, 4): b(f"v_add_f32 v{S1+q}, 0x3c800000, v{S1+q-1}")
    b(f"s_lshl_b32 s6, s{S_W}, 9")
    b(f"s_add_u32 s6, s6, {FX}")
    b(f"v_lshl_add_u32 v{AD}, v0, 3, s6")
    b(f"v_cvt_f32_u32 v{G}, v{V_C}")
    b(f"v_mov_b32 v{t+1}, 0xbc003c00")
    b(f"v_cmp_eq_u32 vcc, 0, v{V_C}")
    for gh in range(2):
        if gh: b(f"v_add_f32 v{G}, 0x41800000, v{G}")
        for q in range(4):
            b(f"v_mul_f32 v{X+(q&1)}, v{G}, v{S1+q}")
            b(f"v_cos_f32 v{CO+q}, v{X+(q&1)}")
            b(f"v_sin_f32 v{SI+q}, -v{X+(q&1)}")
        b(f"v_cvt_pk_f16_f32 v{PK}, v{CO}, v{CO+1}")
        b(f"v_cvt_pk_f16_f32 v{PK+1}, v{CO+2}, v{CO+3}")
        b(f"v_cvt_pk_f16_f32 v{PK+2}, v{SI}, v{SI+1}")
        b(f"v_cvt_pk_f16_f32 v{PK+3}, v{SI+2}, v{SI+3}")
        if gh == 0:
            b(f"v_cndmask_b32 v{PK+2}, v{PK+2}, v{t+1}, vcc")
            b(f"v_cndmask_b32 v{PK+3}, v{PK+3}, v{t+1}, vcc")
        b(f"ds_write_b64 v{AD}, {v(PK,2)} offset:{(gh*2+0)*2048}")
        b(f"ds_write_b64 v{AD}, {v(PK+2,2)} offset:{(gh*2+1)*2048}")

def fm_addr(b):
    for ls in range(4):
        rot(b, 6, ls, 9)
        b(f"s_add_u32 s6, s6, {FX}")
        b(f"v_lshl_add_u32 v{V_G+ls}, v0, 3, s6")
    for lt in range(4):
        b(f"s_lshl_b32 s6, s{S_TT+lt}, 12")
        b(f"s_add_u32 s6, s6, {MX}")
        b(f"v_add_u32 v{V_G+4+lt}, s6, v{V_L16}")

def f_read(b):
    out = []
    for ls in range(4):
        for gh in range(2):
            for sg in range(2):
                reg = V_F + ((gh*2 + sg)*2 + (ls >> 1))*4 + 2*(ls & 1)
                out.append(lambda reg=reg, ls=ls, o=(gh*2+sg)*2048: b(f"ds_read_b64 {v(reg,2)}, v{V_G+ls} offset:{o}", tag="f"))
    return out

def mreg(lt, ks, pq): return ((lt*2 + ks)*2 + pq)*4

def t0_of_tt(b, dst, tt_sreg):
    b(f"s_sub_u32 s{dst}, 64, s{S_IDX}")
    b(f"s_cmp_eq_u32 s{S_IDX}, 0")
    b(f"s_cselect_b32 s{dst}, 32, s{dst}")
    b(f"s_cmp_lt_u32 s{tt_sreg}, 2")
    b(f"s_cselect_b32 s{dst}, s{S_IDX}, s{dst}")
    b(f"s_and_b32 s9, s{tt_sreg}, 1")
    b("s_lshl_b32 s9, s9, 10")
    b(f"s_add_u32 s{dst}, s{dst}, s9")

def m_gen(b):
    t = T
    X, DX, CO, SI, PK, P, Q, AD = V_G, V_G+1, V_G+2, V_G+3, V_G+4, V_G+8, V_G+12, V_G+16
    t0_of_tt(b, 8, S_W)
    b(f"s_mul_i32 s{S_XR}, s8, 896")
    b(f"v_lshl_add_u32 v{t}, v{V_C}, 6, s8")
    b(f"v_cvt_f32_u32 v{DX}, v{t}")
    b(f"v_mul_f32 v{DX}, 0x3a000000, v{DX}")
    selP = [0x03020100, 0x03020100, 0x0c0c0100, 0x01000c0c]
    selQ = [0x01000302, 0x01000302, 0x0c0c0302, 0x03020c0c]
    sgnQ = [0x80000000, 0x00008000, 0, 0]
    neg = [0, 0x80000000, 0, 0]
    def pick(dst, tbl):
        b(f"s_cmp_lt_u32 s{S_W}, 2")
        b(f"s_cselect_b32 s9, {hex(tbl[0])}, 0") if False else None
        b(f"s_mov_b32 s9, {hex(tbl[0])}"); b(f"s_mov_b32 s12, {hex(tbl[1])}")
        b("s_cselect_b32 s9, s9, s12")
        b(f"s_mov_b32 s13, {hex(tbl[2])}"); b(f"s_mov_b32 s12, {hex(tbl[3])}")
        b("s_cselect_b32 s13, s13, s12")
        b(f"s_cmp_eq_u32 s{S_IDX}, 0")
        b(f"s_cselect_b32 s{dst}, s13, s9")
    pick(S_TMP, selP); pick(S_TMP+1, selQ); pick(S_TMP+2, sgnQ); pick(S_TMP+3, neg)
    b(f"v_xor_b32 v{DX}, s{S_TMP+3}, v{DX}")
    b(f"s_lshl_b32 s6, s{S_W}, 12")
    b(f"s_add_u32 s6, s6, {MX}")
    b(f"v_add_u32 v{AD}, s6, v{V_L16}")
    b(f"v_lshlrev_b32 v{t}, 2, v{V_GQ}")
    b(f"v_cvt_f32_u32 v{t}, v{t}")
    for ks in range(2):
        if ks: b(f"v_add_f32 v{t}, 0x41800000, v{t}")
        b(f"v_mul_f32 v{X}, v{t}, v{DX}")
        for j in range(4):
            b(f"v_cos_f32 v{CO}, v{X}")
            b(f"v_sin_f32 v{SI}, v{X}")
            b(f"v_add_f32 v{X}, v{X}, v{DX}")
            b(f"v_cvt_pk_f16_f32 v{PK}, v{CO}, v{SI}")
            b(f"v_perm_b32 v{P+j}, v{PK}, v{PK}, s{S_TMP}")
            b(f"v_perm_b32 v{Q+j}, v{PK}, v{PK}, s{S_TMP+1}")
            b(f"v_xor_b32 v{Q+j}, s{S_TMP+2}, v{Q+j}")
        b(f"ds_write_b128 v{AD}, {v(P,4)} offset:{(ks*2+0)*1024}")
        b(f"ds_write_b128 v{AD}, {v(Q,4)} offset:{(ks*2+1)*1024}")

def m_read(b):
    out = []
    for lt in range(4):
        for ks in range(2):
            for pq in range(2):
                out.append(lambda lt=lt, ks=ks, pq=pq: b(f"ds_read_b128 {a(mreg(lt,ks,pq),4)}, v{V_G+4+lt} offset:{(ks*2+pq)*1024}", tag="m"))
    return out

def prefill_start(b):
    for r in range(4): b(f"v_mov_b32 v{V_NEG+r}, -1")
    b(f"s_add_u32 s7, s10, {16*Z_G}")
    b(f"buffer_store_dwordx4 {v(V_NEG,4)}, v{V_ZO1}, s[{R_WS}:{R_WS+3}], s10 offen sc1", tag="pre")
    b(f"buffer_store_dwordx4 {v(V_NEG,4)}, v{V_ZO1}, s[{R_WS}:{R_WS+3}], s7 offen sc1", tag="pre")
    own_line(b, 6)
    b(f"v_mov_b32 v{T}, 0")
    b("s_mov_b64 exec, 1")
    b(f"buffer_store_dword v{T}, v{T}, s[{R_WS}:{R_WS+3}], s6 offen sc1", tag="pre")
    b("s_mov_b64 exec, -1")

def arrive0(b):
    lab = b.newlabel("L_arr")
    b.notrack = True
    b(f"s_cmp_eq_u32 s{S_W}, 0")
    b(f"s_cbranch_scc0 {lab}")
    b("s_and_b32 s6, s2, 3")
    b("s_lshl_b32 s6, s6, 6")
    b(f"v_mov_b32 v{T}, 1")
    b(f"v_mov_b32 v{T+1}, 0")
    b("s_mov_b64 exec, 1")
    b(f"buffer_atomic_add v{T}, v{T+1}, s[{R_DBG}:{R_DBG+3}], s6 offen sc1")
    b("s_mov_b64 exec, -1")
    b.label(lab)
    b.notrack = False

V_B0 = 229 + 25
def b0_load(b, reg):
    b(f"v_and_b32 v{reg}, 3, v0")
    b(f"v_lshlrev_b32 v{reg}, 6, v{reg}")
    b(f"buffer_load_dword v{reg}, v{reg}, s[{R_DBG}:{R_DBG+3}], 0 offen sc1", tag="b0")

def b0_check(b, reg):
    b.wait_vm("b0")
    l2 = b.newlabel("L_b0"); l3 = b.newlabel("L_b0d")
    b("s_mov_b32 s12, 0")
    b.label(l2)
    b.notrack = True
    b(f"v_cmp_gt_u32 vcc, 63, v{reg}")
    b("s_cmp_eq_u64 vcc, 0")
    b(f"s_cbranch_scc1 {l3}")
    b("s_add_u32 s12, s12, 1")
    b("s_cmp_ge_u32 s12, 0x10000")
    b(f"s_cbranch_scc1 {l3}")
    b(f"v_and_b32 v{reg}, 3, v0")
    b(f"v_lshlrev_b32 v{reg}, 6, v{reg}")
    b(f"buffer_load_dword v{reg}, v{reg}, s[{R_DBG}:{R_DBG+3}], 0 offen sc1")
    b("s_waitcnt vmcnt(0)")
    b(f"s_branch {l2}")
    b.label(l3)
    b.notrack = False

def guarded(b, regs, reload, name):
    t0 = V_GT
    n = len(regs)
    def tree():
        b(f"v_max3_u32 v{t0}, v{regs[0]}, v{regs[1]}, v{regs[2]}")
        i = 3
        while i + 1 < n:
            b(f"v_max3_u32 v{t0}, v{t0}, v{regs[i]}, v{regs[i+1]}"); i += 2
        if i < n: b(f"v_max_u32 v{t0}, v{t0}, v{regs[i]}")
        b(f"v_cmp_eq_u32 vcc, -1, v{t0}")
        b("s_cmp_eq_u64 vcc, 0")
    slow = b.newlabel("L_slow"); back = b.newlabel("L_back")
    if cfg.x_noguard: return
    tree()
    b(f"s_cbranch_scc0 {slow}")
    b.label(back)
    b.slow.append((slow, back, reload, tree))

def emit_slow(b):
    for (slow, back, reload, tree) in b.slow:
        loop = b.newlabel("L_sl")
        b.label(slow)
        b.notrack = True
        b("s_mov_b32 s12, 0")
        b.label(loop)
        reload()
        b("s_waitcnt vmcnt(0)")
        tree()
        b(f"s_cbranch_scc1 {back}")
        b("s_add_u32 s12, s12, 1")
        b("s_cmp_lt_u32 s12, 0x4000")
        b(f"s_cbranch_scc1 {loop}")
        b(f"s_branch {back}")
        b.notrack = False

def w_prefetch(b):
    b("s_mul_i32 s6, s2, 7168")
    b(f"s_lshl_b32 s7, s{S_W}, 10")
    b("s_add_u32 s6, s6, s7")
    b("s_add_u32 s7, s6, 4096")
    for n in range(2):
        b(f"buffer_load_dwordx4 {a(A_PF + 8*n, 4)}, v{V_L16}, s[{R_W1}:{R_W1+3}], s{6+n} offen", tag="pf")
        b(f"buffer_load_dwordx4 {a(A_PF + 8*n + 4, 4)}, v{V_L16}, s[{R_W2}:{R_W2+3}], s{6+n} offen", tag="pf")

def own_line(b, dst):
    b(f"s_mul_i32 s{dst}, s{S_IDX}, 7")
    b(f"s_add_u32 s{dst}, s{dst}, s{S_J}")
    b(f"s_lshl_b32 s{dst}, s{dst}, 2")
    b(f"s_add_u32 s{dst}, s{dst}, s{S_W}")
    b(f"s_lshl_b32 s{dst}, s{dst}, 7")
    b(f"s_add_u32 s{dst}, s{dst}, {WS_FL}")

def p2_scalars(b):
    b(f"s_and_b32 s6, s{S_W}, 1")
    b("s_lshl_b32 s7, s6, 1")
    for lt in range(4): b(f"s_xor_b32 s{S_TT+lt}, s7, {lt}")
    b(f"s_lshr_b32 s7, s{S_W}, 1")
    b("s_mul_i32 s7, s7, 7")
    b("s_lshl_b32 s9, s6, 2")
    b("s_add_u32 s9, s9, s7")
    b(f"s_mov_b32 s{S_PI}, s9")
    for p in range(1, 3): b(f"s_add_u32 s{S_PI+p}, s9, {p}")
    b(f"s_add_u32 s{S_PI+3}, s7, 3")
    b(f"s_mul_i32 s7, s{S_IDX}, {Z_G}")
    for p in range(4):
        b(f"s_lshl_b32 s8, s{S_PI+p}, 12")
        b(f"s_add_u32 s{S_ZL+p}, s7, s8")
        b(f"s_lshl_b32 s{S_P32+p}, s{S_PI+p}, 5")
    b(f"s_cmp_eq_u32 s{S_W}, 0")
    b(f"s_cselect_b32 s{S_MASK}, 0xffff, 0")
    b(f"s_mov_b32 s{S_MASK+1}, 0")
    b(f"s_mul_i32 s{S_RW}, s{S_W}, 24576")
    b(f"s_add_u32 s{S_RW}, s{S_RW}, {RING}")
    b(f"s_lshl_b32 s7, s{S_J}, 9")
    b(f"s_lshl_b32 s9, s{S_W}, 7")
    b(f"s_add_u32 s{S_W1B}, s7, s9")
    b(f"s_mov_b32 s{S_Z0}, s10")
    b(f"s_add_u32 s{S_Z1}, s10, {16*Z_G}")

def inbox_scalars(b):
    b(f"s_mul_i32 s11, s{S_IDX}, {PB_G}")
    b(f"s_lshl_b32 s7, s{S_W}, 11")
    b("s_add_u32 s11, s11, s7")
    b(f"s_add_u32 s11, s11, {WS_PB}")
    b(f"s_lshl_b32 s13, s{S_J}, 13")
    b("s_add_u32 s13, s13, s11")
    for p in range(6):
        b(f"s_add_u32 s6, s{S_J}, {p+1}")
        b("s_sub_u32 s7, s6, 7")
        b("s_min_u32 s6, s6, s7")
        b(f"s_mul_i32 s7, s6, {7*8192}")
        b(f"s_add_u32 s{S_IN+p}, s13, s7")

def p2_scalars_late(b):
    b(f"s_lshl_b32 s{S_HWB}, s{S_W}, 13")
    b(f"s_lshl_b32 s6, s{S_J}, 8")
    b(f"s_lshl_b32 s7, s{S_W}, 6")
    b("s_add_u32 s6, s6, s7")
    b("s_mul_i32 s10, s6, 896")
    b(f"s_mul_i32 s11, s{S_IDX}, {PB_G}")
    b(f"s_lshl_b32 s7, s{S_W}, 11")
    b("s_add_u32 s11, s11, s7")
    b(f"s_add_u32 s11, s11, {WS_PB}")
    b(f"s_mul_i32 s12, s{S_J}, {7*8192}")
    b("s_add_u32 s12, s12, s11")
    for p in range(7):
        b(f"s_add_u32 s6, s{S_J}, {p+1}")
        b("s_sub_u32 s7, s6, 7")
        b("s_min_u32 s6, s6, s7")
        b("s_lshl_b32 s7, s6, 7")
        b(f"s_add_u32 s{S_W2+p}, s10, s7")
        if p < 6:
            b("s_lshl_b32 s7, s6, 13")
            b(f"s_add_u32 s{S_PB+p}, s12, s7")
    b(f"s_lshl_b32 s10, s{S_J}, 7")
    b(f"s_lshl_b32 s7, s{S_W}, 5")
    b("s_add_u32 s10, s10, s7")
    b(f"s_sub_u32 s8, 64, s{S_IDX}")
    b(f"s_cmp_eq_u32 s{S_IDX}, 0")
    b("s_cselect_b32 s8, 32, s8")
    for tt in range(4):
        src = f"s{S_IDX}" if tt < 2 else "s8"
        b(f"s_add_u32 s6, {src}, {1024*(tt&1)}")
        b("s_mul_i32 s6, s6, 896")
        b(f"s_add_u32 s{S_O+tt}, s6, s10")

def p2_addr(b):
    t = T
    for p in range(4): b(f"s_sub_u32 s{S_N32+p}, 864, s{S_P32+p}")
    b(f"v_lshlrev_b32 v{t}, 3, v{V_C}")
    b(f"v_lshl_add_u32 v{V_ZO}, v{V_GQ}, 9, v{t}")
    b(f"s_lshl_b32 s7, s{S_PI}, 12")
    b(f"s_lshl_b32 s8, s{S_PI+3}, 12")
    for lt in range(4):
        b(f"s_lshl_b32 s6, s{S_TT+lt}, 10")
        b("s_add_u32 s9, s6, s7")
        b(f"v_add_u32 v{V_HW+lt}, s9, v{V_L16}")
        if lt < 2:
            b("s_add_u32 s9, s6, s8")
            b(f"v_add_u32 v{V_HWS+lt}, s9, v{V_L16}")
        rot(b, 6, lt, 10)
        b(f"v_add_u32 v{V_HB+lt}, s6, v{V_L16}")
    b(f"v_lshrrev_b32 v{t}, 2, v{V_C}")
    b(f"v_lshl_add_u32 v{t}, v{V_GQ}, 2, v{t}")
    b(f"v_bfe_u32 v{t+1}, v{t}, 1, 2")
    b(f"v_and_b32 v{t+2}, 3, v0")
    b(f"v_lshlrev_b32 v{t+2}, 3, v{t+2}")
    b(f"v_lshl_add_u32 v{t+2}, v{t}, 7, v{t+2}")
    b(f"v_add_u32 v{t+4}, s{S_RW}, v{t+2}")
    for u in range(4):
        b(f"v_xor_b32 v{t+3}, {u}, v{t+1}")
        b(f"v_lshl_add_u32 v{V_TR1+u}, v{t+3}, 5, v{t+4}")
    b(f"v_xor_b32 v{t+3}, s{S_W}, v{t+1}")
    b(f"v_lshl_add_u32 v{t+3}, v{t+3}, 5, v{t+2}")
    b(f"v_add_u32 v{V_TR2}, {RING}, v{t+3}")
    b(f"v_add_u32 v{V_TR2+1}, {RING+49152}, v{t+3}")
    b(f"v_mov_b32 v{V_TR2H}, v{t+3}")
    b(f"v_lshrrev_b32 v{t}, 3, v0")
    b(f"v_bfe_u32 v{t+1}, v{t}, 1, 2")
    b(f"v_lshlrev_b32 v{t+1}, 1, v{t+1}")
    b(f"v_and_b32 v{t+2}, 7, v0")
    b(f"v_xor_b32 v{t+2}, v{t+2}, v{t+1}")
    b(f"v_lshlrev_b32 v{t+2}, 4, v{t+2}")
    b(f"v_mul_u32_u24 v{t+1}, 3584, v{t}")
    b(f"v_add_u32 v{V_W1O}, v{t+1}, v{t+2}")
    b(f"v_add_u32 v{V_W1O+1}, {8*3584 - 1024}, v{V_W1O}")
    b(f"v_sub_u32 v{t+3}, v{t+2}, v{t+1}")
    b(f"v_add_u32 v{V_W1O+2}, {15*3584 - 2048 + 4096}, v{t+3}")
    b(f"v_add_u32 v{V_W1O+3}, {7*3584 - 3072 + 4096}, v{t+3}")
    b(f"v_sub_u32 v{t+3}, 448, v{t}")
    b(f"v_mov_b32 v{t+4}, 224")
    b(f"v_cmp_eq_u32 vcc, 0, v{t}")
    b(f"v_mul_u32_u24 v{t+1}, 896, v{t}")
    b(f"v_cndmask_b32 v{t+3}, v{t+3}, v{t+4}, vcc")
    b(f"v_mul_u32_u24 v{t+3}, 3584, v{t+3}")
    b(f"v_add_u32 v{t+3}, v{t+3}, v{t+2}")
    b(f"v_subrev_u32 v{V_AUX}, 2048, v{t+3}")
    b(f"v_add_u32 v{V_W2O}, v{t+1}, v{t+2}")
    for n in range(1, 4):
        b(f"v_add_u32 v{V_W2O+n}, {n*(8*896 - 1024)}, v{V_W2O}")
    b(f"v_mul_u32_u24 v{t}, {XRS}, v{V_C}")
    b(f"v_lshl_add_u32 v{t}, v{V_GQ}, 4, v{t}")
    for lt in range(4):
        b(f"s_mul_i32 s6, s{S_TT+lt}, {16*XRS}")
        b(f"v_add_u32 v{V_XA+lt}, s6, v{t}")
    b(f"v_lshlrev_b32 v{t}, 3, v{V_GQ}")
    b(f"v_sub_u32 v{t+1}, v{V_C}, v{t}")
    b(f"v_sub_u32 v{t+2}, 16, v{V_C}")
    b(f"v_sub_u32 v{t+2}, v{t+2}, v{t}")
    b(f"v_mov_b32 v{t+3}, 0x3f80")
    b(f"v_mov_b32 v{t+4}, 0x3f800000")
    b(f"v_mov_b32 v{t+5}, 0")
    for (dst, src) in ((V_SEL1, t+1), (V_SEL2, t+2)):
        for m in range(4):
            b(f"v_cmp_eq_u32 vcc, {2*m}, v{src}")
            b(f"v_cmp_eq_u32 s[6:7], {2*m+1}, v{src}")
            b(f"v_cndmask_b32 v{dst+m}, v{t+5}, v{t+3}, vcc")
            b(f"v_cndmask_b32 v{dst+m}, v{dst+m}, v{t+4}, s[6:7]")
    for m in range(4):
        b(f"v_xor_b32 v{V_NSEL2+m}, 0x80008000, v{V_SEL2+m}")

def hres_addr(b):
    t = T
    b(f"s_lshl_b32 s6, s{S_J}, 6")
    b(f"s_lshl_b32 s7, s{S_W}, 4")
    b("s_add_u32 s6, s6, s7")
    b(f"v_lshl_add_u32 v{t+4}, v{V_GQ}, 2, s6")
    b("s_lshl_b32 s6, s6, 8")
    b(f"v_add_u32 v{t+5}, s6, v{V_L16}")
    for r in range(4):
        A = V_HA + r
        b(f"v_add_u32 v{t}, {r}, v{t+4}") if r else b(f"v_mov_b32 v{t}, v{t+4}")
        b(f"v_sub_u32 v{t+2}, 448, v{t}")
        b(f"v_mov_b32 v{t+3}, 0")
        b(f"v_cmp_eq_u32 vcc, 224, v{t}")
        b(f"v_add_u32 v{t+1}, {2*r}, v{t+5}")
        b(f"v_cndmask_b32 v{t+2}, v{t+2}, v{t+3}, vcc")
        b(f"v_lshrrev_b32 v{t+3}, 4, v{t+2}")
        b(f"v_lshlrev_b32 v{A}, 12, v{t+3}")
        b(f"v_bfe_u32 v{t+3}, v{t+2}, 2, 2")
        b(f"v_lshl_add_u32 v{t+3}, v{t+3}, 4, v{V_C}")
        b(f"v_lshl_add_u32 v{A}, v{t+3}, 4, v{A}")
        b(f"v_and_b32 v{t+3}, 3, v{t+2}")
        b(f"v_lshl_add_u32 v{A}, v{t+3}, 1, v{A}")
        b(f"v_cmp_gt_u32 vcc, 224, v{t}")
        b(f"v_add_u32 v{A}, 8, v{A}")
        b(f"v_cndmask_b32 v{A}, v{A}, v{t+1}, vcc")

def p1_loop(b, stages=((0,1),(2,3),(4,5,6))):
    def xread(ks):
        ksp, par, buf = ks >> 1, ks & 1, ks & 1
        return [(lambda ls=ls: b(f"ds_read_b128 {v(V_XF + 16*buf + 4*ls, 4)}, v{V_XB + 2*ls + par} offset:{XL + ksp*8192}", tag=f"xf{ks}")) for ls in range(4)]
    pbp = pb_prefill(b) if (cfg.pre_at == "loop" and not cfg.x_nopre) else []
    for si, stg in enumerate(stages):
        b.wait_vm([f"x{stg[-1]}", "pre"])
        if si == 0: b("s_waitcnt lgkmcnt(0)")
        b("s_barrier")
        if si == 0: arrive0(b)
        stamp(b, 3 + si)
        kss = [k for p in stg for k in (2*p, 2*p+1)]
        for f in xread(kss[0]): f()
        if si == 0:
            fm = f_read(b) + m_read(b)
        for n, ks in enumerate(kss):
            nxt = kss[n+1] if n + 1 < len(kss) else None
            b.wait_lg(f"xf{ks}")
            xf = V_XF + 16*(ks & 1)
            wd = v(V_WD + 4*ks, 4)
            z = ks == 0
            mf = [f"{MF} {v(V_QQ,4)}, {v(xf,4)}, {v(xf,4)}, {'0' if z else v(V_QQ,4)}",
                  f"{MF} {v(V_SS,4)}, {v(V_ONE,4)}, {v(xf,4)}, {'0' if z else v(V_SS,4)}"]
            for ls in range(4):
                mf.append(f"{MF} {v(V_ACC + 4*ls, 4)}, {v(xf + 4*ls, 4)}, {wd}, {'0' if z else v(V_ACC + 4*ls, 4)}")
            fill = xread(nxt) if nxt is not None else []
            fill = fill + fm[:6]; fm = fm[6:]
            if ks >= 2 and pbp: fill.append(pbp.pop(0))
            weave(b, mf, fill, per=2)

def stats_core(b, SS, QQ, scale4):
    b(f"v_cndmask_b32 v{QQ}, v{QQ}, v{QQ+1}, s[{S_M1}:{S_M1+1}]")
    b(f"v_mul_f32 v{SS}, 0x3b124925, v{SS}")
    b(f"v_cndmask_b32 v{QQ}, v{QQ}, v{QQ+2}, s[{S_M1+2}:{S_M1+3}]")
    b(f"v_cndmask_b32 v{QQ}, v{QQ}, v{QQ+3}, s[{S_M1+4}:{S_M1+5}]")
    b(f"v_mul_f32 v{QQ}, 0x3b124925, v{QQ}")
    b(f"v_fma_f32 v{QQ}, -v{SS}, v{SS}, v{QQ}")
    b(f"v_max_f32 v{QQ}, 0, v{QQ}")
    if scale4:
        b(f"v_mul_f32 v{QQ}, 0x3e800000, v{QQ}")
    b(f"v_add_f32 v{QQ}, 0x3727c5ac, v{QQ}")
    b(f"v_rsq_f32 v{QQ}, v{QQ}")

def p1_tail(b):
    t = T
    stamp(b, 6)
    stats_core(b, V_SS, V_QQ, False)
    b(f"s_lshl_b32 s6, s{S_W}, 6")
    b(f"s_add_u32 s6, s6, {STAT}")
    b(f"v_lshl_add_u32 v{t}, v{V_C}, 2, s6")
    b(f"v_mul_f32 v{V_SS}, v{V_QQ}, v{V_SS}")
    b(f"v_add_f32 v{V_QQ}, v{V_QQ}, v{V_QQ}")
    b(f"v_mul_f32 v{V_SS}, -2.0, v{V_SS}")
    b(f"s_mov_b64 exec, s[{S_DIAG}:{S_DIAG+1}]")
    b(f"ds_write_b32 v{t}, v{V_QQ}")
    b(f"ds_write_b32 v{t}, v{V_SS} offset:256")
    b("s_mov_b64 exec, -1")
    b("s_waitcnt lgkmcnt(0)")
    b("s_barrier")
    for ls in range(4):
        b(f"ds_read_b128 {v(V_AB + 8*ls, 4)}, v{V_SA + ls}", tag=f"ab{ls}")
        b(f"ds_read_b128 {v(V_AB + 8*ls + 4, 4)}, v{V_SA + ls} offset:256", tag=f"ab{ls}")
    for ls in range(4):
        b.wait_lg(f"ab{ls}")
        al, be, ac = V_AB + 8*ls, V_AB + 8*ls + 4, V_ACC + 4*ls
        for h in range(2):
            b(f"v_pk_mul_f32 {v(be+2*h,2)}, {v(be+2*h,2)}, {v(V_CS1,2)} op_sel_hi:[1,0]")
        for h in range(2):
            b(f"v_pk_fma_f32 {v(ac+2*h,2)}, {v(al+2*h,2)}, {v(ac+2*h,2)}, {v(be+2*h,2)}")
        for h in range(2):
            b(f"v_cvt_pk_f16_f32 v{V_A + 2*ls + h}, v{ac+2*h}, v{ac+2*h+1}")
    stamp(b, 7)
    for gh in range(2):
        for sg in range(2):
            d = V_D2 + (gh*2 + sg)*4
            b(f"{MH} {v(d,4)}, {v(V_A,4)}, {v(V_F + ((gh*2+sg)*2)*4,4)}, 0")
    for gh in range(2):
        for sg in range(2):
            d = V_D2 + (gh*2 + sg)*4
            b(f"{MH} {v(d,4)}, {v(V_A+4,4)}, {v(V_F + ((gh*2+sg)*2+1)*4,4)}, {v(d,4)}")
    for gh in range(2):
        for r in range(4):
            b(f"v_cvt_pk_f16_f32 v{V_ZP + 4*gh + r}, v{V_D2 + (gh*2)*4 + r}, v{V_D2 + (gh*2+1)*4 + r}")
        b(f"buffer_store_dwordx4 {v(V_ZP + 4*gh, 4)}, v{V_ZO1}, s[{R_WS}:{R_WS+3}], s{S_Z0+gh} offen sc1", tag="zst")

def xres_pad(b):
    b(f"s_mul_i32 s96, s{S_W}, {16*XRS}")
    b(f"v_lshrrev_b32 v{T}, 1, v0")
    b(f"v_mul_u32_u24 v{T}, {XRS}, v{T}")
    b(f"v_and_b32 v{T+1}, 1, v0")
    b(f"v_lshl_add_u32 v{T}, v{T+1}, 4, v{T}")
    b(f"v_add_u32 v{T}, s96, v{T}")
    for r in range(4): b(f"v_mov_b32 v{T+4+r}, 0")
    b("s_mov_b32 exec_hi, 0")
    b(f"ds_write_b128 v{T}, {v(T+4,4)} offset:{XL+896}")
    b("s_mov_b32 exec_hi, -1")

def xres_list(b):
    out = []
    for c in range(16):
        def f(c=c):
            b(f"s_add_u32 m0, s96, {XL + c*XRS}")
            b(f"s_add_u32 s95, s{S_XR}, {c*57344}")
            b("s_mov_b32 exec_hi, 0x00ffffff")
            b(f"buffer_load_dwordx4 v{V_L16}, s[{R_X}:{R_X+3}], s95 offen lds", tag="xres")
            b("s_mov_b32 exec_hi, -1")
        out.append(f)
    return out

def w1_groups(b, k):
    slot = k % 6
    out = []
    for n in range(4):
        pre = []
        if n == 0:
            pre = [f"s_add_u32 m0, s{S_RW}, {slot*4096}", (f"s_add_u32 s95, s{S_W1B}, {16*k*3584}" if k else f"s_mov_b32 s95, s{S_W1B}")]
        if n == 2 and not k == 0: pre = [f"s_add_u32 s96, s{S_W1B}, {(433 - 16*k)*3584 - 4096}"]
        if n == 3 and k == 0: pre = [f"s_add_u32 s96, s{S_W1B}, {(433 - 16*k)*3584 - 4096}"]
        def f(n=n):
            if n < 2: vo, so = V_W1O + n, "s95"
            elif k == 0 and n == 2: vo, so = V_AUX, f"s{S_W1B}"
            else: vo, so = V_W1O + n, "s96"
            off = f" offset:{1024*n}" if n else ""
            b(f"buffer_load_dwordx4 v{vo}, s[{R_W1}:{R_W1+3}], {so} offen{off} lds", tag=f"w1_{k}")
        out.append((pre, f))
    return out

def flat(gs):
    out = []
    for pre, op in gs: out += list(pre) + [op]
    return out
def w1_dma(b, k): return flat(w1_groups(b, k))

def units():
    return [(p, lt) for lt in range(4) for p in range(4) if not (p == 3 and lt >= 2)]
def preg(p, lt): return V_P + (p*4 + lt)*4 if p < 3 else V_PS + lt*4
def qreg(p, lt): return V_Q + (p*4 + lt)*4 if p < 3 else V_QS + lt*4

A_W = 64
def x_init(b, extra=()):
    us = units()
    AD = T
    def rd(i):
        p, lt = us[i]; w = A_W + 8*(i & 3)
        return [f"v_add_u32 v{AD + 2*(i&1)}, s{S_P32+p}, v{V_XA+lt}",
                f"v_add_u32 v{AD + 2*(i&1) + 1}, s{S_N32+p}, v{V_XA+lt}",
                lambda: b(f"ds_read_b128 {a(w,4)}, v{AD + 2*(i&1)} offset:{XL}", tag=f"xw{i}"),
                lambda: b(f"ds_read_b128 {a(w+4,4)}, v{AD + 2*(i&1) + 1} offset:{XL}", tag=f"xw{i}")]
    for lt in range(4):
        b(f"ds_read_b32 v{V_E + 4*lt}, v{V_XA+lt} offset:{XL+448}", tag="xe")
    for i in range(3):
        for f in rd(i): emit(b, f)
    extra = list(extra)
    for i, (p, lt) in enumerate(us):
        b.wait_lg(f"xw{i}")
        w = A_W + 8*(i & 3); P, Q = preg(p, lt), qreg(p, lt)
        mf = [f"{MF} {v(P,4)}, {v(V_SEL1,4)}, {a(w,4)}, 0",
              f"{MF} {v(Q,4)}, {v(V_SEL1,4)}, {a(w,4)}, 0",
              f"{MF} {v(P,4)}, {v(V_SEL2,4)}, {a(w+4,4)}, {v(P,4)}",
              f"{MF} {v(Q,4)}, {v(V_NSEL2,4)}, {a(w+4,4)}, {v(Q,4)}"]
        fill = rd(i+3) if i + 3 < len(us) else []
        ne = (len(extra) + len(us) - i - 1) // (len(us) - i)
        fill = extra[:ne] + fill; extra = extra[ne:]
        weave(b, mf, fill, per=2)
    b("s_nop 7")
    b(f"v_mov_b32 v{T+1}, 0")
    for lt in range(4):
        P, Q, E = preg(0, lt), qreg(0, lt), V_E + 4*lt
        b(f"v_add_f32 v{T}, v{P}, v{P}")
        b(f"v_cndmask_b32 v{Q}, v{Q}, v{T+1}, s[{S_MASK}:{S_MASK+1}]")
        b(f"v_cndmask_b32 v{P}, v{P}, v{T}, s[{S_MASK}:{S_MASK+1}]")
        b(f"v_lshlrev_b32 v{E}, 16, v{E}")
        b(f"v_add_f32 v{E}, v{E}, v{E}")

def z_load(b, p):
    for ks in range(2):
        for j in range(4):
            reg = V_Z + (p*2 + ks)*8 + 2*j
            b(f"buffer_load_dwordx2 {v(reg,2)}, v{V_ZO}, s[{R_WS}:{R_WS+3}], s{S_ZL+p} offen offset:{ks*2048 + j*128} sc1", tag=f"z{p}_{ks}")
def z_list(b):
    out = []
    if cfg.x_z4:
        b(f"v_and_b32 v{T+6}, 7, v{V_C}")
        b(f"v_lshlrev_b32 v{T+6}, 4, v{T+6}")
        b(f"v_lshrrev_b32 v{T+7}, 3, v{V_C}")
        b(f"v_lshl_add_u32 v{T+6}, v{T+7}, 7, v{T+6}")
        b(f"v_lshl_add_u32 v{T+6}, v{V_GQ}, 9, v{T+6}")
        for p in range(4):
            for ks in range(2):
                for j in range(2):
                    reg = V_Z + (p*2 + ks)*8 + 4*j
                    out.append(lambda p=p, ks=ks, j=j, reg=reg: b(f"buffer_load_dwordx4 {v(reg,4)}, v{T+6}, s[{R_WS}:{R_WS+3}], s{S_ZL+p} offen offset:{ks*2048 + j*256} sc1", tag=f"z{p}_{ks}"))
        return out
    for p in range(4):
        for ks in range(2):
            for j in range(4):
                reg = V_Z + (p*2 + ks)*8 + 2*j
                out.append(lambda p=p, ks=ks, j=j, reg=reg: b(f"buffer_load_dwordx2 {v(reg,2)}, v{V_ZO}, s[{R_WS}:{R_WS+3}], s{S_ZL+p} offen offset:{ks*2048 + j*128} sc1", tag=f"z{p}_{ks}"))
    return out

def pb_prefill(b):
    out = []
    for q in range(6):
        for h in range(2):
            out.append(lambda q=q, h=h: b(f"buffer_store_dwordx4 {v(V_NEG,4)}, v{V_L16}, s[{R_WS}:{R_WS+3}], s{S_IN+q} offen offset:{1024*h} sc1", tag="pbpre"))
    return out

def step_b(b, ring=()):
    def swaps(p, ks):
        z = V_Z + (p*2 + ks)*8
        return [f"v_swap_b32 v{z+1}, v{z+2}", f"v_swap_b32 v{z+2}, v{z+4}", f"v_swap_b32 v{z+3}, v{z+6}", f"v_swap_b32 v{z+5}, v{z+6}"]
    def epi(p, lt):
        P, Q = preg(p, lt), qreg(p, lt)
        fl = []
        for r in range(4):
            fl.append(f"v_add_f32 v{T+r}, v{P+r}, v{Q+r}")
            fl.append(f"v_sub_f32 v{T+4+r}, v{P+r}, v{Q+r}")
        if p == 0:
            fl.append(f"v_cndmask_b32 v{T}, v{T}, v{P}, s[{S_MASK}:{S_MASK+1}]")
            fl.append(f"v_cndmask_b32 v{T+4}, v{T+4}, v{V_E+4*lt}, s[{S_MASK}:{S_MASK+1}]")
        fl.append(f"v_cvt_pk_bf16_f32 v{P+0}, v{T+0}, v{T+1}")
        fl.append(f"v_cvt_pk_bf16_f32 v{P+1}, v{T+2}, v{T+3}")
        fl.append(f"v_cvt_pk_bf16_f32 v{P+2}, v{T+4}, v{T+5}")
        fl.append(f"v_cvt_pk_bf16_f32 v{P+3}, v{T+6}, v{T+7}")
        if p < 3:
            fl.append(lambda: b(f"ds_write_b128 v{V_HW+lt}, {v(P,4)} offset:{XL + p*4096}", tag="hw"))
        else:
            fl.append(lambda: b(f"ds_write_b128 v{V_HWS+lt}, {v(P,4)} offset:{XL}", tag="hw"))
        return fl
    def mf(p, lt):
        P, Q = preg(p, lt), qreg(p, lt)
        out = []
        for ks in range(2):
            z = V_Z + (p*2 + ks)*8
            out.append(f"{MH} {v(P,4)}, {v(z,4)}, {a(mreg(lt,ks,0),4)}, {v(P,4)}")
            out.append(f"{MH} {v(Q,4)}, {v(z+4,4)}, {a(mreg(lt,ks,1),4)}, {v(Q,4)}")
        return out
    order = [(p, lt) for p in range(4) for lt in range(4) if not (p == 3 and lt >= 2)]
    done = []
    pre = [] if cfg.x_noring else list(ring)
    nun = len(order)
    for iu, (p, lt) in enumerate(order):
        if lt == 0:
            b.wait_vm(f"z{p}_1")
            if cfg.fineb: stamp(b, 24 + p, True)
            guarded(b, [V_Z + p*16 + i for i in range(16)], lambda p=p: z_load(b, p), f"z{p}")
            for ks in range(2):
                for sw in swaps(p, ks): b(sw)
            if p == 0:
                lab = b.newlabel("L_noE")
                b(f"s_cmp_eq_u32 s{S_W}, 0")
                b(f"s_cbranch_scc0 {lab}")
                for ks in range(2):
                    for l2 in range(4):
                        z = V_Z + ks*8
                        b(f"{MH} {v(V_E+4*l2,4)}, {v(z+4,4)}, {a(mreg(l2,ks,0),4)}, {v(V_E+4*l2,4)}")
                b.label(lab)
        fl = epi(*done[-2]) if len(done) >= 2 else []
        nv = (len(pre) + (nun - iu) - 1) // (nun - iu)
        vm = pre[:nv]; pre = pre[nv:]
        sched(b, mf(p, lt), vm=vm, misc=fl, cap=5)
        done.append((p, lt))
    for f in epi(*done[-2]): emit(b, f)
    for f in epi(*done[-1]): emit(b, f)

def slab_buf(p):
    return {0: 1, 1: 2, 2: 0, 3: 1, 4: 2, 5: "H", 6: "S"}[p]

def w2_groups(b, p):
    sg = slab_buf(p)
    out = []
    for hf in range(2):
        for n in range(4):
            pre = []
            if n == 0:
                pre.append(f"s_add_u32 m0, s{S_HWB}, {XL + hf*4096}" if sg == "H" else f"s_add_u32 m0, s{S_RW}, {sg*8192 + hf*4096}")
                if hf: pre.append(f"s_add_u32 s95, s{S_W2+p}, {32*896}")
            def f(n=n, hf=hf):
                so = "s95" if hf else f"s{S_W2+p}"
                off = f" offset:{1024*n}" if n else ""
                b(f"buffer_load_dwordx4 v{V_W2O+n}, s[{R_W2}:{R_W2+3}], {so} offen{off} lds", tag=f"w2_{p}")
            out.append((pre, f))
    return out
def w2_dma(b, p): return flat(w2_groups(b, p))

S_S6 = 6
def w2_groups6(b):
    ga, gb = [], []
    for i in range(6):
        pre = []
        if i == 0:
            pre = [f"s_mul_i32 s95, s{S_W}, {16*896}", f"s_sub_u32 s95, s{S_W2+6}, s95",
                   f"s_mul_i32 s96, s{S_W}, 6144", f"s_add_u32 m0, s96, {XL + 32768}"]
        if i == 4:
            pre = [f"s_add_u32 s95, s95, {32*896}", f"s_add_u32 m0, s96, {XL + 32768 + 4096}"]
        n = i & 3
        def f(n=n):
            off = f" offset:{1024*n}" if n else ""
            b(f"buffer_load_dwordx4 v{V_W2O+n}, s[{R_W2}:{R_W2+3}], s95 offen{off} lds", tag="w2_6")
        ga.append((pre, f))
    for i in range(2):
        pre = []
        if i == 0:
            pre = [f"s_mul_i32 s95, s{S_W}, {48*896}", f"s_sub_u32 s95, s{S_W2+6}, s95", f"s_add_u32 s95, s95, {192*896}",
                   f"s_lshl_b32 s96, s{S_W}, 11", f"s_add_u32 m0, s96, {RING}"]
        def f(n=i):
            off = f" offset:{1024*n}" if n else ""
            b(f"buffer_load_dwordx4 v{V_W2O+n}, s[{R_W2}:{R_W2+3}], s95 offen{off} lds", tag="w2_6")
        gb.append((pre, f))
    return ga, gb

def cs_loads(b):
    out = []
    def hdr():
        b(f"s_lshl_b32 s6, s{S_J}, 10")
        b(f"s_lshl_b32 s7, s{S_W}, 8")
        b("s_add_u32 s6, s6, s7")
        b(f"s_add_u32 s{S_CSO}, s6, {WS_CS}")
        b(f"v_lshlrev_b32 v{V_CSA}, 4, v{V_GQ}")
    hdr()
    cs_reload(b)

def cs_reload(b):
    for ft in range(4):
        b(f"buffer_load_dwordx4 {v(V_CS+4*ft,4)}, v{V_CSA}, s[{R_WS}:{R_WS+3}], s{S_CSO} offen offset:{64*ft} sc1", tag="cs")

def gemm1(b):
    def reads(k):
        buf = k & 1; slot = k % 6
        out = []
        for lt in range(4):
            out.append(lambda lt=lt: b(f"ds_read_b128 {v(V_B1 + 16*buf + 4*lt, 4)}, v{V_HB+lt} offset:{XL + k*4096}", tag=f"r{k}"))
        for u in range(4):
            for hh in range(2):
                out.append(lambda u=u, hh=hh: b(f"ds_read_b64_tr_b16 {v(V_A1 + 16*buf + 4*u + 2*hh, 2)}, v{V_TR1+u} offset:{slot*4096 + hh*2048}", tag=f"r{k}"))
        return out
    late = record(epi_addr) + record(flag_setup)
    b.wait_vm("w1_0")
    for f in reads(0): f()
    hres = [f"v_mov_b32 v{V_HRES+k}, 0" for k in range(16)]
    hrd = [(lambda tt=tt, r=r: b(f"ds_read_u16_d16_hi v{V_HRES + tt*4 + r}, v{V_HA + r} offset:{XL + tt*1024}", tag="hres")) for tt in range(4) for r in range(4)]
    s0 = []
    for k2 in range(8):
        s0 += slab_read(b, 0, k2, lambda o, k2=k2: a(A_S0 + 4*k2 + o, 2), "s0")
    g0, g1, g2 = w2_groups(b, 0), w2_groups(b, 1), w2_groups(b, 2)
    for k in range(14):
        buf = k & 1
        if k == 12:
            b.wait_vm("w2_0")
            b.wait_lg(f"r{k}")
            b("s_barrier")
        else:
            b.wait_lg(f"r{k}")
        if cfg.fine: stamp(b, k)
        first, vm, misc = [], [], []
        if k + 1 < 14:
            first.append(lambda k=k: b.wait_vm(f"w1_{k+1}"))
            if not cfg.x_noreads: first += reads(k + 1)
        if k + 6 < 14 and not cfg.x_now1dma: vm += w1_groups(b, k + 6)
        if k == 8: misc += hres
        if k == 9: vm += g0[:4]; misc += hrd[:8]
        if k == 10: vm += g0[4:]; misc += hrd[8:]
        if k == 11: vm += g1[:4]; misc.append(lambda: ready_set(b))
        if k == 12: vm += g1[4:]; misc += s0[:8]
        if k < 8:
            n = (len(late) + 7 - k) // (8 - k)
            misc += late[:n]; late = late[n:]
        bb = V_B1 + 16*buf
        z = k == 0
        mf = [f"{MF} {v(V_Q2,4)}, {v(bb,4)}, {v(bb,4)}, {'0' if z else v(V_Q2,4)}",
              f"{MF} {v(V_S2,4)}, {v(V_ONE2,4)}, {v(bb,4)}, {'0' if z else v(V_S2,4)}"]
        for lt in range(4):
            for u in range(4):
                d = V_ACC1 + (u*4 + lt)*4
                mf.append(f"{MF} {v(d,4)}, {v(V_A1 + 16*buf + 4*u, 4)}, {v(bb + 4*lt, 4)}, {'0' if z else v(d,4)}")
        if k == 13:
            r = Rec()
            stats_core(r, V_S2, V_Q2, True)
            sf = r.l + [f"s_lshl_b32 s6, s{S_W}, 6", f"s_add_u32 s6, s6, {STAT}", f"v_lshl_add_u32 v{T}, v{V_C}, 2, s6",
                        f"v_sub_f32 v{V_S2}, 0, v{V_S2}", f"v_mul_f32 v{V_Q2}, 0.5, v{V_Q2}"]
            sched(b, mf[:6], first=s0[8:], vm=g2[:2])
            sched(b, mf[6:], vm=g2[2:5], misc=sf)
            b(f"s_mov_b64 exec, s[{S_DIAG}:{S_DIAG+1}]")
            b(f"ds_write_b32 v{T}, v{V_S2}")
            b(f"ds_write_b32 v{T}, v{V_S2} offset:256")
            b(f"ds_write_b32 v{T}, v{V_Q2} offset:512")
            b("s_mov_b64 exec, -1")
            b.g2rest = g2[5:]
        else:
            sched(b, mf, first=first, vm=vm, misc=misc, misc_from=6)

def slab_read(b, p, k2, dst, tagp):
    sg = slab_buf(p)
    part = k2 >> 1
    if sg == "H":
        base = V_TR2H; off = XL + part*8192 + (k2 & 1)*4096
    elif sg == "S":
        if k2 < 6: base = V_TR2H; off = XL + 32768 + k2*4096
        else: base = V_TR2; off = (k2 - 6)*4096
    else:
        base = V_TR2 + (part >> 1)
        off = (part & 1)*24576 + sg*8192 + (k2 & 1)*4096
    return [(lambda hh=hh: b(f"ds_read_b64_tr_b16 {dst(2*hh)}, v{base} offset:{off + hh*2048}", tag=tagp)) for hh in range(2)]

V_NA = 54
V_SR = 36
def epi_addr(b):
    b(f"s_lshl_b32 s6, s{S_W}, 13")
    for l2 in range(4): b(f"v_add_u32 v{V_NA+l2}, s6, v{V_HB+l2}")
    b(f"v_lshlrev_b32 v{V_SR}, 2, v{V_C}")
    b(f"v_add_u32 v{V_SR}, {STAT}, v{V_SR}")
    b(f"s_lshl_b32 s6, s{S_W}, 6")
    b(f"v_add_u32 v{V_SR+1}, s6, v{V_SR}")

def gemm1_epi(b):
    b.wait_vm("w2_1")
    b("s_waitcnt lgkmcnt(0)")
    b("s_barrier")
    for lt in range(4):
        b(f"ds_read_b32 v{V_NM+2*lt}, v{V_SR+1} offset:{64*lt}", tag="nm")
    for tt in range(4):
        b(f"ds_read_b32 v{V_RR+tt}, v{V_SR} offset:{512 + 64*tt}", tag="rr")
    ready_load(b)
    b.wait_vm("cs")
    guarded(b, [V_CS + i for i in range(16)], lambda: cs_reload(b), "cs")
    b.wait_lg("nm")
    main = []
    for lt in range(4):
        for fp in range(2):
            pk = V_PK + 4*((lt*2 + fp) & 3)
            for hh in range(2):
                d = V_ACC1 + ((2*fp + hh)*4 + lt)*4
                for h in range(2):
                    main.append(f"v_pk_fma_f32 {v(d+2*h,2)}, {v(V_CS+4*(2*fp+hh)+2*h,2)}, {v(V_NM+2*lt,2)}, {v(d+2*h,2)} op_sel_hi:[1,0,1]")
            for hh in range(2):
                d = V_ACC1 + ((2*fp + hh)*4 + lt)*4
                main.append(f"v_cvt_pk_bf16_f32 v{pk+2*hh}, v{d}, v{d+1}")
                main.append(f"v_cvt_pk_bf16_f32 v{pk+2*hh+1}, v{d+2}, v{d+3}")
            for q in range(4):
                main.append(f"v_pk_max_i16 v{pk+q}, v{pk+q}, 0")
            main.append(lambda lt=lt, fp=fp, pk=pk: b(f"ds_write_b128 v{V_NA+lt}, {v(pk,4)} offset:{XL + fp*4096}", tag="hidw"))
    g6a, b.g6b = w2_groups6(b)
    b.g6a = g6a
    dm = [flat([g]) for g in b.g2rest + w2_groups(b, 3)]
    dm = [(lambda l=l: [emit(b, x) for x in l]) for l in dm]
    s1 = []
    for k2 in range(8):
        s1 += slab_read(b, 1, k2, lambda o, k2=k2: a(A_S0 + 32 + 4*k2 + o, 2), "s1")
    ex = []
    for i in range(max(len(dm), len(s1))):
        if i < len(s1): ex.append(s1[i])
        if i < len(dm): ex.append(dm[i])
    spread(b, main, ex, 4)
    b("s_waitcnt lgkmcnt(0)")
    b("s_barrier")

V_INR = [160, 168, 176, 184, 208, 216]
def inbox_load(b, q):
    return [([], (lambda h=h: b(f"buffer_load_dwordx4 {v(V_INR[q]+4*h,4)}, v{V_L16}, s[{R_WS}:{R_WS+3}], s{S_IN+q} offen offset:{1024*h} sc1", tag=f"p{q}"))) for h in range(2)]

def gemm2(b):
    hb = []
    for k2 in range(8):
        for tt in range(4):
            hb.append((k2, lambda k2=k2, tt=tt: b(f"ds_read_b128 {a((k2*4 + tt)*4, 4)}, v{V_L16} offset:{XL + k2*4096 + tt*1024}", tag=f"hb{k2}")))
    def aread(p, k2):
        if p <= 1: return []
        return slab_read(b, p, k2, lambda o: v(V_A2 + 4*(k2 & 3) + o, 2), f"a{p}_{k2}")
    def aop(p, k2):
        return a(A_S0 + 32*p + 4*k2, 4) if p <= 1 else v(V_A2 + 4*(k2 & 3), 4)
    def epi(p):
        acc = V_ACC2 + 16*(p & 1)
        pk = V_PK + 8*(p & 1)
        cv, st = [], []
        for h in range(2):
            pre = []
            for tt in (2*h, 2*h+1):
                pre.append(f"v_cvt_pk_bf16_f32 v{pk+2*tt}, v{acc+4*tt}, v{acc+4*tt+1}")
                pre.append(f"v_cvt_pk_bf16_f32 v{pk+2*tt+1}, v{acc+4*tt+2}, v{acc+4*tt+3}")
            cv.append(pre)
            st.append(lambda h=h: b(f"buffer_store_dwordx4 {v(pk+4*h,4)}, v{V_L16}, s[{R_WS}:{R_WS+3}], s{S_PB+p} offen offset:{1024*h} sc1", tag=f"pst{p}") if not cfg.x_nostore else None)
        return cv, st
    def mfs(p, k2):
        acc = V_ACC2 + 16*(p & 1)
        return [f"{MF} {v(acc+4*tt,4)}, {aop(p, k2)}, {a((k2*4+tt)*4, 4)}, {v(acc+4*tt, 4) if k2 else '0'}" for tt in range(4)]
    W = {q: w2_groups(b, q) for q in (4, 5)}
    plan = {0: W[4], 1: W[5], 2: b.g6a, 3: b.g6b}
    late_in = {5: [], 6: []}
    for (k2, f) in hb[:8]: f()
    tail = []
    for p in range(7):
        if cfg.fine: stamp(b, 24 + p)
        vm = list(plan.get(p, []))
        cv, st = epi(p - 1) if p >= 1 else ([], [])
        body = list(tail)
        firsts = []
        if p >= 1: firsts = aread(p, 0) + aread(p, 1)
        nt = len(tail)
        nvm_tail = min(len(vm), 2) if nt else 0
        if nt:
            sched(b, tail, first=firsts, vm=vm[:nvm_tail])
            vm = vm[nvm_tail:]
        if p == 1: ready_check(b)
        stg = [(cv[h], st[h]) for h in range(2)] if st else []
        order = stg + vm
        per = [[] for _ in range(6)]
        for i, g in enumerate(order): per[min(5, (i * 6) // max(len(order), 1))].append(g)
        for k2 in range(6):
            b.wait_lg([f"hb{k2}", f"a{p}_{k2}"])
            first = aread(p, k2 + 2)
            if p == 0: first += [f for (kk, f) in hb if kk == k2 + 2]
            gs = per[k2]
            if gs and len(gs[0][0]) > 2:
                sched(b, mfs(p, k2), first=first, misc=gs[0][0], cap=3)
                for g in gs[:1]: emit(b, g[1])
                for g in gs[1:]:
                    for x in g[0]: emit(b, x)
                    emit(b, g[1])
            else:
                sched(b, mfs(p, k2), first=first, vm=gs)
        if p < 6:
            if p + 1 >= 2: b.wait_vm(f"w2_{p+1}")
            b("s_waitcnt lgkmcnt(0)")
            if not cfg.x_nobar2: b("s_barrier")
            tail = mfs(p, 6) + mfs(p, 7)
        else:
            b.wait_lg([f"a{p}_6", f"a{p}_7"])
            sched(b, mfs(p, 6) + mfs(p, 7), vm=inbox_load(b, 5) + inbox_load(b, 4))

def flag_setup(b):
    t = T
    b(f"v_add_u32 v{t}, s{S_J}, v0")
    b(f"v_add_u32 v{t}, 1, v{t}")
    b(f"v_subrev_u32 v{t+1}, 7, v{t}")
    b(f"v_cmp_le_u32 vcc, 7, v{t}")
    b(f"s_mul_i32 s6, s{S_IDX}, 7")
    b(f"v_cndmask_b32 v{t}, v{t}, v{t+1}, vcc")
    b(f"v_add_u32 v{t}, s6, v{t}")
    b(f"v_lshlrev_b32 v{t}, 9, v{t}")
    b(f"s_lshl_b32 s6, s{S_W}, 7")
    b(f"s_add_u32 s6, s6, {WS_FL}")
    b(f"v_add_u32 v{t+6}, s6, v{t}")
    own_line(b, 13)
    b(f"v_mov_b32 v{t+5}, 1")
    b(f"v_mov_b32 v{t+4}, 0")

def ready_set(b):
    b.wait_vm("pbpre")
    b("s_mov_b64 exec, 1")
    b(f"buffer_store_dword v{T+5}, v{T+4}, s[{R_WS}:{R_WS+3}], s13 offen sc1", tag="rdy")
    b("s_mov_b64 exec, -1")

def ready_load(b):
    b("s_mov_b64 exec, 0x3f")
    b(f"buffer_load_dword v{T+7}, v{T+6}, s[{R_WS}:{R_WS+3}], 0 offen sc1", tag="rdl")
    b("s_mov_b64 exec, -1")

def ready_check(b):
    b.wait_vm("rdl")
    l2 = b.newlabel("L_rd"); l3 = b.newlabel("L_rdd")
    b.notrack = True
    b("s_mov_b32 s12, 0")
    b("s_mov_b64 exec, 0x3f")
    b.label(l2)
    b(f"v_cmp_ne_u32 vcc, 1, v{T+7}")
    b("s_cmp_eq_u64 vcc, 0")
    b(f"s_cbranch_scc1 {l3}")
    b("s_add_u32 s12, s12, 1")
    b("s_cmp_ge_u32 s12, 0x10000")
    b(f"s_cbranch_scc1 {l3}")
    b(f"buffer_load_dword v{T+7}, v{T+6}, s[{R_WS}:{R_WS+3}], 0 offen sc1")
    b("s_waitcnt vmcnt(0)")
    b(f"s_branch {l2}")
    b.label(l3)
    b("s_mov_b64 exec, -1")
    b.notrack = False

def final_reduce(b):
    t = T
    acc = V_ACC2
    def reload(q):
        for pre, op in inbox_load(b, q): op()
    for q in (3, 2, 1, 0): reload(q)
    b(f"v_mul_u32_u24 v{t+4}, 57344, v{V_C}")
    b(f"v_lshl_add_u32 v{t+4}, v{V_GQ}, 3, v{t+4}")
    stamp(b, 20)
    for q in (5, 4, 3, 2, 1, 0):
        b.wait_vm(f"p{q}")
        guarded(b, [V_INR[q] + i for i in range(8)], lambda q=q: reload(q), f"p{q}")
        if cfg.finef: stamp(b, 24 + q, True)
        for tt in range(4):
            for m in range(2):
                src = V_INR[q] + 2*tt + m
                tt2 = t + 2*((2*tt + m) & 1)
                b(f"v_lshlrev_b32 v{tt2}, 16, v{src}")
                b(f"v_and_b32 v{tt2+1}, 0xffff0000, v{src}")
                b(f"v_pk_add_f32 {v(acc+4*tt+2*m,2)}, {v(acc+4*tt+2*m,2)}, {v(tt2,2)}")
    stamp(b, 22)
    for tt in range(4):
        for r in range(4):
            b(f"v_mul_f32 v{acc+4*tt+r}, v{V_RR+tt}, v{acc+4*tt+r}")
        for m in range(2):
            b(f"v_pk_fma_f32 {v(acc+4*tt+2*m,2)}, {v(V_HRES+4*tt+2*m,2)}, 0.5, {v(acc+4*tt+2*m,2)} op_sel_hi:[1,0,1]")
        b(f"v_cvt_pk_bf16_f32 v{V_PK+2*tt}, v{acc+4*tt}, v{acc+4*tt+1}")
        b(f"v_cvt_pk_bf16_f32 v{V_PK+1+2*tt}, v{acc+4*tt+2}, v{acc+4*tt+3}")
        b(f"buffer_store_dwordx2 {v(V_PK+2*tt,2)}, v{t+4}, s[{R_OUT}:{R_OUT+3}], s{S_O+tt} offen")

def cs_job(b):
    b("s_sub_u32 s6, s2, 224")
    b("s_lshl_b32 s7, s6, 7")
    b("v_and_b32 v1, 15, v9")
    b("v_lshrrev_b32 v2, 4, v9")
    b("v_mul_u32_u24 v3, 3584, v2")
    b("v_lshl_add_u32 v3, v1, 3, v3")
    b("v_and_b32 v6, 63, v9")
    b("v_lshlrev_b32 v6, 2, v6")
    b("v_mov_b32 v7, -1")
    b("s_lshl_b32 s9, s6, 8")
    b(f"s_add_u32 s9, s9, {WS_CS}")
    b(f"buffer_store_dword v7, v6, s[{R_WS}:{R_WS+3}], s9 offen sc1", tag="cspre")
    for n in range(28):
        b(f"s_add_u32 s8, s7, {n*57344}")
        b(f"buffer_load_dwordx2 {v(16 + 2*n, 2)}, v3, s[{R_W1}:{R_W1+3}], s8 offen", tag=f"c{n}")
    b.wait_vm("cspre")
    b("s_barrier")
    arrive0(b)
    b("s_sub_u32 s6, s2, 224")
    for r in range(4): b(f"v_mov_b32 v{76+r}, 0")
    for n in range(28):
        b.wait_vm(f"c{n}")
        for h in range(2):
            b(f"v_lshlrev_b32 v4, 16, v{16+2*n+h}")
            b(f"v_and_b32 v5, 0xffff0000, v{16+2*n+h}")
            b(f"v_pk_add_f32 {v(76+2*h,2)}, {v(76+2*h,2)}, v[4:5]")
    b("v_lshlrev_b32 v4, 8, v2")
    b("v_lshl_add_u32 v4, v1, 4, v4")
    b("ds_write_b128 v4, v[76:79]")
    b("s_waitcnt lgkmcnt(0)")
    b("s_barrier")
    b("v_and_b32 v1, 63, v9")
    b("v_lshlrev_b32 v1, 2, v1")
    for n in range(16): b(f"ds_read_b32 v{16+n}, v1 offset:{256*n}")
    b("s_waitcnt lgkmcnt(0)")
    for n in range(1, 16): b(f"v_add_f32 v16, v16, v{16+n}")
    b("s_lshl_b32 s7, s6, 8")
    b(f"s_add_u32 s7, s7, {WS_CS}")
    b(f"s_cmp_eq_u32 s{S_W}, 0")
    lab = b.newlabel("L_csk")
    b(f"s_cbranch_scc0 {lab}")
    b(f"buffer_store_dword v16, v1, s[{R_WS}:{R_WS+3}], s7 offen sc1", track=False)
    b.label(lab)

def build(name):
    b = Builder()
    b.slow = []
    b("s_cmp_ge_u32 s2, 252")
    b("s_cbranch_scc1 L_end")
    b("s_load_dwordx2 s[16:17], s[0:1], 0")
    b("s_load_dwordx8 s[28:35], s[0:1], 48")
    b("s_load_dwordx2 s[36:37], s[0:1], 80")
    if cfg.code_pf:
        b("s_getpc_b64 s[6:7]")
        b.label("L_pc")
        b("v_lshlrev_b32 v2, 7, v0")
        b("v_mov_b32 v5, s7")
        b("v_add_co_u32 v4, vcc, s6, v2")
        b("v_addc_co_u32 v5, vcc, 0, v5, vcc")
        b(f"v_cmp_gt_u32 vcc, L_code_end-L_pc, v2")
        b("s_and_saveexec_b64 s[8:9], vcc")
        lab = b.newlabel("L_nopf")
        b(f"s_cbranch_execz {lab}")
        b(f"global_load_dword {a(255)}, v[4:5], off", track=False)
        b.label(lab)
        b("s_mov_b64 exec, s[8:9]")
    b("v_mov_b32 v9, v0")
    b("v_lshrrev_b32 v1, 6, v0")
    b("v_and_b32 v0, 63, v0")
    b(f"v_readfirstlane_b32 s{S_W}, v1")
    b("s_cmp_ge_u32 s2, 224")
    b("s_cbranch_scc1 L_cs")
    decode(b)
    p1_addr(b)
    p1_addr2(b)
    wd_setup(b)
    b("s_waitcnt lgkmcnt(0)")
    srd(b, R_X, P_X, X_BYTES)
    srd(b, R_WS, P_WS, WS_BYTES)
    prefill_start(b)
    x_dma(b)
    srd(b, R_W1, P_W1, W_BYTES); srd(b, R_W2, P_W2, W_BYTES)
    srd(b, R_OUT, P_OUT, X_BYTES); srd(b, R_DBG, P_DBG, 256)
    stamp(b, 0)
    move_masks(b)
    if cfg.w_prefetch: w_prefetch(b)
    p2_scalars(b)
    inbox_scalars(b)
    if cfg.pre_at == "start":
        for f in pb_prefill(b): f()
    stamp(b, 1)
    wd_gen(b)
    f_gen(b)
    m_gen(b)
    fm_addr(b)
    stamp(b, 2)
    p1_loop(b)
    p1_tail(b)
    stamp(b, 8)
    b0_load(b, V_B0)
    xres_pad(b)
    ring = []
    for k in range(6): ring += w1_groups(b, k)
    work = record(p2_addr)
    spread(b, work, xres_list(b), max(1, len(work) // 16))
    stamp(b, 9)
    b0_check(b, V_B0)
    zl = z_list(b)
    work = record(hres_addr) + record(p2_scalars_late)
    spread(b, work, zl[:16], max(1, len(work) // 16))
    b.wait_vm("xres")
    b("s_waitcnt lgkmcnt(0)")
    b("s_barrier")
    stamp(b, 10)
    x_init(b, extra=zl[16:])
    b(f"v_mov_b32 v{V_ONE2}, 0x3f803f80")
    for r in range(1, 4): b(f"v_mov_b32 v{V_ONE2+r}, v{V_ONE2}")
    stamp(b, 11)
    b("s_barrier")
    stamp(b, 14)
    step_b(b, ring)
    cs_loads(b)
    b("s_waitcnt lgkmcnt(0)")
    stamp(b, 15)
    b("s_barrier")
    b.finezone = True
    gemm1(b)
    stamp(b, 17)
    gemm1_epi(b)
    stamp(b, 18)
    gemm2(b)
    stamp(b, 19)
    b.finezone = False
    final_reduce(b)
    stamp(b, 23)
    stamp_store(b)
    b("s_endpgm")
    b.label("L_cs")
    b("s_waitcnt lgkmcnt(0)")
    srd(b, R_W1, P_W1, W_BYTES); srd(b, R_WS, P_WS, WS_BYTES); srd(b, R_DBG, P_DBG, 256)
    cs_job(b)
    b("s_endpgm")
    emit_slow(b)
    b.label("L_end")
    b.label("L_code_end")
    b("s_endpgm")
    txt = b.finalize()
    s = f"""; FNet block (pre-LN, 2-D DFT mixing as a 64x32 two-step transform, ReLU FFN) - one persistent launch
; kernarg: A_x, dft_seq_re, dft_seq_im, dft_hid_re, dft_hid_im, B_x, B_w1, B_w2, out, debug, ws
; @launch grid=(252,1,1) block=(256,1,1) lds={LDS_TOTAL}
.amdgcn_target "amdgcn-amd-amdhsa--gfx950"
.text
""" + kernel_header(name) + txt + '\n.section .rodata,"a"\n' + kernel_desc(name, 512, 256)
    return s, b

if __name__ == "__main__":
    import sys
    for o in sys.argv[2:]:
        if o == "diag": cfg.diag = True
        elif "=" in o:
            k, val = o.split("=", 1)
            setattr(cfg, k, eval(val))
    s, b = build(NAME + "_kernel")
    open(sys.argv[1], "w").write(s)
    n = sum(1 for i in b.items if not isinstance(i, str))
    print("instructions", n, "auto nops", b.nnop)
```

```python
from asmb import *
import common
from common import NAME, kernel_header, kernel_desc, X_BYTES, W_BYTES, WS_BYTES, Z_G, PB_G
import struct

def fbits(x): return hex(struct.unpack("<I", struct.pack("<f", x))[0])

class Cfg:
    diag = False
    w_prefetch = True
    xflags = ""
    x_now1dma = False
    x_now2dma = False
    x_noreads = False
    x_nobar2 = False
    x_nostore = False
    fine = False
    cyc = False
    outflags = ''
    finee = False
    ring_early = 0
    pre_at = 'spread'
    x_z4 = False
    x_noring = False
    x_nopre = False
    code_bytes = 26*1024
    code_pf = True
    finef = False
    x_noguard = False
    ring0 = 18
    buf4 = True
    fineb = False
cfg = Cfg()

WS_Z = 0
WS_CS = 0x200000
WS_CNT = 0x210000
WS_FL = 0x220000
WS_PB = 0x400000
WS_TS = 0x4000000

XL = 0
XRS = 928
RING = 64 * XRS
FX = RING
MX = RING + 8192
STAT = RING + 98304
LDS_TOTAL = STAT + 768

S_WG, S_W, S_IDX, S_J = 2, 3, 4, 5
P_X, P_W1, P_W2, P_OUT, P_DBG, P_WS = 16, 28, 30, 32, 34, 36
R_X, R_W1, R_W2, R_WS, R_OUT, R_DBG = 40, 44, 48, 52, 56, 60
S_TT = 16
S_PI = 20
S_ZL = 24
S_RW = 28
S_W1B = 29
S_Z0, S_Z1 = 30, 31
S_DIAG = 32
S_M1 = 34
S_MASK = 64
S_W2 = 66
S_PB = 73
S_IN = 79
S_XR = 85
S_O = 86
S_P32 = 90
S_TMP = 94
S_HWB = 94
S_N32 = 98
S_CSO = 97

V_C, V_GQ, V_TS = 1, 2, 58
T = 4
V_HB = 12
V_TR1 = 16
V_W1O = 20
V_W2O = 24
V_TR2 = 28
V_L16 = 30
V_ZO = 31
V_CSA = 31
V_HW = 32
V_HWS = 36
V_HA = 38
V_SEL1, V_SEL2, V_NSEL2 = 42, 46, 50
V_XA = 54
V_AUX = 3
V_TR2H = 59
V_NEG = 60
V_GT = 4
V_WD = 64
V_XF = 120
V_ACC = 152
V_SS = 168
V_QQ = 172
V_CS1 = 176
V_ONE = 180
V_F = 184
V_XB = 216
V_SA = 224
V_XO = 228
V_ZO1 = 229
V_G = 230
V_AB = V_XF
V_A = V_WD
V_D2 = V_WD + 8
V_ZP = V_WD + 24
A_PF = 128
A_S0 = 128
V_Z = 64
V_P, V_Q, V_PS, V_QS, V_E = 128, 176, 224, 232, 240
V_ACC1 = 128
V_A1 = 192
V_B1 = 224
V_CS = 64
V_HRES = 80
V_PK = 96
V_NM = 112
V_RR = 120
V_S2 = 42
V_Q2 = 46
V_ONE2 = 50
V_A2 = 192
V_ACC2 = 128
V_IN = 160

def stamp(b, i, force=False):
    if not cfg.diag: return
    if cfg.fine and not force and i != 0 and not getattr(b, "finezone", False): return
    if i == 0 and not getattr(b, "tsinit", False):
        b(f"v_mov_b32 v{V_TS}, 0"); b.tsinit = True
        if cfg.fine: return
    b("s_memtime s[14:15]" if cfg.cyc else "s_memrealtime s[14:15]")
    b("s_waitcnt lgkmcnt(0)")
    b(f"v_writelane_b32 v{V_TS}, s14, {i}")
def stamp_store(b):
    if not cfg.diag: return
    b("s_waitcnt vmcnt(0)")
    stamp(b, 31, True)
    b("s_lshl_b32 s6, s2, 9")
    b(f"s_lshl_b32 s7, s{S_W}, 7")
    b("s_add_u32 s6, s6, s7")
    b(f"s_add_u32 s6, s6, {WS_TS}")
    b(f"v_lshlrev_b32 v{T}, 2, v0")
    b("s_mov_b32 exec_hi, 0")
    b(f"buffer_store_dword v{V_TS}, v{T}, s[{R_WS}:{R_WS+3}], s6 offen")
    b("s_waitcnt vmcnt(0)")
    b("s_mov_b64 exec, -1")

def srd(b, r, p, nbytes):
    b(f"s_mov_b32 s{r}, s{p}")
    b(f"s_mov_b32 s{r+1}, s{p+1}")
    b(f"s_mov_b32 s{r+2}, {hex(nbytes)}")
    b(f"s_mov_b32 s{r+3}, 0x00020000")

def emit(b, f):
    f() if callable(f) else b(f)

def weave(b, mfmas, fillers, per=2):
    k = 0; n = len(mfmas)
    for i, m in enumerate(mfmas):
        b(m)
        want = ((i + 1) * len(fillers) + n - 1) // n
        cnt = 0
        while k < len(fillers) and k < want and cnt < per:
            emit(b, fillers[k]); k += 1; cnt += 1
    while k < len(fillers):
        emit(b, fillers[k]); k += 1

class Rec:
    def __init__(self): self.l = []
    def __call__(self, s, tag=None, track=True):
        assert tag is None
        self.l.append(s)
def record(fn, *args):
    r = Rec(); fn(r, *args)
    out = []; i = 0; l = r.l
    while i < len(l):
        if l[i].startswith("s_cmp"):
            j = i + 1
            while j < len(l) and l[j].startswith(("s_cselect", "s_mov")): j += 1
            out.append("\n".join(l[i:j])); i = j
        else:
            out.append(l[i]); i += 1
    return out

def spread(b, main, extra, every):
    k = 0
    for i, m in enumerate(main):
        emit(b, m)
        if (i + 1) % every == 0 and k < len(extra):
            emit(b, extra[k]); k += 1
    while k < len(extra):
        emit(b, extra[k]); k += 1

def sched(b, mfmas, first=(), vm=(), misc=(), vm_from=0, vm_to=None, misc_from=0, cap=2):
    n = len(mfmas)
    slots = [[] for _ in range(n)]
    first = list(first); vm = list(vm); misc = list(misc)
    if vm_to is None: vm_to = n
    vpos = []
    if vm:
        span = vm_to - vm_from
        for i, (pre, op) in enumerate(vm):
            g = vm_from + min(span - 1, (i * span) // len(vm) + (1 if pre else 0))
            if vpos and g <= vpos[-1]: g = min(n - 1, vpos[-1] + 1)
            vpos.append(g)
            gp = max(0, g - 1)
            if vpos[:-1] and gp < vpos[-2]: gp = vpos[-2]
            slots[gp] += [("vm", x) for x in pre]
            slots[g].append(("vm", op))
    g = 0
    for f in first:
        while g < n - 1 and len(slots[g]) >= cap: g += 1
        slots[g].append(("first", f))
        if len(slots[g]) >= (cap if len(first) > n else 1 + sum(1 for t, _ in slots[g] if t == "vm")): g = min(n - 1, g + 1)
    free = [max(0, cap - len(slots[g])) if g >= misc_from else 0 for g in range(n)]
    tot = sum(free)
    k = 0; acc = 0
    for g in range(n):
        if k >= len(misc): break
        acc += free[g]
        want = len(misc) if tot == 0 else min(len(misc), -(-acc * len(misc) // tot)) if tot < len(misc) else (acc * len(misc) + tot - 1) // tot
        take = 0
        while k < len(misc) and k < want and (take < free[g] or tot < len(misc)):
            slots[g].append(("misc", misc[k])); k += 1; take += 1
            if tot < len(misc) and take >= free[g] + 1: break
    rest = misc[k:]
    for g in range(n):
        b(mfmas[g])
        for t, x in sorted(slots[g], key=lambda e: {"first": 0, "misc": 1, "vm": 2}[e[0]]): emit(b, x)
    for x in rest: emit(b, x)

def groups(closures_with_hdr):
    return closures_with_hdr

def multi_spread(b, main, lists):
    n = len(main)
    at = [[] for _ in range(n + 1)]
    for lst in lists:
        for i, x in enumerate(lst):
            at[min(n, ((2*i + 1) * n) // (2*len(lst)))].append(x)
    for i in range(n):
        for x in at[i]: emit(b, x)
        emit(b, main[i])
    for x in at[n]: emit(b, x)

MF = "v_mfma_f32_16x16x32_bf16"
MH = "v_mfma_f32_16x16x32_f16"

def decode(b):
    b("s_and_b32 s6, s2, 7")
    b("s_lshr_b32 s7, s2, 3")
    b("s_mul_i32 s8, s7, 37")
    b("s_lshr_b32 s8, s8, 8")
    b("s_mul_i32 s9, s8, 7")
    b(f"s_sub_u32 s{S_J}, s7, s9")
    b("s_lshl_b32 s8, s8, 3")
    b(f"s_add_u32 s{S_IDX}, s6, s8")

def rot(b, dst, ls, shift):
    if ls == 0:
        b(f"s_lshl_b32 s{dst}, s{S_W}, {shift}")
    else:
        b(f"s_add_u32 s{dst}, s{S_W}, {ls}")
        b(f"s_and_b32 s{dst}, s{dst}, 3")
        b(f"s_lshl_b32 s{dst}, s{dst}, {shift}")

def p1_addr(b):
    t = T
    b(f"v_and_b32 v{V_C}, 15, v0")
    b(f"v_lshrrev_b32 v{V_GQ}, 4, v0")
    b(f"v_lshlrev_b32 v{V_L16}, 4, v0")
    b(f"v_lshrrev_b32 v{t}, 3, v0")
    b(f"v_and_b32 v{t+1}, 7, v0")
    b(f"v_xor_b32 v{t+1}, v{t+1}, v{t}")
    b(f"v_lshlrev_b32 v{t+1}, 4, v{t+1}")
    b(f"v_mul_u32_u24 v{V_XO}, 28672, v{t}")
    b(f"v_add_u32 v{V_XO}, v{V_XO}, v{t+1}")
    b(f"s_lshl_b32 s6, s{S_W}, 9")
    b(f"s_add_u32 s6, s6, s{S_IDX}")
    b("s_mul_i32 s12, s6, 896")
    b("s_add_u32 s13, s12, 229376")
    b(f"s_lshl_b32 s11, s{S_W}, 11")

def x_dma(b):
    for ksp in range(7):
        for o2 in range(2):
            b(f"s_add_u32 m0, s11, {XL + o2*1024 + 8064*ksp}")
            b(f"buffer_load_dwordx4 v{V_XO}, s[{R_X}:{R_X+3}], s{12+o2} offen offset:{128*ksp} {cfg.xflags} lds", tag=f"x{ksp}")

def p1_addr2(b):
    t = T
    b(f"v_and_b32 v{t}, 7, v{V_C}")
    b(f"v_lshrrev_b32 v{t+1}, 3, v{V_C}")
    b(f"v_lshlrev_b32 v{t+1}, 10, v{t+1}")
    b(f"v_lshl_add_u32 v{t+1}, v{t}, 7, v{t+1}")
    for par in range(2):
        b(f"v_add_u32 v{t+2}, {4*par}, v{V_GQ}") if par else b(f"v_mov_b32 v{t+2}, v{V_GQ}")
        b(f"v_xor_b32 v{t+2}, v{t+2}, v{t}")
        b(f"v_lshl_add_u32 v{t+3+par}, v{t+2}, 4, v{t+1}")
    b(f"v_lshlrev_b32 v{t+5}, 4, v{V_GQ}")
    for ls in range(4):
        rot(b, 6, ls, 11)
        b(f"v_add_u32 v{V_XB + 2*ls}, s6, v{t+3}")
        b(f"v_add_u32 v{V_XB + 2*ls + 1}, s6, v{t+4}")
        b("s_lshr_b32 s6, s6, 5")
        b(f"s_add_u32 s6, s6, {STAT}")
        b(f"v_add_u32 v{V_SA + ls}, s6, v{t+5}")
    b(f"v_mul_u32_u24 v{V_ZO1}, {Z_G}, v{V_C}")
    b(f"v_lshl_add_u32 v{V_ZO1}, v{V_GQ}, 4, v{V_ZO1}")
    b(f"v_mov_b32 v{V_ONE}, 0x3f803f80")
    for r in range(1, 4): b(f"v_mov_b32 v{V_ONE + r}, v{V_ONE}")
    b(f"v_lshrrev_b32 v{t}, 2, v{V_C}")
    b(f"v_cmp_eq_u32 s[{S_TMP}:{S_TMP+1}], v{t}, v{V_GQ}")
    b(f"v_and_b32 v{t}, 3, v{V_C}")
    for r in range(1, 4):
        b(f"v_cmp_eq_u32 s[{S_TMP+2*r}:{S_TMP+2*r+1}], {r}, v{t}")

def move_masks(b):
    for k in range(8): b(f"s_mov_b32 s{S_DIAG+k}, s{S_TMP+k}")

def wd_setup(b):
    t = T
    E, X, STEP, K2 = V_G, V_G+1, V_G+2, V_G+3
    b(f"s_lshr_b32 s6, s{S_W}, 1")
    b(f"s_lshl_b32 s7, s{S_J}, 1")
    b("s_add_u32 s8, s6, s7")
    b(f"s_and_b32 s9, s{S_W}, 1")
    b("s_lshl_b32 s6, s8, 12")
    b(f"s_lshl_b32 s7, s{S_IDX}, 7")
    b("s_add_u32 s6, s6, s7")
    b("s_lshl_b32 s7, s9, 6")
    b(f"s_add_u32 s{S_TMP+6}, s6, s7") if False else b("s_add_u32 s10, s6, s7")
    b("s_lshl_b32 s6, s8, 4")
    b("s_lshl_b32 s7, s9, 3")
    b("s_add_u32 s6, s6, s7")
    b(f"v_lshrrev_b32 v{t}, 1, v{V_C}")
    b(f"v_add_u32 v{t}, s6, v{t}")
    b(f"v_and_b32 v{t+1}, 1, v{V_C}")
    b(f"v_lshl_or_b32 v{t+2}, v{t}, 1, v{t+1}")
    b(f"v_mov_b32 v{t+3}, 224")
    b(f"v_cmp_eq_u32 vcc, 1, v{t+2}")
    b(f"v_mov_b32 v{t+4}, 0")
    b(f"v_cndmask_b32 v{t}, v{t}, v{t+3}, vcc")
    b(f"v_cndmask_b32 v{t+1}, v{t+1}, v{t+4}, vcc")
    b(f"v_cvt_f32_u32 v{t+5}, v{t+1}")
    b(f"v_mul_f32 v{t+5}, 0x3e800000, v{t+5}")
    b(f"v_cvt_f32_u32 v{E}, v{t}")
    b(f"v_mul_f32 v{E}, 0x3b124925, v{E}")
    b(f"v_mul_u32_u24 v{t+1}, 4682, v{t}")
    b(f"v_lshrrev_b32 v{t+1}, 16, v{t+1}")
    b(f"v_mul_u32_u24 v{t+1}, 14, v{t+1}")
    b(f"v_sub_u32 v{t+1}, v{t}, v{t+1}")
    b(f"v_cvt_f32_u32 v{STEP}, v{t+1}")
    b(f"v_mul_f32 v{STEP}, {fbits(1.0/14)}, v{STEP}")
    b(f"v_mul_u32_u24 v{t+1}, v{V_GQ}, v{t}")
    b(f"v_mul_u32_u24 v{t+2}, 1171, v{t+1}")
    b(f"v_lshrrev_b32 v{t+2}, 16, v{t+2}")
    b(f"v_mul_u32_u24 v{t+2}, 56, v{t+2}")
    b(f"v_sub_u32 v{t+1}, v{t+1}, v{t+2}")
    b(f"v_cvt_f32_u32 v{X}, v{t+1}")
    b(f"v_mul_f32 v{X}, {fbits(1.0/56)}, v{X}")
    b(f"v_cos_f32 v{K2}, v{E}")
    b(f"v_add_f32 v{X}, v{X}, v{t+5}")
    b(f"v_add_f32 v{K2}, v{K2}, v{K2}")

def wd_gen(b):
    E, X, STEP, K2 = V_G, V_G+1, V_G+2, V_G+3
    C = [V_G + 4 + i for i in range(8)]
    X1 = V_G + 12
    for ks in range(14):
        b(f"v_cos_f32 v{C[0]}, v{X}")
        b(f"v_add_f32 v{X1}, v{X}, v{E}")
        b(f"v_cos_f32 v{C[1]}, v{X1}")
        if ks < 13:
            b(f"v_add_f32 v{X}, v{X}, v{STEP}")
            b(f"v_fract_f32 v{X}, v{X}")
        else:
            b("s_nop 0")
        if ks > 0:
            c = "0" if ks == 1 else v(V_CS1, 4)
            b(f"{MF} {v(V_CS1,4)}, {v(V_ONE,4)}, {v(V_WD + 4*(ks-1),4)}, {c}")
        for n in range(2, 8):
            b(f"v_fma_f32 v{C[n]}, v{K2}, v{C[n-1]}, -v{C[n-2]}")
            if n % 2 == 1:
                b(f"v_cvt_pk_bf16_f32 v{V_WD + 4*ks + (n-3)//2}, v{C[n-3]}, v{C[n-2]}")
        b(f"v_cvt_pk_bf16_f32 v{V_WD + 4*ks + 3}, v{C[6]}, v{C[7]}")
    b("s_nop 0")
    b(f"{MF} {v(V_CS1,4)}, {v(V_ONE,4)}, {v(V_WD + 4*13,4)}, {v(V_CS1,4)}")

def f_gen(b):
    t = T
    S1, G, X, CO, SI, PK, AD = V_G, V_G+4, V_G+5, V_G+8, V_G+12, V_G+16, V_G+20
    b(f"s_lshl_b32 s6, s{S_W}, 4")
    b(f"v_lshl_add_u32 v{t}, v{V_GQ}, 2, s6")
    b(f"v_cvt_f32_u32 v{t}, v{t}")
    b(f"v_mul_f32 v{S1}, 0x3c800000, v{t}")
    for q in range(1, 4): b(f"v_add_f32 v{S1+q}, 0x3c800000, v{S1+q-1}")
    b(f"s_lshl_b32 s6, s{S_W}, 9")
    b(f"s_add_u32 s6, s6, {FX}")
    b(f"v_lshl_add_u32 v{AD}, v0, 3, s6")
    b(f"v_cvt_f32_u32 v{G}, v{V_C}")
    b(f"v_mov_b32 v{t+1}, 0xbc003c00")
    b(f"v_cmp_eq_u32 vcc, 0, v{V_C}")
    for gh in range(2):
        if gh: b(f"v_add_f32 v{G}, 0x41800000, v{G}")
        for q in range(4):
            b(f"v_mul_f32 v{X+(q&1)}, v{G}, v{S1+q}")
            b(f"v_cos_f32 v{CO+q}, v{X+(q&1)}")
            b(f"v_sin_f32 v{SI+q}, -v{X+(q&1)}")
        b(f"v_cvt_pk_f16_f32 v{PK}, v{CO}, v{CO+1}")
        b(f"v_cvt_pk_f16_f32 v{PK+1}, v{CO+2}, v{CO+3}")
        b(f"v_cvt_pk_f16_f32 v{PK+2}, v{SI}, v{SI+1}")
        b(f"v_cvt_pk_f16_f32 v{PK+3}, v{SI+2}, v{SI+3}")
        if gh == 0:
            b(f"v_cndmask_b32 v{PK+2}, v{PK+2}, v{t+1}, vcc")
            b(f"v_cndmask_b32 v{PK+3}, v{PK+3}, v{t+1}, vcc")
        b(f"ds_write_b64 v{AD}, {v(PK,2)} offset:{(gh*2+0)*2048}")
        b(f"ds_write_b64 v{AD}, {v(PK+2,2)} offset:{(gh*2+1)*2048}")

def fm_addr(b):
    for ls in range(4):
        rot(b, 6, ls, 9)
        b(f"s_add_u32 s6, s6, {FX}")
        b(f"v_lshl_add_u32 v{V_G+ls}, v0, 3, s6")
    for lt in range(4):
        b(f"s_lshl_b32 s6, s{S_TT+lt}, 12")
        b(f"s_add_u32 s6, s6, {MX}")
        b(f"v_add_u32 v{V_G+4+lt}, s6, v{V_L16}")

def f_read(b):
    out = []
    for ls in range(4):
        for gh in range(2):
            for sg in range(2):
                reg = V_F + ((gh*2 + sg)*2 + (ls >> 1))*4 + 2*(ls & 1)
                out.append(lambda reg=reg, ls=ls, o=(gh*2+sg)*2048: b(f"ds_read_b64 {v(reg,2)}, v{V_G+ls} offset:{o}", tag="f"))
    return out

def mreg(lt, ks, pq): return ((lt*2 + ks)*2 + pq)*4

def t0_of_tt(b, dst, tt_sreg):
    b(f"s_sub_u32 s{dst}, 64, s{S_IDX}")
    b(f"s_cmp_eq_u32 s{S_IDX}, 0")
    b(f"s_cselect_b32 s{dst}, 32, s{dst}")
    b(f"s_cmp_lt_u32 s{tt_sreg}, 2")
    b(f"s_cselect_b32 s{dst}, s{S_IDX}, s{dst}")
    b(f"s_and_b32 s9, s{tt_sreg}, 1")
    b("s_lshl_b32 s9, s9, 10")
    b(f"s_add_u32 s{dst}, s{dst}, s9")

def m_gen(b):
    t = T
    X, DX, CO, SI, PK, P, Q, AD = V_G, V_G+1, V_G+2, V_G+3, V_G+4, V_G+8, V_G+12, V_G+16
    t0_of_tt(b, 8, S_W)
    b(f"s_mul_i32 s{S_XR}, s8, 896")
    b(f"v_lshl_add_u32 v{t}, v{V_C}, 6, s8")
    b(f"v_cvt_f32_u32 v{DX}, v{t}")
    b(f"v_mul_f32 v{DX}, 0x3a000000, v{DX}")
    selP = [0x03020100, 0x03020100, 0x0c0c0100, 0x01000c0c]
    selQ = [0x01000302, 0x01000302, 0x0c0c0302, 0x03020c0c]
    sgnQ = [0x80000000, 0x00008000, 0, 0]
    neg = [0, 0x80000000, 0, 0]
    def pick(dst, tbl):
        b(f"s_cmp_lt_u32 s{S_W}, 2")
        b(f"s_cselect_b32 s9, {hex(tbl[0])}, 0") if False else None
        b(f"s_mov_b32 s9, {hex(tbl[0])}"); b(f"s_mov_b32 s12, {hex(tbl[1])}")
        b("s_cselect_b32 s9, s9, s12")
        b(f"s_mov_b32 s13, {hex(tbl[2])}"); b(f"s_mov_b32 s12, {hex(tbl[3])}")
        b("s_cselect_b32 s13, s13, s12")
        b(f"s_cmp_eq_u32 s{S_IDX}, 0")
        b(f"s_cselect_b32 s{dst}, s13, s9")
    pick(S_TMP, selP); pick(S_TMP+1, selQ); pick(S_TMP+2, sgnQ); pick(S_TMP+3, neg)
    b(f"v_xor_b32 v{DX}, s{S_TMP+3}, v{DX}")
    b(f"s_lshl_b32 s6, s{S_W}, 12")
    b(f"s_add_u32 s6, s6, {MX}")
    b(f"v_add_u32 v{AD}, s6, v{V_L16}")
    b(f"v_lshlrev_b32 v{t}, 2, v{V_GQ}")
    b(f"v_cvt_f32_u32 v{t}, v{t}")
    for ks in range(2):
        if ks: b(f"v_add_f32 v{t}, 0x41800000, v{t}")
        b(f"v_mul_f32 v{X}, v{t}, v{DX}")
        for j in range(4):
            b(f"v_cos_f32 v{CO}, v{X}")
            b(f"v_sin_f32 v{SI}, v{X}")
            b(f"v_add_f32 v{X}, v{X}, v{DX}")
            b(f"v_cvt_pk_f16_f32 v{PK}, v{CO}, v{SI}")
            b(f"v_perm_b32 v{P+j}, v{PK}, v{PK}, s{S_TMP}")
            b(f"v_perm_b32 v{Q+j}, v{PK}, v{PK}, s{S_TMP+1}")
            b(f"v_xor_b32 v{Q+j}, s{S_TMP+2}, v{Q+j}")
        b(f"ds_write_b128 v{AD}, {v(P,4)} offset:{(ks*2+0)*1024}")
        b(f"ds_write_b128 v{AD}, {v(Q,4)} offset:{(ks*2+1)*1024}")

def m_read(b):
    out = []
    for lt in range(4):
        for ks in range(2):
            for pq in range(2):
                out.append(lambda lt=lt, ks=ks, pq=pq: b(f"ds_read_b128 {a(mreg(lt,ks,pq),4)}, v{V_G+4+lt} offset:{(ks*2+pq)*1024}", tag="m"))
    return out

def prefill_start(b):
    for r in range(4): b(f"v_mov_b32 v{V_NEG+r}, -1")
    b(f"s_add_u32 s7, s10, {16*Z_G}")
    b(f"buffer_store_dwordx4 {v(V_NEG,4)}, v{V_ZO1}, s[{R_WS}:{R_WS+3}], s10 offen sc1", tag="pre")
    b(f"buffer_store_dwordx4 {v(V_NEG,4)}, v{V_ZO1}, s[{R_WS}:{R_WS+3}], s7 offen sc1", tag="pre")
    own_line(b, 6)
    b(f"v_mov_b32 v{T}, 0")
    b("s_mov_b64 exec, 1")
    b(f"buffer_store_dword v{T}, v{T}, s[{R_WS}:{R_WS+3}], s6 offen sc1", tag="pre")
    b("s_mov_b64 exec, -1")

def arrive0(b):
    lab = b.newlabel("L_arr")
    b.notrack = True
    b(f"s_cmp_eq_u32 s{S_W}, 0")
    b(f"s_cbranch_scc0 {lab}")
    b("s_and_b32 s6, s2, 3")
    b("s_lshl_b32 s6, s6, 6")
    b(f"v_mov_b32 v{T}, 1")
    b(f"v_mov_b32 v{T+1}, 0")
    b("s_mov_b64 exec, 1")
    b(f"buffer_atomic_add v{T}, v{T+1}, s[{R_DBG}:{R_DBG+3}], s6 offen sc1")
    b("s_mov_b64 exec, -1")
    b.label(lab)
    b.notrack = False

V_B0 = 229 + 25
def b0_load(b, reg):
    b(f"v_and_b32 v{reg}, 3, v0")
    b(f"v_lshlrev_b32 v{reg}, 6, v{reg}")
    b(f"buffer_load_dword v{reg}, v{reg}, s[{R_DBG}:{R_DBG+3}], 0 offen sc1", tag="b0")

def b0_check(b, reg):
    b.wait_vm("b0")
    l2 = b.newlabel("L_b0"); l3 = b.newlabel("L_b0d")
    b("s_mov_b32 s12, 0")
    b.label(l2)
    b.notrack = True
    b(f"v_cmp_gt_u32 vcc, 63, v{reg}")
    b("s_cmp_eq_u64 vcc, 0")
    b(f"s_cbranch_scc1 {l3}")
    b("s_add_u32 s12, s12, 1")
    b("s_cmp_ge_u32 s12, 0x10000")
    b(f"s_cbranch_scc1 {l3}")
    b(f"v_and_b32 v{reg}, 3, v0")
    b(f"v_lshlrev_b32 v{reg}, 6, v{reg}")
    b(f"buffer_load_dword v{reg}, v{reg}, s[{R_DBG}:{R_DBG+3}], 0 offen sc1")
    b("s_waitcnt vmcnt(0)")
    b(f"s_branch {l2}")
    b.label(l3)
    b.notrack = False

def guarded(b, regs, reload, name):
    t0 = V_GT
    n = len(regs)
    def tree():
        b(f"v_max3_u32 v{t0}, v{regs[0]}, v{regs[1]}, v{regs[2]}")
        i = 3
        while i + 1 < n:
            b(f"v_max3_u32 v{t0}, v{t0}, v{regs[i]}, v{regs[i+1]}"); i += 2
        if i < n: b(f"v_max_u32 v{t0}, v{t0}, v{regs[i]}")
        b(f"v_cmp_eq_u32 vcc, -1, v{t0}")
        b("s_cmp_eq_u64 vcc, 0")
    slow = b.newlabel("L_slow"); back = b.newlabel("L_back")
    if cfg.x_noguard: return
    tree()
    b(f"s_cbranch_scc0 {slow}")
    b.label(back)
    b.slow.append((slow, back, reload, tree))

def emit_slow(b):
    for (slow, back, reload, tree) in b.slow:
        loop = b.newlabel("L_sl")
        b.label(slow)
        b.notrack = True
        b("s_mov_b32 s12, 0")
        b.label(loop)
        reload()
        b("s_waitcnt vmcnt(0)")
        tree()
        b(f"s_cbranch_scc1 {back}")
        b("s_add_u32 s12, s12, 1")
        b("s_cmp_lt_u32 s12, 0x4000")
        b(f"s_cbranch_scc1 {loop}")
        b(f"s_branch {back}")
        b.notrack = False

def w_prefetch(b):
    b("s_mul_i32 s6, s2, 7168")
    b(f"s_lshl_b32 s7, s{S_W}, 10")
    b("s_add_u32 s6, s6, s7")
    b("s_add_u32 s7, s6, 4096")
    for n in range(2):
        b(f"buffer_load_dwordx4 {a(A_PF + 8*n, 4)}, v{V_L16}, s[{R_W1}:{R_W1+3}], s{6+n} offen", tag="pf")
        b(f"buffer_load_dwordx4 {a(A_PF + 8*n + 4, 4)}, v{V_L16}, s[{R_W2}:{R_W2+3}], s{6+n} offen", tag="pf")

def own_line(b, dst):
    b(f"s_mul_i32 s{dst}, s{S_IDX}, 7")
    b(f"s_add_u32 s{dst}, s{dst}, s{S_J}")
    b(f"s_lshl_b32 s{dst}, s{dst}, 2")
    b(f"s_add_u32 s{dst}, s{dst}, s{S_W}")
    b(f"s_lshl_b32 s{dst}, s{dst}, 7")
    b(f"s_add_u32 s{dst}, s{dst}, {WS_FL}")

def p2_scalars(b):
    b(f"s_and_b32 s6, s{S_W}, 1")
    b("s_lshl_b32 s7, s6, 1")
    for lt in range(4): b(f"s_xor_b32 s{S_TT+lt}, s7, {lt}")
    b(f"s_lshr_b32 s7, s{S_W}, 1")
    b("s_mul_i32 s7, s7, 7")
    b("s_lshl_b32 s9, s6, 2")
    b("s_add_u32 s9, s9, s7")
    b(f"s_mov_b32 s{S_PI}, s9")
    for p in range(1, 3): b(f"s_add_u32 s{S_PI+p}, s9, {p}")
    b(f"s_add_u32 s{S_PI+3}, s7, 3")
    b(f"s_mul_i32 s7, s{S_IDX}, {Z_G}")
    for p in range(4):
        b(f"s_lshl_b32 s8, s{S_PI+p}, 12")
        b(f"s_add_u32 s{S_ZL+p}, s7, s8")
        b(f"s_lshl_b32 s{S_P32+p}, s{S_PI+p}, 5")
    b(f"s_cmp_eq_u32 s{S_W}, 0")
    b(f"s_cselect_b32 s{S_MASK}, 0xffff, 0")
    b(f"s_mov_b32 s{S_MASK+1}, 0")
    b(f"s_mul_i32 s{S_RW}, s{S_W}, 24576")
    b(f"s_add_u32 s{S_RW}, s{S_RW}, {RING}")
    b(f"s_lshl_b32 s7, s{S_J}, 9")
    b(f"s_lshl_b32 s9, s{S_W}, 7")
    b(f"s_add_u32 s{S_W1B}, s7, s9")
    b(f"s_mov_b32 s{S_Z0}, s10")
    b(f"s_add_u32 s{S_Z1}, s10, {16*Z_G}")

def inbox_scalars(b):
    b(f"s_mul_i32 s11, s{S_IDX}, {PB_G}")
    b(f"s_lshl_b32 s7, s{S_W}, 11")
    b("s_add_u32 s11, s11, s7")
    b(f"s_add_u32 s11, s11, {WS_PB}")
    b(f"s_lshl_b32 s13, s{S_J}, 13")
    b("s_add_u32 s13, s13, s11")
    for p in range(6):
        b(f"s_add_u32 s6, s{S_J}, {p+1}")
        b("s_sub_u32 s7, s6, 7")
        b("s_min_u32 s6, s6, s7")
        b(f"s_mul_i32 s7, s6, {7*8192}")
        b(f"s_add_u32 s{S_IN+p}, s13, s7")

def p2_scalars_late(b):
    b(f"s_lshl_b32 s{S_HWB}, s{S_W}, 13")
    b(f"s_lshl_b32 s6, s{S_J}, 8")
    b(f"s_lshl_b32 s7, s{S_W}, 6")
    b("s_add_u32 s6, s6, s7")
    b("s_mul_i32 s10, s6, 896")
    b(f"s_mul_i32 s11, s{S_IDX}, {PB_G}")
    b(f"s_lshl_b32 s7, s{S_W}, 11")
    b("s_add_u32 s11, s11, s7")
    b(f"s_add_u32 s11, s11, {WS_PB}")
    b(f"s_mul_i32 s12, s{S_J}, {7*8192}")
    b("s_add_u32 s12, s12, s11")
    for p in range(7):
        b(f"s_add_u32 s6, s{S_J}, {p+1}")
        b("s_sub_u32 s7, s6, 7")
        b("s_min_u32 s6, s6, s7")
        b("s_lshl_b32 s7, s6, 7")
        b(f"s_add_u32 s{S_W2+p}, s10, s7")
        if p < 6:
            b("s_lshl_b32 s7, s6, 13")
            b(f"s_add_u32 s{S_PB+p}, s12, s7")
    b(f"s_lshl_b32 s10, s{S_J}, 7")
    b(f"s_lshl_b32 s7, s{S_W}, 5")
    b("s_add_u32 s10, s10, s7")
    b(f"s_sub_u32 s8, 64, s{S_IDX}")
    b(f"s_cmp_eq_u32 s{S_IDX}, 0")
    b("s_cselect_b32 s8, 32, s8")
    for tt in range(4):
        src = f"s{S_IDX}" if tt < 2 else "s8"
        b(f"s_add_u32 s6, {src}, {1024*(tt&1)}")
        b("s_mul_i32 s6, s6, 896")
        b(f"s_add_u32 s{S_O+tt}, s6, s10")

def dma_addr(b):
    t = T
    b(f"v_lshrrev_b32 v{t}, 3, v0")
    b(f"v_bfe_u32 v{t+1}, v{t}, 1, 2")
    b(f"v_lshlrev_b32 v{t+1}, 1, v{t+1}")
    b(f"v_and_b32 v{t+2}, 7, v0")
    b(f"v_xor_b32 v{t+2}, v{t+2}, v{t+1}")
    b(f"v_lshlrev_b32 v{t+2}, 4, v{t+2}")
    b(f"v_mul_u32_u24 v{t+1}, 3584, v{t}")
    b(f"v_add_u32 v{V_W1O}, v{t+1}, v{t+2}")
    b(f"v_add_u32 v{V_W1O+1}, {8*3584 - 1024}, v{V_W1O}")
    b(f"v_sub_u32 v{t+3}, v{t+2}, v{t+1}")
    b(f"v_add_u32 v{V_W1O+2}, {15*3584 - 2048 + 4096}, v{t+3}")
    b(f"v_add_u32 v{V_W1O+3}, {7*3584 - 3072 + 4096}, v{t+3}")
    b(f"v_sub_u32 v{t+3}, 448, v{t}")
    b(f"v_mov_b32 v{t+4}, 224")
    b(f"v_cmp_eq_u32 vcc, 0, v{t}")
    b(f"v_mul_u32_u24 v{t+1}, 896, v{t}")
    b(f"v_cndmask_b32 v{t+3}, v{t+3}, v{t+4}, vcc")
    b(f"v_mul_u32_u24 v{t+3}, 3584, v{t+3}")
    b(f"v_add_u32 v{t+3}, v{t+3}, v{t+2}")
    b(f"v_subrev_u32 v{V_AUX}, 2048, v{t+3}")
    b(f"v_add_u32 v{V_W2O}, v{t+1}, v{t+2}")
    for n in range(1, 4):
        b(f"v_add_u32 v{V_W2O+n}, {n*(8*896 - 1024)}, v{V_W2O}")
    b(f"v_mul_u32_u24 v{t}, {XRS}, v{V_C}")
    b(f"v_lshl_add_u32 v{t}, v{V_GQ}, 4, v{t}")
    for lt in range(4):
        b(f"s_mul_i32 s6, s{S_TT+lt}, {16*XRS}")
        b(f"v_add_u32 v{V_XA+lt}, s6, v{t}")
    b(f"v_lshlrev_b32 v{t}, 3, v{V_GQ}")
    b(f"v_sub_u32 v{t+1}, v{V_C}, v{t}")
    b(f"v_sub_u32 v{t+2}, 16, v{V_C}")
    b(f"v_sub_u32 v{t+2}, v{t+2}, v{t}")
    b(f"v_mov_b32 v{t+3}, 0x3f80")
    b(f"v_mov_b32 v{t+4}, 0x3f800000")
    b(f"v_mov_b32 v{t+5}, 0")
    for (dst, src) in ((V_SEL1, t+1), (V_SEL2, t+2)):
        for m in range(4):
            b(f"v_cmp_eq_u32 vcc, {2*m}, v{src}")
            b(f"v_cmp_eq_u32 s[6:7], {2*m+1}, v{src}")
            b(f"v_cndmask_b32 v{dst+m}, v{t+5}, v{t+3}, vcc")
            b(f"v_cndmask_b32 v{dst+m}, v{dst+m}, v{t+4}, s[6:7]")
    for m in range(4):
        b(f"v_xor_b32 v{V_NSEL2+m}, 0x80008000, v{V_SEL2+m}")


def p2_addr(b):
    t = T
    for p in range(4): b(f"s_sub_u32 s{S_N32+p}, 864, s{S_P32+p}")
    b(f"v_lshlrev_b32 v{t}, 3, v{V_C}")
    b(f"v_lshl_add_u32 v{V_ZO}, v{V_GQ}, 9, v{t}")
    b(f"s_lshl_b32 s7, s{S_PI}, 12")
    b(f"s_lshl_b32 s8, s{S_PI+3}, 12")
    for lt in range(4):
        b(f"s_lshl_b32 s6, s{S_TT+lt}, 10")
        b("s_add_u32 s9, s6, s7")
        b(f"v_add_u32 v{V_HW+lt}, s9, v{V_L16}")
        if lt < 2:
            b("s_add_u32 s9, s6, s8")
            b(f"v_add_u32 v{V_HWS+lt}, s9, v{V_L16}")
        rot(b, 6, lt, 10)
        b(f"v_add_u32 v{V_HB+lt}, s6, v{V_L16}")
    b(f"v_lshrrev_b32 v{t}, 2, v{V_C}")
    b(f"v_lshl_add_u32 v{t}, v{V_GQ}, 2, v{t}")
    b(f"v_bfe_u32 v{t+1}, v{t}, 1, 2")
    b(f"v_and_b32 v{t+2}, 3, v0")
    b(f"v_lshlrev_b32 v{t+2}, 3, v{t+2}")
    b(f"v_lshl_add_u32 v{t+2}, v{t}, 7, v{t+2}")
    b(f"v_add_u32 v{t+4}, s{S_RW}, v{t+2}")
    for u in range(4):
        b(f"v_xor_b32 v{t+3}, {u}, v{t+1}")
        b(f"v_lshl_add_u32 v{V_TR1+u}, v{t+3}, 5, v{t+4}")
    b(f"v_xor_b32 v{t+3}, s{S_W}, v{t+1}")
    b(f"v_lshl_add_u32 v{t+3}, v{t+3}, 5, v{t+2}")
    b(f"v_add_u32 v{V_TR2}, {RING}, v{t+3}")
    b(f"v_add_u32 v{V_TR2+1}, {RING+49152}, v{t+3}")
    b(f"v_mov_b32 v{V_TR2H}, v{t+3}")

def hres_addr(b):
    t = T
    b(f"s_lshl_b32 s6, s{S_J}, 6")
    b(f"s_lshl_b32 s7, s{S_W}, 4")
    b("s_add_u32 s6, s6, s7")
    b(f"v_lshl_add_u32 v{t+4}, v{V_GQ}, 2, s6")
    b("s_lshl_b32 s6, s6, 8")
    b(f"v_add_u32 v{t+5}, s6, v{V_L16}")
    for r in range(4):
        A = V_HA + r
        b(f"v_add_u32 v{t}, {r}, v{t+4}") if r else b(f"v_mov_b32 v{t}, v{t+4}")
        b(f"v_sub_u32 v{t+2}, 448, v{t}")
        b(f"v_mov_b32 v{t+3}, 0")
        b(f"v_cmp_eq_u32 vcc, 224, v{t}")
        b(f"v_add_u32 v{t+1}, {2*r}, v{t+5}")
        b(f"v_cndmask_b32 v{t+2}, v{t+2}, v{t+3}, vcc")
        b(f"v_lshrrev_b32 v{t+3}, 4, v{t+2}")
        b(f"v_lshlrev_b32 v{A}, 12, v{t+3}")
        b(f"v_bfe_u32 v{t+3}, v{t+2}, 2, 2")
        b(f"v_lshl_add_u32 v{t+3}, v{t+3}, 4, v{V_C}")
        b(f"v_lshl_add_u32 v{A}, v{t+3}, 4, v{A}")
        b(f"v_and_b32 v{t+3}, 3, v{t+2}")
        b(f"v_lshl_add_u32 v{A}, v{t+3}, 1, v{A}")
        b(f"v_cmp_gt_u32 vcc, 224, v{t}")
        b(f"v_add_u32 v{A}, 8, v{A}")
        b(f"v_cndmask_b32 v{A}, v{A}, v{t+1}, vcc")

def p1_loop(b, stages=((0,1),(2,3),(4,5,6))):
    XBUF = [V_XF, V_XF + 16, V_G + 8]
    def xread(ks):
        ksp, par = ks >> 1, ks & 1
        return [(lambda ls=ls: b(f"ds_read_b128 {v(XBUF[ks % 3] + 4*ls, 4)}, v{V_XB + 2*ls + par} offset:{XL + ksp*8192}", tag=f"xf{ks}")) for ls in range(4)]
    pbp = pb_prefill(b) if (cfg.pre_at == "loop" and not cfg.x_nopre) else []
    rg = []
    for k in range(cfg.ring_early): rg += w1_groups(b, k)
    for si, stg in enumerate(stages):
        b.wait_vm([f"x{stg[-1]}", "pre"])
        if si == 0 or (si == 2 and cfg.ring_early): b("s_waitcnt lgkmcnt(0)")
        b("s_barrier")
        if si == 0: arrive0(b)
        stamp(b, 3 + si)
        kss = [k for p in stg for k in (2*p, 2*p+1)]
        for f in xread(kss[0]) + xread(kss[1]): f()
        if si == 0:
            fm = f_read(b) + m_read(b)
        for n, ks in enumerate(kss):
            nxt = kss[n+2] if n + 2 < len(kss) else None
            b.wait_lg(f"xf{ks}")
            xf = XBUF[ks % 3]
            wd = v(V_WD + 4*ks, 4)
            z = ks == 0
            mf = [f"{MF} {v(V_QQ,4)}, {v(xf,4)}, {v(xf,4)}, {'0' if z else v(V_QQ,4)}",
                  f"{MF} {v(V_SS,4)}, {v(V_ONE,4)}, {v(xf,4)}, {'0' if z else v(V_SS,4)}"]
            for ls in range(4):
                mf.append(f"{MF} {v(V_ACC + 4*ls, 4)}, {v(xf + 4*ls, 4)}, {wd}, {'0' if z else v(V_ACC + 4*ls, 4)}")
            fill = xread(nxt) if nxt is not None else []
            fill = fill + fm[:6]; fm = fm[6:]
            if ks >= 2 and pbp: fill.append(pbp.pop(0))
            if ks >= 8 and rg:
                n = (len(rg) + 13 - ks) // (14 - ks)
                sched(b, mf, first=fill, vm=rg[:n], cap=3); rg = rg[n:]
            else:
                weave(b, mf, fill, per=2)

def stats_core(b, SS, QQ, scale4):
    b(f"v_cndmask_b32 v{QQ}, v{QQ}, v{QQ+1}, s[{S_M1}:{S_M1+1}]")
    b(f"v_mul_f32 v{SS}, 0x3b124925, v{SS}")
    b(f"v_cndmask_b32 v{QQ}, v{QQ}, v{QQ+2}, s[{S_M1+2}:{S_M1+3}]")
    b(f"v_cndmask_b32 v{QQ}, v{QQ}, v{QQ+3}, s[{S_M1+4}:{S_M1+5}]")
    b(f"v_mul_f32 v{QQ}, 0x3b124925, v{QQ}")
    b(f"v_fma_f32 v{QQ}, -v{SS}, v{SS}, v{QQ}")
    b(f"v_max_f32 v{QQ}, 0, v{QQ}")
    if scale4:
        b(f"v_mul_f32 v{QQ}, 0x3e800000, v{QQ}")
    b(f"v_add_f32 v{QQ}, 0x3727c5ac, v{QQ}")
    b(f"v_rsq_f32 v{QQ}, v{QQ}")

def p1_tail(b):
    t = T
    stamp(b, 6)
    stats_core(b, V_SS, V_QQ, False)
    b(f"s_lshl_b32 s6, s{S_W}, 6")
    b(f"s_add_u32 s6, s6, {STAT}")
    b(f"v_lshl_add_u32 v{t}, v{V_C}, 2, s6")
    b(f"v_mul_f32 v{V_SS}, v{V_QQ}, v{V_SS}")
    b(f"v_add_f32 v{V_QQ}, v{V_QQ}, v{V_QQ}")
    b(f"v_mul_f32 v{V_SS}, -2.0, v{V_SS}")
    b(f"s_mov_b64 exec, s[{S_DIAG}:{S_DIAG+1}]")
    b(f"ds_write_b32 v{t}, v{V_QQ}")
    b(f"ds_write_b32 v{t}, v{V_SS} offset:256")
    b("s_mov_b64 exec, -1")
    b("s_waitcnt lgkmcnt(0)")
    b("s_barrier")
    for ls in range(4):
        b(f"ds_read_b128 {v(V_AB + 8*ls, 4)}, v{V_SA + ls}", tag=f"ab{ls}")
        b(f"ds_read_b128 {v(V_AB + 8*ls + 4, 4)}, v{V_SA + ls} offset:256", tag=f"ab{ls}")
    for ls in range(4):
        b.wait_lg(f"ab{ls}")
        al, be, ac = V_AB + 8*ls, V_AB + 8*ls + 4, V_ACC + 4*ls
        for h in range(2):
            b(f"v_pk_mul_f32 {v(be+2*h,2)}, {v(be+2*h,2)}, {v(V_CS1,2)} op_sel_hi:[1,0]")
        for h in range(2):
            b(f"v_pk_fma_f32 {v(ac+2*h,2)}, {v(al+2*h,2)}, {v(ac+2*h,2)}, {v(be+2*h,2)}")
        for h in range(2):
            b(f"v_cvt_pk_f16_f32 v{V_A + 2*ls + h}, v{ac+2*h}, v{ac+2*h+1}")
    stamp(b, 7)
    for gh in range(2):
        for sg in range(2):
            d = V_D2 + (gh*2 + sg)*4
            b(f"{MH} {v(d,4)}, {v(V_A,4)}, {v(V_F + ((gh*2+sg)*2)*4,4)}, 0")
    for gh in range(2):
        for sg in range(2):
            d = V_D2 + (gh*2 + sg)*4
            b(f"{MH} {v(d,4)}, {v(V_A+4,4)}, {v(V_F + ((gh*2+sg)*2+1)*4,4)}, {v(d,4)}")
    for gh in range(2):
        for r in range(4):
            b(f"v_cvt_pk_f16_f32 v{V_ZP + 4*gh + r}, v{V_D2 + (gh*2)*4 + r}, v{V_D2 + (gh*2+1)*4 + r}")
        b(f"buffer_store_dwordx4 {v(V_ZP + 4*gh, 4)}, v{V_ZO1}, s[{R_WS}:{R_WS+3}], s{S_Z0+gh} offen sc1", tag="zst")

def xres_pad(b):
    b(f"s_mul_i32 s96, s{S_W}, {16*XRS}")
    b(f"v_lshrrev_b32 v{T}, 1, v0")
    b(f"v_mul_u32_u24 v{T}, {XRS}, v{T}")
    b(f"v_and_b32 v{T+1}, 1, v0")
    b(f"v_lshl_add_u32 v{T}, v{T+1}, 4, v{T}")
    b(f"v_add_u32 v{T}, s96, v{T}")
    for r in range(4): b(f"v_mov_b32 v{T+4+r}, 0")
    b("s_mov_b32 exec_hi, 0")
    b(f"ds_write_b128 v{T}, {v(T+4,4)} offset:{XL+896}")
    b("s_mov_b32 exec_hi, -1")

def xres_list(b):
    out = []
    for c in range(16):
        def f(c=c):
            b(f"s_add_u32 m0, s96, {XL + c*XRS}")
            b(f"s_add_u32 s95, s{S_XR}, {c*57344}")
            b("s_mov_b32 exec_hi, 0x00ffffff")
            b(f"buffer_load_dwordx4 v{V_L16}, s[{R_X}:{R_X+3}], s95 offen lds", tag="xres")
            b("s_mov_b32 exec_hi, -1")
        out.append(f)
    return out

def w1_groups(b, k):
    slot = k % 6
    out = []
    for n in range(4):
        pre = []
        if n == 0:
            pre = [f"s_add_u32 m0, s{S_RW}, {slot*4096}", (f"s_add_u32 s95, s{S_W1B}, {16*k*3584}" if k else f"s_mov_b32 s95, s{S_W1B}")]
        if n == 2 and not k == 0: pre = [f"s_add_u32 s96, s{S_W1B}, {(433 - 16*k)*3584 - 4096}"]
        if n == 3 and k == 0: pre = [f"s_add_u32 s96, s{S_W1B}, {(433 - 16*k)*3584 - 4096}"]
        def f(n=n):
            if n < 2: vo, so = V_W1O + n, "s95"
            elif k == 0 and n == 2: vo, so = V_AUX, f"s{S_W1B}"
            else: vo, so = V_W1O + n, "s96"
            off = f" offset:{1024*n}" if n else ""
            b(f"buffer_load_dwordx4 v{vo}, s[{R_W1}:{R_W1+3}], {so} offen{off} lds", tag=f"w1_{k}")
        out.append((pre, f))
    return out

def flat(gs):
    out = []
    for pre, op in gs: out += list(pre) + [op]
    return out
def w1_dma(b, k): return flat(w1_groups(b, k))

def units():
    return [(p, lt) for lt in range(4) for p in range(4) if not (p == 3 and lt >= 2)]
def preg(p, lt): return V_P + (p*4 + lt)*4 if p < 3 else V_PS + lt*4
def qreg(p, lt): return V_Q + (p*4 + lt)*4 if p < 3 else V_QS + lt*4

A_W = 64
def x_init(b, extra=()):
    us = units()
    AD = T
    def rd(i):
        p, lt = us[i]; w = A_W + 8*(i & 3)
        return [f"v_add_u32 v{AD + 2*(i&1)}, s{S_P32+p}, v{V_XA+lt}",
                f"v_add_u32 v{AD + 2*(i&1) + 1}, s{S_N32+p}, v{V_XA+lt}",
                lambda: b(f"ds_read_b128 {a(w,4)}, v{AD + 2*(i&1)} offset:{XL}", tag=f"xw{i}"),
                lambda: b(f"ds_read_b128 {a(w+4,4)}, v{AD + 2*(i&1) + 1} offset:{XL}", tag=f"xw{i}")]
    for lt in range(4):
        b(f"ds_read_b32 v{V_E + 4*lt}, v{V_XA+lt} offset:{XL+448}", tag="xe")
    for i in range(3):
        for f in rd(i): emit(b, f)
    extra = list(extra)
    for i, (p, lt) in enumerate(us):
        b.wait_lg(f"xw{i}")
        w = A_W + 8*(i & 3); P, Q = preg(p, lt), qreg(p, lt)
        mf = [f"{MF} {v(P,4)}, {v(V_SEL1,4)}, {a(w,4)}, 0",
              f"{MF} {v(Q,4)}, {v(V_SEL1,4)}, {a(w,4)}, 0",
              f"{MF} {v(P,4)}, {v(V_SEL2,4)}, {a(w+4,4)}, {v(P,4)}",
              f"{MF} {v(Q,4)}, {v(V_NSEL2,4)}, {a(w+4,4)}, {v(Q,4)}"]
        fill = rd(i+3) if i + 3 < len(us) else []
        ne = (len(extra) + len(us) - i - 1) // (len(us) - i)
        fill = extra[:ne] + fill; extra = extra[ne:]
        weave(b, mf, fill, per=2)
    b("s_nop 7")
    b(f"v_mov_b32 v{T+1}, 0")
    for lt in range(4):
        P, Q, E = preg(0, lt), qreg(0, lt), V_E + 4*lt
        b(f"v_add_f32 v{T}, v{P}, v{P}")
        b(f"v_cndmask_b32 v{Q}, v{Q}, v{T+1}, s[{S_MASK}:{S_MASK+1}]")
        b(f"v_cndmask_b32 v{P}, v{P}, v{T}, s[{S_MASK}:{S_MASK+1}]")
        b(f"v_lshlrev_b32 v{E}, 16, v{E}")
        b(f"v_add_f32 v{E}, v{E}, v{E}")

def z_load(b, p):
    for ks in range(2):
        for j in range(4):
            reg = V_Z + (p*2 + ks)*8 + 2*j
            b(f"buffer_load_dwordx2 {v(reg,2)}, v{V_ZO}, s[{R_WS}:{R_WS+3}], s{S_ZL+p} offen offset:{ks*2048 + j*128} sc1", tag=f"z{p}_{ks}")
def z_list(b):
    out = []
    if cfg.x_z4:
        b(f"v_and_b32 v{T+6}, 7, v{V_C}")
        b(f"v_lshlrev_b32 v{T+6}, 4, v{T+6}")
        b(f"v_lshrrev_b32 v{T+7}, 3, v{V_C}")
        b(f"v_lshl_add_u32 v{T+6}, v{T+7}, 7, v{T+6}")
        b(f"v_lshl_add_u32 v{T+6}, v{V_GQ}, 9, v{T+6}")
        for p in range(4):
            for ks in range(2):
                for j in range(2):
                    reg = V_Z + (p*2 + ks)*8 + 4*j
                    out.append(lambda p=p, ks=ks, j=j, reg=reg: b(f"buffer_load_dwordx4 {v(reg,4)}, v{T+6}, s[{R_WS}:{R_WS+3}], s{S_ZL+p} offen offset:{ks*2048 + j*256} sc1", tag=f"z{p}_{ks}"))
        return out
    for p in range(4):
        for ks in range(2):
            for j in range(4):
                reg = V_Z + (p*2 + ks)*8 + 2*j
                out.append(lambda p=p, ks=ks, j=j, reg=reg: b(f"buffer_load_dwordx2 {v(reg,2)}, v{V_ZO}, s[{R_WS}:{R_WS+3}], s{S_ZL+p} offen offset:{ks*2048 + j*128} sc1", tag=f"z{p}_{ks}"))
    return out

def pb_prefill(b):
    out = []
    for q in range(6):
        for h in range(2):
            out.append(lambda q=q, h=h: b(f"buffer_store_dwordx4 {v(V_NEG,4)}, v{V_L16}, s[{R_WS}:{R_WS+3}], s{S_IN+q} offen offset:{1024*h} sc1", tag="pbpre"))
    return out

def step_b(b, ring=()):
    def swaps(p, ks):
        z = V_Z + (p*2 + ks)*8
        return [f"v_swap_b32 v{z+1}, v{z+2}", f"v_swap_b32 v{z+2}, v{z+4}", f"v_swap_b32 v{z+3}, v{z+6}", f"v_swap_b32 v{z+5}, v{z+6}"]
    def epi(p, lt):
        P, Q = preg(p, lt), qreg(p, lt)
        fl = []
        for r in range(4):
            fl.append(f"v_add_f32 v{T+r}, v{P+r}, v{Q+r}")
            fl.append(f"v_sub_f32 v{T+4+r}, v{P+r}, v{Q+r}")
        if p == 0:
            fl.append(f"v_cndmask_b32 v{T}, v{T}, v{P}, s[{S_MASK}:{S_MASK+1}]")
            fl.append(f"v_cndmask_b32 v{T+4}, v{T+4}, v{V_E+4*lt}, s[{S_MASK}:{S_MASK+1}]")
        fl.append(f"v_cvt_pk_bf16_f32 v{P+0}, v{T+0}, v{T+1}")
        fl.append(f"v_cvt_pk_bf16_f32 v{P+1}, v{T+2}, v{T+3}")
        fl.append(f"v_cvt_pk_bf16_f32 v{P+2}, v{T+4}, v{T+5}")
        fl.append(f"v_cvt_pk_bf16_f32 v{P+3}, v{T+6}, v{T+7}")
        if p < 3:
            fl.append(lambda: b(f"ds_write_b128 v{V_HW+lt}, {v(P,4)} offset:{XL + p*4096}", tag="hw"))
        else:
            fl.append(lambda: b(f"ds_write_b128 v{V_HWS+lt}, {v(P,4)} offset:{XL}", tag="hw"))
        return fl
    def mf(p, lt):
        P, Q = preg(p, lt), qreg(p, lt)
        out = []
        for ks in range(2):
            z = V_Z + (p*2 + ks)*8
            out.append(f"{MH} {v(P,4)}, {v(z,4)}, {a(mreg(lt,ks,0),4)}, {v(P,4)}")
            out.append(f"{MH} {v(Q,4)}, {v(z+4,4)}, {a(mreg(lt,ks,1),4)}, {v(Q,4)}")
        return out
    order = [(p, lt) for p in range(4) for lt in range(4) if not (p == 3 and lt >= 2)]
    done = []
    pre = [] if cfg.x_noring else list(ring)
    nun = len(order)
    for iu, (p, lt) in enumerate(order):
        if lt == 0:
            b.wait_vm(f"z{p}_1")
            if cfg.fineb: stamp(b, 24 + p, True)
            guarded(b, [V_Z + p*16 + i for i in range(16)], lambda p=p: z_load(b, p), f"z{p}")
            for ks in range(2):
                for sw in swaps(p, ks): b(sw)
            if p == 0:
                lab = b.newlabel("L_noE")
                b(f"s_cmp_eq_u32 s{S_W}, 0")
                b(f"s_cbranch_scc0 {lab}")
                for ks in range(2):
                    for l2 in range(4):
                        z = V_Z + ks*8
                        b(f"{MH} {v(V_E+4*l2,4)}, {v(z+4,4)}, {a(mreg(l2,ks,0),4)}, {v(V_E+4*l2,4)}")
                b.label(lab)
        fl = epi(*done[-2]) if len(done) >= 2 else []
        nv = (len(pre) + (nun - iu) - 1) // (nun - iu)
        vm = pre[:nv]; pre = pre[nv:]
        sched(b, mf(p, lt), vm=vm, misc=fl, cap=5)
        done.append((p, lt))
    for f in epi(*done[-2]): emit(b, f)
    for f in epi(*done[-1]): emit(b, f)

def slab_buf(p):
    return {0: 1, 1: 2, 2: 0, 3: 1, 4: 2, 5: "H", 6: "S"}[p]

def w2_groups(b, p):
    sg = slab_buf(p)
    out = []
    for hf in range(2):
        for n in range(4):
            pre = []
            if n == 0:
                pre.append(f"s_add_u32 m0, s{S_HWB}, {XL + hf*4096}" if sg == "H" else f"s_add_u32 m0, s{S_RW}, {sg*8192 + hf*4096}")
                if hf: pre.append(f"s_add_u32 s95, s{S_W2+p}, {32*896}")
            def f(n=n, hf=hf):
                so = "s95" if hf else f"s{S_W2+p}"
                off = f" offset:{1024*n}" if n else ""
                b(f"buffer_load_dwordx4 v{V_W2O+n}, s[{R_W2}:{R_W2+3}], {so} offen{off} lds", tag=f"w2_{p}")
            out.append((pre, f))
    return out
def w2_dma(b, p): return flat(w2_groups(b, p))

S_S6 = 6
def w2_groups6(b):
    ga, gb = [], []
    for i in range(6):
        pre = []
        if i == 0:
            pre = [f"s_mul_i32 s95, s{S_W}, {16*896}", f"s_sub_u32 s95, s{S_W2+6}, s95",
                   f"s_mul_i32 s96, s{S_W}, 6144", f"s_add_u32 m0, s96, {XL + 32768}"]
        if i == 4:
            pre = [f"s_add_u32 s95, s95, {32*896}", f"s_add_u32 m0, s96, {XL + 32768 + 4096}"]
        n = i & 3
        def f(n=n):
            off = f" offset:{1024*n}" if n else ""
            b(f"buffer_load_dwordx4 v{V_W2O+n}, s[{R_W2}:{R_W2+3}], s95 offen{off} lds", tag="w2_6")
        ga.append((pre, f))
    for i in range(2):
        pre = []
        if i == 0:
            pre = [f"s_mul_i32 s95, s{S_W}, {48*896}", f"s_sub_u32 s95, s{S_W2+6}, s95", f"s_add_u32 s95, s95, {192*896}",
                   f"s_lshl_b32 s96, s{S_W}, 11", f"s_add_u32 m0, s96, {RING}"]
        def f(n=i):
            off = f" offset:{1024*n}" if n else ""
            b(f"buffer_load_dwordx4 v{V_W2O+n}, s[{R_W2}:{R_W2+3}], s95 offen{off} lds", tag="w2_6")
        gb.append((pre, f))
    return ga, gb

def cs_loads(b):
    out = []
    def hdr():
        b(f"s_lshl_b32 s6, s{S_J}, 10")
        b(f"s_lshl_b32 s7, s{S_W}, 8")
        b("s_add_u32 s6, s6, s7")
        b(f"s_add_u32 s{S_CSO}, s6, {WS_CS}")
        b(f"v_lshlrev_b32 v{V_CSA}, 4, v{V_GQ}")
    hdr()
    cs_reload(b)

def cs_reload(b):
    for ft in range(4):
        b(f"buffer_load_dwordx4 {v(V_CS+4*ft,4)}, v{V_CSA}, s[{R_WS}:{R_WS+3}], s{S_CSO} offen offset:{64*ft} sc1", tag="cs")

def gemm1(b):
    def reads(k):
        buf = k & 1; slot = k % 6
        out = []
        for lt in range(4):
            out.append(lambda lt=lt: b(f"ds_read_b128 {v(V_B1 + 16*buf + 4*lt, 4)}, v{V_HB+lt} offset:{XL + k*4096}", tag=f"r{k}"))
        for u in range(4):
            for hh in range(2):
                out.append(lambda u=u, hh=hh: b(f"ds_read_b64_tr_b16 {v(V_A1 + 16*buf + 4*u + 2*hh, 2)}, v{V_TR1+u} offset:{slot*4096 + hh*2048}", tag=f"r{k}"))
        return out
    late = record(epi_addr) + record(flag_setup)
    b.wait_vm("w1_0")
    for f in reads(0): f()
    hres = [f"v_mov_b32 v{V_HRES+k}, 0" for k in range(16)]
    hrd = [(lambda tt=tt, r=r: b(f"ds_read_u16_d16_hi v{V_HRES + tt*4 + r}, v{V_HA + r} offset:{XL + tt*1024}", tag="hres")) for tt in range(4) for r in range(4)]
    s0 = []
    for k2 in range(8):
        s0 += slab_read(b, 0, k2, lambda o, k2=k2: a(A_S0 + 4*k2 + o, 2), "s0")
    g0, g1, g2 = w2_groups(b, 0), w2_groups(b, 1), w2_groups(b, 2)
    for k in range(14):
        buf = k & 1
        if k == 12:
            b.wait_vm("w2_0")
            b.wait_lg(f"r{k}")
            b("s_barrier")
        else:
            b.wait_lg(f"r{k}")
        if cfg.fine: stamp(b, k)
        first, vm, misc = [], [], []
        if k + 1 < 14:
            first.append(lambda k=k: b.wait_vm(f"w1_{k+1}"))
            if not cfg.x_noreads: first += reads(k + 1)
        if k + 6 < 14 and not cfg.x_now1dma: vm += w1_groups(b, k + 6)
        if k == 8: misc += hres
        if k == 8: vm += g0[:4]
        if k == 9: vm += g0[4:]; misc += hrd[:8]
        if k == 10: vm += g1[:4]; misc += hrd[8:]
        if k == 11: vm += g1[4:]; misc.append(lambda: ready_set(b))
        if k == 12: vm += g2[:4]; misc += s0[:8]
        if k < 8:
            n = (len(late) + 7 - k) // (8 - k)
            misc += late[:n]; late = late[n:]
        bb = V_B1 + 16*buf
        z = k == 0
        mf = [f"{MF} {v(V_Q2,4)}, {v(bb,4)}, {v(bb,4)}, {'0' if z else v(V_Q2,4)}",
              f"{MF} {v(V_S2,4)}, {v(V_ONE2,4)}, {v(bb,4)}, {'0' if z else v(V_S2,4)}"]
        for lt in range(4):
            for u in range(4):
                d = V_ACC1 + (u*4 + lt)*4
                mf.append(f"{MF} {v(d,4)}, {v(V_A1 + 16*buf + 4*u, 4)}, {v(bb + 4*lt, 4)}, {'0' if z else v(d,4)}")
        if k == 13:
            r = Rec()
            stats_core(r, V_S2, V_Q2, True)
            sf = r.l + [f"s_lshl_b32 s6, s{S_W}, 6", f"s_add_u32 s6, s6, {STAT}", f"v_lshl_add_u32 v{T}, v{V_C}, 2, s6",
                        f"v_sub_f32 v{V_S2}, 0, v{V_S2}", f"v_mul_f32 v{V_Q2}, 0.5, v{V_Q2}"]
            sched(b, mf[:6], first=s0[8:], vm=g2[4:5])
            sched(b, mf[6:], vm=g2[5:], misc=sf)
            b(f"s_mov_b64 exec, s[{S_DIAG}:{S_DIAG+1}]")
            b(f"ds_write_b32 v{T}, v{V_S2}")
            b(f"ds_write_b32 v{T}, v{V_S2} offset:256")
            b(f"ds_write_b32 v{T}, v{V_Q2} offset:512")
            b("s_mov_b64 exec, -1")
            b.g2rest = []
        else:
            sched(b, mf, first=first, vm=vm, misc=misc, misc_from=6)

def slab_read(b, p, k2, dst, tagp):
    sg = slab_buf(p)
    part = k2 >> 1
    if sg == "H":
        base = V_TR2H; off = XL + part*8192 + (k2 & 1)*4096
    elif sg == "S":
        if k2 < 6: base = V_TR2H; off = XL + 32768 + k2*4096
        else: base = V_TR2; off = (k2 - 6)*4096
    else:
        base = V_TR2 + (part >> 1)
        off = (part & 1)*24576 + sg*8192 + (k2 & 1)*4096
    return [(lambda hh=hh: b(f"ds_read_b64_tr_b16 {dst(2*hh)}, v{base} offset:{off + hh*2048}", tag=tagp)) for hh in range(2)]

V_NA = 54
V_SR = 36
def epi_addr(b):
    b(f"s_lshl_b32 s6, s{S_W}, 13")
    for l2 in range(4): b(f"v_add_u32 v{V_NA+l2}, s6, v{V_HB+l2}")
    b(f"v_lshlrev_b32 v{V_SR}, 2, v{V_C}")
    b(f"v_add_u32 v{V_SR}, {STAT}, v{V_SR}")
    b(f"s_lshl_b32 s6, s{S_W}, 6")
    b(f"v_add_u32 v{V_SR+1}, s6, v{V_SR}")

def gemm1_epi(b):
    b.wait_vm("w2_1")
    b("s_waitcnt lgkmcnt(0)")
    if cfg.finee: stamp(b, 24, True)
    b("s_barrier")
    if cfg.finee: stamp(b, 25, True)
    for lt in range(4):
        b(f"ds_read_b32 v{V_NM+2*lt}, v{V_SR+1} offset:{64*lt}", tag="nm")
    for tt in range(4):
        b(f"ds_read_b32 v{V_RR+tt}, v{V_SR} offset:{512 + 64*tt}", tag="rr")
    ready_load(b)
    b.wait_vm("cs")
    guarded(b, [V_CS + i for i in range(16)], lambda: cs_reload(b), "cs")
    b.wait_lg("nm")
    if cfg.finee: stamp(b, 26, True)
    main = []
    for lt in range(4):
        for fp in range(2):
            pk = V_PK + 4*((lt*2 + fp) & 3)
            for hh in range(2):
                d = V_ACC1 + ((2*fp + hh)*4 + lt)*4
                for h in range(2):
                    main.append(f"v_pk_fma_f32 {v(d+2*h,2)}, {v(V_CS+4*(2*fp+hh)+2*h,2)}, {v(V_NM+2*lt,2)}, {v(d+2*h,2)} op_sel_hi:[1,0,1]")
            for hh in range(2):
                d = V_ACC1 + ((2*fp + hh)*4 + lt)*4
                main.append(f"v_cvt_pk_bf16_f32 v{pk+2*hh}, v{d}, v{d+1}")
                main.append(f"v_cvt_pk_bf16_f32 v{pk+2*hh+1}, v{d+2}, v{d+3}")
            for q in range(4):
                main.append(f"v_pk_max_i16 v{pk+q}, v{pk+q}, 0")
            main.append(lambda lt=lt, fp=fp, pk=pk: b(f"ds_write_b128 v{V_NA+lt}, {v(pk,4)} offset:{XL + fp*4096}", tag="hidw"))
    g6a, b.g6b = w2_groups6(b)
    b.g6a = g6a
    dm = [flat([g]) for g in b.g2rest + w2_groups(b, 3)]
    dm = [(lambda l=l: [emit(b, x) for x in l]) for l in dm]
    s1 = []
    for k2 in range(8):
        s1 += slab_read(b, 1, k2, lambda o, k2=k2: a(A_S0 + 32 + 4*k2 + o, 2), "s1")
    multi_spread(b, main, [dm, s1])
    if cfg.finee: stamp(b, 27, True)
    b("s_waitcnt lgkmcnt(0)")
    b("s_barrier")

V_INR = [160, 168, 176, 184, 208, 216]
def inbox_load(b, q):
    return [([], (lambda h=h: b(f"buffer_load_dwordx4 {v(V_INR[q]+4*h,4)}, v{V_L16}, s[{R_WS}:{R_WS+3}], s{S_IN+q} offen offset:{1024*h} sc1", tag=f"p{q}"))) for h in range(2)]

def gemm2(b):
    hb = []
    for k2 in range(8):
        for tt in range(4):
            hb.append((k2, lambda k2=k2, tt=tt: b(f"ds_read_b128 {a((k2*4 + tt)*4, 4)}, v{V_L16} offset:{XL + k2*4096 + tt*1024}", tag=f"hb{k2}")))
    def aread(p, k2):
        if p <= 1: return []
        return slab_read(b, p, k2, lambda o: v(V_A2 + 4*(k2 & 3) + o, 2), f"a{p}_{k2}")
    def aop(p, k2):
        return a(A_S0 + 32*p + 4*k2, 4) if p <= 1 else v(V_A2 + 4*(k2 & 3), 4)
    def epi(p):
        acc = V_ACC2 + 16*(p & 1)
        pk = V_PK + 8*(p & 1)
        cv, st = [], []
        for h in range(2):
            pre = []
            for tt in (2*h, 2*h+1):
                pre.append(f"v_cvt_pk_bf16_f32 v{pk+2*tt}, v{acc+4*tt}, v{acc+4*tt+1}")
                pre.append(f"v_cvt_pk_bf16_f32 v{pk+2*tt+1}, v{acc+4*tt+2}, v{acc+4*tt+3}")
            cv.append(pre)
            st.append(lambda h=h: b(f"buffer_store_dwordx4 {v(pk+4*h,4)}, v{V_L16}, s[{R_WS}:{R_WS+3}], s{S_PB+p} offen offset:{1024*h} sc1", tag=f"pst{p}") if not cfg.x_nostore else None)
        return cv, st
    def mfs(p, k2):
        acc = V_ACC2 + 16*(p & 1)
        return [f"{MF} {v(acc+4*tt,4)}, {aop(p, k2)}, {a((k2*4+tt)*4, 4)}, {v(acc+4*tt, 4) if k2 else '0'}" for tt in range(4)]
    W = {q: w2_groups(b, q) for q in (4, 5)}
    plan = {0: W[4], 1: W[5], 2: b.g6a, 3: b.g6b}
    late_in = {5: [], 6: []}
    for (k2, f) in hb[:8]: f()
    tail = []
    for p in range(7):
        if cfg.fine: stamp(b, 24 + p)
        vm = list(plan.get(p, []))
        cv, st = epi(p - 1) if p >= 1 else ([], [])
        body = list(tail)
        firsts = []
        if p >= 1: firsts = aread(p, 0) + aread(p, 1)
        nt = len(tail)
        nvm_tail = min(len(vm), 2) if nt else 0
        if nt:
            b.wait_lg([f"a{p-1}_6"])
            sched(b, tail[:4], first=firsts[:2], vm=vm[:min(1, nvm_tail)])
            b.wait_lg([f"a{p-1}_7"])
            sched(b, tail[4:], first=firsts[2:], vm=vm[1:nvm_tail])
            vm = vm[nvm_tail:]
        if p == 1: ready_check(b)
        stg = [(cv[h], st[h]) for h in range(2)] if st else []
        order = stg + vm
        per = [[] for _ in range(6)]
        for i, g in enumerate(order): per[min(5, (i * 6) // max(len(order), 1))].append(g)
        for k2 in range(6):
            b.wait_lg([f"hb{k2}", f"a{p}_{k2}"])
            first = aread(p, k2 + 2)
            if p == 0: first += [f for (kk, f) in hb if kk == k2 + 2]
            gs = per[k2]
            if gs and len(gs[0][0]) > 2:
                sched(b, mfs(p, k2), first=first, misc=gs[0][0], cap=3)
                for g in gs[:1]: emit(b, g[1])
                for g in gs[1:]:
                    for x in g[0]: emit(b, x)
                    emit(b, g[1])
            else:
                sched(b, mfs(p, k2), first=first, vm=gs)
        if p < 6:
            if p + 1 >= 2: b.wait_vm(f"w2_{p+1}")
            if p in (0, 2): b("s_waitcnt lgkmcnt(0)")
            if not cfg.x_nobar2: b("s_barrier")
            tail = mfs(p, 6) + mfs(p, 7)
        else:
            b.wait_lg([f"a{p}_6", f"a{p}_7"])
            sched(b, mfs(p, 6) + mfs(p, 7), vm=inbox_load(b, 5) + inbox_load(b, 4))

def flag_setup(b):
    t = T
    b(f"v_add_u32 v{t}, s{S_J}, v0")
    b(f"v_add_u32 v{t}, 1, v{t}")
    b(f"v_subrev_u32 v{t+1}, 7, v{t}")
    b(f"v_cmp_le_u32 vcc, 7, v{t}")
    b(f"s_mul_i32 s6, s{S_IDX}, 7")
    b(f"v_cndmask_b32 v{t}, v{t}, v{t+1}, vcc")
    b(f"v_add_u32 v{t}, s6, v{t}")
    b(f"v_lshlrev_b32 v{t}, 9, v{t}")
    b(f"s_lshl_b32 s6, s{S_W}, 7")
    b(f"s_add_u32 s6, s6, {WS_FL}")
    b(f"v_add_u32 v{t+6}, s6, v{t}")
    own_line(b, 13)
    b(f"v_mov_b32 v{t+5}, 1")
    b(f"v_mov_b32 v{t+4}, 0")

def ready_set(b):
    b.wait_vm("pbpre")
    b("s_mov_b64 exec, 1")
    b(f"buffer_store_dword v{T+5}, v{T+4}, s[{R_WS}:{R_WS+3}], s13 offen sc1", tag="rdy")
    b("s_mov_b64 exec, -1")

def ready_load(b):
    b("s_mov_b64 exec, 0x3f")
    b(f"buffer_load_dword v{T+7}, v{T+6}, s[{R_WS}:{R_WS+3}], 0 offen sc1", tag="rdl")
    b("s_mov_b64 exec, -1")

def ready_check(b):
    b.wait_vm("rdl")
    l2 = b.newlabel("L_rd"); l3 = b.newlabel("L_rdd")
    b.notrack = True
    b("s_mov_b32 s12, 0")
    b("s_mov_b64 exec, 0x3f")
    b.label(l2)
    b(f"v_cmp_ne_u32 vcc, 1, v{T+7}")
    b("s_cmp_eq_u64 vcc, 0")
    b(f"s_cbranch_scc1 {l3}")
    b("s_add_u32 s12, s12, 1")
    b("s_cmp_ge_u32 s12, 0x10000")
    b(f"s_cbranch_scc1 {l3}")
    b(f"buffer_load_dword v{T+7}, v{T+6}, s[{R_WS}:{R_WS+3}], 0 offen sc1")
    b("s_waitcnt vmcnt(0)")
    b(f"s_branch {l2}")
    b.label(l3)
    b("s_mov_b64 exec, -1")
    b.notrack = False

def final_reduce(b):
    t = T
    acc = V_ACC2
    def reload(q):
        for pre, op in inbox_load(b, q): op()
    for q in (3, 2, 1, 0): reload(q)
    b(f"v_mul_u32_u24 v{t+4}, 57344, v{V_C}")
    b(f"v_lshl_add_u32 v{t+4}, v{V_GQ}, 3, v{t+4}")
    stamp(b, 20)
    for q in (5, 4, 3, 2, 1, 0):
        b.wait_vm(f"p{q}")
        guarded(b, [V_INR[q] + i for i in range(8)], lambda q=q: reload(q), f"p{q}")
        if cfg.finef: stamp(b, 24 + q, True)
        for tt in range(4):
            for m in range(2):
                src = V_INR[q] + 2*tt + m
                tt2 = t + 2*((2*tt + m) & 1)
                b(f"v_lshlrev_b32 v{tt2}, 16, v{src}")
                b(f"v_and_b32 v{tt2+1}, 0xffff0000, v{src}")
                b(f"v_pk_add_f32 {v(acc+4*tt+2*m,2)}, {v(acc+4*tt+2*m,2)}, {v(tt2,2)}")
    stamp(b, 22)
    for tt in range(4):
        for r in range(4):
            b(f"v_mul_f32 v{acc+4*tt+r}, v{V_RR+tt}, v{acc+4*tt+r}")
        for m in range(2):
            b(f"v_pk_fma_f32 {v(acc+4*tt+2*m,2)}, {v(V_HRES+4*tt+2*m,2)}, 0.5, {v(acc+4*tt+2*m,2)} op_sel_hi:[1,0,1]")
        b(f"v_cvt_pk_bf16_f32 v{V_PK+2*tt}, v{acc+4*tt}, v{acc+4*tt+1}")
        b(f"v_cvt_pk_bf16_f32 v{V_PK+1+2*tt}, v{acc+4*tt+2}, v{acc+4*tt+3}")
        b(f"buffer_store_dwordx2 {v(V_PK+2*tt,2)}, v{t+4}, s[{R_OUT}:{R_OUT+3}], s{S_O+tt} offen {cfg.outflags}")

def cs_job(b):
    b("s_sub_u32 s6, s2, 224")
    b("s_lshl_b32 s7, s6, 7")
    b("v_and_b32 v1, 15, v9")
    b("v_lshrrev_b32 v2, 4, v9")
    b("v_mul_u32_u24 v3, 3584, v2")
    b("v_lshl_add_u32 v3, v1, 3, v3")
    b("v_and_b32 v6, 63, v9")
    b("v_lshlrev_b32 v6, 2, v6")
    b("v_mov_b32 v7, -1")
    b("s_lshl_b32 s9, s6, 8")
    b(f"s_add_u32 s9, s9, {WS_CS}")
    b(f"buffer_store_dword v7, v6, s[{R_WS}:{R_WS+3}], s9 offen sc1", tag="cspre")
    for n in range(28):
        b(f"s_add_u32 s8, s7, {n*57344}")
        b(f"buffer_load_dwordx2 {v(16 + 2*n, 2)}, v3, s[{R_W1}:{R_W1+3}], s8 offen", tag=f"c{n}")
    b.wait_vm("cspre")
    b("s_barrier")
    arrive0(b)
    b("s_sub_u32 s6, s2, 224")
    for r in range(4): b(f"v_mov_b32 v{76+r}, 0")
    for n in range(28):
        b.wait_vm(f"c{n}")
        for h in range(2):
            b(f"v_lshlrev_b32 v4, 16, v{16+2*n+h}")
            b(f"v_and_b32 v5, 0xffff0000, v{16+2*n+h}")
            b(f"v_pk_add_f32 {v(76+2*h,2)}, {v(76+2*h,2)}, v[4:5]")
    b("v_lshlrev_b32 v4, 8, v2")
    b("v_lshl_add_u32 v4, v1, 4, v4")
    b("ds_write_b128 v4, v[76:79]")
    b("s_waitcnt lgkmcnt(0)")
    b("s_barrier")
    b("v_and_b32 v1, 63, v9")
    b("v_lshlrev_b32 v1, 2, v1")
    for n in range(16): b(f"ds_read_b32 v{16+n}, v1 offset:{256*n}")
    b("s_waitcnt lgkmcnt(0)")
    for n in range(1, 16): b(f"v_add_f32 v16, v16, v{16+n}")
    b("s_lshl_b32 s7, s6, 8")
    b(f"s_add_u32 s7, s7, {WS_CS}")
    b(f"s_cmp_eq_u32 s{S_W}, 0")
    lab = b.newlabel("L_csk")
    b(f"s_cbranch_scc0 {lab}")
    b(f"buffer_store_dword v16, v1, s[{R_WS}:{R_WS+3}], s7 offen sc1", track=False)
    b.label(lab)

def build(name):
    b = Builder()
    b.slow = []
    b("s_cmp_ge_u32 s2, 252")
    b("s_cbranch_scc1 L_end")
    b("s_load_dwordx2 s[16:17], s[0:1], 0")
    b("s_load_dwordx8 s[28:35], s[0:1], 48")
    b("s_load_dwordx2 s[36:37], s[0:1], 80")
    if cfg.code_pf:
        b("s_getpc_b64 s[6:7]")
        b.label("L_pc")
        b("v_lshlrev_b32 v2, 7, v0")
        b("v_mov_b32 v5, s7")
        b("v_add_co_u32 v4, vcc, s6, v2")
        b("v_addc_co_u32 v5, vcc, 0, v5, vcc")
        b(f"v_cmp_gt_u32 vcc, L_code_end-L_pc, v2")
        b("s_and_saveexec_b64 s[8:9], vcc")
        lab = b.newlabel("L_nopf")
        b(f"s_cbranch_execz {lab}")
        b(f"global_load_dword {a(255)}, v[4:5], off", track=False)
        b.label(lab)
        b("s_mov_b64 exec, s[8:9]")
    b("v_mov_b32 v9, v0")
    b("v_lshrrev_b32 v1, 6, v0")
    b("v_and_b32 v0, 63, v0")
    b(f"v_readfirstlane_b32 s{S_W}, v1")
    b("s_cmp_ge_u32 s2, 224")
    b("s_cbranch_scc1 L_cs")
    decode(b)
    p1_addr(b)
    p1_addr2(b)
    wd_setup(b)
    b("s_waitcnt lgkmcnt(0)")
    srd(b, R_X, P_X, X_BYTES)
    srd(b, R_WS, P_WS, WS_BYTES)
    prefill_start(b)
    x_dma(b)
    srd(b, R_W1, P_W1, W_BYTES); srd(b, R_W2, P_W2, W_BYTES)
    srd(b, R_OUT, P_OUT, X_BYTES); srd(b, R_DBG, P_DBG, 256)
    stamp(b, 0)
    move_masks(b)
    if cfg.w_prefetch: w_prefetch(b)
    p2_scalars(b)
    inbox_scalars(b)
    if cfg.pre_at == "start":
        for f in pb_prefill(b): f()
    stamp(b, 1)
    wd_gen(b)
    f_gen(b)
    m_gen(b)
    fm_addr(b)
    dma_addr(b)
    stamp(b, 2)
    p1_loop(b)
    p1_tail(b)
    stamp(b, 8)
    b0_load(b, V_B0)
    xres_pad(b)
    ring = []
    for k in range(cfg.ring_early, 6): ring += w1_groups(b, k)
    work = record(p2_addr)
    pbq = pb_prefill(b) if cfg.pre_at == "spread" else []
    xl = xres_list(b)
    if pbq: xl = xl[:8] + pbq[:1] + xl[8:] + pbq[1:2]; pbq = pbq[2:]
    multi_spread(b, work, [xl])
    stamp(b, 9)
    b0_check(b, V_B0)
    zl = z_list(b)
    work = record(hres_addr) + record(p2_scalars_late)
    z1 = zl[:16]
    if pbq: z1 = z1[:8] + pbq[:1] + z1[8:] + pbq[1:2]; pbq = pbq[2:]
    multi_spread(b, work, [z1])
    b.wait_vm("xres")
    b("s_waitcnt lgkmcnt(0)")
    b("s_barrier")
    stamp(b, 10)
    z2 = zl[16:]
    if pbq: z2 = z2[:8] + pbq[:1] + z2[8:] + pbq[1:2]; pbq = pbq[2:]
    x_init(b, extra=z2)
    b(f"v_mov_b32 v{V_ONE2}, 0x3f803f80")
    for r in range(1, 4): b(f"v_mov_b32 v{V_ONE2+r}, v{V_ONE2}")
    stamp(b, 11)
    b("s_barrier")
    stamp(b, 14)
    if pbq:
        r2 = []
        for i, g in enumerate(ring):
            r2.append(g)
            if i % 4 == 3 and pbq: r2.append(([], pbq.pop(0)))
        ring = r2
    if cfg.pre_at == "stepb": ring = ring + [([], x) for x in pb_prefill(b)]
    step_b(b, ring)
    cs_loads(b)
    b("s_waitcnt lgkmcnt(0)")
    stamp(b, 15)
    b("s_barrier")
    b.finezone = True
    gemm1(b)
    stamp(b, 17)
    gemm1_epi(b)
    stamp(b, 18)
    gemm2(b)
    stamp(b, 19)
    b.finezone = False
    final_reduce(b)
    stamp(b, 23)
    stamp_store(b)
    b("s_endpgm")
    b.label("L_cs")
    b("s_waitcnt lgkmcnt(0)")
    srd(b, R_W1, P_W1, W_BYTES); srd(b, R_WS, P_WS, WS_BYTES); srd(b, R_DBG, P_DBG, 256)
    cs_job(b)
    b("s_endpgm")
    emit_slow(b)
    b.label("L_end")
    b.label("L_code_end")
    b("s_endpgm")
    txt = b.finalize()
    s = f"""; FNet block (pre-LN, 2-D DFT mixing as a 64x32 two-step transform, ReLU FFN) - one persistent launch
; kernarg: A_x, dft_seq_re, dft_seq_im, dft_hid_re, dft_hid_im, B_x, B_w1, B_w2, out, debug, ws
; @launch grid=(252,1,1) block=(256,1,1) lds={LDS_TOTAL}
.amdgcn_target "amdgcn-amd-amdhsa--gfx950"
.text
""" + kernel_header(name) + txt + '\n.section .rodata,"a"\n' + kernel_desc(name, 512, 256)
    return s, b

if __name__ == "__main__":
    import sys
    for o in sys.argv[2:]:
        if o == "diag": cfg.diag = True
        elif "=" in o:
            k, val = o.split("=", 1)
            setattr(cfg, k, eval(val))
    s, b = build(NAME + "_kernel")
    open(sys.argv[1], "w").write(s)
    n = sum(1 for i in b.items if not isinstance(i, str))
    print("instructions", n, "auto nops", b.nnop)
```

```python
from asmb import *
import common
from common import NAME, kernel_header, kernel_desc, X_BYTES, W_BYTES, WS_BYTES, Z_G, PB_G
import struct

def fbits(x): return hex(struct.unpack("<I", struct.pack("<f", x))[0])

class Cfg:
    diag = False
    w_prefetch = True
    xflags = ""
    x_now1dma = False
    x_now2dma = False
    x_noreads = False
    x_nobar2 = False
    x_nostore = False
    fine = False
    cyc = False
    xres_tail = 0
    stages = ((0,1,2,3,4,5,6),)
    m_late = True
    lean_start = True
    late_dma_addr = True
    outflags = ''
    finee = False
    ring_early = 0
    pre_at = 'spread'
    x_z4 = False
    x_noring = False
    x_nopre = False
    code_bytes = 26*1024
    code_pf = True
    finef = False
    x_noguard = False
    ring0 = 18
    buf4 = True
    fineb = False
cfg = Cfg()

WS_Z = 0
WS_CS = 0x200000
WS_CNT = 0x210000
WS_FL = 0x220000
WS_PB = 0x400000
WS_TS = 0x4000000

XL = 0
XRS = 928
RING = 64 * XRS
FX = RING
MX = RING + 8192
STAT = RING + 98304
LDS_TOTAL = STAT + 768

S_WG, S_W, S_IDX, S_J = 2, 3, 4, 5
P_X, P_W1, P_W2, P_OUT, P_DBG, P_WS = 16, 28, 30, 32, 34, 36
R_X, R_W1, R_W2, R_WS, R_OUT, R_DBG = 40, 44, 48, 52, 56, 60
S_TT = 16
S_PI = 20
S_ZL = 24
S_RW = 28
S_W1B = 29
S_Z0, S_Z1 = 30, 31
S_DIAG = 32
S_M1 = 34
S_MASK = 64
S_W2 = 66
S_PB = 73
S_IN = 79
S_XR = 85
S_O = 86
S_P32 = 90
S_TMP = 94
S_HWB = 94
S_N32 = 98
S_CSO = 97

V_C, V_GQ, V_TS = 1, 2, 58
T = 4
V_HB = 12
V_TR1 = 16
V_W1O = 20
V_W2O = 24
V_TR2 = 28
V_L16 = 30
V_ZO = 31
V_CSA = 31
V_HW = 32
V_HWS = 36
V_HA = 38
V_SEL1, V_SEL2, V_NSEL2 = 42, 46, 50
V_XA = 54
V_AUX = 3
V_TR2H = 59
V_NEG = 60
V_GT = 4
V_WD = 64
V_XF = 120
V_ACC = 152
V_SS = 168
V_QQ = 172
V_CS1 = 176
V_ONE = 180
V_F = 184
V_XB = 216
V_SA = 224
V_XO = 228
V_ZO1 = 229
V_G = 230
V_AB = V_XF
V_A = V_WD
V_D2 = V_WD + 8
V_ZP = V_WD + 24
A_PF = 128
A_S0 = 128
V_Z = 64
V_P, V_Q, V_PS, V_QS, V_E = 128, 176, 224, 232, 240
V_ACC1 = 128
V_A1 = 192
V_B1 = 224
V_CS = 64
V_HRES = 80
V_PK = 96
V_NM = 112
V_RR = 120
V_S2 = 42
V_Q2 = 46
V_ONE2 = 50
V_A2 = 192
V_ACC2 = 128
V_IN = 160

def stamp(b, i, force=False):
    if not cfg.diag: return
    if cfg.fine and not force and i != 0 and not getattr(b, "finezone", False): return
    if i == 0 and not getattr(b, "tsinit", False):
        b(f"v_mov_b32 v{V_TS}, 0"); b.tsinit = True
        if cfg.fine: return
    b("s_memtime s[14:15]" if cfg.cyc else "s_memrealtime s[14:15]")
    b("s_waitcnt lgkmcnt(0)")
    b(f"v_writelane_b32 v{V_TS}, s14, {i}")
def stamp_store(b):
    if not cfg.diag: return
    b("s_waitcnt vmcnt(0)")
    stamp(b, 31, True)
    b("s_lshl_b32 s6, s2, 9")
    b(f"s_lshl_b32 s7, s{S_W}, 7")
    b("s_add_u32 s6, s6, s7")
    b(f"s_add_u32 s6, s6, {WS_TS}")
    b(f"v_lshlrev_b32 v{T}, 2, v0")
    b("s_mov_b32 exec_hi, 0")
    b(f"buffer_store_dword v{V_TS}, v{T}, s[{R_WS}:{R_WS+3}], s6 offen")
    b("s_waitcnt vmcnt(0)")
    b("s_mov_b64 exec, -1")

def srd(b, r, p, nbytes):
    b(f"s_mov_b32 s{r}, s{p}")
    b(f"s_mov_b32 s{r+1}, s{p+1}")
    b(f"s_mov_b32 s{r+2}, {hex(nbytes)}")
    b(f"s_mov_b32 s{r+3}, 0x00020000")

def emit(b, f):
    f() if callable(f) else b(f)

def weave(b, mfmas, fillers, per=2):
    k = 0; n = len(mfmas)
    for i, m in enumerate(mfmas):
        b(m)
        want = ((i + 1) * len(fillers) + n - 1) // n
        cnt = 0
        while k < len(fillers) and k < want and cnt < per:
            emit(b, fillers[k]); k += 1; cnt += 1
    while k < len(fillers):
        emit(b, fillers[k]); k += 1

class Rec:
    def __init__(self): self.l = []
    def __call__(self, s, tag=None, track=True):
        assert tag is None
        self.l.append(s)
def record(fn, *args):
    r = Rec(); fn(r, *args)
    out = []; i = 0; l = r.l
    while i < len(l):
        if l[i].startswith("s_cmp"):
            j = i + 1
            while j < len(l) and l[j].startswith(("s_cselect", "s_mov")): j += 1
            out.append("\n".join(l[i:j])); i = j
        else:
            out.append(l[i]); i += 1
    return out

def spread(b, main, extra, every):
    k = 0
    for i, m in enumerate(main):
        emit(b, m)
        if (i + 1) % every == 0 and k < len(extra):
            emit(b, extra[k]); k += 1
    while k < len(extra):
        emit(b, extra[k]); k += 1

def sched(b, mfmas, first=(), vm=(), misc=(), vm_from=0, vm_to=None, misc_from=0, cap=2):
    n = len(mfmas)
    slots = [[] for _ in range(n)]
    first = list(first); vm = list(vm); misc = list(misc)
    if vm_to is None: vm_to = n
    vpos = []
    if vm:
        span = vm_to - vm_from
        for i, (pre, op) in enumerate(vm):
            g = vm_from + min(span - 1, (i * span) // len(vm) + (1 if pre else 0))
            if vpos and g <= vpos[-1]: g = min(n - 1, vpos[-1] + 1)
            vpos.append(g)
            gp = max(0, g - 1)
            if vpos[:-1] and gp < vpos[-2]: gp = vpos[-2]
            slots[gp] += [("vm", x) for x in pre]
            slots[g].append(("vm", op))
    g = 0
    for f in first:
        while g < n - 1 and len(slots[g]) >= cap: g += 1
        slots[g].append(("first", f))
        if len(slots[g]) >= (cap if len(first) > n else 1 + sum(1 for t, _ in slots[g] if t == "vm")): g = min(n - 1, g + 1)
    free = [max(0, cap - len(slots[g])) if g >= misc_from else 0 for g in range(n)]
    tot = sum(free)
    k = 0; acc = 0
    for g in range(n):
        if k >= len(misc): break
        acc += free[g]
        want = len(misc) if tot == 0 else min(len(misc), -(-acc * len(misc) // tot)) if tot < len(misc) else (acc * len(misc) + tot - 1) // tot
        take = 0
        while k < len(misc) and k < want and (take < free[g] or tot < len(misc)):
            slots[g].append(("misc", misc[k])); k += 1; take += 1
            if tot < len(misc) and take >= free[g] + 1: break
    rest = misc[k:]
    for g in range(n):
        b(mfmas[g])
        for t, x in sorted(slots[g], key=lambda e: {"first": 0, "misc": 1, "vm": 2}[e[0]]): emit(b, x)
    for x in rest: emit(b, x)

def groups(closures_with_hdr):
    return closures_with_hdr

def multi_spread(b, main, lists):
    n = len(main)
    at = [[] for _ in range(n + 1)]
    for lst in lists:
        for i, x in enumerate(lst):
            at[min(n, ((2*i + 1) * n) // (2*len(lst)))].append(x)
    for i in range(n):
        for x in at[i]: emit(b, x)
        emit(b, main[i])
    for x in at[n]: emit(b, x)

MF = "v_mfma_f32_16x16x32_bf16"
MH = "v_mfma_f32_16x16x32_f16"

def decode(b):
    b("s_and_b32 s6, s2, 7")
    b("s_lshr_b32 s7, s2, 3")
    b("s_mul_i32 s8, s7, 37")
    b("s_lshr_b32 s8, s8, 8")
    b("s_mul_i32 s9, s8, 7")
    b(f"s_sub_u32 s{S_J}, s7, s9")
    b("s_lshl_b32 s8, s8, 3")
    b(f"s_add_u32 s{S_IDX}, s6, s8")

def rot(b, dst, ls, shift):
    if ls == 0:
        b(f"s_lshl_b32 s{dst}, s{S_W}, {shift}")
    else:
        b(f"s_add_u32 s{dst}, s{S_W}, {ls}")
        b(f"s_and_b32 s{dst}, s{dst}, 3")
        b(f"s_lshl_b32 s{dst}, s{dst}, {shift}")

def p1_addr(b):
    t = T
    b(f"v_and_b32 v{V_C}, 15, v0")
    b(f"v_lshrrev_b32 v{V_GQ}, 4, v0")
    b(f"v_lshlrev_b32 v{V_L16}, 4, v0")
    b(f"v_lshrrev_b32 v{t}, 3, v0")
    b(f"v_and_b32 v{t+1}, 7, v0")
    b(f"v_xor_b32 v{t+1}, v{t+1}, v{t}")
    b(f"v_lshlrev_b32 v{t+1}, 4, v{t+1}")
    b(f"v_mul_u32_u24 v{V_XO}, 28672, v{t}")
    b(f"v_add_u32 v{V_XO}, v{V_XO}, v{t+1}")
    b(f"s_lshl_b32 s6, s{S_W}, 9")
    b(f"s_add_u32 s6, s6, s{S_IDX}")
    b("s_mul_i32 s12, s6, 896")
    b("s_add_u32 s13, s12, 229376")
    b(f"s_lshl_b32 s11, s{S_W}, 11")

def x_dma(b):
    for ksp in range(7):
        for o2 in range(2):
            b(f"s_add_u32 m0, s11, {XL + o2*1024 + 8064*ksp}")
            b(f"buffer_load_dwordx4 v{V_XO}, s[{R_X}:{R_X+3}], s{12+o2} offen offset:{128*ksp} {cfg.xflags} lds", tag=f"x{ksp}")

def p1_addr2(b):
    t = T
    b(f"v_and_b32 v{t}, 7, v{V_C}")
    b(f"v_lshrrev_b32 v{t+1}, 3, v{V_C}")
    b(f"v_lshlrev_b32 v{t+1}, 10, v{t+1}")
    b(f"v_lshl_add_u32 v{t+1}, v{t}, 7, v{t+1}")
    for par in range(2):
        b(f"v_add_u32 v{t+2}, {4*par}, v{V_GQ}") if par else b(f"v_mov_b32 v{t+2}, v{V_GQ}")
        b(f"v_xor_b32 v{t+2}, v{t+2}, v{t}")
        b(f"v_lshl_add_u32 v{t+3+par}, v{t+2}, 4, v{t+1}")
    b(f"v_lshlrev_b32 v{t+5}, 4, v{V_GQ}")
    for ls in range(4):
        rot(b, 6, ls, 11)
        b(f"v_add_u32 v{V_XB + 2*ls}, s6, v{t+3}")
        b(f"v_add_u32 v{V_XB + 2*ls + 1}, s6, v{t+4}")
        b("s_lshr_b32 s6, s6, 5")
        b(f"s_add_u32 s6, s6, {STAT}")
        b(f"v_add_u32 v{V_SA + ls}, s6, v{t+5}")
    b(f"v_mov_b32 v{V_ONE}, 0x3f803f80")
    for r in range(1, 4): b(f"v_mov_b32 v{V_ONE + r}, v{V_ONE}")
    b(f"v_lshrrev_b32 v{t}, 2, v{V_C}")
    b(f"v_cmp_eq_u32 s[{S_TMP}:{S_TMP+1}], v{t}, v{V_GQ}")
    b(f"v_and_b32 v{t}, 3, v{V_C}")
    for r in range(1, 4):
        b(f"v_cmp_eq_u32 s[{S_TMP+2*r}:{S_TMP+2*r+1}], {r}, v{t}")

def move_masks(b):
    for k in range(8): b(f"s_mov_b32 s{S_DIAG+k}, s{S_TMP+k}")

def z_base(b):
    b(f"s_lshr_b32 s6, s{S_W}, 1")
    b(f"s_lshl_b32 s7, s{S_J}, 1")
    b("s_add_u32 s8, s6, s7")
    b(f"s_and_b32 s9, s{S_W}, 1")
    b("s_lshl_b32 s6, s8, 12")
    b(f"s_lshl_b32 s7, s{S_IDX}, 7")
    b("s_add_u32 s6, s6, s7")
    b("s_lshl_b32 s7, s9, 6")
    b("s_add_u32 s10, s6, s7")
    b(f"v_mul_u32_u24 v{V_ZO1}, {Z_G}, v{V_C}")
    b(f"v_lshl_add_u32 v{V_ZO1}, v{V_GQ}, 4, v{V_ZO1}")

def wd_setup(b):
    t = T
    E, X, STEP, K2 = V_G, V_G+1, V_G+2, V_G+3
    b(f"s_lshr_b32 s6, s{S_W}, 1")
    b(f"s_lshl_b32 s7, s{S_J}, 1")
    b("s_add_u32 s8, s6, s7")
    b(f"s_and_b32 s9, s{S_W}, 1")
    b("s_lshl_b32 s6, s8, 4")
    b("s_lshl_b32 s7, s9, 3")
    b("s_add_u32 s6, s6, s7")
    b(f"v_lshrrev_b32 v{t}, 1, v{V_C}")
    b(f"v_add_u32 v{t}, s6, v{t}")
    b(f"v_and_b32 v{t+1}, 1, v{V_C}")
    b(f"v_lshl_or_b32 v{t+2}, v{t}, 1, v{t+1}")
    b(f"v_mov_b32 v{t+3}, 224")
    b(f"v_cmp_eq_u32 vcc, 1, v{t+2}")
    b(f"v_mov_b32 v{t+4}, 0")
    b(f"v_cndmask_b32 v{t}, v{t}, v{t+3}, vcc")
    b(f"v_cndmask_b32 v{t+1}, v{t+1}, v{t+4}, vcc")
    b(f"v_cvt_f32_u32 v{t+5}, v{t+1}")
    b(f"v_mul_f32 v{t+5}, 0x3e800000, v{t+5}")
    b(f"v_cvt_f32_u32 v{E}, v{t}")
    b(f"v_mul_f32 v{E}, 0x3b124925, v{E}")
    b(f"v_mul_u32_u24 v{t+1}, 4682, v{t}")
    b(f"v_lshrrev_b32 v{t+1}, 16, v{t+1}")
    b(f"v_mul_u32_u24 v{t+1}, 14, v{t+1}")
    b(f"v_sub_u32 v{t+1}, v{t}, v{t+1}")
    b(f"v_cvt_f32_u32 v{STEP}, v{t+1}")
    b(f"v_mul_f32 v{STEP}, {fbits(1.0/14)}, v{STEP}")
    b(f"v_mul_u32_u24 v{t+1}, v{V_GQ}, v{t}")
    b(f"v_mul_u32_u24 v{t+2}, 1171, v{t+1}")
    b(f"v_lshrrev_b32 v{t+2}, 16, v{t+2}")
    b(f"v_mul_u32_u24 v{t+2}, 56, v{t+2}")
    b(f"v_sub_u32 v{t+1}, v{t+1}, v{t+2}")
    b(f"v_cvt_f32_u32 v{X}, v{t+1}")
    b(f"v_mul_f32 v{X}, {fbits(1.0/56)}, v{X}")
    b(f"v_cos_f32 v{K2}, v{E}")
    b(f"v_add_f32 v{X}, v{X}, v{t+5}")
    b(f"v_add_f32 v{K2}, v{K2}, v{K2}")

def wd_gen(b):
    E, X, STEP, K2 = V_G, V_G+1, V_G+2, V_G+3
    C = [V_G + 4 + i for i in range(8)]
    X1 = V_G + 12
    for ks in range(14):
        b(f"v_cos_f32 v{C[0]}, v{X}")
        b(f"v_add_f32 v{X1}, v{X}, v{E}")
        b(f"v_cos_f32 v{C[1]}, v{X1}")
        if ks < 13:
            b(f"v_add_f32 v{X}, v{X}, v{STEP}")
            b(f"v_fract_f32 v{X}, v{X}")
        else:
            b("s_nop 0")
        if ks > 0:
            c = "0" if ks == 1 else v(V_CS1, 4)
            b(f"{MF} {v(V_CS1,4)}, {v(V_ONE,4)}, {v(V_WD + 4*(ks-1),4)}, {c}")
        for n in range(2, 8):
            b(f"v_fma_f32 v{C[n]}, v{K2}, v{C[n-1]}, -v{C[n-2]}")
            if n % 2 == 1:
                b(f"v_cvt_pk_bf16_f32 v{V_WD + 4*ks + (n-3)//2}, v{C[n-3]}, v{C[n-2]}")
        b(f"v_cvt_pk_bf16_f32 v{V_WD + 4*ks + 3}, v{C[6]}, v{C[7]}")
    b("s_nop 0")
    b(f"{MF} {v(V_CS1,4)}, {v(V_ONE,4)}, {v(V_WD + 4*13,4)}, {v(V_CS1,4)}")

def f_gen(b):
    t = T
    S1, G, X, CO, SI, PK, AD = V_G, V_G+4, V_G+5, V_G+8, V_G+12, V_G+16, V_G+20
    b(f"s_lshl_b32 s6, s{S_W}, 4")
    b(f"v_lshl_add_u32 v{t}, v{V_GQ}, 2, s6")
    b(f"v_cvt_f32_u32 v{t}, v{t}")
    b(f"v_mul_f32 v{S1}, 0x3c800000, v{t}")
    for q in range(1, 4): b(f"v_add_f32 v{S1+q}, 0x3c800000, v{S1+q-1}")
    b(f"s_lshl_b32 s6, s{S_W}, 9")
    b(f"s_add_u32 s6, s6, {FX}")
    b(f"v_lshl_add_u32 v{AD}, v0, 3, s6")
    b(f"v_cvt_f32_u32 v{G}, v{V_C}")
    b(f"v_mov_b32 v{t+1}, 0xbc003c00")
    b(f"v_cmp_eq_u32 vcc, 0, v{V_C}")
    for gh in range(2):
        if gh: b(f"v_add_f32 v{G}, 0x41800000, v{G}")
        for q in range(4):
            b(f"v_mul_f32 v{X+(q&1)}, v{G}, v{S1+q}")
            b(f"v_cos_f32 v{CO+q}, v{X+(q&1)}")
            b(f"v_sin_f32 v{SI+q}, -v{X+(q&1)}")
        b(f"v_cvt_pk_f16_f32 v{PK}, v{CO}, v{CO+1}")
        b(f"v_cvt_pk_f16_f32 v{PK+1}, v{CO+2}, v{CO+3}")
        b(f"v_cvt_pk_f16_f32 v{PK+2}, v{SI}, v{SI+1}")
        b(f"v_cvt_pk_f16_f32 v{PK+3}, v{SI+2}, v{SI+3}")
        if gh == 0:
            b(f"v_cndmask_b32 v{PK+2}, v{PK+2}, v{t+1}, vcc")
            b(f"v_cndmask_b32 v{PK+3}, v{PK+3}, v{t+1}, vcc")
        b(f"ds_write_b64 v{AD}, {v(PK,2)} offset:{(gh*2+0)*2048}")
        b(f"ds_write_b64 v{AD}, {v(PK+2,2)} offset:{(gh*2+1)*2048}")

def fm_addr(b):
    for ls in range(4):
        rot(b, 6, ls, 9)
        b(f"s_add_u32 s6, s6, {FX}")
        b(f"v_lshl_add_u32 v{V_G+ls}, v0, 3, s6")
    for lt in range(4):
        b(f"s_lshl_b32 s6, s{S_TT+lt}, 12")
        b(f"s_add_u32 s6, s6, {MX}")
        b(f"v_add_u32 v{V_G+4+lt}, s6, v{V_L16}")

def f_read(b):
    out = []
    for ls in range(4):
        for gh in range(2):
            for sg in range(2):
                reg = V_F + ((gh*2 + sg)*2 + (ls >> 1))*4 + 2*(ls & 1)
                out.append(lambda reg=reg, ls=ls, o=(gh*2+sg)*2048: b(f"ds_read_b64 {v(reg,2)}, v{V_G+ls} offset:{o}", tag="f"))
    return out

def mreg(lt, ks, pq): return ((lt*2 + ks)*2 + pq)*4

def t0_of_tt(b, dst, tt_sreg):
    b(f"s_sub_u32 s{dst}, 64, s{S_IDX}")
    b(f"s_cmp_eq_u32 s{S_IDX}, 0")
    b(f"s_cselect_b32 s{dst}, 32, s{dst}")
    b(f"s_cmp_lt_u32 s{tt_sreg}, 2")
    b(f"s_cselect_b32 s{dst}, s{S_IDX}, s{dst}")
    b(f"s_and_b32 s9, s{tt_sreg}, 1")
    b("s_lshl_b32 s9, s9, 10")
    b(f"s_add_u32 s{dst}, s{dst}, s9")

def m_gen(b):
    t = T
    X, DX, CO, SI, PK, P, Q, AD = V_G, V_G+1, V_G+2, V_G+3, V_G+4, V_G+8, V_G+12, V_G+16
    t0_of_tt(b, 8, S_W)
    b(f"s_mul_i32 s{S_XR}, s8, 896")
    b(f"v_lshl_add_u32 v{t}, v{V_C}, 6, s8")
    b(f"v_cvt_f32_u32 v{DX}, v{t}")
    b(f"v_mul_f32 v{DX}, 0x3a000000, v{DX}")
    selP = [0x03020100, 0x03020100, 0x0c0c0100, 0x01000c0c]
    selQ = [0x01000302, 0x01000302, 0x0c0c0302, 0x03020c0c]
    sgnQ = [0x80000000, 0x00008000, 0, 0]
    neg = [0, 0x80000000, 0, 0]
    def pick(dst, tbl):
        b(f"s_cmp_lt_u32 s{S_W}, 2")
        b(f"s_cselect_b32 s9, {hex(tbl[0])}, 0") if False else None
        b(f"s_mov_b32 s9, {hex(tbl[0])}"); b(f"s_mov_b32 s12, {hex(tbl[1])}")
        b("s_cselect_b32 s9, s9, s12")
        b(f"s_mov_b32 s13, {hex(tbl[2])}"); b(f"s_mov_b32 s12, {hex(tbl[3])}")
        b("s_cselect_b32 s13, s13, s12")
        b(f"s_cmp_eq_u32 s{S_IDX}, 0")
        b(f"s_cselect_b32 s{dst}, s13, s9")
    pick(S_TMP, selP); pick(S_TMP+1, selQ); pick(S_TMP+2, sgnQ); pick(S_TMP+3, neg)
    b(f"v_xor_b32 v{DX}, s{S_TMP+3}, v{DX}")
    b(f"s_lshl_b32 s6, s{S_W}, 12")
    b(f"s_add_u32 s6, s6, {MX}")
    b(f"v_add_u32 v{AD}, s6, v{V_L16}")
    b(f"v_lshlrev_b32 v{t}, 2, v{V_GQ}")
    b(f"v_cvt_f32_u32 v{t}, v{t}")
    for ks in range(2):
        if ks: b(f"v_add_f32 v{t}, 0x41800000, v{t}")
        b(f"v_mul_f32 v{X}, v{t}, v{DX}")
        for j in range(4):
            b(f"v_cos_f32 v{CO}, v{X}")
            b(f"v_sin_f32 v{SI}, v{X}")
            b(f"v_add_f32 v{X}, v{X}, v{DX}")
            b(f"v_cvt_pk_f16_f32 v{PK}, v{CO}, v{SI}")
            b(f"v_perm_b32 v{P+j}, v{PK}, v{PK}, s{S_TMP}")
            b(f"v_perm_b32 v{Q+j}, v{PK}, v{PK}, s{S_TMP+1}")
            b(f"v_xor_b32 v{Q+j}, s{S_TMP+2}, v{Q+j}")
        b(f"ds_write_b128 v{AD}, {v(P,4)} offset:{(ks*2+0)*1024}")
        b(f"ds_write_b128 v{AD}, {v(Q,4)} offset:{(ks*2+1)*1024}")

def m_read(b):
    out = []
    for lt in range(4):
        for ks in range(2):
            for pq in range(2):
                out.append(lambda lt=lt, ks=ks, pq=pq: b(f"ds_read_b128 {a(mreg(lt,ks,pq),4)}, v{V_G+4+lt} offset:{(ks*2+pq)*1024}", tag="m"))
    return out

def prefill_start(b):
    for r in range(4): b(f"v_mov_b32 v{V_NEG+r}, -1")
    b(f"s_add_u32 s7, s10, {16*Z_G}")
    b(f"buffer_store_dwordx4 {v(V_NEG,4)}, v{V_ZO1}, s[{R_WS}:{R_WS+3}], s10 offen sc1", tag="pre")
    b(f"buffer_store_dwordx4 {v(V_NEG,4)}, v{V_ZO1}, s[{R_WS}:{R_WS+3}], s7 offen sc1", tag="pre")
    own_line(b, 6)
    b(f"v_mov_b32 v{T}, 0")
    b("s_mov_b64 exec, 1")
    b(f"buffer_store_dword v{T}, v{T}, s[{R_WS}:{R_WS+3}], s6 offen sc1", tag="pre")
    b("s_mov_b64 exec, -1")

def arrive0(b):
    lab = b.newlabel("L_arr")
    b.notrack = True
    b(f"s_cmp_eq_u32 s{S_W}, 0")
    b(f"s_cbranch_scc0 {lab}")
    b("s_and_b32 s6, s2, 3")
    b("s_lshl_b32 s6, s6, 6")
    b(f"v_mov_b32 v{T}, 1")
    b(f"v_mov_b32 v{T+1}, 0")
    b("s_mov_b64 exec, 1")
    b(f"buffer_atomic_add v{T}, v{T+1}, s[{R_DBG}:{R_DBG+3}], s6 offen sc1")
    b("s_mov_b64 exec, -1")
    b.label(lab)
    b.notrack = False

V_B0 = 229 + 25
def b0_load(b, reg):
    b(f"v_and_b32 v{reg}, 3, v0")
    b(f"v_lshlrev_b32 v{reg}, 6, v{reg}")
    b(f"buffer_load_dword v{reg}, v{reg}, s[{R_DBG}:{R_DBG+3}], 0 offen sc1", tag="b0")

def b0_check(b, reg):
    b.wait_vm("b0")
    l2 = b.newlabel("L_b0"); l3 = b.newlabel("L_b0d")
    b("s_mov_b32 s12, 0")
    b.label(l2)
    b.notrack = True
    b(f"v_cmp_gt_u32 vcc, 63, v{reg}")
    b("s_cmp_eq_u64 vcc, 0")
    b(f"s_cbranch_scc1 {l3}")
    b("s_add_u32 s12, s12, 1")
    b("s_cmp_ge_u32 s12, 0x10000")
    b(f"s_cbranch_scc1 {l3}")
    b(f"v_and_b32 v{reg}, 3, v0")
    b(f"v_lshlrev_b32 v{reg}, 6, v{reg}")
    b(f"buffer_load_dword v{reg}, v{reg}, s[{R_DBG}:{R_DBG+3}], 0 offen sc1")
    b("s_waitcnt vmcnt(0)")
    b(f"s_branch {l2}")
    b.label(l3)
    b.notrack = False

def guarded(b, regs, reload, name):
    t0 = V_GT
    n = len(regs)
    def tree():
        b(f"v_max3_u32 v{t0}, v{regs[0]}, v{regs[1]}, v{regs[2]}")
        i = 3
        while i + 1 < n:
            b(f"v_max3_u32 v{t0}, v{t0}, v{regs[i]}, v{regs[i+1]}"); i += 2
        if i < n: b(f"v_max_u32 v{t0}, v{t0}, v{regs[i]}")
        b(f"v_cmp_eq_u32 vcc, -1, v{t0}")
        b("s_cmp_eq_u64 vcc, 0")
    slow = b.newlabel("L_slow"); back = b.newlabel("L_back")
    if cfg.x_noguard: return
    tree()
    b(f"s_cbranch_scc0 {slow}")
    b.label(back)
    b.slow.append((slow, back, reload, tree))

def emit_slow(b):
    for (slow, back, reload, tree) in b.slow:
        loop = b.newlabel("L_sl")
        b.label(slow)
        b.notrack = True
        b("s_mov_b32 s12, 0")
        b.label(loop)
        reload()
        b("s_waitcnt vmcnt(0)")
        tree()
        b(f"s_cbranch_scc1 {back}")
        b("s_add_u32 s12, s12, 1")
        b("s_cmp_lt_u32 s12, 0x4000")
        b(f"s_cbranch_scc1 {loop}")
        b(f"s_branch {back}")
        b.notrack = False

def w_prefetch(b):
    b("s_mul_i32 s6, s2, 7168")
    b(f"s_lshl_b32 s7, s{S_W}, 10")
    b("s_add_u32 s6, s6, s7")
    b("s_add_u32 s7, s6, 4096")
    for n in range(2):
        b(f"buffer_load_dwordx4 {a(A_PF + 8*n, 4)}, v{V_L16}, s[{R_W1}:{R_W1+3}], s{6+n} offen", tag="pf")
        b(f"buffer_load_dwordx4 {a(A_PF + 8*n + 4, 4)}, v{V_L16}, s[{R_W2}:{R_W2+3}], s{6+n} offen", tag="pf")

def own_line(b, dst):
    b(f"s_mul_i32 s{dst}, s{S_IDX}, 7")
    b(f"s_add_u32 s{dst}, s{dst}, s{S_J}")
    b(f"s_lshl_b32 s{dst}, s{dst}, 2")
    b(f"s_add_u32 s{dst}, s{dst}, s{S_W}")
    b(f"s_lshl_b32 s{dst}, s{dst}, 7")
    b(f"s_add_u32 s{dst}, s{dst}, {WS_FL}")

def p2_scalars(b):
    b(f"s_and_b32 s6, s{S_W}, 1")
    b("s_lshl_b32 s7, s6, 1")
    for lt in range(4): b(f"s_xor_b32 s{S_TT+lt}, s7, {lt}")
    b(f"s_lshr_b32 s7, s{S_W}, 1")
    b("s_mul_i32 s7, s7, 7")
    b("s_lshl_b32 s9, s6, 2")
    b("s_add_u32 s9, s9, s7")
    b(f"s_mov_b32 s{S_PI}, s9")
    for p in range(1, 3): b(f"s_add_u32 s{S_PI+p}, s9, {p}")
    b(f"s_add_u32 s{S_PI+3}, s7, 3")
    b(f"s_mul_i32 s7, s{S_IDX}, {Z_G}")
    for p in range(4):
        b(f"s_lshl_b32 s8, s{S_PI+p}, 12")
        b(f"s_add_u32 s{S_ZL+p}, s7, s8")
        b(f"s_lshl_b32 s{S_P32+p}, s{S_PI+p}, 5")
    b(f"s_cmp_eq_u32 s{S_W}, 0")
    b(f"s_cselect_b32 s{S_MASK}, 0xffff, 0")
    b(f"s_mov_b32 s{S_MASK+1}, 0")
    b(f"s_mul_i32 s{S_RW}, s{S_W}, 24576")
    b(f"s_add_u32 s{S_RW}, s{S_RW}, {RING}")
    b(f"s_lshl_b32 s7, s{S_J}, 9")
    b(f"s_lshl_b32 s9, s{S_W}, 7")
    b(f"s_add_u32 s{S_W1B}, s7, s9")
    b(f"s_mov_b32 s{S_Z0}, s10")
    b(f"s_add_u32 s{S_Z1}, s10, {16*Z_G}")

def inbox_scalars(b):
    b(f"s_mul_i32 s11, s{S_IDX}, {PB_G}")
    b(f"s_lshl_b32 s7, s{S_W}, 11")
    b("s_add_u32 s11, s11, s7")
    b(f"s_add_u32 s11, s11, {WS_PB}")
    b(f"s_lshl_b32 s13, s{S_J}, 13")
    b("s_add_u32 s13, s13, s11")
    for p in range(6):
        b(f"s_add_u32 s6, s{S_J}, {p+1}")
        b("s_sub_u32 s7, s6, 7")
        b("s_min_u32 s6, s6, s7")
        b(f"s_mul_i32 s7, s6, {7*8192}")
        b(f"s_add_u32 s{S_IN+p}, s13, s7")

def p2_scalars_late(b):
    b(f"s_lshl_b32 s{S_HWB}, s{S_W}, 13")
    b(f"s_lshl_b32 s6, s{S_J}, 8")
    b(f"s_lshl_b32 s7, s{S_W}, 6")
    b("s_add_u32 s6, s6, s7")
    b("s_mul_i32 s10, s6, 896")
    b(f"s_mul_i32 s11, s{S_IDX}, {PB_G}")
    b(f"s_lshl_b32 s7, s{S_W}, 11")
    b("s_add_u32 s11, s11, s7")
    b(f"s_add_u32 s11, s11, {WS_PB}")
    b(f"s_mul_i32 s12, s{S_J}, {7*8192}")
    b("s_add_u32 s12, s12, s11")
    for p in range(7):
        b(f"s_add_u32 s6, s{S_J}, {p+1}")
        b("s_sub_u32 s7, s6, 7")
        b("s_min_u32 s6, s6, s7")
        b("s_lshl_b32 s7, s6, 7")
        b(f"s_add_u32 s{S_W2+p}, s10, s7")
        if p < 6:
            b("s_lshl_b32 s7, s6, 13")
            b(f"s_add_u32 s{S_PB+p}, s12, s7")
    b(f"s_lshl_b32 s10, s{S_J}, 7")
    b(f"s_lshl_b32 s7, s{S_W}, 5")
    b("s_add_u32 s10, s10, s7")
    b(f"s_sub_u32 s8, 64, s{S_IDX}")
    b(f"s_cmp_eq_u32 s{S_IDX}, 0")
    b("s_cselect_b32 s8, 32, s8")
    for tt in range(4):
        src = f"s{S_IDX}" if tt < 2 else "s8"
        b(f"s_add_u32 s6, {src}, {1024*(tt&1)}")
        b("s_mul_i32 s6, s6, 896")
        b(f"s_add_u32 s{S_O+tt}, s6, s10")

def dma_addr(b):
    t = T
    b(f"v_lshrrev_b32 v{t}, 3, v0")
    b(f"v_bfe_u32 v{t+1}, v{t}, 1, 2")
    b(f"v_lshlrev_b32 v{t+1}, 1, v{t+1}")
    b(f"v_and_b32 v{t+2}, 7, v0")
    b(f"v_xor_b32 v{t+2}, v{t+2}, v{t+1}")
    b(f"v_lshlrev_b32 v{t+2}, 4, v{t+2}")
    b(f"v_mul_u32_u24 v{t+1}, 3584, v{t}")
    b(f"v_add_u32 v{V_W1O}, v{t+1}, v{t+2}")
    b(f"v_add_u32 v{V_W1O+1}, {8*3584 - 1024}, v{V_W1O}")
    b(f"v_sub_u32 v{t+3}, v{t+2}, v{t+1}")
    b(f"v_add_u32 v{V_W1O+2}, {15*3584 - 2048 + 4096}, v{t+3}")
    b(f"v_add_u32 v{V_W1O+3}, {7*3584 - 3072 + 4096}, v{t+3}")
    b(f"v_sub_u32 v{t+3}, 448, v{t}")
    b(f"v_mov_b32 v{t+4}, 224")
    b(f"v_cmp_eq_u32 vcc, 0, v{t}")
    b(f"v_mul_u32_u24 v{t+1}, 896, v{t}")
    b(f"v_cndmask_b32 v{t+3}, v{t+3}, v{t+4}, vcc")
    b(f"v_mul_u32_u24 v{t+3}, 3584, v{t+3}")
    b(f"v_add_u32 v{t+3}, v{t+3}, v{t+2}")
    b(f"v_subrev_u32 v{V_AUX}, 2048, v{t+3}")
    b(f"v_add_u32 v{V_W2O}, v{t+1}, v{t+2}")
    for n in range(1, 4):
        b(f"v_add_u32 v{V_W2O+n}, {n*(8*896 - 1024)}, v{V_W2O}")
    b(f"v_mul_u32_u24 v{t}, {XRS}, v{V_C}")
    b(f"v_lshl_add_u32 v{t}, v{V_GQ}, 4, v{t}")
    for lt in range(4):
        b(f"s_mul_i32 s6, s{S_TT+lt}, {16*XRS}")
        b(f"v_add_u32 v{V_XA+lt}, s6, v{t}")
    b(f"v_lshlrev_b32 v{t}, 3, v{V_GQ}")
    b(f"v_sub_u32 v{t+1}, v{V_C}, v{t}")
    b(f"v_sub_u32 v{t+2}, 16, v{V_C}")
    b(f"v_sub_u32 v{t+2}, v{t+2}, v{t}")
    b(f"v_mov_b32 v{t+3}, 0x3f80")
    b(f"v_mov_b32 v{t+4}, 0x3f800000")
    b(f"v_mov_b32 v{t+5}, 0")
    for (dst, src) in ((V_SEL1, t+1), (V_SEL2, t+2)):
        for m in range(4):
            b(f"v_cmp_eq_u32 vcc, {2*m}, v{src}")
            b(f"v_cmp_eq_u32 s[6:7], {2*m+1}, v{src}")
            b(f"v_cndmask_b32 v{dst+m}, v{t+5}, v{t+3}, vcc")
            b(f"v_cndmask_b32 v{dst+m}, v{dst+m}, v{t+4}, s[6:7]")
    for m in range(4):
        b(f"v_xor_b32 v{V_NSEL2+m}, 0x80008000, v{V_SEL2+m}")


def p2_addr(b):
    t = T
    for p in range(4): b(f"s_sub_u32 s{S_N32+p}, 864, s{S_P32+p}")
    b(f"v_lshlrev_b32 v{t}, 3, v{V_C}")
    b(f"v_lshl_add_u32 v{V_ZO}, v{V_GQ}, 9, v{t}")
    b(f"s_lshl_b32 s7, s{S_PI}, 12")
    b(f"s_lshl_b32 s8, s{S_PI+3}, 12")
    for lt in range(4):
        b(f"s_lshl_b32 s6, s{S_TT+lt}, 10")
        b("s_add_u32 s9, s6, s7")
        b(f"v_add_u32 v{V_HW+lt}, s9, v{V_L16}")
        if lt < 2:
            b("s_add_u32 s9, s6, s8")
            b(f"v_add_u32 v{V_HWS+lt}, s9, v{V_L16}")
        rot(b, 6, lt, 10)
        b(f"v_add_u32 v{V_HB+lt}, s6, v{V_L16}")
    b(f"v_lshrrev_b32 v{t}, 2, v{V_C}")
    b(f"v_lshl_add_u32 v{t}, v{V_GQ}, 2, v{t}")
    b(f"v_bfe_u32 v{t+1}, v{t}, 1, 2")
    b(f"v_and_b32 v{t+2}, 3, v0")
    b(f"v_lshlrev_b32 v{t+2}, 3, v{t+2}")
    b(f"v_lshl_add_u32 v{t+2}, v{t}, 7, v{t+2}")
    b(f"v_add_u32 v{t+4}, s{S_RW}, v{t+2}")
    for u in range(4):
        b(f"v_xor_b32 v{t+3}, {u}, v{t+1}")
        b(f"v_lshl_add_u32 v{V_TR1+u}, v{t+3}, 5, v{t+4}")
    b(f"v_xor_b32 v{t+3}, s{S_W}, v{t+1}")
    b(f"v_lshl_add_u32 v{t+3}, v{t+3}, 5, v{t+2}")
    b(f"v_add_u32 v{V_TR2}, {RING}, v{t+3}")
    b(f"v_add_u32 v{V_TR2+1}, {RING+49152}, v{t+3}")
    b(f"v_mov_b32 v{V_TR2H}, v{t+3}")

def hres_addr(b):
    t = T
    b(f"s_lshl_b32 s6, s{S_J}, 6")
    b(f"s_lshl_b32 s7, s{S_W}, 4")
    b("s_add_u32 s6, s6, s7")
    b(f"v_lshl_add_u32 v{t+4}, v{V_GQ}, 2, s6")
    b("s_lshl_b32 s6, s6, 8")
    b(f"v_add_u32 v{t+5}, s6, v{V_L16}")
    for r in range(4):
        A = V_HA + r
        b(f"v_add_u32 v{t}, {r}, v{t+4}") if r else b(f"v_mov_b32 v{t}, v{t+4}")
        b(f"v_sub_u32 v{t+2}, 448, v{t}")
        b(f"v_mov_b32 v{t+3}, 0")
        b(f"v_cmp_eq_u32 vcc, 224, v{t}")
        b(f"v_add_u32 v{t+1}, {2*r}, v{t+5}")
        b(f"v_cndmask_b32 v{t+2}, v{t+2}, v{t+3}, vcc")
        b(f"v_lshrrev_b32 v{t+3}, 4, v{t+2}")
        b(f"v_lshlrev_b32 v{A}, 12, v{t+3}")
        b(f"v_bfe_u32 v{t+3}, v{t+2}, 2, 2")
        b(f"v_lshl_add_u32 v{t+3}, v{t+3}, 4, v{V_C}")
        b(f"v_lshl_add_u32 v{A}, v{t+3}, 4, v{A}")
        b(f"v_and_b32 v{t+3}, 3, v{t+2}")
        b(f"v_lshl_add_u32 v{A}, v{t+3}, 1, v{A}")
        b(f"v_cmp_gt_u32 vcc, 224, v{t}")
        b(f"v_add_u32 v{A}, 8, v{A}")
        b(f"v_cndmask_b32 v{A}, v{A}, v{t+1}, vcc")

def p1_loop(b):
    stages = cfg.stages
    XBUF = [V_XF, V_XF + 16, V_G + 8]
    def xread(ks):
        ksp, par = ks >> 1, ks & 1
        return [(lambda ls=ls: b(f"ds_read_b128 {v(XBUF[ks % 3] + 4*ls, 4)}, v{V_XB + 2*ls + par} offset:{XL + ksp*8192}", tag=f"xf{ks}")) for ls in range(4)]
    pbp = pb_prefill(b) if (cfg.pre_at == "loop" and not cfg.x_nopre) else []
    rg = []
    for k in range(cfg.ring_early): rg += w1_groups(b, k)
    for si, stg in enumerate(stages):
        b.wait_vm([f"x{stg[-1]}", "pre"])
        if si == 0 or (si == len(stages) - 1 and cfg.ring_early): b("s_waitcnt lgkmcnt(0)")
        b("s_barrier")
        if si == 0: arrive0(b)
        stamp(b, 3 + si)
        kss = [k for p in stg for k in (2*p, 2*p+1)]
        for f in xread(kss[0]) + xread(kss[1]): f()
        if si == 0:
            fm = f_read(b) + ([] if cfg.m_late else m_read(b))
        for n, ks in enumerate(kss):
            nxt = kss[n+2] if n + 2 < len(kss) else None
            b.wait_lg(f"xf{ks}")
            xf = XBUF[ks % 3]
            wd = v(V_WD + 4*ks, 4)
            z = ks == 0
            mf = [f"{MF} {v(V_QQ,4)}, {v(xf,4)}, {v(xf,4)}, {'0' if z else v(V_QQ,4)}",
                  f"{MF} {v(V_SS,4)}, {v(V_ONE,4)}, {v(xf,4)}, {'0' if z else v(V_SS,4)}"]
            for ls in range(4):
                mf.append(f"{MF} {v(V_ACC + 4*ls, 4)}, {v(xf + 4*ls, 4)}, {wd}, {'0' if z else v(V_ACC + 4*ls, 4)}")
            fill = xread(nxt) if nxt is not None else []
            nf = 2 if cfg.m_late else 6
            fill = fill + fm[:nf]; fm = fm[nf:]
            if ks >= 2 and pbp: fill.append(pbp.pop(0))
            if ks >= 8 and rg:
                n = (len(rg) + 13 - ks) // (14 - ks)
                sched(b, mf, first=fill, vm=rg[:n], cap=3); rg = rg[n:]
            else:
                weave(b, mf, fill, per=2)

def stats_core(b, SS, QQ, scale4):
    b(f"v_cndmask_b32 v{QQ}, v{QQ}, v{QQ+1}, s[{S_M1}:{S_M1+1}]")
    b(f"v_mul_f32 v{SS}, 0x3b124925, v{SS}")
    b(f"v_cndmask_b32 v{QQ}, v{QQ}, v{QQ+2}, s[{S_M1+2}:{S_M1+3}]")
    b(f"v_cndmask_b32 v{QQ}, v{QQ}, v{QQ+3}, s[{S_M1+4}:{S_M1+5}]")
    b(f"v_mul_f32 v{QQ}, 0x3b124925, v{QQ}")
    b(f"v_fma_f32 v{QQ}, -v{SS}, v{SS}, v{QQ}")
    b(f"v_max_f32 v{QQ}, 0, v{QQ}")
    if scale4:
        b(f"v_mul_f32 v{QQ}, 0x3e800000, v{QQ}")
    b(f"v_add_f32 v{QQ}, 0x3727c5ac, v{QQ}")
    b(f"v_rsq_f32 v{QQ}, v{QQ}")

def p1_tail(b, xl=None):
    t = T
    xl = xl if xl is not None else []
    def X():
        if xl: xl.pop(0)()
    stamp(b, 6)
    stats_core(b, V_SS, V_QQ, False)
    b(f"s_lshl_b32 s6, s{S_W}, 6")
    b(f"s_add_u32 s6, s6, {STAT}")
    b(f"v_lshl_add_u32 v{t}, v{V_C}, 2, s6")
    b(f"v_mul_f32 v{V_SS}, v{V_QQ}, v{V_SS}")
    b(f"v_add_f32 v{V_QQ}, v{V_QQ}, v{V_QQ}")
    b(f"v_mul_f32 v{V_SS}, -2.0, v{V_SS}")
    b(f"s_mov_b64 exec, s[{S_DIAG}:{S_DIAG+1}]")
    b(f"ds_write_b32 v{t}, v{V_QQ}")
    b(f"ds_write_b32 v{t}, v{V_SS} offset:256")
    b("s_mov_b64 exec, -1")
    b("s_waitcnt lgkmcnt(0)")
    b("s_barrier")
    for ls in range(4):
        b(f"ds_read_b128 {v(V_AB + 8*ls, 4)}, v{V_SA + ls}", tag=f"ab{ls}")
        b(f"ds_read_b128 {v(V_AB + 8*ls + 4, 4)}, v{V_SA + ls} offset:256", tag=f"ab{ls}")
    if xl:
        b(f"s_mul_i32 s96, s{S_W}, {16*XRS}")
    X()
    for ls in range(4):
        b.wait_lg(f"ab{ls}")
        al, be, ac = V_AB + 8*ls, V_AB + 8*ls + 4, V_ACC + 4*ls
        for h in range(2):
            b(f"v_pk_mul_f32 {v(be+2*h,2)}, {v(be+2*h,2)}, {v(V_CS1,2)} op_sel_hi:[1,0]")
        for h in range(2):
            b(f"v_pk_fma_f32 {v(ac+2*h,2)}, {v(al+2*h,2)}, {v(ac+2*h,2)}, {v(be+2*h,2)}")
        for h in range(2):
            b(f"v_cvt_pk_f16_f32 v{V_A + 2*ls + h}, v{ac+2*h}, v{ac+2*h+1}")
        if ls in (1, 3): X()
    stamp(b, 7)
    for gh in range(2):
        for sg in range(2):
            d = V_D2 + (gh*2 + sg)*4
            b(f"{MH} {v(d,4)}, {v(V_A,4)}, {v(V_F + ((gh*2+sg)*2)*4,4)}, 0")
    for gh in range(2):
        for sg in range(2):
            d = V_D2 + (gh*2 + sg)*4
            b(f"{MH} {v(d,4)}, {v(V_A+4,4)}, {v(V_F + ((gh*2+sg)*2+1)*4,4)}, {v(d,4)}")
    X()
    for gh in range(2):
        for r in range(4):
            b(f"v_cvt_pk_f16_f32 v{V_ZP + 4*gh + r}, v{V_D2 + (gh*2)*4 + r}, v{V_D2 + (gh*2+1)*4 + r}")
        b(f"buffer_store_dwordx4 {v(V_ZP + 4*gh, 4)}, v{V_ZO1}, s[{R_WS}:{R_WS+3}], s{S_Z0+gh} offen sc1", tag="zst")

def xres_pad(b):
    b(f"s_mul_i32 s96, s{S_W}, {16*XRS}")
    b(f"v_lshrrev_b32 v{T}, 1, v0")
    b(f"v_mul_u32_u24 v{T}, {XRS}, v{T}")
    b(f"v_and_b32 v{T+1}, 1, v0")
    b(f"v_lshl_add_u32 v{T}, v{T+1}, 4, v{T}")
    b(f"v_add_u32 v{T}, s96, v{T}")
    for r in range(4): b(f"v_mov_b32 v{T+4+r}, 0")
    b("s_mov_b32 exec_hi, 0")
    b(f"ds_write_b128 v{T}, {v(T+4,4)} offset:{XL+896}")
    b("s_mov_b32 exec_hi, -1")

def xres_list(b):
    out = []
    for c in range(16):
        def f(c=c):
            b(f"s_add_u32 m0, s96, {XL + c*XRS}")
            b(f"s_add_u32 s95, s{S_XR}, {c*57344}")
            b("s_mov_b32 exec_hi, 0x00ffffff")
            b(f"buffer_load_dwordx4 v{V_L16}, s[{R_X}:{R_X+3}], s95 offen lds", tag="xres")
            b("s_mov_b32 exec_hi, -1")
        out.append(f)
    return out

def w1_groups(b, k):
    slot = k % 6
    out = []
    for n in range(4):
        pre = []
        if n == 0:
            pre = [f"s_add_u32 m0, s{S_RW}, {slot*4096}", (f"s_add_u32 s95, s{S_W1B}, {16*k*3584}" if k else f"s_mov_b32 s95, s{S_W1B}")]
        if n == 2 and not k == 0: pre = [f"s_add_u32 s96, s{S_W1B}, {(433 - 16*k)*3584 - 4096}"]
        if n == 3 and k == 0: pre = [f"s_add_u32 s96, s{S_W1B}, {(433 - 16*k)*3584 - 4096}"]
        def f(n=n):
            if n < 2: vo, so = V_W1O + n, "s95"
            elif k == 0 and n == 2: vo, so = V_AUX, f"s{S_W1B}"
            else: vo, so = V_W1O + n, "s96"
            off = f" offset:{1024*n}" if n else ""
            b(f"buffer_load_dwordx4 v{vo}, s[{R_W1}:{R_W1+3}], {so} offen{off} lds", tag=f"w1_{k}")
        out.append((pre, f))
    return out

def flat(gs):
    out = []
    for pre, op in gs: out += list(pre) + [op]
    return out
def w1_dma(b, k): return flat(w1_groups(b, k))

def units():
    return [(p, lt) for lt in range(4) for p in range(4) if not (p == 3 and lt >= 2)]
def preg(p, lt): return V_P + (p*4 + lt)*4 if p < 3 else V_PS + lt*4
def qreg(p, lt): return V_Q + (p*4 + lt)*4 if p < 3 else V_QS + lt*4

A_W = 64
def x_init(b, extra=()):
    us = units()
    AD = T
    def rd(i):
        p, lt = us[i]; w = A_W + 8*(i & 3)
        return [f"v_add_u32 v{AD + 2*(i&1)}, s{S_P32+p}, v{V_XA+lt}",
                f"v_add_u32 v{AD + 2*(i&1) + 1}, s{S_N32+p}, v{V_XA+lt}",
                lambda: b(f"ds_read_b128 {a(w,4)}, v{AD + 2*(i&1)} offset:{XL}", tag=f"xw{i}"),
                lambda: b(f"ds_read_b128 {a(w+4,4)}, v{AD + 2*(i&1) + 1} offset:{XL}", tag=f"xw{i}")]
    for lt in range(4):
        b(f"ds_read_b32 v{V_E + 4*lt}, v{V_XA+lt} offset:{XL+448}", tag="xe")
    for i in range(3):
        for f in rd(i): emit(b, f)
    extra = list(extra)
    for i, (p, lt) in enumerate(us):
        b.wait_lg(f"xw{i}")
        w = A_W + 8*(i & 3); P, Q = preg(p, lt), qreg(p, lt)
        mf = [f"{MF} {v(P,4)}, {v(V_SEL1,4)}, {a(w,4)}, 0",
              f"{MF} {v(Q,4)}, {v(V_SEL1,4)}, {a(w,4)}, 0",
              f"{MF} {v(P,4)}, {v(V_SEL2,4)}, {a(w+4,4)}, {v(P,4)}",
              f"{MF} {v(Q,4)}, {v(V_NSEL2,4)}, {a(w+4,4)}, {v(Q,4)}"]
        fill = rd(i+3) if i + 3 < len(us) else []
        ne = (len(extra) + len(us) - i - 1) // (len(us) - i)
        fill = extra[:ne] + fill; extra = extra[ne:]
        weave(b, mf, fill, per=2)
    b("s_nop 7")
    b(f"v_mov_b32 v{T+1}, 0")
    for lt in range(4):
        P, Q, E = preg(0, lt), qreg(0, lt), V_E + 4*lt
        b(f"v_add_f32 v{T}, v{P}, v{P}")
        b(f"v_cndmask_b32 v{Q}, v{Q}, v{T+1}, s[{S_MASK}:{S_MASK+1}]")
        b(f"v_cndmask_b32 v{P}, v{P}, v{T}, s[{S_MASK}:{S_MASK+1}]")
        b(f"v_lshlrev_b32 v{E}, 16, v{E}")
        b(f"v_add_f32 v{E}, v{E}, v{E}")

def z_load(b, p):
    for ks in range(2):
        for j in range(4):
            reg = V_Z + (p*2 + ks)*8 + 2*j
            b(f"buffer_load_dwordx2 {v(reg,2)}, v{V_ZO}, s[{R_WS}:{R_WS+3}], s{S_ZL+p} offen offset:{ks*2048 + j*128} sc1", tag=f"z{p}_{ks}")
def z_list(b):
    out = []
    if cfg.x_z4:
        b(f"v_and_b32 v{T+6}, 7, v{V_C}")
        b(f"v_lshlrev_b32 v{T+6}, 4, v{T+6}")
        b(f"v_lshrrev_b32 v{T+7}, 3, v{V_C}")
        b(f"v_lshl_add_u32 v{T+6}, v{T+7}, 7, v{T+6}")
        b(f"v_lshl_add_u32 v{T+6}, v{V_GQ}, 9, v{T+6}")
        for p in range(4):
            for ks in range(2):
                for j in range(2):
                    reg = V_Z + (p*2 + ks)*8 + 4*j
                    out.append(lambda p=p, ks=ks, j=j, reg=reg: b(f"buffer_load_dwordx4 {v(reg,4)}, v{T+6}, s[{R_WS}:{R_WS+3}], s{S_ZL+p} offen offset:{ks*2048 + j*256} sc1", tag=f"z{p}_{ks}"))
        return out
    for p in range(4):
        for ks in range(2):
            for j in range(4):
                reg = V_Z + (p*2 + ks)*8 + 2*j
                out.append(lambda p=p, ks=ks, j=j, reg=reg: b(f"buffer_load_dwordx2 {v(reg,2)}, v{V_ZO}, s[{R_WS}:{R_WS+3}], s{S_ZL+p} offen offset:{ks*2048 + j*128} sc1", tag=f"z{p}_{ks}"))
    return out

def pb_prefill(b):
    out = []
    for q in range(6):
        for h in range(2):
            out.append(lambda q=q, h=h: b(f"buffer_store_dwordx4 {v(V_NEG,4)}, v{V_L16}, s[{R_WS}:{R_WS+3}], s{S_IN+q} offen offset:{1024*h} sc1", tag="pbpre"))
    return out

def step_b(b, ring=()):
    def swaps(p, ks):
        z = V_Z + (p*2 + ks)*8
        return [f"v_swap_b32 v{z+1}, v{z+2}", f"v_swap_b32 v{z+2}, v{z+4}", f"v_swap_b32 v{z+3}, v{z+6}", f"v_swap_b32 v{z+5}, v{z+6}"]
    def epi(p, lt):
        P, Q = preg(p, lt), qreg(p, lt)
        fl = []
        for r in range(4):
            fl.append(f"v_add_f32 v{T+r}, v{P+r}, v{Q+r}")
            fl.append(f"v_sub_f32 v{T+4+r}, v{P+r}, v{Q+r}")
        if p == 0:
            fl.append(f"v_cndmask_b32 v{T}, v{T}, v{P}, s[{S_MASK}:{S_MASK+1}]")
            fl.append(f"v_cndmask_b32 v{T+4}, v{T+4}, v{V_E+4*lt}, s[{S_MASK}:{S_MASK+1}]")
        fl.append(f"v_cvt_pk_bf16_f32 v{P+0}, v{T+0}, v{T+1}")
        fl.append(f"v_cvt_pk_bf16_f32 v{P+1}, v{T+2}, v{T+3}")
        fl.append(f"v_cvt_pk_bf16_f32 v{P+2}, v{T+4}, v{T+5}")
        fl.append(f"v_cvt_pk_bf16_f32 v{P+3}, v{T+6}, v{T+7}")
        if p < 3:
            fl.append(lambda: b(f"ds_write_b128 v{V_HW+lt}, {v(P,4)} offset:{XL + p*4096}", tag="hw"))
        else:
            fl.append(lambda: b(f"ds_write_b128 v{V_HWS+lt}, {v(P,4)} offset:{XL}", tag="hw"))
        return fl
    def mf(p, lt):
        P, Q = preg(p, lt), qreg(p, lt)
        out = []
        for ks in range(2):
            z = V_Z + (p*2 + ks)*8
            out.append(f"{MH} {v(P,4)}, {v(z,4)}, {a(mreg(lt,ks,0),4)}, {v(P,4)}")
            out.append(f"{MH} {v(Q,4)}, {v(z+4,4)}, {a(mreg(lt,ks,1),4)}, {v(Q,4)}")
        return out
    order = [(p, lt) for p in range(4) for lt in range(4) if not (p == 3 and lt >= 2)]
    done = []
    pre = [] if cfg.x_noring else list(ring)
    nun = len(order)
    for iu, (p, lt) in enumerate(order):
        if lt == 0:
            b.wait_vm(f"z{p}_1")
            if cfg.fineb: stamp(b, 24 + p, True)
            guarded(b, [V_Z + p*16 + i for i in range(16)], lambda p=p: z_load(b, p), f"z{p}")
            for ks in range(2):
                for sw in swaps(p, ks): b(sw)
            if p == 0:
                lab = b.newlabel("L_noE")
                b(f"s_cmp_eq_u32 s{S_W}, 0")
                b(f"s_cbranch_scc0 {lab}")
                for ks in range(2):
                    for l2 in range(4):
                        z = V_Z + ks*8
                        b(f"{MH} {v(V_E+4*l2,4)}, {v(z+4,4)}, {a(mreg(l2,ks,0),4)}, {v(V_E+4*l2,4)}")
                b.label(lab)
        fl = epi(*done[-2]) if len(done) >= 2 else []
        nv = (len(pre) + (nun - iu) - 1) // (nun - iu)
        vm = pre[:nv]; pre = pre[nv:]
        sched(b, mf(p, lt), vm=vm, misc=fl, cap=5)
        done.append((p, lt))
    for f in epi(*done[-2]): emit(b, f)
    for f in epi(*done[-1]): emit(b, f)

def slab_buf(p):
    return {0: 1, 1: 2, 2: 0, 3: 1, 4: 2, 5: "H", 6: "S"}[p]

def w2_groups(b, p):
    sg = slab_buf(p)
    out = []
    for hf in range(2):
        for n in range(4):
            pre = []
            if n == 0:
                pre.append(f"s_add_u32 m0, s{S_HWB}, {XL + hf*4096}" if sg == "H" else f"s_add_u32 m0, s{S_RW}, {sg*8192 + hf*4096}")
                if hf: pre.append(f"s_add_u32 s95, s{S_W2+p}, {32*896}")
            def f(n=n, hf=hf):
                so = "s95" if hf else f"s{S_W2+p}"
                off = f" offset:{1024*n}" if n else ""
                b(f"buffer_load_dwordx4 v{V_W2O+n}, s[{R_W2}:{R_W2+3}], {so} offen{off} lds", tag=f"w2_{p}")
            out.append((pre, f))
    return out
def w2_dma(b, p): return flat(w2_groups(b, p))

S_S6 = 6
def w2_groups6(b):
    ga, gb = [], []
    for i in range(6):
        pre = []
        if i == 0:
            pre = [f"s_mul_i32 s95, s{S_W}, {16*896}", f"s_sub_u32 s95, s{S_W2+6}, s95",
                   f"s_mul_i32 s96, s{S_W}, 6144", f"s_add_u32 m0, s96, {XL + 32768}"]
        if i == 4:
            pre = [f"s_add_u32 s95, s95, {32*896}", f"s_add_u32 m0, s96, {XL + 32768 + 4096}"]
        n = i & 3
        def f(n=n):
            off = f" offset:{1024*n}" if n else ""
            b(f"buffer_load_dwordx4 v{V_W2O+n}, s[{R_W2}:{R_W2+3}], s95 offen{off} lds", tag="w2_6")
        ga.append((pre, f))
    for i in range(2):
        pre = []
        if i == 0:
            pre = [f"s_mul_i32 s95, s{S_W}, {48*896}", f"s_sub_u32 s95, s{S_W2+6}, s95", f"s_add_u32 s95, s95, {192*896}",
                   f"s_lshl_b32 s96, s{S_W}, 11", f"s_add_u32 m0, s96, {RING}"]
        def f(n=i):
            off = f" offset:{1024*n}" if n else ""
            b(f"buffer_load_dwordx4 v{V_W2O+n}, s[{R_W2}:{R_W2+3}], s95 offen{off} lds", tag="w2_6")
        gb.append((pre, f))
    return ga, gb

def cs_loads(b):
    out = []
    def hdr():
        b(f"s_lshl_b32 s6, s{S_J}, 10")
        b(f"s_lshl_b32 s7, s{S_W}, 8")
        b("s_add_u32 s6, s6, s7")
        b(f"s_add_u32 s{S_CSO}, s6, {WS_CS}")
        b(f"v_lshlrev_b32 v{V_CSA}, 4, v{V_GQ}")
    hdr()
    cs_reload(b)

def cs_reload(b):
    for ft in range(4):
        b(f"buffer_load_dwordx4 {v(V_CS+4*ft,4)}, v{V_CSA}, s[{R_WS}:{R_WS+3}], s{S_CSO} offen offset:{64*ft} sc1", tag="cs")

def gemm1(b):
    def reads(k):
        buf = k & 1; slot = k % 6
        out = []
        for lt in range(4):
            out.append(lambda lt=lt: b(f"ds_read_b128 {v(V_B1 + 16*buf + 4*lt, 4)}, v{V_HB+lt} offset:{XL + k*4096}", tag=f"r{k}"))
        for u in range(4):
            for hh in range(2):
                out.append(lambda u=u, hh=hh: b(f"ds_read_b64_tr_b16 {v(V_A1 + 16*buf + 4*u + 2*hh, 2)}, v{V_TR1+u} offset:{slot*4096 + hh*2048}", tag=f"r{k}"))
        return out
    late = record(epi_addr) + record(flag_setup)
    b.wait_vm("w1_0")
    for f in reads(0): f()
    hres = [f"v_mov_b32 v{V_HRES+k}, 0" for k in range(16)]
    hrd = [(lambda tt=tt, r=r: b(f"ds_read_u16_d16_hi v{V_HRES + tt*4 + r}, v{V_HA + r} offset:{XL + tt*1024}", tag="hres")) for tt in range(4) for r in range(4)]
    s0 = []
    for k2 in range(8):
        s0 += slab_read(b, 0, k2, lambda o, k2=k2: a(A_S0 + 4*k2 + o, 2), "s0")
    g0, g1, g2 = w2_groups(b, 0), w2_groups(b, 1), w2_groups(b, 2)
    for k in range(14):
        buf = k & 1
        if k == 12:
            b.wait_vm("w2_0")
            b.wait_lg(f"r{k}")
            b("s_barrier")
        else:
            b.wait_lg(f"r{k}")
        if cfg.fine: stamp(b, k)
        first, vm, misc = [], [], []
        if k + 1 < 14:
            first.append(lambda k=k: b.wait_vm(f"w1_{k+1}"))
            if not cfg.x_noreads: first += reads(k + 1)
        if k + 6 < 14 and not cfg.x_now1dma: vm += w1_groups(b, k + 6)
        if k == 8: misc += hres
        if k == 8: vm += g0[:4]
        if k == 9: vm += g0[4:]; misc += hrd[:8]
        if k == 10: vm += g1[:4]; misc += hrd[8:]
        if k == 11: vm += g1[4:]; misc.append(lambda: ready_set(b))
        if k == 12: vm += g2[:4]; misc += s0[:8]
        if k < 8:
            n = (len(late) + 7 - k) // (8 - k)
            misc += late[:n]; late = late[n:]
        bb = V_B1 + 16*buf
        z = k == 0
        mf = [f"{MF} {v(V_Q2,4)}, {v(bb,4)}, {v(bb,4)}, {'0' if z else v(V_Q2,4)}",
              f"{MF} {v(V_S2,4)}, {v(V_ONE2,4)}, {v(bb,4)}, {'0' if z else v(V_S2,4)}"]
        for lt in range(4):
            for u in range(4):
                d = V_ACC1 + (u*4 + lt)*4
                mf.append(f"{MF} {v(d,4)}, {v(V_A1 + 16*buf + 4*u, 4)}, {v(bb + 4*lt, 4)}, {'0' if z else v(d,4)}")
        if k == 13:
            r = Rec()
            stats_core(r, V_S2, V_Q2, True)
            sf = r.l + [f"s_lshl_b32 s6, s{S_W}, 6", f"s_add_u32 s6, s6, {STAT}", f"v_lshl_add_u32 v{T}, v{V_C}, 2, s6",
                        f"v_sub_f32 v{V_S2}, 0, v{V_S2}", f"v_mul_f32 v{V_Q2}, 0.5, v{V_Q2}"]
            sched(b, mf[:6], first=s0[8:], vm=g2[4:5])
            sched(b, mf[6:], vm=g2[5:], misc=sf)
            b(f"s_mov_b64 exec, s[{S_DIAG}:{S_DIAG+1}]")
            b(f"ds_write_b32 v{T}, v{V_S2}")
            b(f"ds_write_b32 v{T}, v{V_S2} offset:256")
            b(f"ds_write_b32 v{T}, v{V_Q2} offset:512")
            b("s_mov_b64 exec, -1")
            b.g2rest = []
        else:
            sched(b, mf, first=first, vm=vm, misc=misc, misc_from=6)

def slab_read(b, p, k2, dst, tagp):
    sg = slab_buf(p)
    part = k2 >> 1
    if sg == "H":
        base = V_TR2H; off = XL + part*8192 + (k2 & 1)*4096
    elif sg == "S":
        if k2 < 6: base = V_TR2H; off = XL + 32768 + k2*4096
        else: base = V_TR2; off = (k2 - 6)*4096
    else:
        base = V_TR2 + (part >> 1)
        off = (part & 1)*24576 + sg*8192 + (k2 & 1)*4096
    return [(lambda hh=hh: b(f"ds_read_b64_tr_b16 {dst(2*hh)}, v{base} offset:{off + hh*2048}", tag=tagp)) for hh in range(2)]

V_NA = 54
V_SR = 36
def epi_addr(b):
    b(f"s_lshl_b32 s6, s{S_W}, 13")
    for l2 in range(4): b(f"v_add_u32 v{V_NA+l2}, s6, v{V_HB+l2}")
    b(f"v_lshlrev_b32 v{V_SR}, 2, v{V_C}")
    b(f"v_add_u32 v{V_SR}, {STAT}, v{V_SR}")
    b(f"s_lshl_b32 s6, s{S_W}, 6")
    b(f"v_add_u32 v{V_SR+1}, s6, v{V_SR}")

def gemm1_epi(b):
    b.wait_vm("w2_1")
    b("s_waitcnt lgkmcnt(0)")
    if cfg.finee: stamp(b, 24, True)
    b("s_barrier")
    if cfg.finee: stamp(b, 25, True)
    for lt in range(4):
        b(f"ds_read_b32 v{V_NM+2*lt}, v{V_SR+1} offset:{64*lt}", tag="nm")
    for tt in range(4):
        b(f"ds_read_b32 v{V_RR+tt}, v{V_SR} offset:{512 + 64*tt}", tag="rr")
    ready_load(b)
    b.wait_vm("cs")
    guarded(b, [V_CS + i for i in range(16)], lambda: cs_reload(b), "cs")
    b.wait_lg("nm")
    if cfg.finee: stamp(b, 26, True)
    main = []
    for lt in range(4):
        for fp in range(2):
            pk = V_PK + 4*((lt*2 + fp) & 3)
            for hh in range(2):
                d = V_ACC1 + ((2*fp + hh)*4 + lt)*4
                for h in range(2):
                    main.append(f"v_pk_fma_f32 {v(d+2*h,2)}, {v(V_CS+4*(2*fp+hh)+2*h,2)}, {v(V_NM+2*lt,2)}, {v(d+2*h,2)} op_sel_hi:[1,0,1]")
            for hh in range(2):
                d = V_ACC1 + ((2*fp + hh)*4 + lt)*4
                main.append(f"v_cvt_pk_bf16_f32 v{pk+2*hh}, v{d}, v{d+1}")
                main.append(f"v_cvt_pk_bf16_f32 v{pk+2*hh+1}, v{d+2}, v{d+3}")
            for q in range(4):
                main.append(f"v_pk_max_i16 v{pk+q}, v{pk+q}, 0")
            main.append(lambda lt=lt, fp=fp, pk=pk: b(f"ds_write_b128 v{V_NA+lt}, {v(pk,4)} offset:{XL + fp*4096}", tag="hidw"))
    g6a, b.g6b = w2_groups6(b)
    b.g6a = g6a
    dm = [flat([g]) for g in b.g2rest + w2_groups(b, 3)]
    dm = [(lambda l=l: [emit(b, x) for x in l]) for l in dm]
    s1 = []
    for k2 in range(8):
        s1 += slab_read(b, 1, k2, lambda o, k2=k2: a(A_S0 + 32 + 4*k2 + o, 2), "s1")
    multi_spread(b, main, [dm, s1])
    if cfg.finee: stamp(b, 27, True)
    b("s_waitcnt lgkmcnt(0)")
    b("s_barrier")

V_INR = [160, 168, 176, 184, 208, 216]
def inbox_load(b, q):
    return [([], (lambda h=h: b(f"buffer_load_dwordx4 {v(V_INR[q]+4*h,4)}, v{V_L16}, s[{R_WS}:{R_WS+3}], s{S_IN+q} offen offset:{1024*h} sc1", tag=f"p{q}"))) for h in range(2)]

def gemm2(b):
    hb = []
    for k2 in range(8):
        for tt in range(4):
            hb.append((k2, lambda k2=k2, tt=tt: b(f"ds_read_b128 {a((k2*4 + tt)*4, 4)}, v{V_L16} offset:{XL + k2*4096 + tt*1024}", tag=f"hb{k2}")))
    def aread(p, k2):
        if p <= 1: return []
        return slab_read(b, p, k2, lambda o: v(V_A2 + 4*(k2 & 3) + o, 2), f"a{p}_{k2}")
    def aop(p, k2):
        return a(A_S0 + 32*p + 4*k2, 4) if p <= 1 else v(V_A2 + 4*(k2 & 3), 4)
    def epi(p):
        acc = V_ACC2 + 16*(p & 1)
        pk = V_PK + 8*(p & 1)
        cv, st = [], []
        for h in range(2):
            pre = []
            for tt in (2*h, 2*h+1):
                pre.append(f"v_cvt_pk_bf16_f32 v{pk+2*tt}, v{acc+4*tt}, v{acc+4*tt+1}")
                pre.append(f"v_cvt_pk_bf16_f32 v{pk+2*tt+1}, v{acc+4*tt+2}, v{acc+4*tt+3}")
            cv.append(pre)
            st.append(lambda h=h: b(f"buffer_store_dwordx4 {v(pk+4*h,4)}, v{V_L16}, s[{R_WS}:{R_WS+3}], s{S_PB+p} offen offset:{1024*h} sc1", tag=f"pst{p}") if not cfg.x_nostore else None)
        return cv, st
    def mfs(p, k2):
        acc = V_ACC2 + 16*(p & 1)
        return [f"{MF} {v(acc+4*tt,4)}, {aop(p, k2)}, {a((k2*4+tt)*4, 4)}, {v(acc+4*tt, 4) if k2 else '0'}" for tt in range(4)]
    W = {q: w2_groups(b, q) for q in (4, 5)}
    plan = {0: W[4], 1: W[5], 2: b.g6a, 3: b.g6b}
    late_in = {5: [], 6: []}
    for (k2, f) in hb[:8]: f()
    tail = []
    for p in range(7):
        if cfg.fine: stamp(b, 24 + p)
        vm = list(plan.get(p, []))
        cv, st = epi(p - 1) if p >= 1 else ([], [])
        body = list(tail)
        firsts = []
        if p >= 1: firsts = aread(p, 0) + aread(p, 1)
        nt = len(tail)
        nvm_tail = min(len(vm), 2) if nt else 0
        if nt:
            b.wait_lg([f"a{p-1}_6"])
            sched(b, tail[:4], first=firsts[:2], vm=vm[:min(1, nvm_tail)])
            b.wait_lg([f"a{p-1}_7"])
            sched(b, tail[4:], first=firsts[2:], vm=vm[1:nvm_tail])
            vm = vm[nvm_tail:]
        if p == 1: ready_check(b)
        stg = [(cv[h], st[h]) for h in range(2)] if st else []
        order = stg + vm
        per = [[] for _ in range(6)]
        for i, g in enumerate(order): per[min(5, (i * 6) // max(len(order), 1))].append(g)
        for k2 in range(6):
            b.wait_lg([f"hb{k2}", f"a{p}_{k2}"])
            first = aread(p, k2 + 2)
            if p == 0: first += [f for (kk, f) in hb if kk == k2 + 2]
            gs = per[k2]
            if gs and len(gs[0][0]) > 2:
                sched(b, mfs(p, k2), first=first, misc=gs[0][0], cap=3)
                for g in gs[:1]: emit(b, g[1])
                for g in gs[1:]:
                    for x in g[0]: emit(b, x)
                    emit(b, g[1])
            else:
                sched(b, mfs(p, k2), first=first, vm=gs)
        if p < 6:
            if p + 1 >= 2: b.wait_vm(f"w2_{p+1}")
            if p in (0, 2): b("s_waitcnt lgkmcnt(0)")
            if not cfg.x_nobar2: b("s_barrier")
            tail = mfs(p, 6) + mfs(p, 7)
        else:
            b.wait_lg([f"a{p}_6", f"a{p}_7"])
            sched(b, mfs(p, 6) + mfs(p, 7), vm=inbox_load(b, 5) + inbox_load(b, 4))

def flag_setup(b):
    t = T
    b(f"v_add_u32 v{t}, s{S_J}, v0")
    b(f"v_add_u32 v{t}, 1, v{t}")
    b(f"v_subrev_u32 v{t+1}, 7, v{t}")
    b(f"v_cmp_le_u32 vcc, 7, v{t}")
    b(f"s_mul_i32 s6, s{S_IDX}, 7")
    b(f"v_cndmask_b32 v{t}, v{t}, v{t+1}, vcc")
    b(f"v_add_u32 v{t}, s6, v{t}")
    b(f"v_lshlrev_b32 v{t}, 9, v{t}")
    b(f"s_lshl_b32 s6, s{S_W}, 7")
    b(f"s_add_u32 s6, s6, {WS_FL}")
    b(f"v_add_u32 v{t+6}, s6, v{t}")
    own_line(b, 13)
    b(f"v_mov_b32 v{t+5}, 1")
    b(f"v_mov_b32 v{t+4}, 0")

def ready_set(b):
    b.wait_vm("pbpre")
    b("s_mov_b64 exec, 1")
    b(f"buffer_store_dword v{T+5}, v{T+4}, s[{R_WS}:{R_WS+3}], s13 offen sc1", tag="rdy")
    b("s_mov_b64 exec, -1")

def ready_load(b):
    b("s_mov_b64 exec, 0x3f")
    b(f"buffer_load_dword v{T+7}, v{T+6}, s[{R_WS}:{R_WS+3}], 0 offen sc1", tag="rdl")
    b("s_mov_b64 exec, -1")

def ready_check(b):
    b.wait_vm("rdl")
    l2 = b.newlabel("L_rd"); l3 = b.newlabel("L_rdd")
    b.notrack = True
    b("s_mov_b32 s12, 0")
    b("s_mov_b64 exec, 0x3f")
    b.label(l2)
    b(f"v_cmp_ne_u32 vcc, 1, v{T+7}")
    b("s_cmp_eq_u64 vcc, 0")
    b(f"s_cbranch_scc1 {l3}")
    b("s_add_u32 s12, s12, 1")
    b("s_cmp_ge_u32 s12, 0x10000")
    b(f"s_cbranch_scc1 {l3}")
    b(f"buffer_load_dword v{T+7}, v{T+6}, s[{R_WS}:{R_WS+3}], 0 offen sc1")
    b("s_waitcnt vmcnt(0)")
    b(f"s_branch {l2}")
    b.label(l3)
    b("s_mov_b64 exec, -1")
    b.notrack = False

def final_reduce(b):
    t = T
    acc = V_ACC2
    def reload(q):
        for pre, op in inbox_load(b, q): op()
    for q in (3, 2, 1, 0): reload(q)
    b(f"v_mul_u32_u24 v{t+4}, 57344, v{V_C}")
    b(f"v_lshl_add_u32 v{t+4}, v{V_GQ}, 3, v{t+4}")
    stamp(b, 20)
    for q in (5, 4, 3, 2, 1, 0):
        b.wait_vm(f"p{q}")
        guarded(b, [V_INR[q] + i for i in range(8)], lambda q=q: reload(q), f"p{q}")
        if cfg.finef: stamp(b, 24 + q, True)
        for tt in range(4):
            for m in range(2):
                src = V_INR[q] + 2*tt + m
                tt2 = t + 2*((2*tt + m) & 1)
                b(f"v_lshlrev_b32 v{tt2}, 16, v{src}")
                b(f"v_and_b32 v{tt2+1}, 0xffff0000, v{src}")
                b(f"v_pk_add_f32 {v(acc+4*tt+2*m,2)}, {v(acc+4*tt+2*m,2)}, {v(tt2,2)}")
    stamp(b, 22)
    for tt in range(4):
        for r in range(4):
            b(f"v_mul_f32 v{acc+4*tt+r}, v{V_RR+tt}, v{acc+4*tt+r}")
        for m in range(2):
            b(f"v_pk_fma_f32 {v(acc+4*tt+2*m,2)}, {v(V_HRES+4*tt+2*m,2)}, 0.5, {v(acc+4*tt+2*m,2)} op_sel_hi:[1,0,1]")
        b(f"v_cvt_pk_bf16_f32 v{V_PK+2*tt}, v{acc+4*tt}, v{acc+4*tt+1}")
        b(f"v_cvt_pk_bf16_f32 v{V_PK+1+2*tt}, v{acc+4*tt+2}, v{acc+4*tt+3}")
        b(f"buffer_store_dwordx2 {v(V_PK+2*tt,2)}, v{t+4}, s[{R_OUT}:{R_OUT+3}], s{S_O+tt} offen {cfg.outflags}")

def cs_job(b):
    b("s_sub_u32 s6, s2, 224")
    b("s_lshl_b32 s7, s6, 7")
    b("v_and_b32 v1, 15, v9")
    b("v_lshrrev_b32 v2, 4, v9")
    b("v_mul_u32_u24 v3, 3584, v2")
    b("v_lshl_add_u32 v3, v1, 3, v3")
    b("v_and_b32 v6, 63, v9")
    b("v_lshlrev_b32 v6, 2, v6")
    b("v_mov_b32 v7, -1")
    b("s_lshl_b32 s9, s6, 8")
    b(f"s_add_u32 s9, s9, {WS_CS}")
    b(f"buffer_store_dword v7, v6, s[{R_WS}:{R_WS+3}], s9 offen sc1", tag="cspre")
    for n in range(28):
        b(f"s_add_u32 s8, s7, {n*57344}")
        b(f"buffer_load_dwordx2 {v(16 + 2*n, 2)}, v3, s[{R_W1}:{R_W1+3}], s8 offen", tag=f"c{n}")
    b.wait_vm("cspre")
    b("s_barrier")
    arrive0(b)
    b("s_sub_u32 s6, s2, 224")
    for r in range(4): b(f"v_mov_b32 v{76+r}, 0")
    for n in range(28):
        b.wait_vm(f"c{n}")
        for h in range(2):
            b(f"v_lshlrev_b32 v4, 16, v{16+2*n+h}")
            b(f"v_and_b32 v5, 0xffff0000, v{16+2*n+h}")
            b(f"v_pk_add_f32 {v(76+2*h,2)}, {v(76+2*h,2)}, v[4:5]")
    b("v_lshlrev_b32 v4, 8, v2")
    b("v_lshl_add_u32 v4, v1, 4, v4")
    b("ds_write_b128 v4, v[76:79]")
    b("s_waitcnt lgkmcnt(0)")
    b("s_barrier")
    b("v_and_b32 v1, 63, v9")
    b("v_lshlrev_b32 v1, 2, v1")
    for n in range(16): b(f"ds_read_b32 v{16+n}, v1 offset:{256*n}")
    b("s_waitcnt lgkmcnt(0)")
    for n in range(1, 16): b(f"v_add_f32 v16, v16, v{16+n}")
    b("s_lshl_b32 s7, s6, 8")
    b(f"s_add_u32 s7, s7, {WS_CS}")
    b(f"s_cmp_eq_u32 s{S_W}, 0")
    lab = b.newlabel("L_csk")
    b(f"s_cbranch_scc0 {lab}")
    b(f"buffer_store_dword v16, v1, s[{R_WS}:{R_WS+3}], s7 offen sc1", track=False)
    b.label(lab)

def build(name):
    b = Builder()
    b.slow = []
    b("s_cmp_ge_u32 s2, 252")
    b("s_cbranch_scc1 L_end")
    b("s_load_dwordx2 s[16:17], s[0:1], 0")
    b("s_load_dwordx8 s[28:35], s[0:1], 48")
    b("s_load_dwordx2 s[36:37], s[0:1], 80")
    if cfg.code_pf:
        b("s_getpc_b64 s[6:7]")
        b.label("L_pc")
        b("v_lshlrev_b32 v2, 7, v0")
        b("v_mov_b32 v5, s7")
        b("v_add_co_u32 v4, vcc, s6, v2")
        b("v_addc_co_u32 v5, vcc, 0, v5, vcc")
        b(f"v_cmp_gt_u32 vcc, L_code_end-L_pc, v2")
        b("s_and_saveexec_b64 s[8:9], vcc")
        lab = b.newlabel("L_nopf")
        b(f"s_cbranch_execz {lab}")
        b(f"global_load_dword {a(255)}, v[4:5], off", track=False)
        b.label(lab)
        b("s_mov_b64 exec, s[8:9]")
    b("v_mov_b32 v9, v0")
    b("v_lshrrev_b32 v1, 6, v0")
    b("v_and_b32 v0, 63, v0")
    b(f"v_readfirstlane_b32 s{S_W}, v1")
    b("s_cmp_ge_u32 s2, 224")
    b("s_cbranch_scc1 L_cs")
    decode(b)
    p1_addr(b)
    z_base(b)
    if not cfg.lean_start:
        p1_addr2(b)
        wd_setup(b)
    b("s_waitcnt lgkmcnt(0)")
    srd(b, R_X, P_X, X_BYTES)
    srd(b, R_WS, P_WS, WS_BYTES)
    prefill_start(b)
    x_dma(b)
    srd(b, R_W1, P_W1, W_BYTES); srd(b, R_W2, P_W2, W_BYTES)
    srd(b, R_OUT, P_OUT, X_BYTES); srd(b, R_DBG, P_DBG, 256)
    stamp(b, 0)
    if cfg.lean_start:
        p1_addr2(b)
        wd_setup(b)
    move_masks(b)
    if cfg.w_prefetch: w_prefetch(b)
    p2_scalars(b)
    inbox_scalars(b)
    if cfg.pre_at == "start":
        for f in pb_prefill(b): f()
    stamp(b, 1)
    wd_gen(b)
    f_gen(b)
    m_gen(b)
    fm_addr(b)
    if cfg.ring_early or not cfg.late_dma_addr: dma_addr(b)
    stamp(b, 2)
    p1_loop(b)
    xall = xres_list(b)
    xt = xall[:cfg.xres_tail]; xall = xall[cfg.xres_tail:]
    p1_tail(b, xt)
    for f in xt: f()
    stamp(b, 8)
    b0_load(b, V_B0)
    xres_pad(b)
    ring = []
    for k in range(cfg.ring_early, 6): ring += w1_groups(b, k)
    work = record(p2_addr)
    if not cfg.ring_early and cfg.late_dma_addr: work = work + record(dma_addr)
    pbq = pb_prefill(b) if cfg.pre_at == "spread" else []
    xl = xall
    if pbq: xl = xl[:8] + pbq[:1] + xl[8:] + pbq[1:2]; pbq = pbq[2:]
    multi_spread(b, work, [xl] + ([m_read(b)] if cfg.m_late else []))
    stamp(b, 9)
    b0_check(b, V_B0)
    zl = z_list(b)
    work = record(hres_addr) + record(p2_scalars_late)
    z1 = zl[:16]
    if pbq: z1 = z1[:8] + pbq[:1] + z1[8:] + pbq[1:2]; pbq = pbq[2:]
    multi_spread(b, work, [z1])
    b.wait_vm("xres")
    b("s_waitcnt lgkmcnt(0)")
    b("s_barrier")
    stamp(b, 10)
    z2 = zl[16:]
    if pbq: z2 = z2[:8] + pbq[:1] + z2[8:] + pbq[1:2]; pbq = pbq[2:]
    x_init(b, extra=z2)
    b(f"v_mov_b32 v{V_ONE2}, 0x3f803f80")
    for r in range(1, 4): b(f"v_mov_b32 v{V_ONE2+r}, v{V_ONE2}")
    stamp(b, 11)
    b("s_barrier")
    stamp(b, 14)
    if pbq:
        r2 = []
        for i, g in enumerate(ring):
            r2.append(g)
            if i % 4 == 3 and pbq: r2.append(([], pbq.pop(0)))
        ring = r2
    if cfg.pre_at == "stepb": ring = ring + [([], x) for x in pb_prefill(b)]
    step_b(b, ring)
    cs_loads(b)
    b("s_waitcnt lgkmcnt(0)")
    stamp(b, 15)
    b("s_barrier")
    b.finezone = True
    gemm1(b)
    stamp(b, 17)
    gemm1_epi(b)
    stamp(b, 18)
    gemm2(b)
    stamp(b, 19)
    b.finezone = False
    final_reduce(b)
    stamp(b, 23)
    stamp_store(b)
    b("s_endpgm")
    b.label("L_cs")
    b("s_waitcnt lgkmcnt(0)")
    srd(b, R_W1, P_W1, W_BYTES); srd(b, R_WS, P_WS, WS_BYTES); srd(b, R_DBG, P_DBG, 256)
    cs_job(b)
    b("s_endpgm")
    emit_slow(b)
    b.label("L_end")
    b.label("L_code_end")
    b("s_endpgm")
    txt = b.finalize()
    s = f"""; FNet block (pre-LN, 2-D DFT mixing as a 64x32 two-step transform, ReLU FFN) - one persistent launch
; kernarg: A_x, dft_seq_re, dft_seq_im, dft_hid_re, dft_hid_im, B_x, B_w1, B_w2, out, debug, ws
; @launch grid=(252,1,1) block=(256,1,1) lds={LDS_TOTAL}
.amdgcn_target "amdgcn-amd-amdhsa--gfx950"
.text
""" + kernel_header(name) + txt + '\n.section .rodata,"a"\n' + kernel_desc(name, 512, 256)
    return s, b

if __name__ == "__main__":
    import sys
    for o in sys.argv[2:]:
        if o == "diag": cfg.diag = True
        elif "=" in o:
            k, val = o.split("=", 1)
            setattr(cfg, k, eval(val))
    s, b = build(NAME + "_kernel")
    open(sys.argv[1], "w").write(s)
    n = sum(1 for i in b.items if not isinstance(i, str))
    print("instructions", n, "auto nops", b.nnop)
```

```python
from asmb import *
import common
from common import NAME, kernel_header, kernel_desc, X_BYTES, W_BYTES, WS_BYTES, Z_G, PB_G
import struct

def fbits(x): return hex(struct.unpack("<I", struct.pack("<f", x))[0])

class Cfg:
    diag = False
    w_prefetch = True
    xflags = ""
    x_now1dma = False
    x_now2dma = False
    x_noreads = False
    x_nobar2 = False
    x_nostore = False
    fine = False
    cyc = False
    trim = True
    g1_umajor = False
    align = False
    align_nop = True
    addr_in_loop = False
    touch_x = False
    touch_w = False
    x_first = False
    fewbar = False
    dma_first = False
    xres_rot = False
    x_noexec = False
    late_w2 = False
    in_first = False
    early_in = 0
    xres_tail = 0
    stages = ((0,1,2,3,4,5,6),)
    m_late = True
    lean_start = True
    late_dma_addr = True
    outflags = ''
    finee = False
    ring_early = 0
    pre_at = 'spread'
    x_z4 = False
    x_noring = False
    x_nopre = False
    code_bytes = 26*1024
    code_pf = True
    finef = False
    x_noguard = False
    ring0 = 18
    buf4 = True
    fineb = False
cfg = Cfg()

WS_Z = 0
WS_CS = 0x200000
WS_CNT = 0x210000
WS_FL = 0x220000
WS_PB = 0x400000
WS_TS = 0x4000000

XL = 0
XRS = 928
RING = 64 * XRS
FX = RING
MX = RING + 8192
STAT = RING + 98304
LDS_TOTAL = STAT + 768

S_WG, S_W, S_IDX, S_J = 2, 3, 4, 5
P_X, P_W1, P_W2, P_OUT, P_DBG, P_WS = 16, 28, 30, 32, 34, 36
R_X, R_W1, R_W2, R_WS, R_OUT, R_DBG = 40, 44, 48, 52, 56, 60
S_TT = 16
S_PI = 20
S_ZL = 24
S_RW = 28
S_W1B = 29
S_Z0, S_Z1 = 30, 31
S_DIAG = 32
S_M1 = 34
S_MASK = 64
S_W2 = 66
S_PB = 73
S_IN = 79
S_XR = 85
S_O = 86
S_P32 = 90
S_TMP = 94
S_HWB = 94
S_N32 = 98
S_CSO = 97

V_C, V_GQ, V_TS = 1, 2, 58
T = 4
V_HB = 12
V_TR1 = 16
V_W1O = 20
V_W2O = 24
V_TR2 = 28
V_L16 = 30
V_ZO = 31
V_CSA = 31
V_HW = 32
V_HWS = 36
V_HA = 38
V_SEL1, V_SEL2, V_NSEL2 = 42, 46, 50
V_XA = 54
V_AUX = 3
V_TR2H = 59
V_NEG = 60
V_GT = 4
V_WD = 64
V_XF = 120
V_ACC = 152
V_SS = 168
V_QQ = 172
V_CS1 = 176
V_ONE = 180
V_F = 184
V_XB = 216
V_SA = 224
V_XO = 228
V_ZO1 = 229
V_G = 230
V_AB = V_XF
V_A = V_WD
V_D2 = V_WD + 8
V_ZP = V_WD + 24
A_PF = 128
A_S0 = 128
V_Z = 64
V_P, V_Q, V_PS, V_QS, V_E = 128, 176, 224, 232, 240
V_ACC1 = 128
V_A1 = 192
V_B1 = 224
V_CS = 64
V_HRES = 80
V_PK = 96
V_NM = 112
V_RR = 120
V_RR2 = 112
V_S2 = 42
V_Q2 = 46
V_ONE2 = 50
V_A2 = 192
V_ACC2 = 128
V_IN = 160

def stamp(b, i, force=False):
    if not cfg.diag: return
    if cfg.fine and not force and i != 0 and not getattr(b, "finezone", False): return
    if i == 0 and not getattr(b, "tsinit", False):
        b(f"v_mov_b32 v{V_TS}, 0"); b.tsinit = True
        if cfg.fine: return
    b("s_memtime s[14:15]" if cfg.cyc else "s_memrealtime s[14:15]")
    b("s_waitcnt lgkmcnt(0)")
    b(f"v_writelane_b32 v{V_TS}, s14, {i}")
def stamp_store(b):
    if not cfg.diag: return
    b("s_waitcnt vmcnt(0)")
    stamp(b, 31, True)
    b("s_lshl_b32 s6, s2, 9")
    b(f"s_lshl_b32 s7, s{S_W}, 7")
    b("s_add_u32 s6, s6, s7")
    b(f"s_add_u32 s6, s6, {WS_TS}")
    b(f"v_lshlrev_b32 v{T}, 2, v0")
    b("s_mov_b32 exec_hi, 0")
    b(f"buffer_store_dword v{V_TS}, v{T}, s[{R_WS}:{R_WS+3}], s6 offen")
    b("s_waitcnt vmcnt(0)")
    b("s_mov_b64 exec, -1")

def srd(b, r, p, nbytes):
    b(f"s_mov_b32 s{r}, s{p}")
    b(f"s_mov_b32 s{r+1}, s{p+1}")
    b(f"s_mov_b32 s{r+2}, {hex(nbytes)}")
    b(f"s_mov_b32 s{r+3}, 0x00020000")

def emit(b, f):
    f() if callable(f) else b(f)

def weave(b, mfmas, fillers, per=2):
    k = 0; n = len(mfmas)
    for i, m in enumerate(mfmas):
        b(m)
        want = ((i + 1) * len(fillers) + n - 1) // n
        cnt = 0
        while k < len(fillers) and k < want and cnt < per:
            emit(b, fillers[k]); k += 1; cnt += 1
    while k < len(fillers):
        emit(b, fillers[k]); k += 1

class Rec:
    def __init__(self): self.l = []
    def __call__(self, s, tag=None, track=True):
        assert tag is None
        self.l.append(s)
def record(fn, *args):
    r = Rec(); fn(r, *args)
    out = []; i = 0; l = r.l
    while i < len(l):
        if l[i].startswith("s_cmp"):
            j = i + 1
            while j < len(l) and l[j].startswith(("s_cselect", "s_mov")): j += 1
            out.append("\n".join(l[i:j])); i = j
        else:
            out.append(l[i]); i += 1
    return out

def spread(b, main, extra, every):
    k = 0
    for i, m in enumerate(main):
        emit(b, m)
        if (i + 1) % every == 0 and k < len(extra):
            emit(b, extra[k]); k += 1
    while k < len(extra):
        emit(b, extra[k]); k += 1

def sched(b, mfmas, first=(), vm=(), misc=(), vm_from=0, vm_to=None, misc_from=0, cap=2):
    n = len(mfmas)
    slots = [[] for _ in range(n)]
    first = list(first); vm = list(vm); misc = list(misc)
    if vm_to is None: vm_to = n
    vpos = []
    if vm:
        span = vm_to - vm_from
        for i, (pre, op) in enumerate(vm):
            g = vm_from + min(span - 1, (i * span) // len(vm) + (1 if pre else 0))
            if vpos and g <= vpos[-1]: g = min(n - 1, vpos[-1] + 1)
            vpos.append(g)
            gp = max(0, g - 1)
            if vpos[:-1] and gp < vpos[-2]: gp = vpos[-2]
            slots[gp] += [("vm", x) for x in pre]
            slots[g].append(("vm", op))
    g = 0
    for f in first:
        while g < n - 1 and len(slots[g]) >= cap: g += 1
        slots[g].append(("first", f))
        if len(slots[g]) >= (cap if len(first) > n else 1 + sum(1 for t, _ in slots[g] if t == "vm")): g = min(n - 1, g + 1)
    free = [max(0, cap - len(slots[g])) if g >= misc_from else 0 for g in range(n)]
    tot = sum(free)
    k = 0; acc = 0
    for g in range(n):
        if k >= len(misc): break
        acc += free[g]
        want = len(misc) if tot == 0 else min(len(misc), -(-acc * len(misc) // tot)) if tot < len(misc) else (acc * len(misc) + tot - 1) // tot
        take = 0
        while k < len(misc) and k < want and (take < free[g] or tot < len(misc)):
            slots[g].append(("misc", misc[k])); k += 1; take += 1
            if tot < len(misc) and take >= free[g] + 1: break
    rest = misc[k:]
    for g in range(n):
        b(mfmas[g])
        for t, x in sorted(slots[g], key=lambda e: {"first": 0, "misc": 1, "vm": 2}[e[0]]): emit(b, x)
    for x in rest: emit(b, x)

def groups(closures_with_hdr):
    return closures_with_hdr

def multi_spread(b, main, lists):
    n = len(main)
    at = [[] for _ in range(n + 1)]
    for lst in lists:
        for i, x in enumerate(lst):
            at[min(n, ((2*i + 1) * n) // (2*len(lst)))].append(x)
    for i in range(n):
        for x in at[i]: emit(b, x)
        emit(b, main[i])
    for x in at[n]: emit(b, x)

MF = "v_mfma_f32_16x16x32_bf16"
MH = "v_mfma_f32_16x16x32_f16"

def decode(b):
    b("s_and_b32 s6, s2, 7")
    b("s_lshr_b32 s7, s2, 3")
    b("s_mul_i32 s8, s7, 37")
    b("s_lshr_b32 s8, s8, 8")
    b("s_mul_i32 s9, s8, 7")
    b(f"s_sub_u32 s{S_J}, s7, s9")
    b("s_lshl_b32 s8, s8, 3")
    b(f"s_add_u32 s{S_IDX}, s6, s8")

def rot(b, dst, ls, shift):
    if ls == 0:
        b(f"s_lshl_b32 s{dst}, s{S_W}, {shift}")
    else:
        b(f"s_add_u32 s{dst}, s{S_W}, {ls}")
        b(f"s_and_b32 s{dst}, s{dst}, 3")
        b(f"s_lshl_b32 s{dst}, s{dst}, {shift}")

def p1_addr(b):
    t = T
    b(f"v_and_b32 v{V_C}, 15, v0")
    b(f"v_lshrrev_b32 v{V_GQ}, 4, v0")
    b(f"v_lshlrev_b32 v{V_L16}, 4, v0")
    b(f"v_lshrrev_b32 v{t}, 3, v0")
    b(f"v_and_b32 v{t+1}, 7, v0")
    b(f"v_xor_b32 v{t+1}, v{t+1}, v{t}")
    b(f"v_lshlrev_b32 v{t+1}, 4, v{t+1}")
    b(f"v_mul_u32_u24 v{V_XO}, 28672, v{t}")
    b(f"v_add_u32 v{V_XO}, v{V_XO}, v{t+1}")
    b(f"s_lshl_b32 s6, s{S_W}, 9")
    b(f"s_add_u32 s6, s6, s{S_IDX}")
    b("s_mul_i32 s12, s6, 896")
    b("s_add_u32 s13, s12, 229376")
    b(f"s_lshl_b32 s11, s{S_W}, 11")

def x_dma(b):
    for ksp in range(7):
        for o2 in range(2):
            b(f"s_add_u32 m0, s11, {XL + o2*1024 + 8064*ksp}")
            b(f"buffer_load_dwordx4 v{V_XO}, s[{R_X}:{R_X+3}], s{12+o2} offen offset:{128*ksp} {cfg.xflags} lds", tag=f"x{ksp}")

def p1_addr2(b):
    t = T
    b(f"v_and_b32 v{t}, 7, v{V_C}")
    b(f"v_lshrrev_b32 v{t+1}, 3, v{V_C}")
    b(f"v_lshlrev_b32 v{t+1}, 10, v{t+1}")
    b(f"v_lshl_add_u32 v{t+1}, v{t}, 7, v{t+1}")
    for par in range(2):
        b(f"v_add_u32 v{t+2}, {4*par}, v{V_GQ}") if par else b(f"v_mov_b32 v{t+2}, v{V_GQ}")
        b(f"v_xor_b32 v{t+2}, v{t+2}, v{t}")
        b(f"v_lshl_add_u32 v{t+3+par}, v{t+2}, 4, v{t+1}")
    b(f"v_lshlrev_b32 v{t+5}, 4, v{V_GQ}")
    for ls in range(4):
        rot(b, 6, ls, 11)
        b(f"v_add_u32 v{V_XB + 2*ls}, s6, v{t+3}")
        b(f"v_add_u32 v{V_XB + 2*ls + 1}, s6, v{t+4}")
        b("s_lshr_b32 s6, s6, 5")
        b(f"s_add_u32 s6, s6, {STAT}")
        b(f"v_add_u32 v{V_SA + ls}, s6, v{t+5}")
    b(f"v_mov_b32 v{V_ONE}, 0x3f803f80")
    for r in range(1, 4): b(f"v_mov_b32 v{V_ONE + r}, v{V_ONE}")
    b(f"v_lshrrev_b32 v{t}, 2, v{V_C}")
    b(f"v_cmp_eq_u32 s[{S_TMP}:{S_TMP+1}], v{t}, v{V_GQ}")
    b(f"v_and_b32 v{t}, 3, v{V_C}")
    for r in range(1, 4):
        b(f"v_cmp_eq_u32 s[{S_TMP+2*r}:{S_TMP+2*r+1}], {r}, v{t}")

def move_masks(b):
    for k in range(8): b(f"s_mov_b32 s{S_DIAG+k}, s{S_TMP+k}")

def z_base(b):
    b(f"s_lshr_b32 s6, s{S_W}, 1")
    b(f"s_lshl_b32 s7, s{S_J}, 1")
    b("s_add_u32 s8, s6, s7")
    b(f"s_and_b32 s9, s{S_W}, 1")
    b("s_lshl_b32 s6, s8, 12")
    b(f"s_lshl_b32 s7, s{S_IDX}, 7")
    b("s_add_u32 s6, s6, s7")
    b("s_lshl_b32 s7, s9, 6")
    b("s_add_u32 s10, s6, s7")
    b(f"v_mul_u32_u24 v{V_ZO1}, {Z_G}, v{V_C}")
    b(f"v_lshl_add_u32 v{V_ZO1}, v{V_GQ}, 4, v{V_ZO1}")

def wd_setup(b):
    t = T
    E, X, STEP, K2 = V_G, V_G+1, V_G+2, V_G+3
    b(f"s_lshr_b32 s6, s{S_W}, 1")
    b(f"s_lshl_b32 s7, s{S_J}, 1")
    b("s_add_u32 s8, s6, s7")
    b(f"s_and_b32 s9, s{S_W}, 1")
    b("s_lshl_b32 s6, s8, 4")
    b("s_lshl_b32 s7, s9, 3")
    b("s_add_u32 s6, s6, s7")
    b(f"v_lshrrev_b32 v{t}, 1, v{V_C}")
    b(f"v_add_u32 v{t}, s6, v{t}")
    b(f"v_and_b32 v{t+1}, 1, v{V_C}")
    b(f"v_lshl_or_b32 v{t+2}, v{t}, 1, v{t+1}")
    b(f"v_mov_b32 v{t+3}, 224")
    b(f"v_cmp_eq_u32 vcc, 1, v{t+2}")
    b(f"v_mov_b32 v{t+4}, 0")
    b(f"v_cndmask_b32 v{t}, v{t}, v{t+3}, vcc")
    b(f"v_cndmask_b32 v{t+1}, v{t+1}, v{t+4}, vcc")
    b(f"v_cvt_f32_u32 v{t+5}, v{t+1}")
    b(f"v_mul_f32 v{t+5}, 0x3e800000, v{t+5}")
    b(f"v_cvt_f32_u32 v{E}, v{t}")
    b(f"v_mul_f32 v{E}, 0x3b124925, v{E}")
    b(f"v_mul_u32_u24 v{t+1}, 4682, v{t}")
    b(f"v_lshrrev_b32 v{t+1}, 16, v{t+1}")
    b(f"v_mul_u32_u24 v{t+1}, 14, v{t+1}")
    b(f"v_sub_u32 v{t+1}, v{t}, v{t+1}")
    b(f"v_cvt_f32_u32 v{STEP}, v{t+1}")
    b(f"v_mul_f32 v{STEP}, {fbits(1.0/14)}, v{STEP}")
    b(f"v_mul_u32_u24 v{t+1}, v{V_GQ}, v{t}")
    b(f"v_mul_u32_u24 v{t+2}, 1171, v{t+1}")
    b(f"v_lshrrev_b32 v{t+2}, 16, v{t+2}")
    b(f"v_mul_u32_u24 v{t+2}, 56, v{t+2}")
    b(f"v_sub_u32 v{t+1}, v{t+1}, v{t+2}")
    b(f"v_cvt_f32_u32 v{X}, v{t+1}")
    b(f"v_mul_f32 v{X}, {fbits(1.0/56)}, v{X}")
    b(f"v_cos_f32 v{K2}, v{E}")
    b(f"v_add_f32 v{X}, v{X}, v{t+5}")
    b(f"v_add_f32 v{K2}, v{K2}, v{K2}")

def wd_gen(b):
    E, X, STEP, K2 = V_G, V_G+1, V_G+2, V_G+3
    C = [V_G + 4 + i for i in range(8)]
    X1 = V_G + 12
    for ks in range(14):
        b(f"v_cos_f32 v{C[0]}, v{X}")
        b(f"v_add_f32 v{X1}, v{X}, v{E}")
        b(f"v_cos_f32 v{C[1]}, v{X1}")
        if ks < 13:
            b(f"v_add_f32 v{X}, v{X}, v{STEP}")
            if not cfg.trim: b(f"v_fract_f32 v{X}, v{X}")
        else:
            b("s_nop 0")
        if ks > 0:
            c = "0" if ks == 1 else v(V_CS1, 4)
            b(f"{MF} {v(V_CS1,4)}, {v(V_ONE,4)}, {v(V_WD + 4*(ks-1),4)}, {c}")
        for n in range(2, 8):
            b(f"v_fma_f32 v{C[n]}, v{K2}, v{C[n-1]}, -v{C[n-2]}")
            if n % 2 == 1:
                b(f"v_cvt_pk_bf16_f32 v{V_WD + 4*ks + (n-3)//2}, v{C[n-3]}, v{C[n-2]}")
        b(f"v_cvt_pk_bf16_f32 v{V_WD + 4*ks + 3}, v{C[6]}, v{C[7]}")
    b("s_nop 0")
    b(f"{MF} {v(V_CS1,4)}, {v(V_ONE,4)}, {v(V_WD + 4*13,4)}, {v(V_CS1,4)}")

def f_gen(b):
    t = T
    S1, G, X, CO, SI, PK, AD = V_G, V_G+4, V_G+5, V_G+8, V_G+12, V_G+16, V_G+20
    b(f"s_lshl_b32 s6, s{S_W}, 4")
    b(f"v_lshl_add_u32 v{t}, v{V_GQ}, 2, s6")
    b(f"v_cvt_f32_u32 v{t}, v{t}")
    b(f"v_mul_f32 v{S1}, 0x3c800000, v{t}")
    for q in range(1, 4): b(f"v_add_f32 v{S1+q}, 0x3c800000, v{S1+q-1}")
    b(f"s_lshl_b32 s6, s{S_W}, 9")
    b(f"s_add_u32 s6, s6, {FX}")
    b(f"v_lshl_add_u32 v{AD}, v0, 3, s6")
    b(f"v_cvt_f32_u32 v{G}, v{V_C}")
    b(f"v_mov_b32 v{t+1}, 0xbc003c00")
    b(f"v_cmp_eq_u32 vcc, 0, v{V_C}")
    for gh in range(2):
        if gh: b(f"v_add_f32 v{G}, 0x41800000, v{G}")
        for q in range(4):
            b(f"v_mul_f32 v{X+(q&1)}, v{G}, v{S1+q}")
            b(f"v_cos_f32 v{CO+q}, v{X+(q&1)}")
            b(f"v_sin_f32 v{SI+q}, -v{X+(q&1)}")
        b(f"v_cvt_pk_f16_f32 v{PK}, v{CO}, v{CO+1}")
        b(f"v_cvt_pk_f16_f32 v{PK+1}, v{CO+2}, v{CO+3}")
        b(f"v_cvt_pk_f16_f32 v{PK+2}, v{SI}, v{SI+1}")
        b(f"v_cvt_pk_f16_f32 v{PK+3}, v{SI+2}, v{SI+3}")
        if gh == 0:
            b(f"v_cndmask_b32 v{PK+2}, v{PK+2}, v{t+1}, vcc")
            b(f"v_cndmask_b32 v{PK+3}, v{PK+3}, v{t+1}, vcc")
        b(f"ds_write_b64 v{AD}, {v(PK,2)} offset:{(gh*2+0)*2048}")
        b(f"ds_write_b64 v{AD}, {v(PK+2,2)} offset:{(gh*2+1)*2048}")

def fm_addr(b):
    for ls in range(4):
        rot(b, 6, ls, 9)
        b(f"s_add_u32 s6, s6, {FX}")
        b(f"v_lshl_add_u32 v{V_G+ls}, v0, 3, s6")
    for lt in range(4):
        b(f"s_lshl_b32 s6, s{S_TT+lt}, 12")
        b(f"s_add_u32 s6, s6, {MX}")
        b(f"v_add_u32 v{V_G+4+lt}, s6, v{V_L16}")

def f_read(b):
    out = []
    for ls in range(4):
        for gh in range(2):
            for sg in range(2):
                reg = V_F + ((gh*2 + sg)*2 + (ls >> 1))*4 + 2*(ls & 1)
                out.append(lambda reg=reg, ls=ls, o=(gh*2+sg)*2048: b(f"ds_read_b64 {v(reg,2)}, v{V_G+ls} offset:{o}", tag="f"))
    return out

def mreg(lt, ks, pq): return ((lt*2 + ks)*2 + pq)*4

def t0_of_tt(b, dst, tt_sreg):
    b(f"s_sub_u32 s{dst}, 64, s{S_IDX}")
    b(f"s_cmp_eq_u32 s{S_IDX}, 0")
    b(f"s_cselect_b32 s{dst}, 32, s{dst}")
    b(f"s_cmp_lt_u32 s{tt_sreg}, 2")
    b(f"s_cselect_b32 s{dst}, s{S_IDX}, s{dst}")
    b(f"s_and_b32 s9, s{tt_sreg}, 1")
    b("s_lshl_b32 s9, s9, 10")
    b(f"s_add_u32 s{dst}, s{dst}, s9")

def m_gen(b):
    t = T
    X, DX, CO, SI, PK, P, Q, AD = V_G, V_G+1, V_G+2, V_G+3, V_G+4, V_G+8, V_G+12, V_G+16
    t0_of_tt(b, 8, S_W)
    b(f"v_lshl_add_u32 v{t}, v{V_C}, 6, s8")
    b(f"v_cvt_f32_u32 v{DX}, v{t}")
    b(f"v_mul_f32 v{DX}, 0x3a000000, v{DX}")
    selP = [0x03020100, 0x03020100, 0x0c0c0100, 0x01000c0c]
    selQ = [0x01000302, 0x01000302, 0x0c0c0302, 0x03020c0c]
    sgnQ = [0x80000000, 0x00008000, 0, 0]
    neg = [0, 0x80000000, 0, 0]
    def pick(dst, tbl):
        b(f"s_cmp_lt_u32 s{S_W}, 2")
        b(f"s_cselect_b32 s9, {hex(tbl[0])}, 0") if False else None
        b(f"s_mov_b32 s9, {hex(tbl[0])}"); b(f"s_mov_b32 s12, {hex(tbl[1])}")
        b("s_cselect_b32 s9, s9, s12")
        b(f"s_mov_b32 s13, {hex(tbl[2])}"); b(f"s_mov_b32 s12, {hex(tbl[3])}")
        b("s_cselect_b32 s13, s13, s12")
        b(f"s_cmp_eq_u32 s{S_IDX}, 0")
        b(f"s_cselect_b32 s{dst}, s13, s9")
    pick(S_TMP, selP); pick(S_TMP+1, selQ); pick(S_TMP+2, sgnQ); pick(S_TMP+3, neg)
    b(f"v_xor_b32 v{DX}, s{S_TMP+3}, v{DX}")
    b(f"s_lshl_b32 s6, s{S_W}, 12")
    b(f"s_add_u32 s6, s6, {MX}")
    b(f"v_add_u32 v{AD}, s6, v{V_L16}")
    b(f"v_lshlrev_b32 v{t}, 2, v{V_GQ}")
    b(f"v_cvt_f32_u32 v{t}, v{t}")
    for ks in range(2):
        if ks: b(f"v_add_f32 v{t}, 0x41800000, v{t}")
        b(f"v_mul_f32 v{X}, v{t}, v{DX}")
        for j in range(4):
            b(f"v_cos_f32 v{CO}, v{X}")
            b(f"v_sin_f32 v{SI}, v{X}")
            b(f"v_add_f32 v{X}, v{X}, v{DX}")
            b(f"v_cvt_pk_f16_f32 v{PK}, v{CO}, v{SI}")
            b(f"v_perm_b32 v{P+j}, v{PK}, v{PK}, s{S_TMP}")
            b(f"v_perm_b32 v{Q+j}, v{PK}, v{PK}, s{S_TMP+1}")
            b(f"v_xor_b32 v{Q+j}, s{S_TMP+2}, v{Q+j}")
        b(f"ds_write_b128 v{AD}, {v(P,4)} offset:{(ks*2+0)*1024}")
        b(f"ds_write_b128 v{AD}, {v(Q,4)} offset:{(ks*2+1)*1024}")

def m_read(b):
    out = []
    for lt in range(4):
        for ks in range(2):
            for pq in range(2):
                out.append(lambda lt=lt, ks=ks, pq=pq: b(f"ds_read_b128 {a(mreg(lt,ks,pq),4)}, v{V_G+4+lt} offset:{(ks*2+pq)*1024}", tag="m"))
    return out

def prefill_start(b):
    for r in range(4): b(f"v_mov_b32 v{V_NEG+r}, -1")
    b(f"s_add_u32 s7, s10, {16*Z_G}")
    b(f"buffer_store_dwordx4 {v(V_NEG,4)}, v{V_ZO1}, s[{R_WS}:{R_WS+3}], s10 offen sc1", tag="pre")
    b(f"buffer_store_dwordx4 {v(V_NEG,4)}, v{V_ZO1}, s[{R_WS}:{R_WS+3}], s7 offen sc1", tag="pre")
    own_line(b, 6)
    b(f"v_mov_b32 v{T}, 0")
    b("s_mov_b64 exec, 1")
    b(f"buffer_store_dword v{T}, v{T}, s[{R_WS}:{R_WS+3}], s6 offen sc1", tag="pre")
    b("s_mov_b64 exec, -1")

def arrive0(b):
    lab = b.newlabel("L_arr")
    b.notrack = True
    b(f"s_cmp_eq_u32 s{S_W}, 0")
    b(f"s_cbranch_scc0 {lab}")
    b("s_and_b32 s6, s2, 3")
    b("s_lshl_b32 s6, s6, 6")
    b(f"v_mov_b32 v{T}, 1")
    b(f"v_mov_b32 v{T+1}, 0")
    b("s_mov_b64 exec, 1")
    b(f"buffer_atomic_add v{T}, v{T+1}, s[{R_DBG}:{R_DBG+3}], s6 offen sc1")
    b("s_mov_b64 exec, -1")
    b.label(lab)
    b.notrack = False

V_B0 = 229 + 25
def b0_load(b, reg):
    b(f"v_and_b32 v{reg}, 3, v0")
    b(f"v_lshlrev_b32 v{reg}, 6, v{reg}")
    b(f"buffer_load_dword v{reg}, v{reg}, s[{R_DBG}:{R_DBG+3}], 0 offen sc1", tag="b0")

def b0_check(b, reg):
    b.wait_vm("b0")
    l2 = b.newlabel("L_b0"); l3 = b.newlabel("L_b0d")
    b("s_mov_b32 s12, 0")
    b.label(l2)
    b.notrack = True
    b(f"v_cmp_gt_u32 vcc, 63, v{reg}")
    b("s_cmp_eq_u64 vcc, 0")
    b(f"s_cbranch_scc1 {l3}")
    b("s_add_u32 s12, s12, 1")
    b("s_cmp_ge_u32 s12, 0x10000")
    b(f"s_cbranch_scc1 {l3}")
    b(f"v_and_b32 v{reg}, 3, v0")
    b(f"v_lshlrev_b32 v{reg}, 6, v{reg}")
    b(f"buffer_load_dword v{reg}, v{reg}, s[{R_DBG}:{R_DBG+3}], 0 offen sc1")
    b("s_waitcnt vmcnt(0)")
    b(f"s_branch {l2}")
    b.label(l3)
    b.notrack = False

def guarded(b, regs, reload, name):
    t0 = V_GT
    n = len(regs)
    def tree():
        b(f"v_max3_u32 v{t0}, v{regs[0]}, v{regs[1]}, v{regs[2]}")
        i = 3
        while i + 1 < n:
            b(f"v_max3_u32 v{t0}, v{t0}, v{regs[i]}, v{regs[i+1]}"); i += 2
        if i < n: b(f"v_max_u32 v{t0}, v{t0}, v{regs[i]}")
        b(f"v_cmp_eq_u32 vcc, -1, v{t0}")
        b("s_cmp_eq_u64 vcc, 0")
    slow = b.newlabel("L_slow"); back = b.newlabel("L_back")
    if cfg.x_noguard: return
    tree()
    b(f"s_cbranch_scc0 {slow}")
    b.label(back)
    b.slow.append((slow, back, reload, tree))

def emit_slow(b):
    for (slow, back, reload, tree) in b.slow:
        loop = b.newlabel("L_sl")
        b.label(slow)
        b.notrack = True
        b("s_mov_b32 s12, 0")
        b.label(loop)
        reload()
        b("s_waitcnt vmcnt(0)")
        tree()
        b(f"s_cbranch_scc1 {back}")
        b("s_add_u32 s12, s12, 1")
        b("s_cmp_lt_u32 s12, 0x4000")
        b(f"s_cbranch_scc1 {loop}")
        b(f"s_branch {back}")
        b.notrack = False

def w_prefetch(b):
    b("s_mul_i32 s6, s2, 7168")
    b(f"s_lshl_b32 s7, s{S_W}, 10")
    b("s_add_u32 s6, s6, s7")
    b("s_add_u32 s7, s6, 4096")
    for n in range(2):
        b(f"buffer_load_dwordx4 {a(A_PF + 8*n, 4)}, v{V_L16}, s[{R_W1}:{R_W1+3}], s{6+n} offen", tag="pf")
        b(f"buffer_load_dwordx4 {a(A_PF + 8*n + 4, 4)}, v{V_L16}, s[{R_W2}:{R_W2+3}], s{6+n} offen", tag="pf")

def touch_xres(b):
    b(f"v_mul_u32_u24 v{T}, 57344, v{V_C}")
    b(f"s_lshl_b32 s6, s{S_J}, 7")
    b(f"s_add_u32 s6, s6, s{S_XR}")
    b("s_mov_b64 exec, 0xffff")
    b(f"buffer_load_dword {a(254)}, v{T}, s[{R_X}:{R_X+3}], s6 offen", tag="tch")
    b("s_mov_b64 exec, -1")

V_TW1, V_TW2 = 8, 9
def touch_w_setup(b):
    b(f"v_lshrrev_b32 v{V_TW1}, 2, v0")
    b(f"v_mul_u32_u24 v{V_TW1}, 3584, v{V_TW1}")
    b(f"v_and_b32 v{V_TW2}, 3, v0")
    b(f"v_lshl_add_u32 v{V_TW1}, v{V_TW2}, 7, v{V_TW1}")
    b(f"v_lshlrev_b32 v{V_TW2}, 7, v0")
    b(f"s_lshr_b32 s6, s{S_IDX}, 3")
    b("s_mul_i32 s7, s6, 112")
    b(f"s_lshl_b32 s8, s{S_W}, 4")
    b("s_add_u32 s7, s7, s8")
    b("s_mul_i32 s7, s7, 3584")
    b(f"s_lshl_b32 s8, s{S_J}, 9")
    b("s_add_u32 s12, s7, s8")
    b("s_mul_i32 s7, s6, 448")
    b(f"s_lshl_b32 s8, s{S_W}, 6")
    b("s_add_u32 s7, s7, s8")
    b("s_lshl_b32 s7, s7, 7")
    b(f"s_mul_i32 s8, s{S_J}, 229376")
    b("s_add_u32 s13, s7, s8")
def touch_w_list(b):
    out = []
    for n in range(2):
        def f1(n=n):
            if n: b(f"s_add_u32 s12, s12, {64*3584}")
            b(f"buffer_load_dword {a(253)}, v{V_TW1}, s[{R_W1}:{R_W1+3}], s12 offen", tag="tch")
        out.append(f1)
    for n in range(2):
        def f2(n=n):
            if n: b(f"s_add_u32 s13, s13, {256*128}")
            b(f"buffer_load_dword {a(252)}, v{V_TW2}, s[{R_W2}:{R_W2+3}], s13 offen", tag="tch")
        out.append(f2)
    return out

def own_line(b, dst):
    b(f"s_mul_i32 s{dst}, s{S_IDX}, 7")
    b(f"s_add_u32 s{dst}, s{dst}, s{S_J}")
    b(f"s_lshl_b32 s{dst}, s{dst}, 2")
    b(f"s_add_u32 s{dst}, s{dst}, s{S_W}")
    b(f"s_lshl_b32 s{dst}, s{dst}, 7")
    b(f"s_add_u32 s{dst}, s{dst}, {WS_FL}")

def p2_scalars(b):
    b(f"s_and_b32 s6, s{S_W}, 1")
    b("s_lshl_b32 s7, s6, 1")
    for lt in range(4): b(f"s_xor_b32 s{S_TT+lt}, s7, {lt}")
    b(f"s_lshr_b32 s7, s{S_W}, 1")
    b("s_mul_i32 s7, s7, 7")
    b("s_lshl_b32 s9, s6, 2")
    b("s_add_u32 s9, s9, s7")
    b(f"s_mov_b32 s{S_PI}, s9")
    for p in range(1, 3): b(f"s_add_u32 s{S_PI+p}, s9, {p}")
    b(f"s_add_u32 s{S_PI+3}, s7, 3")
    b(f"s_mul_i32 s7, s{S_IDX}, {Z_G}")
    for p in range(4):
        b(f"s_lshl_b32 s8, s{S_PI+p}, 12")
        b(f"s_add_u32 s{S_ZL+p}, s7, s8")
        b(f"s_lshl_b32 s{S_P32+p}, s{S_PI+p}, 5")
    b(f"s_cmp_eq_u32 s{S_W}, 0")
    b(f"s_cselect_b32 s{S_MASK}, 0xffff, 0")
    b(f"s_mov_b32 s{S_MASK+1}, 0")
    b(f"s_mul_i32 s{S_RW}, s{S_W}, 24576")
    b(f"s_add_u32 s{S_RW}, s{S_RW}, {RING}")
    b(f"s_lshl_b32 s7, s{S_J}, 9")
    b(f"s_lshl_b32 s9, s{S_W}, 7")
    b(f"s_add_u32 s{S_W1B}, s7, s9")
    b(f"s_mov_b32 s{S_Z0}, s10")
    b(f"s_add_u32 s{S_Z1}, s10, {16*Z_G}")
    t0_of_tt(b, 8, S_W)
    b(f"s_mul_i32 s{S_XR}, s8, 896")

def inbox_scalars(b):
    b(f"s_mul_i32 s11, s{S_IDX}, {PB_G}")
    b(f"s_lshl_b32 s7, s{S_W}, 11")
    b("s_add_u32 s11, s11, s7")
    b(f"s_add_u32 s11, s11, {WS_PB}")
    b(f"s_lshl_b32 s13, s{S_J}, 13")
    b("s_add_u32 s13, s13, s11")
    for p in range(6):
        b(f"s_add_u32 s6, s{S_J}, {p+1}")
        b("s_sub_u32 s7, s6, 7")
        b("s_min_u32 s6, s6, s7")
        b(f"s_mul_i32 s7, s6, {7*8192}")
        b(f"s_add_u32 s{S_IN+p}, s13, s7")

def p2_scalars_late(b):
    b(f"s_lshl_b32 s{S_HWB}, s{S_W}, 13")
    b(f"s_lshl_b32 s6, s{S_J}, 8")
    b(f"s_lshl_b32 s7, s{S_W}, 6")
    b("s_add_u32 s6, s6, s7")
    b("s_mul_i32 s10, s6, 896")
    b(f"s_mul_i32 s11, s{S_IDX}, {PB_G}")
    b(f"s_lshl_b32 s7, s{S_W}, 11")
    b("s_add_u32 s11, s11, s7")
    b(f"s_add_u32 s11, s11, {WS_PB}")
    b(f"s_mul_i32 s12, s{S_J}, {7*8192}")
    b("s_add_u32 s12, s12, s11")
    for p in range(7):
        b(f"s_add_u32 s6, s{S_J}, {p+1}")
        b("s_sub_u32 s7, s6, 7")
        b("s_min_u32 s6, s6, s7")
        b("s_lshl_b32 s7, s6, 7")
        b(f"s_add_u32 s{S_W2+p}, s10, s7")
        if p < 6:
            b("s_lshl_b32 s7, s6, 13")
            b(f"s_add_u32 s{S_PB+p}, s12, s7")
    b(f"s_lshl_b32 s10, s{S_J}, 7")
    b(f"s_lshl_b32 s7, s{S_W}, 5")
    b("s_add_u32 s10, s10, s7")
    b(f"s_sub_u32 s8, 64, s{S_IDX}")
    b(f"s_cmp_eq_u32 s{S_IDX}, 0")
    b("s_cselect_b32 s8, 32, s8")
    for tt in range(4):
        src = f"s{S_IDX}" if tt < 2 else "s8"
        b(f"s_add_u32 s6, {src}, {1024*(tt&1)}")
        b("s_mul_i32 s6, s6, 896")
        b(f"s_add_u32 s{S_O+tt}, s6, s10")

def dma_addr(b):
    t = T
    b(f"v_lshrrev_b32 v{t}, 3, v0")
    b(f"v_bfe_u32 v{t+1}, v{t}, 1, 2")
    b(f"v_lshlrev_b32 v{t+1}, 1, v{t+1}")
    b(f"v_and_b32 v{t+2}, 7, v0")
    b(f"v_xor_b32 v{t+2}, v{t+2}, v{t+1}")
    b(f"v_lshlrev_b32 v{t+2}, 4, v{t+2}")
    b(f"v_mul_u32_u24 v{t+1}, 3584, v{t}")
    b(f"v_add_u32 v{V_W1O}, v{t+1}, v{t+2}")
    b(f"v_add_u32 v{V_W1O+1}, {8*3584 - 1024}, v{V_W1O}")
    b(f"v_sub_u32 v{t+3}, v{t+2}, v{t+1}")
    b(f"v_add_u32 v{V_W1O+2}, {15*3584 - 2048 + 4096}, v{t+3}")
    b(f"v_add_u32 v{V_W1O+3}, {7*3584 - 3072 + 4096}, v{t+3}")
    b(f"v_sub_u32 v{t+3}, 448, v{t}")
    b(f"v_mov_b32 v{t+4}, 224")
    b(f"v_cmp_eq_u32 vcc, 0, v{t}")
    b(f"v_mul_u32_u24 v{t+1}, 896, v{t}")
    b(f"v_cndmask_b32 v{t+3}, v{t+3}, v{t+4}, vcc")
    b(f"v_mul_u32_u24 v{t+3}, 3584, v{t+3}")
    b(f"v_add_u32 v{t+3}, v{t+3}, v{t+2}")
    b(f"v_subrev_u32 v{V_AUX}, 2048, v{t+3}")
    b(f"v_add_u32 v{V_W2O}, v{t+1}, v{t+2}")
    for n in range(1, 4):
        b(f"v_add_u32 v{V_W2O+n}, {n*(8*896 - 1024)}, v{V_W2O}")
    b(f"v_mul_u32_u24 v{t}, {XRS}, v{V_C}")
    b(f"v_lshl_add_u32 v{t}, v{V_GQ}, 4, v{t}")
    for lt in range(4):
        b(f"s_mul_i32 s6, s{S_TT+lt}, {16*XRS}")
        b(f"v_add_u32 v{V_XA+lt}, s6, v{t}")
    b(f"v_lshlrev_b32 v{t}, 3, v{V_GQ}")
    b(f"v_sub_u32 v{t+1}, v{V_C}, v{t}")
    b(f"v_sub_u32 v{t+2}, 16, v{V_C}")
    b(f"v_sub_u32 v{t+2}, v{t+2}, v{t}")
    b(f"v_mov_b32 v{t+3}, 0x3f80")
    b(f"v_mov_b32 v{t+4}, 0x3f800000")
    b(f"v_mov_b32 v{t+5}, 0")
    for (dst, src) in ((V_SEL1, t+1), (V_SEL2, t+2)):
        for m in range(4):
            b(f"v_cmp_eq_u32 vcc, {2*m}, v{src}")
            b(f"v_cmp_eq_u32 s[6:7], {2*m+1}, v{src}")
            b(f"v_cndmask_b32 v{dst+m}, v{t+5}, v{t+3}, vcc")
            b(f"v_cndmask_b32 v{dst+m}, v{dst+m}, v{t+4}, s[6:7]")
    for m in range(4):
        b(f"v_xor_b32 v{V_NSEL2+m}, 0x80008000, v{V_SEL2+m}")


def p2_addr(b):
    t = T
    for p in range(4): b(f"s_sub_u32 s{S_N32+p}, 864, s{S_P32+p}")
    b(f"v_lshlrev_b32 v{t}, 3, v{V_C}")
    b(f"v_lshl_add_u32 v{V_ZO}, v{V_GQ}, 9, v{t}")
    b(f"s_lshl_b32 s7, s{S_PI}, 12")
    b(f"s_lshl_b32 s8, s{S_PI+3}, 12")
    for lt in range(4):
        b(f"s_lshl_b32 s6, s{S_TT+lt}, 10")
        b("s_add_u32 s9, s6, s7")
        b(f"v_add_u32 v{V_HW+lt}, s9, v{V_L16}")
        if lt < 2:
            b("s_add_u32 s9, s6, s8")
            b(f"v_add_u32 v{V_HWS+lt}, s9, v{V_L16}")
        rot(b, 6, lt, 10)
        b(f"v_add_u32 v{V_HB+lt}, s6, v{V_L16}")
    b(f"v_lshrrev_b32 v{t}, 2, v{V_C}")
    b(f"v_lshl_add_u32 v{t}, v{V_GQ}, 2, v{t}")
    b(f"v_bfe_u32 v{t+1}, v{t}, 1, 2")
    b(f"v_and_b32 v{t+2}, 3, v0")
    b(f"v_lshlrev_b32 v{t+2}, 3, v{t+2}")
    b(f"v_lshl_add_u32 v{t+2}, v{t}, 7, v{t+2}")
    b(f"v_add_u32 v{t+4}, s{S_RW}, v{t+2}")
    for u in range(4):
        b(f"v_xor_b32 v{t+3}, {u}, v{t+1}")
        b(f"v_lshl_add_u32 v{V_TR1+u}, v{t+3}, 5, v{t+4}")
    b(f"v_xor_b32 v{t+3}, s{S_W}, v{t+1}")
    b(f"v_lshl_add_u32 v{t+3}, v{t+3}, 5, v{t+2}")
    b(f"v_add_u32 v{V_TR2}, {RING}, v{t+3}")
    b(f"v_add_u32 v{V_TR2+1}, {RING+49152}, v{t+3}")
    b(f"v_mov_b32 v{V_TR2H}, v{t+3}")

def hres_addr(b):
    t = T
    b(f"s_lshl_b32 s6, s{S_J}, 6")
    b(f"s_lshl_b32 s7, s{S_W}, 4")
    b("s_add_u32 s6, s6, s7")
    b(f"v_lshl_add_u32 v{t+4}, v{V_GQ}, 2, s6")
    b("s_lshl_b32 s6, s6, 8")
    b(f"v_add_u32 v{t+5}, s6, v{V_L16}")
    for r in range(4):
        A = V_HA + r
        b(f"v_add_u32 v{t}, {r}, v{t+4}") if r else b(f"v_mov_b32 v{t}, v{t+4}")
        b(f"v_sub_u32 v{t+2}, 448, v{t}")
        b(f"v_mov_b32 v{t+3}, 0")
        b(f"v_cmp_eq_u32 vcc, 224, v{t}")
        b(f"v_add_u32 v{t+1}, {2*r}, v{t+5}")
        b(f"v_cndmask_b32 v{t+2}, v{t+2}, v{t+3}, vcc")
        b(f"v_lshrrev_b32 v{t+3}, 4, v{t+2}")
        b(f"v_lshlrev_b32 v{A}, 12, v{t+3}")
        b(f"v_bfe_u32 v{t+3}, v{t+2}, 2, 2")
        b(f"v_lshl_add_u32 v{t+3}, v{t+3}, 4, v{V_C}")
        b(f"v_lshl_add_u32 v{A}, v{t+3}, 4, v{A}")
        b(f"v_and_b32 v{t+3}, 3, v{t+2}")
        b(f"v_lshl_add_u32 v{A}, v{t+3}, 1, v{A}")
        b(f"v_cmp_gt_u32 vcc, 224, v{t}")
        b(f"v_add_u32 v{A}, 8, v{A}")
        b(f"v_cndmask_b32 v{A}, v{A}, v{t+1}, vcc")

def p1_loop(b):
    stages = cfg.stages
    XBUF = [V_XF, V_XF + 16, V_G + 8]
    def xread(ks):
        ksp, par = ks >> 1, ks & 1
        return [(lambda ls=ls: b(f"ds_read_b128 {v(XBUF[ks % 3] + 4*ls, 4)}, v{V_XB + 2*ls + par} offset:{XL + ksp*8192}", tag=f"xf{ks}")) for ls in range(4)]
    pbp = pb_prefill(b) if (cfg.pre_at == "loop" and not cfg.x_nopre) else []
    rg = []
    for k in range(cfg.ring_early): rg += w1_groups(b, k)
    wk = (record(p2_addr) + record(dma_addr)) if cfg.addr_in_loop else []
    tw = touch_w_list(b) if cfg.touch_w else []
    for si, stg in enumerate(stages):
        b.wait_vm([f"x{stg[-1]}", "pre"])
        if si == 0 or (si == len(stages) - 1 and cfg.ring_early): b("s_waitcnt lgkmcnt(0)")
        b("s_barrier")
        if si == 0: arrive0(b)
        stamp(b, 3 + si)
        kss = [k for p in stg for k in (2*p, 2*p+1)]
        for f in xread(kss[0]) + xread(kss[1]): f()
        if si == 0:
            fm = f_read(b) + ([] if cfg.m_late else m_read(b))
        for n, ks in enumerate(kss):
            nxt = kss[n+2] if n + 2 < len(kss) else None
            b.wait_lg(f"xf{ks}")
            xf = XBUF[ks % 3]
            wd = v(V_WD + 4*ks, 4)
            z = ks == 0
            mf = [f"{MF} {v(V_QQ,4)}, {v(xf,4)}, {v(xf,4)}, {'0' if z else v(V_QQ,4)}",
                  f"{MF} {v(V_SS,4)}, {v(V_ONE,4)}, {v(xf,4)}, {'0' if z else v(V_SS,4)}"]
            for ls in range(4):
                mf.append(f"{MF} {v(V_ACC + 4*ls, 4)}, {v(xf + 4*ls, 4)}, {wd}, {'0' if z else v(V_ACC + 4*ls, 4)}")
            fill = xread(nxt) if nxt is not None else []
            nf = 2 if cfg.m_late else 6
            fill = fill + fm[:nf]; fm = fm[nf:]
            if ks >= 2 and pbp: fill.append(pbp.pop(0))
            if tw and ks % 3 == 1: fill.append(tw.pop(0))
            if wk:
                nw = (len(wk) + 13 - ks) // (14 - ks)
                sched(b, mf, first=fill, misc=wk[:nw], cap=3); wk = wk[nw:]
            elif ks >= 8 and rg:
                n = (len(rg) + 13 - ks) // (14 - ks)
                sched(b, mf, first=fill, vm=rg[:n], cap=3); rg = rg[n:]
            else:
                weave(b, mf, fill, per=2)

def stats_core(b, SS, QQ, scale4):
    b(f"v_cndmask_b32 v{QQ}, v{QQ}, v{QQ+1}, s[{S_M1}:{S_M1+1}]")
    b(f"v_mul_f32 v{SS}, 0x3b124925, v{SS}")
    b(f"v_cndmask_b32 v{QQ}, v{QQ}, v{QQ+2}, s[{S_M1+2}:{S_M1+3}]")
    b(f"v_cndmask_b32 v{QQ}, v{QQ}, v{QQ+3}, s[{S_M1+4}:{S_M1+5}]")
    b(f"v_mul_f32 v{QQ}, 0x3b124925, v{QQ}")
    b(f"v_fma_f32 v{QQ}, -v{SS}, v{SS}, v{QQ}")
    b(f"v_max_f32 v{QQ}, 0, v{QQ}")
    if scale4:
        b(f"v_mul_f32 v{QQ}, 0x3e800000, v{QQ}")
    b(f"v_add_f32 v{QQ}, 0x3727c5ac, v{QQ}")
    b(f"v_rsq_f32 v{QQ}, v{QQ}")

def p1_tail(b, xl=None):
    t = T
    xl = xl if xl is not None else []
    def X():
        if xl: xl.pop(0)()
    stamp(b, 6)
    stats_core(b, V_SS, V_QQ, False)
    b(f"s_lshl_b32 s6, s{S_W}, 6")
    b(f"s_add_u32 s6, s6, {STAT}")
    b(f"v_lshl_add_u32 v{t}, v{V_C}, 2, s6")
    b(f"v_mul_f32 v{V_SS}, v{V_QQ}, v{V_SS}")
    b(f"v_add_f32 v{V_QQ}, v{V_QQ}, v{V_QQ}")
    b(f"v_mul_f32 v{V_SS}, -2.0, v{V_SS}")
    b(f"s_mov_b64 exec, s[{S_DIAG}:{S_DIAG+1}]")
    b(f"ds_write_b32 v{t}, v{V_QQ}")
    b(f"ds_write_b32 v{t}, v{V_SS} offset:256")
    b("s_mov_b64 exec, -1")
    b("s_waitcnt lgkmcnt(0)")
    b("s_barrier")
    for ls in range(4):
        b(f"ds_read_b128 {v(V_AB + 8*ls, 4)}, v{V_SA + ls}", tag=f"ab{ls}")
        b(f"ds_read_b128 {v(V_AB + 8*ls + 4, 4)}, v{V_SA + ls} offset:256", tag=f"ab{ls}")
    if xl:
        b(f"s_mul_i32 s96, s{S_W}, {16*XRS}")
    X()
    for ls in range(4):
        b.wait_lg(f"ab{ls}")
        al, be, ac = V_AB + 8*ls, V_AB + 8*ls + 4, V_ACC + 4*ls
        for h in range(2):
            b(f"v_pk_mul_f32 {v(be+2*h,2)}, {v(be+2*h,2)}, {v(V_CS1,2)} op_sel_hi:[1,0]")
        for h in range(2):
            b(f"v_pk_fma_f32 {v(ac+2*h,2)}, {v(al+2*h,2)}, {v(ac+2*h,2)}, {v(be+2*h,2)}")
        for h in range(2):
            b(f"v_cvt_pk_f16_f32 v{V_A + 2*ls + h}, v{ac+2*h}, v{ac+2*h+1}")
        if ls in (1, 3): X()
    stamp(b, 7)
    for gh in range(2):
        for sg in range(2):
            d = V_D2 + (gh*2 + sg)*4
            b(f"{MH} {v(d,4)}, {v(V_A,4)}, {v(V_F + ((gh*2+sg)*2)*4,4)}, 0")
    for gh in range(2):
        for sg in range(2):
            d = V_D2 + (gh*2 + sg)*4
            b(f"{MH} {v(d,4)}, {v(V_A+4,4)}, {v(V_F + ((gh*2+sg)*2+1)*4,4)}, {v(d,4)}")
    X()
    for gh in range(2):
        for r in range(4):
            b(f"v_cvt_pk_f16_f32 v{V_ZP + 4*gh + r}, v{V_D2 + (gh*2)*4 + r}, v{V_D2 + (gh*2+1)*4 + r}")
        b(f"buffer_store_dwordx4 {v(V_ZP + 4*gh, 4)}, v{V_ZO1}, s[{R_WS}:{R_WS+3}], s{S_Z0+gh} offen sc1", tag="zst")

def xres_pad(b):
    b(f"s_mul_i32 s96, s{S_W}, {16*XRS}")
    b(f"v_lshrrev_b32 v{T}, 1, v0")
    b(f"v_mul_u32_u24 v{T}, {XRS}, v{T}")
    b(f"v_and_b32 v{T+1}, 1, v0")
    b(f"v_lshl_add_u32 v{T}, v{T+1}, 4, v{T}")
    b(f"v_add_u32 v{T}, s96, v{T}")
    for r in range(4): b(f"v_mov_b32 v{T+4+r}, 0")
    b("s_mov_b32 exec_hi, 0")
    b(f"ds_write_b128 v{T}, {v(T+4,4)} offset:{XL+896}")
    b("s_mov_b32 exec_hi, -1")

def xres_list(b):
    out = []
    for c in range(16):
        def f(c=c):
            if cfg.xres_rot:
                b(f"s_lshl_b32 s12, s{S_J}, 1")
                b(f"s_add_u32 s12, s12, {c}")
                b("s_and_b32 s12, s12, 15")
                b(f"s_mul_i32 s13, s12, {XRS}")
                b("s_add_u32 s13, s13, s96")
                b(f"s_add_u32 m0, s13, {XL}") if XL else b("s_mov_b32 m0, s13")
                b("s_mul_i32 s12, s12, 57344")
                b(f"s_add_u32 s95, s{S_XR}, s12")
            else:
                b(f"s_add_u32 m0, s96, {XL + c*XRS}")
                b(f"s_add_u32 s95, s{S_XR}, {c*57344}")
            if not cfg.x_noexec: b("s_mov_b32 exec_hi, 0x00ffffff")
            b(f"buffer_load_dwordx4 v{V_L16}, s[{R_X}:{R_X+3}], s95 offen lds", tag="xres")
            if not cfg.x_noexec: b("s_mov_b32 exec_hi, -1")
        out.append(f)
    return out

def w1_groups(b, k):
    slot = k % 6
    out = []
    for n in range(4):
        pre = []
        if n == 0:
            pre = [f"s_add_u32 m0, s{S_RW}, {slot*4096}", (f"s_add_u32 s95, s{S_W1B}, {16*k*3584}" if k else f"s_mov_b32 s95, s{S_W1B}")]
        if n == 2 and not k == 0: pre = [f"s_add_u32 s96, s{S_W1B}, {(433 - 16*k)*3584 - 4096}"]
        if n == 3 and k == 0: pre = [f"s_add_u32 s96, s{S_W1B}, {(433 - 16*k)*3584 - 4096}"]
        def f(n=n):
            if n < 2: vo, so = V_W1O + n, "s95"
            elif k == 0 and n == 2: vo, so = V_AUX, f"s{S_W1B}"
            else: vo, so = V_W1O + n, "s96"
            off = f" offset:{1024*n}" if n else ""
            b(f"buffer_load_dwordx4 v{vo}, s[{R_W1}:{R_W1+3}], {so} offen{off} lds", tag=f"w1_{k}")
        out.append((pre, f))
    return out

def flat(gs):
    out = []
    for pre, op in gs: out += list(pre) + [op]
    return out
def w1_dma(b, k): return flat(w1_groups(b, k))

def units():
    return [(p, lt) for lt in range(4) for p in range(4) if not (p == 3 and lt >= 2)]
def preg(p, lt): return V_P + (p*4 + lt)*4 if p < 3 else V_PS + lt*4
def qreg(p, lt): return V_Q + (p*4 + lt)*4 if p < 3 else V_QS + lt*4

A_W = 64
def x_init(b, extra=()):
    us = units()
    AD = T
    def rd(i):
        p, lt = us[i]; w = A_W + 8*(i & 3)
        return [f"v_add_u32 v{AD + 2*(i&1)}, s{S_P32+p}, v{V_XA+lt}",
                f"v_add_u32 v{AD + 2*(i&1) + 1}, s{S_N32+p}, v{V_XA+lt}",
                lambda: b(f"ds_read_b128 {a(w,4)}, v{AD + 2*(i&1)} offset:{XL}", tag=f"xw{i}"),
                lambda: b(f"ds_read_b128 {a(w+4,4)}, v{AD + 2*(i&1) + 1} offset:{XL}", tag=f"xw{i}")]
    for lt in range(4):
        b(f"ds_read_b32 v{V_E + 4*lt}, v{V_XA+lt} offset:{XL+448}", tag="xe")
    for i in range(3):
        for f in rd(i): emit(b, f)
    extra = list(extra)
    for i, (p, lt) in enumerate(us):
        b.wait_lg(f"xw{i}")
        w = A_W + 8*(i & 3); P, Q = preg(p, lt), qreg(p, lt)
        mf = [f"{MF} {v(P,4)}, {v(V_SEL1,4)}, {a(w,4)}, 0",
              f"{MF} {v(Q,4)}, {v(V_SEL1,4)}, {a(w,4)}, 0",
              f"{MF} {v(P,4)}, {v(V_SEL2,4)}, {a(w+4,4)}, {v(P,4)}",
              f"{MF} {v(Q,4)}, {v(V_NSEL2,4)}, {a(w+4,4)}, {v(Q,4)}"]
        fill = rd(i+3) if i + 3 < len(us) else []
        ne = (len(extra) + len(us) - i - 1) // (len(us) - i)
        fill = extra[:ne] + fill; extra = extra[ne:]
        weave(b, mf, fill, per=2)
    b("s_nop 7")
    b(f"v_mov_b32 v{T+1}, 0")
    for lt in range(4):
        P, Q, E = preg(0, lt), qreg(0, lt), V_E + 4*lt
        b(f"v_add_f32 v{T}, v{P}, v{P}")
        b(f"v_cndmask_b32 v{Q}, v{Q}, v{T+1}, s[{S_MASK}:{S_MASK+1}]")
        b(f"v_cndmask_b32 v{P}, v{P}, v{T}, s[{S_MASK}:{S_MASK+1}]")
        b(f"v_lshlrev_b32 v{E}, 16, v{E}")
        b(f"v_add_f32 v{E}, v{E}, v{E}")

def z_load(b, p):
    for ks in range(2):
        for j in range(4):
            reg = V_Z + (p*2 + ks)*8 + 2*j
            b(f"buffer_load_dwordx2 {v(reg,2)}, v{V_ZO}, s[{R_WS}:{R_WS+3}], s{S_ZL+p} offen offset:{ks*2048 + j*128} sc1", tag=f"z{p}_{ks}")
def z_list(b):
    out = []
    if cfg.x_z4:
        b(f"v_and_b32 v{T+6}, 7, v{V_C}")
        b(f"v_lshlrev_b32 v{T+6}, 4, v{T+6}")
        b(f"v_lshrrev_b32 v{T+7}, 3, v{V_C}")
        b(f"v_lshl_add_u32 v{T+6}, v{T+7}, 7, v{T+6}")
        b(f"v_lshl_add_u32 v{T+6}, v{V_GQ}, 9, v{T+6}")
        for p in range(4):
            for ks in range(2):
                for j in range(2):
                    reg = V_Z + (p*2 + ks)*8 + 4*j
                    out.append(lambda p=p, ks=ks, j=j, reg=reg: b(f"buffer_load_dwordx4 {v(reg,4)}, v{T+6}, s[{R_WS}:{R_WS+3}], s{S_ZL+p} offen offset:{ks*2048 + j*256} sc1", tag=f"z{p}_{ks}"))
        return out
    for p in range(4):
        for ks in range(2):
            for j in range(4):
                reg = V_Z + (p*2 + ks)*8 + 2*j
                out.append(lambda p=p, ks=ks, j=j, reg=reg: b(f"buffer_load_dwordx2 {v(reg,2)}, v{V_ZO}, s[{R_WS}:{R_WS+3}], s{S_ZL+p} offen offset:{ks*2048 + j*128} sc1", tag=f"z{p}_{ks}"))
    return out

def pb_prefill(b):
    out = []
    for q in range(6):
        for h in range(2):
            out.append(lambda q=q, h=h: b(f"buffer_store_dwordx4 {v(V_NEG,4)}, v{V_L16}, s[{R_WS}:{R_WS+3}], s{S_IN+q} offen offset:{1024*h} sc1", tag="pbpre"))
    return out

def step_b(b, ring=()):
    def swaps(p, ks):
        z = V_Z + (p*2 + ks)*8
        return [f"v_swap_b32 v{z+1}, v{z+2}", f"v_swap_b32 v{z+2}, v{z+4}", f"v_swap_b32 v{z+3}, v{z+6}", f"v_swap_b32 v{z+5}, v{z+6}"]
    def epi(p, lt):
        P, Q = preg(p, lt), qreg(p, lt)
        fl = []
        for r in range(4):
            fl.append(f"v_add_f32 v{T+r}, v{P+r}, v{Q+r}")
            fl.append(f"v_sub_f32 v{T+4+r}, v{P+r}, v{Q+r}")
        if p == 0:
            fl.append(f"v_cndmask_b32 v{T}, v{T}, v{P}, s[{S_MASK}:{S_MASK+1}]")
            fl.append(f"v_cndmask_b32 v{T+4}, v{T+4}, v{V_E+4*lt}, s[{S_MASK}:{S_MASK+1}]")
        fl.append(f"v_cvt_pk_bf16_f32 v{P+0}, v{T+0}, v{T+1}")
        fl.append(f"v_cvt_pk_bf16_f32 v{P+1}, v{T+2}, v{T+3}")
        fl.append(f"v_cvt_pk_bf16_f32 v{P+2}, v{T+4}, v{T+5}")
        fl.append(f"v_cvt_pk_bf16_f32 v{P+3}, v{T+6}, v{T+7}")
        if p < 3:
            fl.append(lambda: b(f"ds_write_b128 v{V_HW+lt}, {v(P,4)} offset:{XL + p*4096}", tag="hw"))
        else:
            fl.append(lambda: b(f"ds_write_b128 v{V_HWS+lt}, {v(P,4)} offset:{XL}", tag="hw"))
        return fl
    def mf(p, lt):
        P, Q = preg(p, lt), qreg(p, lt)
        out = []
        for ks in range(2):
            z = V_Z + (p*2 + ks)*8
            out.append(f"{MH} {v(P,4)}, {v(z,4)}, {a(mreg(lt,ks,0),4)}, {v(P,4)}")
            out.append(f"{MH} {v(Q,4)}, {v(z+4,4)}, {a(mreg(lt,ks,1),4)}, {v(Q,4)}")
        return out
    order = [(p, lt) for p in range(4) for lt in range(4) if not (p == 3 and lt >= 2)]
    done = []
    pre = [] if cfg.x_noring else list(ring)
    nun = len(order)
    for iu, (p, lt) in enumerate(order):
        if lt == 0:
            b.wait_vm(f"z{p}_1")
            if cfg.fineb: stamp(b, 24 + p, True)
            guarded(b, [V_Z + p*16 + i for i in range(16)], lambda p=p: z_load(b, p), f"z{p}")
            for ks in range(2):
                for sw in swaps(p, ks): b(sw)
            if p == 0:
                lab = b.newlabel("L_noE")
                b(f"s_cmp_eq_u32 s{S_W}, 0")
                b(f"s_cbranch_scc0 {lab}")
                for ks in range(2):
                    for l2 in range(4):
                        z = V_Z + ks*8
                        b(f"{MH} {v(V_E+4*l2,4)}, {v(z+4,4)}, {a(mreg(l2,ks,0),4)}, {v(V_E+4*l2,4)}")
                b.label(lab)
        fl = epi(*done[-2]) if len(done) >= 2 else []
        nv = (len(pre) + (nun - iu) - 1) // (nun - iu)
        vm = pre[:nv]; pre = pre[nv:]
        sched(b, mf(p, lt), vm=vm, misc=fl, cap=5)
        done.append((p, lt))
    for f in epi(*done[-2]): emit(b, f)
    for f in epi(*done[-1]): emit(b, f)

def slab_buf(p):
    return {0: 1, 1: 2, 2: 0, 3: 1, 4: 2, 5: "H", 6: "S"}[p]

def w2_groups(b, p):
    sg = slab_buf(p)
    out = []
    for hf in range(2):
        for n in range(4):
            pre = []
            if n == 0:
                pre.append(f"s_add_u32 m0, s{S_HWB}, {XL + hf*4096}" if sg == "H" else f"s_add_u32 m0, s{S_RW}, {sg*8192 + hf*4096}")
                if hf: pre.append(f"s_add_u32 s95, s{S_W2+p}, {32*896}")
            def f(n=n, hf=hf):
                so = "s95" if hf else f"s{S_W2+p}"
                off = f" offset:{1024*n}" if n else ""
                b(f"buffer_load_dwordx4 v{V_W2O+n}, s[{R_W2}:{R_W2+3}], {so} offen{off} lds", tag=f"w2_{p}")
            out.append((pre, f))
    return out
def w2_dma(b, p): return flat(w2_groups(b, p))

S_S6 = 6
def w2_groups6(b):
    ga, gb = [], []
    for i in range(6):
        pre = []
        if i == 0:
            pre = [f"s_mul_i32 s95, s{S_W}, {16*896}", f"s_sub_u32 s95, s{S_W2+6}, s95",
                   f"s_mul_i32 s96, s{S_W}, 6144", f"s_add_u32 m0, s96, {XL + 32768}"]
        if i == 4:
            pre = [f"s_add_u32 s95, s95, {32*896}", f"s_add_u32 m0, s96, {XL + 32768 + 4096}"]
        n = i & 3
        def f(n=n):
            off = f" offset:{1024*n}" if n else ""
            b(f"buffer_load_dwordx4 v{V_W2O+n}, s[{R_W2}:{R_W2+3}], s95 offen{off} lds", tag="w2_6")
        ga.append((pre, f))
    for i in range(2):
        pre = []
        if i == 0:
            pre = [f"s_mul_i32 s95, s{S_W}, {48*896}", f"s_sub_u32 s95, s{S_W2+6}, s95", f"s_add_u32 s95, s95, {192*896}",
                   f"s_lshl_b32 s96, s{S_W}, 11", f"s_add_u32 m0, s96, {RING}"]
        def f(n=i):
            off = f" offset:{1024*n}" if n else ""
            b(f"buffer_load_dwordx4 v{V_W2O+n}, s[{R_W2}:{R_W2+3}], s95 offen{off} lds", tag="w2_6")
        gb.append((pre, f))
    return ga, gb

def cs_loads(b):
    out = []
    def hdr():
        b(f"s_lshl_b32 s6, s{S_J}, 10")
        b(f"s_lshl_b32 s7, s{S_W}, 8")
        b("s_add_u32 s6, s6, s7")
        b(f"s_add_u32 s{S_CSO}, s6, {WS_CS}")
        b(f"v_lshlrev_b32 v{V_CSA}, 4, v{V_GQ}")
    hdr()
    cs_reload(b)

def cs_reload(b):
    for ft in range(4):
        b(f"buffer_load_dwordx4 {v(V_CS+4*ft,4)}, v{V_CSA}, s[{R_WS}:{R_WS+3}], s{S_CSO} offen offset:{64*ft} sc1", tag="cs")

def gemm1(b):
    def reads(k):
        buf = k & 1; slot = k % 6
        out = []
        for lt in range(4):
            out.append(lambda lt=lt: b(f"ds_read_b128 {v(V_B1 + 16*buf + 4*lt, 4)}, v{V_HB+lt} offset:{XL + k*4096}", tag=f"r{k}"))
        for u in range(4):
            for hh in range(2):
                out.append(lambda u=u, hh=hh: b(f"ds_read_b64_tr_b16 {v(V_A1 + 16*buf + 4*u + 2*hh, 2)}, v{V_TR1+u} offset:{slot*4096 + hh*2048}", tag=f"r{k}"))
        return out
    late = record(epi_addr) + record(flag_setup)
    b.wait_vm("w1_0")
    for f in reads(0): f()
    hres = [f"v_mov_b32 v{V_HRES+k}, 0" for k in range(16)]
    hrd = [(lambda tt=tt, r=r: b(f"ds_read_u16_d16_hi v{V_HRES + tt*4 + r}, v{V_HA + r} offset:{XL + tt*1024}", tag="hres")) for tt in range(4) for r in range(4)]
    s0 = []
    for k2 in range(8):
        s0 += slab_read(b, 0, k2, lambda o, k2=k2: a(A_S0 + 4*k2 + o, 2), "s0")
    g0, g1, g2 = w2_groups(b, 0), w2_groups(b, 1), w2_groups(b, 2)
    for k in range(14):
        buf = k & 1
        if k == 12:
            b.wait_vm("w2_0")
            b.wait_lg(f"r{k}")
            b("s_barrier")
        else:
            b.wait_lg(f"r{k}")
        if cfg.fine: stamp(b, k)
        first, vm, misc = [], [], []
        if k + 1 < 14:
            first.append(lambda k=k: b.wait_vm(f"w1_{k+1}"))
            if not cfg.x_noreads: first += reads(k + 1)
        if k + 6 < 14 and not cfg.x_now1dma: vm += w1_groups(b, k + 6)
        if k == 8: misc += hres
        if k == 8: vm += g0[:4]
        if k == 9: vm += g0[4:]; misc += hrd[:8]
        if k == 10: vm += g1[:4]; misc += hrd[8:]
        if k == 11: vm += g1[4:]; misc.append(lambda: ready_set(b))
        if k == 12: vm += g2[:4]; misc += s0[:8]
        if k < 8:
            n = (len(late) + 7 - k) // (8 - k)
            misc += late[:n]; late = late[n:]
        bb = V_B1 + 16*buf
        z = k == 0
        mf = [f"{MF} {v(V_Q2,4)}, {v(bb,4)}, {v(bb,4)}, {'0' if z else v(V_Q2,4)}",
              f"{MF} {v(V_S2,4)}, {v(V_ONE2,4)}, {v(bb,4)}, {'0' if z else v(V_S2,4)}"]
        pairs = [(lt, u) for u in range(4) for lt in range(4)] if cfg.g1_umajor else [(lt, u) for lt in range(4) for u in range(4)]
        for lt, u in pairs:
            d = V_ACC1 + (u*4 + lt)*4
            mf.append(f"{MF} {v(d,4)}, {v(V_A1 + 16*buf + 4*u, 4)}, {v(bb + 4*lt, 4)}, {'0' if z else v(d,4)}")
        if k == 13:
            r = Rec()
            stats_core(r, V_S2, V_Q2, True)
            sf = r.l + [f"s_lshl_b32 s6, s{S_W}, 6", f"s_add_u32 s6, s6, {STAT}", f"v_lshl_add_u32 v{T}, v{V_C}, 2, s6",
                        f"v_sub_f32 v{V_S2}, 0, v{V_S2}", f"v_mul_f32 v{V_Q2}, 0.5, v{V_Q2}"]
            sched(b, mf[:6], first=s0[8:], vm=g2[4:5])
            sched(b, mf[6:], vm=g2[5:], misc=sf)
            b(f"s_mov_b64 exec, s[{S_DIAG}:{S_DIAG+1}]")
            b(f"ds_write_b32 v{T}, v{V_S2}")
            b(f"ds_write_b32 v{T}, v{V_S2} offset:256")
            b(f"ds_write_b32 v{T}, v{V_Q2} offset:512")
            b("s_mov_b64 exec, -1")
            b.g2rest = []
        else:
            sched(b, mf, first=first, vm=vm, misc=misc, misc_from=6)

def slab_read(b, p, k2, dst, tagp):
    sg = slab_buf(p)
    part = k2 >> 1
    if sg == "H":
        base = V_TR2H; off = XL + part*8192 + (k2 & 1)*4096
    elif sg == "S":
        if k2 < 6: base = V_TR2H; off = XL + 32768 + k2*4096
        else: base = V_TR2; off = (k2 - 6)*4096
    else:
        base = V_TR2 + (part >> 1)
        off = (part & 1)*24576 + sg*8192 + (k2 & 1)*4096
    return [(lambda hh=hh: b(f"ds_read_b64_tr_b16 {dst(2*hh)}, v{base} offset:{off + hh*2048}", tag=tagp)) for hh in range(2)]

V_NA = 54
V_SR = 36
def epi_addr(b):
    b(f"s_lshl_b32 s6, s{S_W}, 13")
    for l2 in range(4): b(f"v_add_u32 v{V_NA+l2}, s6, v{V_HB+l2}")
    b(f"v_lshlrev_b32 v{V_SR}, 2, v{V_C}")
    b(f"v_add_u32 v{V_SR}, {STAT}, v{V_SR}")
    b(f"s_lshl_b32 s6, s{S_W}, 6")
    b(f"v_add_u32 v{V_SR+1}, s6, v{V_SR}")

def gemm1_epi(b):
    b.wait_vm("w2_1")
    b("s_waitcnt lgkmcnt(0)")
    if cfg.finee: stamp(b, 24, True)
    b("s_barrier")
    if cfg.finee: stamp(b, 25, True)
    for lt in range(4):
        b(f"ds_read_b32 v{V_NM+2*lt}, v{V_SR+1} offset:{64*lt}", tag="nm")
    for tt in range(4):
        b(f"ds_read_b32 v{V_RR+tt}, v{V_SR} offset:{512 + 64*tt}", tag="rr")
    ready_load(b)
    b.wait_vm("cs")
    guarded(b, [V_CS + i for i in range(16)], lambda: cs_reload(b), "cs")
    b.wait_lg("nm")
    if cfg.finee: stamp(b, 26, True)
    main = []
    for lt in range(4):
        for fp in range(2):
            pk = V_PK + 4*((lt*2 + fp) & 3)
            for hh in range(2):
                d = V_ACC1 + ((2*fp + hh)*4 + lt)*4
                for h in range(2):
                    main.append(f"v_pk_fma_f32 {v(d+2*h,2)}, {v(V_CS+4*(2*fp+hh)+2*h,2)}, {v(V_NM+2*lt,2)}, {v(d+2*h,2)} op_sel_hi:[1,0,1]")
            for hh in range(2):
                d = V_ACC1 + ((2*fp + hh)*4 + lt)*4
                main.append(f"v_cvt_pk_bf16_f32 v{pk+2*hh}, v{d}, v{d+1}")
                main.append(f"v_cvt_pk_bf16_f32 v{pk+2*hh+1}, v{d+2}, v{d+3}")
            for q in range(4):
                main.append(f"v_pk_max_i16 v{pk+q}, v{pk+q}, 0")
            main.append(lambda lt=lt, fp=fp, pk=pk: b(f"ds_write_b128 v{V_NA+lt}, {v(pk,4)} offset:{XL + fp*4096}", tag="hidw"))
    g6a, b.g6b = w2_groups6(b)
    b.g6a = g6a
    dm = [flat([g]) for g in b.g2rest + ([] if cfg.late_w2 else w2_groups(b, 3))]
    dm = [(lambda l=l: [emit(b, x) for x in l]) for l in dm]
    s1 = []
    for k2 in range(8):
        s1 += slab_read(b, 1, k2, lambda o, k2=k2: a(A_S0 + 32 + 4*k2 + o, 2), "s1")
    multi_spread(b, main, [x for x in (dm, s1) if x])
    if cfg.finee: stamp(b, 27, True)
    if cfg.fewbar: b.wait_vm("w2_2")
    b("s_waitcnt lgkmcnt(0)")
    b("s_barrier")

V_INR = [160, 168, 176, 184, 208, 216]
def inbox_load(b, q):
    return [([], (lambda h=h: b(f"buffer_load_dwordx4 {v(V_INR[q]+4*h,4)}, v{V_L16}, s[{R_WS}:{R_WS+3}], s{S_IN+q} offen offset:{1024*h} sc1", tag=f"p{q}"))) for h in range(2)]

def gemm2(b):
    hb = []
    for k2 in range(8):
        for tt in range(4):
            hb.append((k2, lambda k2=k2, tt=tt: b(f"ds_read_b128 {a((k2*4 + tt)*4, 4)}, v{V_L16} offset:{XL + k2*4096 + tt*1024}", tag=f"hb{k2}")))
    def aread(p, k2):
        if p <= 1: return []
        return slab_read(b, p, k2, lambda o: v(V_A2 + 4*(k2 & 3) + o, 2), f"a{p}_{k2}")
    def aop(p, k2):
        return a(A_S0 + 32*p + 4*k2, 4) if p <= 1 else v(V_A2 + 4*(k2 & 3), 4)
    def epi(p):
        acc = V_ACC2 + 16*(p & 1)
        pk = V_PK + 8*(p & 1)
        cv, st = [], []
        for h in range(2):
            pre = []
            for tt in (2*h, 2*h+1):
                pre.append(f"v_cvt_pk_bf16_f32 v{pk+2*tt}, v{acc+4*tt}, v{acc+4*tt+1}")
                pre.append(f"v_cvt_pk_bf16_f32 v{pk+2*tt+1}, v{acc+4*tt+2}, v{acc+4*tt+3}")
            cv.append(pre)
            st.append(lambda h=h: b(f"buffer_store_dwordx4 {v(pk+4*h,4)}, v{V_L16}, s[{R_WS}:{R_WS+3}], s{S_PB+p} offen offset:{1024*h} sc1", tag=f"pst{p}") if not cfg.x_nostore else None)
        return cv, st
    def mfs(p, k2):
        acc = V_ACC2 + 16*(p & 1)
        return [f"{MF} {v(acc+4*tt,4)}, {aop(p, k2)}, {a((k2*4+tt)*4, 4)}, {v(acc+4*tt, 4) if k2 else '0'}" for tt in range(4)]
    W = {q: w2_groups(b, q) for q in (4, 5)}
    plan = {0: W[4], 1: W[5], 2: b.g6a, 3: b.g6b}
    if cfg.late_w2: plan = {0: w2_groups(b, 3), 1: W[4], 2: W[5], 3: b.g6a, 4: b.g6b}
    if cfg.early_in == 1:
        plan[5] = inbox_load(b, 5) + inbox_load(b, 4) + inbox_load(b, 3)
        plan[6] = inbox_load(b, 2)
    elif cfg.early_in == 2:
        plan[4] = inbox_load(b, 5)
        plan[5] = inbox_load(b, 4) + inbox_load(b, 3)
        plan[6] = inbox_load(b, 2)
    elif cfg.early_in == 3:
        plan[6] = inbox_load(b, 5) + inbox_load(b, 4) + inbox_load(b, 3)
    late_in = {5: [], 6: []}
    for (k2, f) in hb[:8]: f()
    tail = []
    for p in range(7):
        if cfg.fine: stamp(b, 24 + p)
        vm = list(plan.get(p, []))
        cv, st = epi(p - 1) if p >= 1 else ([], [])
        body = list(tail)
        firsts = []
        if p >= 1: firsts = aread(p, 0) + aread(p, 1)
        nt = len(tail)
        nvm_tail = min(len(vm), 2) if nt else 0
        if nt:
            b.wait_lg([f"a{p-1}_6"])
            sched(b, tail[:4], first=firsts[:2], vm=vm[:min(1, nvm_tail)])
            b.wait_lg([f"a{p-1}_7"])
            sched(b, tail[4:], first=firsts[2:], vm=vm[1:nvm_tail])
            vm = vm[nvm_tail:]
        if p == 1: ready_check(b)
        if p == 4 and cfg.trim:
            for tt in range(4): b(f"v_mov_b32 v{V_RR2+2*tt}, v{V_RR+tt}")
            for k in range(16): b.pending_half.append(f"v_mul_f32 v{V_HRES+k}, 0.5, v{V_HRES+k}")
        stg = [(cv[h], st[h]) for h in range(2)] if st else []
        order = (vm + stg) if ((cfg.early_in and p >= 4 and cfg.in_first) or (cfg.dma_first and p <= 3)) else stg + vm
        per = [[] for _ in range(6)]
        for i, g in enumerate(order): per[min(5, (i * 6) // max(len(order), 1))].append(g)
        for k2 in range(6):
            b.wait_lg([f"hb{k2}", f"a{p}_{k2}"])
            first = aread(p, k2 + 2)
            if p == 0: first += [f for (kk, f) in hb if kk == k2 + 2]
            gs = per[k2]
            if gs and len(gs[0][0]) > 2:
                sched(b, mfs(p, k2), first=first, misc=gs[0][0], cap=3)
                for g in gs[:1]: emit(b, g[1])
                for g in gs[1:]:
                    for x in g[0]: emit(b, x)
                    emit(b, g[1])
            else:
                hm = b.pending_half[:4]; b.pending_half = b.pending_half[4:]
                sched(b, mfs(p, k2), first=first, vm=gs, misc=hm)
        if p < 6:
            if cfg.fewbar:
                need = {0: 3, 2: 4, 3: None, 4: 5, 5: 6}.get(p)
                if p == 3: b.wait_vm("w2_4")
                if need: b.wait_vm(f"w2_{need}")
                if p in (0, 2): b("s_waitcnt lgkmcnt(0)")
                if p in (0, 2, 4, 5): b("s_barrier")
            else:
                if p + 1 >= 2: b.wait_vm(f"w2_{p+1}")
                if p in (0, 2): b("s_waitcnt lgkmcnt(0)")
                if not cfg.x_nobar2: b("s_barrier")
            tail = mfs(p, 6) + mfs(p, 7)
        else:
            b.wait_lg([f"a{p}_6", f"a{p}_7"])
            last = {0: [5, 4], 1: [1], 2: [1], 3: [2, 1]}[cfg.early_in]
            sched(b, mfs(p, 6) + mfs(p, 7), vm=[g for q in last for g in inbox_load(b, q)])

def flag_setup(b):
    t = T
    b(f"v_add_u32 v{t}, s{S_J}, v0")
    b(f"v_add_u32 v{t}, 1, v{t}")
    b(f"v_subrev_u32 v{t+1}, 7, v{t}")
    b(f"v_cmp_le_u32 vcc, 7, v{t}")
    b(f"s_mul_i32 s6, s{S_IDX}, 7")
    b(f"v_cndmask_b32 v{t}, v{t}, v{t+1}, vcc")
    b(f"v_add_u32 v{t}, s6, v{t}")
    b(f"v_lshlrev_b32 v{t}, 9, v{t}")
    b(f"s_lshl_b32 s6, s{S_W}, 7")
    b(f"s_add_u32 s6, s6, {WS_FL}")
    b(f"v_add_u32 v{t+6}, s6, v{t}")
    own_line(b, 13)
    b(f"v_mov_b32 v{t+5}, 1")
    b(f"v_mov_b32 v{t+4}, 0")

def ready_set(b):
    b.wait_vm("pbpre")
    b("s_mov_b64 exec, 1")
    b(f"buffer_store_dword v{T+5}, v{T+4}, s[{R_WS}:{R_WS+3}], s13 offen sc1", tag="rdy")
    b("s_mov_b64 exec, -1")

def ready_load(b):
    b("s_mov_b64 exec, 0x3f")
    b(f"buffer_load_dword v{T+7}, v{T+6}, s[{R_WS}:{R_WS+3}], 0 offen sc1", tag="rdl")
    b("s_mov_b64 exec, -1")

def ready_check(b):
    b.wait_vm("rdl")
    l2 = b.newlabel("L_rd"); l3 = b.newlabel("L_rdd")
    b.notrack = True
    b("s_mov_b32 s12, 0")
    b("s_mov_b64 exec, 0x3f")
    b.label(l2)
    b(f"v_cmp_ne_u32 vcc, 1, v{T+7}")
    b("s_cmp_eq_u64 vcc, 0")
    b(f"s_cbranch_scc1 {l3}")
    b("s_add_u32 s12, s12, 1")
    b("s_cmp_ge_u32 s12, 0x10000")
    b(f"s_cbranch_scc1 {l3}")
    b(f"buffer_load_dword v{T+7}, v{T+6}, s[{R_WS}:{R_WS+3}], 0 offen sc1")
    b("s_waitcnt vmcnt(0)")
    b(f"s_branch {l2}")
    b.label(l3)
    b("s_mov_b64 exec, -1")
    b.notrack = False

def final_reduce(b):
    t = T
    acc = V_ACC2
    for x in b.pending_half: b(x)
    b.pending_half = []
    def reload(q):
        for pre, op in inbox_load(b, q): op()
    for q in ((3, 2, 1, 0) if cfg.early_in == 0 else (0,)): reload(q)
    b(f"v_mul_u32_u24 v{t+4}, 57344, v{V_C}")
    b(f"v_lshl_add_u32 v{t+4}, v{V_GQ}, 3, v{t+4}")
    stamp(b, 20)
    for q in (5, 4, 3, 2, 1, 0):
        b.wait_vm(f"p{q}")
        guarded(b, [V_INR[q] + i for i in range(8)], lambda q=q: reload(q), f"p{q}")
        if cfg.finef: stamp(b, 24 + q, True)
        for tt in range(4):
            for m in range(2):
                src = V_INR[q] + 2*tt + m
                tt2 = t + 2*((2*tt + m) & 1)
                b(f"v_lshlrev_b32 v{tt2}, 16, v{src}")
                b(f"v_and_b32 v{tt2+1}, 0xffff0000, v{src}")
                b(f"v_pk_add_f32 {v(acc+4*tt+2*m,2)}, {v(acc+4*tt+2*m,2)}, {v(tt2,2)}")
    stamp(b, 22)
    for tt in range(4):
        if cfg.trim:
            for m in range(2):
                b(f"v_pk_fma_f32 {v(acc+4*tt+2*m,2)}, {v(acc+4*tt+2*m,2)}, {v(V_RR2+2*tt,2)}, {v(V_HRES+4*tt+2*m,2)} op_sel_hi:[1,0,1]")
        else:
            for r in range(4):
                b(f"v_mul_f32 v{acc+4*tt+r}, v{V_RR+tt}, v{acc+4*tt+r}")
            for m in range(2):
                b(f"v_pk_fma_f32 {v(acc+4*tt+2*m,2)}, {v(V_HRES+4*tt+2*m,2)}, 0.5, {v(acc+4*tt+2*m,2)} op_sel_hi:[1,0,1]")
        b(f"v_cvt_pk_bf16_f32 v{V_PK+2*tt}, v{acc+4*tt}, v{acc+4*tt+1}")
        b(f"v_cvt_pk_bf16_f32 v{V_PK+1+2*tt}, v{acc+4*tt+2}, v{acc+4*tt+3}")
        b(f"buffer_store_dwordx2 {v(V_PK+2*tt,2)}, v{t+4}, s[{R_OUT}:{R_OUT+3}], s{S_O+tt} offen {cfg.outflags}")

def cs_job(b):
    b("s_sub_u32 s6, s2, 224")
    b("s_lshl_b32 s7, s6, 7")
    b("v_and_b32 v1, 15, v9")
    b("v_lshrrev_b32 v2, 4, v9")
    b("v_mul_u32_u24 v3, 3584, v2")
    b("v_lshl_add_u32 v3, v1, 3, v3")
    b("v_and_b32 v6, 63, v9")
    b("v_lshlrev_b32 v6, 2, v6")
    b("v_mov_b32 v7, -1")
    b("s_lshl_b32 s9, s6, 8")
    b(f"s_add_u32 s9, s9, {WS_CS}")
    b(f"buffer_store_dword v7, v6, s[{R_WS}:{R_WS+3}], s9 offen sc1", tag="cspre")
    for n in range(28):
        b(f"s_add_u32 s8, s7, {n*57344}")
        b(f"buffer_load_dwordx2 {v(16 + 2*n, 2)}, v3, s[{R_W1}:{R_W1+3}], s8 offen", tag=f"c{n}")
    b.wait_vm("cspre")
    b("s_barrier")
    arrive0(b)
    b("s_sub_u32 s6, s2, 224")
    for r in range(4): b(f"v_mov_b32 v{76+r}, 0")
    for n in range(28):
        b.wait_vm(f"c{n}")
        for h in range(2):
            b(f"v_lshlrev_b32 v4, 16, v{16+2*n+h}")
            b(f"v_and_b32 v5, 0xffff0000, v{16+2*n+h}")
            b(f"v_pk_add_f32 {v(76+2*h,2)}, {v(76+2*h,2)}, v[4:5]")
    b("v_lshlrev_b32 v4, 8, v2")
    b("v_lshl_add_u32 v4, v1, 4, v4")
    b("ds_write_b128 v4, v[76:79]")
    b("s_waitcnt lgkmcnt(0)")
    b("s_barrier")
    b("v_and_b32 v1, 63, v9")
    b("v_lshlrev_b32 v1, 2, v1")
    for n in range(16): b(f"ds_read_b32 v{16+n}, v1 offset:{256*n}")
    b("s_waitcnt lgkmcnt(0)")
    for n in range(1, 16): b(f"v_add_f32 v16, v16, v{16+n}")
    b("s_lshl_b32 s7, s6, 8")
    b(f"s_add_u32 s7, s7, {WS_CS}")
    b(f"s_cmp_eq_u32 s{S_W}, 0")
    lab = b.newlabel("L_csk")
    b(f"s_cbranch_scc0 {lab}")
    b(f"buffer_store_dword v16, v1, s[{R_WS}:{R_WS+3}], s7 offen sc1", track=False)
    b.label(lab)

def build(name):
    b = Builder()
    b.slow = []
    b.pending_half = []
    b("s_cmp_ge_u32 s2, 252")
    b("s_cbranch_scc1 L_end")
    b("s_load_dwordx2 s[16:17], s[0:1], 0")
    b("s_load_dwordx8 s[28:35], s[0:1], 48")
    b("s_load_dwordx2 s[36:37], s[0:1], 80")
    if cfg.code_pf:
        b("s_getpc_b64 s[6:7]")
        b.label("L_pc")
        b("v_lshlrev_b32 v2, 7, v0")
        b("v_mov_b32 v5, s7")
        b("v_add_co_u32 v4, vcc, s6, v2")
        b("v_addc_co_u32 v5, vcc, 0, v5, vcc")
        b(f"v_cmp_gt_u32 vcc, L_code_end-L_pc, v2")
        b("s_and_saveexec_b64 s[8:9], vcc")
        lab = b.newlabel("L_nopf")
        b(f"s_cbranch_execz {lab}")
        b(f"global_load_dword {a(255)}, v[4:5], off", track=False)
        b.label(lab)
        b("s_mov_b64 exec, s[8:9]")
    b("v_mov_b32 v9, v0")
    b("v_lshrrev_b32 v1, 6, v0")
    b("v_and_b32 v0, 63, v0")
    b(f"v_readfirstlane_b32 s{S_W}, v1")
    b("s_cmp_ge_u32 s2, 224")
    b("s_cbranch_scc1 L_cs")
    decode(b)
    p1_addr(b)
    z_base(b)
    if not cfg.lean_start:
        p1_addr2(b)
        wd_setup(b)
    b("s_waitcnt lgkmcnt(0)")
    srd(b, R_X, P_X, X_BYTES)
    if cfg.x_first:
        x_dma(b)
        srd(b, R_WS, P_WS, WS_BYTES)
        prefill_start(b)
    else:
        srd(b, R_WS, P_WS, WS_BYTES)
        prefill_start(b)
        x_dma(b)
    srd(b, R_W1, P_W1, W_BYTES); srd(b, R_W2, P_W2, W_BYTES)
    srd(b, R_OUT, P_OUT, X_BYTES); srd(b, R_DBG, P_DBG, 256)
    stamp(b, 0)
    if cfg.lean_start:
        p1_addr2(b)
        wd_setup(b)
    move_masks(b)
    if cfg.w_prefetch: w_prefetch(b)
    p2_scalars(b)
    inbox_scalars(b)
    if cfg.touch_x: touch_xres(b)
    if cfg.pre_at == "start":
        for f in pb_prefill(b): f()
    stamp(b, 1)
    wd_gen(b)
    f_gen(b)
    m_gen(b)
    fm_addr(b)
    if cfg.touch_w: touch_w_setup(b)
    if cfg.ring_early or not cfg.late_dma_addr: dma_addr(b)
    stamp(b, 2)
    p1_loop(b)
    xall = xres_list(b)
    xt = xall[:cfg.xres_tail]; xall = xall[cfg.xres_tail:]
    p1_tail(b, xt)
    for f in xt: f()
    stamp(b, 8)
    b0_load(b, V_B0)
    xres_pad(b)
    ring = []
    for k in range(cfg.ring_early, 6): ring += w1_groups(b, k)
    work = [] if cfg.addr_in_loop else record(p2_addr)
    if not cfg.ring_early and cfg.late_dma_addr and not cfg.addr_in_loop: work = work + record(dma_addr)
    pbq = pb_prefill(b) if cfg.pre_at == "spread" else []
    xl = xall
    if pbq: xl = xl[:8] + pbq[:1] + xl[8:] + pbq[1:2]; pbq = pbq[2:]
    if work: multi_spread(b, work, [xl] + ([m_read(b)] if cfg.m_late else []))
    else: multi_spread(b, xl, [m_read(b) if cfg.m_late else []] if cfg.m_late else [])
    stamp(b, 9)
    b0_check(b, V_B0)
    zl = z_list(b)
    work = record(hres_addr) + record(p2_scalars_late)
    z1 = zl[:len(zl)//2]
    if pbq: z1 = z1[:len(z1)//2] + pbq[:1] + z1[len(z1)//2:] + pbq[1:2]; pbq = pbq[2:]
    multi_spread(b, work, [z1])
    b.wait_vm("xres")
    b("s_waitcnt lgkmcnt(0)")
    b("s_barrier")
    stamp(b, 10)
    z2 = zl[len(zl)//2:]
    if pbq: z2 = z2[:len(z2)//2] + pbq[:1] + z2[len(z2)//2:] + pbq[1:2]; pbq = pbq[2:]
    x_init(b, extra=z2)
    b(f"v_mov_b32 v{V_ONE2}, 0x3f803f80")
    for r in range(1, 4): b(f"v_mov_b32 v{V_ONE2+r}, v{V_ONE2}")
    stamp(b, 11)
    b("s_barrier")
    stamp(b, 14)
    if pbq:
        r2 = []
        for i, g in enumerate(ring):
            r2.append(g)
            if i % 4 == 3 and pbq: r2.append(([], pbq.pop(0)))
        ring = r2
    if cfg.pre_at == "stepb": ring = ring + [([], x) for x in pb_prefill(b)]
    step_b(b, ring)
    cs_loads(b)
    b("s_waitcnt lgkmcnt(0)")
    stamp(b, 15)
    b("s_barrier")
    b.finezone = True
    gemm1(b)
    stamp(b, 17)
    gemm1_epi(b)
    stamp(b, 18)
    gemm2(b)
    stamp(b, 19)
    b.finezone = False
    final_reduce(b)
    stamp(b, 23)
    stamp_store(b)
    b("s_endpgm")
    b.label("L_cs")
    b("s_waitcnt lgkmcnt(0)")
    srd(b, R_W1, P_W1, W_BYTES); srd(b, R_WS, P_WS, WS_BYTES); srd(b, R_DBG, P_DBG, 256)
    cs_job(b)
    b("s_endpgm")
    emit_slow(b)
    b.label("L_end")
    b.label("L_code_end")
    b("s_endpgm")
    txt = b.finalize()
    if cfg.align:
        import align
        hdr = '.amdgcn_target "amdgcn-amd-amdhsa--gfx950"\n.text\n' + kernel_header(name)
        lines, before, nw, nn, tot = align.align(txt.rstrip("\n").split("\n"), hdr, "", allow_nop=cfg.align_nop)
        print("misaligned 8-byte instructions before:", before, "widened:", nw, "nops:", nn, "residual cost:", tot)
        txt = "\n".join(lines) + "\n"
    s = f"""; FNet block (pre-LN, 2-D DFT mixing as a 64x32 two-step transform, ReLU FFN) - one persistent launch
; kernarg: A_x, dft_seq_re, dft_seq_im, dft_hid_re, dft_hid_im, B_x, B_w1, B_w2, out, debug, ws
; @launch grid=(252,1,1) block=(256,1,1) lds={LDS_TOTAL}
.amdgcn_target "amdgcn-amd-amdhsa--gfx950"
.text
""" + kernel_header(name) + txt + '\n.section .rodata,"a"\n' + kernel_desc(name, 512, 256)
    return s, b

if __name__ == "__main__":
    import sys
    for o in sys.argv[2:]:
        if o == "diag": cfg.diag = True
        elif "=" in o:
            k, val = o.split("=", 1)
            setattr(cfg, k, eval(val))
    s, b = build(NAME + "_kernel")
    open(sys.argv[1], "w").write(s)
    n = sum(1 for i in b.items if not isinstance(i, str))
    print("instructions", n, "auto nops", b.nnop)
```

```python
from asmb import *
import common
from common import NAME, kernel_header, kernel_desc, X_BYTES, W_BYTES, WS_BYTES, Z_G, PB_G
import struct

def fbits(x): return hex(struct.unpack("<I", struct.pack("<f", x))[0])

class Cfg:
    diag = False
    w_prefetch = True
    xflags = ""
    x_now1dma = False
    x_now2dma = False
    x_noreads = False
    x_nobar2 = False
    x_nostore = False
    fine = False
    cyc = False
    trim = True
    x_off = 0.0
    early_arrive = 6
    g1_umajor = False
    align = False
    align_nop = True
    addr_in_loop = False
    touch_x = False
    touch_w = False
    x_first = False
    fewbar = False
    dma_first = False
    xres_rot = False
    x_noexec = False
    late_w2 = False
    in_first = False
    early_in = 0
    xres_tail = 0
    stages = ((0,1,2,3,4,5,6),)
    m_late = True
    lean_start = True
    late_dma_addr = True
    outflags = ''
    finee = False
    ring_early = 0
    pre_at = 'spread'
    x_z4 = False
    x_noring = False
    x_nopre = False
    code_bytes = 26*1024
    code_pf = True
    finef = False
    x_noguard = False
    ring0 = 18
    buf4 = True
    fineb = False
cfg = Cfg()

WS_Z = 0
WS_CS = 0x200000
WS_CNT = 0x210000
WS_FL = 0x220000
WS_PB = 0x400000
WS_TS = 0x4000000

XL = 0
XRS = 928
RING = 64 * XRS
FX = RING
MX = RING + 8192
STAT = RING + 98304
LDS_TOTAL = STAT + 768

S_WG, S_W, S_IDX, S_J = 2, 3, 4, 5
P_X, P_W1, P_W2, P_OUT, P_DBG, P_WS = 16, 28, 30, 32, 34, 36
R_X, R_W1, R_W2, R_WS, R_OUT, R_DBG = 40, 44, 48, 52, 56, 60
S_TT = 16
S_PI = 20
S_ZL = 24
S_RW = 28
S_W1B = 29
S_Z0, S_Z1 = 30, 31
S_DIAG = 32
S_M1 = 34
S_MASK = 64
S_W2 = 66
S_PB = 73
S_IN = 79
S_XR = 85
S_O = 86
S_P32 = 90
S_TMP = 94
S_HWB = 94
S_N32 = 98
S_CSO = 97

V_C, V_GQ, V_TS = 1, 2, 58
T = 4
V_HB = 12
V_TR1 = 16
V_W1O = 20
V_W2O = 24
V_TR2 = 28
V_L16 = 30
V_ZO = 31
V_CSA = 31
V_HW = 32
V_HWS = 36
V_HA = 38
V_SEL1, V_SEL2, V_NSEL2 = 42, 46, 50
V_XA = 54
V_AUX = 3
V_TR2H = 59
V_NEG = 60
V_GT = 4
V_WD = 64
V_XF = 120
V_ACC = 152
V_SS = 168
V_QQ = 172
V_CS1 = 176
V_ONE = 180
V_F = 184
V_XB = 216
V_SA = 224
V_XO = 228
V_ZO1 = 229
V_G = 230
V_AB = V_XF
V_A = V_WD
V_D2 = V_WD + 8
V_ZP = V_WD + 24
A_PF = 128
A_S0 = 128
V_Z = 64
V_P, V_Q, V_PS, V_QS, V_E = 128, 176, 224, 232, 240
V_ACC1 = 128
V_A1 = 192
V_B1 = 224
V_CS = 64
V_HRES = 80
V_PK = 96
V_NM = 112
V_RR = 120
V_RR2 = 112
V_S2 = 42
V_Q2 = 46
V_ONE2 = 50
V_A2 = 192
V_ACC2 = 128
V_IN = 160

def stamp(b, i, force=False):
    if not cfg.diag: return
    if cfg.fine and not force and i != 0 and not getattr(b, "finezone", False): return
    if i == 0 and not getattr(b, "tsinit", False):
        b(f"v_mov_b32 v{V_TS}, 0"); b.tsinit = True
        if cfg.fine: return
    b("s_memtime s[14:15]" if cfg.cyc else "s_memrealtime s[14:15]")
    b("s_waitcnt lgkmcnt(0)")
    b(f"v_writelane_b32 v{V_TS}, s14, {i}")
def stamp_store(b):
    if not cfg.diag: return
    b("s_waitcnt vmcnt(0)")
    stamp(b, 31, True)
    b("s_lshl_b32 s6, s2, 9")
    b(f"s_lshl_b32 s7, s{S_W}, 7")
    b("s_add_u32 s6, s6, s7")
    b(f"s_add_u32 s6, s6, {WS_TS}")
    b(f"v_lshlrev_b32 v{T}, 2, v0")
    b("s_mov_b32 exec_hi, 0")
    b(f"buffer_store_dword v{V_TS}, v{T}, s[{R_WS}:{R_WS+3}], s6 offen")
    b("s_waitcnt vmcnt(0)")
    b("s_mov_b64 exec, -1")

def srd(b, r, p, nbytes):
    b(f"s_mov_b32 s{r}, s{p}")
    b(f"s_mov_b32 s{r+1}, s{p+1}")
    b(f"s_mov_b32 s{r+2}, {hex(nbytes)}")
    b(f"s_mov_b32 s{r+3}, 0x00020000")

def emit(b, f):
    f() if callable(f) else b(f)

def weave(b, mfmas, fillers, per=2):
    k = 0; n = len(mfmas)
    for i, m in enumerate(mfmas):
        b(m)
        want = ((i + 1) * len(fillers) + n - 1) // n
        cnt = 0
        while k < len(fillers) and k < want and cnt < per:
            emit(b, fillers[k]); k += 1; cnt += 1
    while k < len(fillers):
        emit(b, fillers[k]); k += 1

class Rec:
    def __init__(self): self.l = []
    def __call__(self, s, tag=None, track=True):
        assert tag is None
        self.l.append(s)
def record(fn, *args):
    r = Rec(); fn(r, *args)
    out = []; i = 0; l = r.l
    while i < len(l):
        if l[i].startswith("s_cmp"):
            j = i + 1
            while j < len(l) and l[j].startswith(("s_cselect", "s_mov")): j += 1
            out.append("\n".join(l[i:j])); i = j
        else:
            out.append(l[i]); i += 1
    return out

def spread(b, main, extra, every):
    k = 0
    for i, m in enumerate(main):
        emit(b, m)
        if (i + 1) % every == 0 and k < len(extra):
            emit(b, extra[k]); k += 1
    while k < len(extra):
        emit(b, extra[k]); k += 1

def sched(b, mfmas, first=(), vm=(), misc=(), vm_from=0, vm_to=None, misc_from=0, cap=2):
    n = len(mfmas)
    slots = [[] for _ in range(n)]
    first = list(first); vm = list(vm); misc = list(misc)
    if vm_to is None: vm_to = n
    vpos = []
    if vm:
        span = vm_to - vm_from
        for i, (pre, op) in enumerate(vm):
            g = vm_from + min(span - 1, (i * span) // len(vm) + (1 if pre else 0))
            if vpos and g <= vpos[-1]: g = min(n - 1, vpos[-1] + 1)
            vpos.append(g)
            gp = max(0, g - 1)
            if vpos[:-1] and gp < vpos[-2]: gp = vpos[-2]
            slots[gp] += [("vm", x) for x in pre]
            slots[g].append(("vm", op))
    g = 0
    for f in first:
        while g < n - 1 and len(slots[g]) >= cap: g += 1
        slots[g].append(("first", f))
        if len(slots[g]) >= (cap if len(first) > n else 1 + sum(1 for t, _ in slots[g] if t == "vm")): g = min(n - 1, g + 1)
    free = [max(0, cap - len(slots[g])) if g >= misc_from else 0 for g in range(n)]
    tot = sum(free)
    k = 0; acc = 0
    for g in range(n):
        if k >= len(misc): break
        acc += free[g]
        want = len(misc) if tot == 0 else min(len(misc), -(-acc * len(misc) // tot)) if tot < len(misc) else (acc * len(misc) + tot - 1) // tot
        take = 0
        while k < len(misc) and k < want and (take < free[g] or tot < len(misc)):
            slots[g].append(("misc", misc[k])); k += 1; take += 1
            if tot < len(misc) and take >= free[g] + 1: break
    rest = misc[k:]
    for g in range(n):
        b(mfmas[g])
        for t, x in sorted(slots[g], key=lambda e: {"first": 0, "misc": 1, "vm": 2}[e[0]]): emit(b, x)
    for x in rest: emit(b, x)

def groups(closures_with_hdr):
    return closures_with_hdr

def multi_spread(b, main, lists):
    n = len(main)
    at = [[] for _ in range(n + 1)]
    for lst in lists:
        for i, x in enumerate(lst):
            at[min(n, ((2*i + 1) * n) // (2*len(lst)))].append(x)
    for i in range(n):
        for x in at[i]: emit(b, x)
        emit(b, main[i])
    for x in at[n]: emit(b, x)

MF = "v_mfma_f32_16x16x32_bf16"
MH = "v_mfma_f32_16x16x32_f16"

def decode(b):
    b("s_and_b32 s6, s2, 7")
    b("s_lshr_b32 s7, s2, 3")
    b("s_mul_i32 s8, s7, 37")
    b("s_lshr_b32 s8, s8, 8")
    b("s_mul_i32 s9, s8, 7")
    b(f"s_sub_u32 s{S_J}, s7, s9")
    b("s_lshl_b32 s8, s8, 3")
    b(f"s_add_u32 s{S_IDX}, s6, s8")

def rot(b, dst, ls, shift):
    if ls == 0:
        b(f"s_lshl_b32 s{dst}, s{S_W}, {shift}")
    else:
        b(f"s_add_u32 s{dst}, s{S_W}, {ls}")
        b(f"s_and_b32 s{dst}, s{dst}, 3")
        b(f"s_lshl_b32 s{dst}, s{dst}, {shift}")

def p1_addr(b):
    t = T
    b(f"v_and_b32 v{V_C}, 15, v0")
    b(f"v_lshrrev_b32 v{V_GQ}, 4, v0")
    b(f"v_lshlrev_b32 v{V_L16}, 4, v0")
    b(f"v_lshrrev_b32 v{t}, 3, v0")
    b(f"v_and_b32 v{t+1}, 7, v0")
    b(f"v_xor_b32 v{t+1}, v{t+1}, v{t}")
    b(f"v_lshlrev_b32 v{t+1}, 4, v{t+1}")
    b(f"v_mul_u32_u24 v{V_XO}, 28672, v{t}")
    b(f"v_add_u32 v{V_XO}, v{V_XO}, v{t+1}")
    b(f"s_lshl_b32 s6, s{S_W}, 9")
    b(f"s_add_u32 s6, s6, s{S_IDX}")
    b("s_mul_i32 s12, s6, 896")
    b("s_add_u32 s13, s12, 229376")
    b(f"s_lshl_b32 s11, s{S_W}, 11")

def x_dma(b):
    for ksp in range(7):
        for o2 in range(2):
            b(f"s_add_u32 m0, s11, {XL + o2*1024 + 8064*ksp}")
            b(f"buffer_load_dwordx4 v{V_XO}, s[{R_X}:{R_X+3}], s{12+o2} offen offset:{128*ksp} {cfg.xflags} lds", tag=f"x{ksp}")

def p1_addr2(b):
    t = T
    b(f"v_and_b32 v{t}, 7, v{V_C}")
    b(f"v_lshrrev_b32 v{t+1}, 3, v{V_C}")
    b(f"v_lshlrev_b32 v{t+1}, 10, v{t+1}")
    b(f"v_lshl_add_u32 v{t+1}, v{t}, 7, v{t+1}")
    for par in range(2):
        b(f"v_add_u32 v{t+2}, {4*par}, v{V_GQ}") if par else b(f"v_mov_b32 v{t+2}, v{V_GQ}")
        b(f"v_xor_b32 v{t+2}, v{t+2}, v{t}")
        b(f"v_lshl_add_u32 v{t+3+par}, v{t+2}, 4, v{t+1}")
    b(f"v_lshlrev_b32 v{t+5}, 4, v{V_GQ}")
    for ls in range(4):
        rot(b, 6, ls, 11)
        b(f"v_add_u32 v{V_XB + 2*ls}, s6, v{t+3}")
        b(f"v_add_u32 v{V_XB + 2*ls + 1}, s6, v{t+4}")
        b("s_lshr_b32 s6, s6, 5")
        b(f"s_add_u32 s6, s6, {STAT}")
        b(f"v_add_u32 v{V_SA + ls}, s6, v{t+5}")
    b(f"v_mov_b32 v{V_ONE}, 0x3f803f80")
    for r in range(1, 4): b(f"v_mov_b32 v{V_ONE + r}, v{V_ONE}")
    b(f"v_lshrrev_b32 v{t}, 2, v{V_C}")
    b(f"v_cmp_eq_u32 s[{S_TMP}:{S_TMP+1}], v{t}, v{V_GQ}")
    b(f"v_and_b32 v{t}, 3, v{V_C}")
    for r in range(1, 4):
        b(f"v_cmp_eq_u32 s[{S_TMP+2*r}:{S_TMP+2*r+1}], {r}, v{t}")

def move_masks(b):
    for k in range(8): b(f"s_mov_b32 s{S_DIAG+k}, s{S_TMP+k}")

def z_base(b):
    b(f"s_lshr_b32 s6, s{S_W}, 1")
    b(f"s_lshl_b32 s7, s{S_J}, 1")
    b("s_add_u32 s8, s6, s7")
    b(f"s_and_b32 s9, s{S_W}, 1")
    b("s_lshl_b32 s6, s8, 12")
    b(f"s_lshl_b32 s7, s{S_IDX}, 7")
    b("s_add_u32 s6, s6, s7")
    b("s_lshl_b32 s7, s9, 6")
    b("s_add_u32 s10, s6, s7")
    b(f"v_mul_u32_u24 v{V_ZO1}, {Z_G}, v{V_C}")
    b(f"v_lshl_add_u32 v{V_ZO1}, v{V_GQ}, 4, v{V_ZO1}")

def wd_setup(b):
    t = T
    E, X, STEP, K2 = V_G, V_G+1, V_G+2, V_G+3
    b(f"s_lshr_b32 s6, s{S_W}, 1")
    b(f"s_lshl_b32 s7, s{S_J}, 1")
    b("s_add_u32 s8, s6, s7")
    b(f"s_and_b32 s9, s{S_W}, 1")
    b("s_lshl_b32 s6, s8, 4")
    b("s_lshl_b32 s7, s9, 3")
    b("s_add_u32 s6, s6, s7")
    b(f"v_lshrrev_b32 v{t}, 1, v{V_C}")
    b(f"v_add_u32 v{t}, s6, v{t}")
    b(f"v_and_b32 v{t+1}, 1, v{V_C}")
    b(f"v_lshl_or_b32 v{t+2}, v{t}, 1, v{t+1}")
    b(f"v_mov_b32 v{t+3}, 224")
    b(f"v_cmp_eq_u32 vcc, 1, v{t+2}")
    b(f"v_mov_b32 v{t+4}, 0")
    b(f"v_cndmask_b32 v{t}, v{t}, v{t+3}, vcc")
    b(f"v_cndmask_b32 v{t+1}, v{t+1}, v{t+4}, vcc")
    b(f"v_cvt_f32_u32 v{t+5}, v{t+1}")
    b(f"v_mul_f32 v{t+5}, 0x3e800000, v{t+5}")
    b(f"v_cvt_f32_u32 v{E}, v{t}")
    b(f"v_mul_f32 v{E}, 0x3b124925, v{E}")
    b(f"v_mul_u32_u24 v{t+1}, 4682, v{t}")
    b(f"v_lshrrev_b32 v{t+1}, 16, v{t+1}")
    b(f"v_mul_u32_u24 v{t+1}, 14, v{t+1}")
    b(f"v_sub_u32 v{t+1}, v{t}, v{t+1}")
    b(f"v_cvt_f32_u32 v{STEP}, v{t+1}")
    b(f"v_mul_f32 v{STEP}, {fbits(1.0/14)}, v{STEP}")
    b(f"v_mul_u32_u24 v{t+1}, v{V_GQ}, v{t}")
    b(f"v_mul_u32_u24 v{t+2}, 1171, v{t+1}")
    b(f"v_lshrrev_b32 v{t+2}, 16, v{t+2}")
    b(f"v_mul_u32_u24 v{t+2}, 56, v{t+2}")
    b(f"v_sub_u32 v{t+1}, v{t+1}, v{t+2}")
    b(f"v_cvt_f32_u32 v{X}, v{t+1}")
    b(f"v_mul_f32 v{X}, {fbits(1.0/56)}, v{X}")
    b(f"v_cos_f32 v{K2}, v{E}")
    b(f"v_add_f32 v{X}, v{X}, v{t+5}")
    b(f"v_add_f32 v{K2}, v{K2}, v{K2}")

def wd_gen(b, hook=None):
    E, X, STEP, K2 = V_G, V_G+1, V_G+2, V_G+3
    C = [V_G + 4 + i for i in range(8)]
    X1 = V_G + 12
    for ks in range(14):
        b(f"v_cos_f32 v{C[0]}, v{X}")
        b(f"v_add_f32 v{X1}, v{X}, v{E}")
        b(f"v_cos_f32 v{C[1]}, v{X1}")
        if ks < 13:
            b(f"v_add_f32 v{X}, v{X}, v{STEP}")
            if not cfg.trim: b(f"v_fract_f32 v{X}, v{X}")
        else:
            b("s_nop 0")
        if ks > 0:
            c = "0" if ks == 1 else v(V_CS1, 4)
            b(f"{MF} {v(V_CS1,4)}, {v(V_ONE,4)}, {v(V_WD + 4*(ks-1),4)}, {c}")
        for n in range(2, 8):
            b(f"v_fma_f32 v{C[n]}, v{K2}, v{C[n-1]}, -v{C[n-2]}")
            if n % 2 == 1:
                b(f"v_cvt_pk_bf16_f32 v{V_WD + 4*ks + (n-3)//2}, v{C[n-3]}, v{C[n-2]}")
        b(f"v_cvt_pk_bf16_f32 v{V_WD + 4*ks + 3}, v{C[6]}, v{C[7]}")
        if hook: hook(ks)
    b("s_nop 0")
    b(f"{MF} {v(V_CS1,4)}, {v(V_ONE,4)}, {v(V_WD + 4*13,4)}, {v(V_CS1,4)}")

def f_gen(b):
    t = T
    S1, G, X, CO, SI, PK, AD = V_G, V_G+4, V_G+5, V_G+8, V_G+12, V_G+16, V_G+20
    b(f"s_lshl_b32 s6, s{S_W}, 4")
    b(f"v_lshl_add_u32 v{t}, v{V_GQ}, 2, s6")
    b(f"v_cvt_f32_u32 v{t}, v{t}")
    b(f"v_mul_f32 v{S1}, 0x3c800000, v{t}")
    for q in range(1, 4): b(f"v_add_f32 v{S1+q}, 0x3c800000, v{S1+q-1}")
    b(f"s_lshl_b32 s6, s{S_W}, 9")
    b(f"s_add_u32 s6, s6, {FX}")
    b(f"v_lshl_add_u32 v{AD}, v0, 3, s6")
    b(f"v_cvt_f32_u32 v{G}, v{V_C}")
    b(f"v_mov_b32 v{t+1}, 0xbc003c00")
    b(f"v_cmp_eq_u32 vcc, 0, v{V_C}")
    for gh in range(2):
        if gh: b(f"v_add_f32 v{G}, 0x41800000, v{G}")
        for q in range(4):
            b(f"v_mul_f32 v{X+(q&1)}, v{G}, v{S1+q}")
            b(f"v_cos_f32 v{CO+q}, v{X+(q&1)}")
            b(f"v_sin_f32 v{SI+q}, -v{X+(q&1)}")
        b(f"v_cvt_pk_f16_f32 v{PK}, v{CO}, v{CO+1}")
        b(f"v_cvt_pk_f16_f32 v{PK+1}, v{CO+2}, v{CO+3}")
        b(f"v_cvt_pk_f16_f32 v{PK+2}, v{SI}, v{SI+1}")
        b(f"v_cvt_pk_f16_f32 v{PK+3}, v{SI+2}, v{SI+3}")
        if gh == 0:
            b(f"v_cndmask_b32 v{PK+2}, v{PK+2}, v{t+1}, vcc")
            b(f"v_cndmask_b32 v{PK+3}, v{PK+3}, v{t+1}, vcc")
        b(f"ds_write_b64 v{AD}, {v(PK,2)} offset:{(gh*2+0)*2048}")
        b(f"ds_write_b64 v{AD}, {v(PK+2,2)} offset:{(gh*2+1)*2048}")

def fm_addr(b):
    for ls in range(4):
        rot(b, 6, ls, 9)
        b(f"s_add_u32 s6, s6, {FX}")
        b(f"v_lshl_add_u32 v{V_G+ls}, v0, 3, s6")
    for lt in range(4):
        b(f"s_lshl_b32 s6, s{S_TT+lt}, 12")
        b(f"s_add_u32 s6, s6, {MX}")
        b(f"v_add_u32 v{V_G+4+lt}, s6, v{V_L16}")

def f_read(b):
    out = []
    for ls in range(4):
        for gh in range(2):
            for sg in range(2):
                reg = V_F + ((gh*2 + sg)*2 + (ls >> 1))*4 + 2*(ls & 1)
                out.append(lambda reg=reg, ls=ls, o=(gh*2+sg)*2048: b(f"ds_read_b64 {v(reg,2)}, v{V_G+ls} offset:{o}", tag="f"))
    return out

def mreg(lt, ks, pq): return ((lt*2 + ks)*2 + pq)*4

def t0_of_tt(b, dst, tt_sreg):
    b(f"s_sub_u32 s{dst}, 64, s{S_IDX}")
    b(f"s_cmp_eq_u32 s{S_IDX}, 0")
    b(f"s_cselect_b32 s{dst}, 32, s{dst}")
    b(f"s_cmp_lt_u32 s{tt_sreg}, 2")
    b(f"s_cselect_b32 s{dst}, s{S_IDX}, s{dst}")
    b(f"s_and_b32 s9, s{tt_sreg}, 1")
    b("s_lshl_b32 s9, s9, 10")
    b(f"s_add_u32 s{dst}, s{dst}, s9")

def m_gen(b):
    t = T
    X, DX, CO, SI, PK, P, Q, AD = V_G, V_G+1, V_G+2, V_G+3, V_G+4, V_G+8, V_G+12, V_G+16
    t0_of_tt(b, 8, S_W)
    b(f"v_lshl_add_u32 v{t}, v{V_C}, 6, s8")
    b(f"v_cvt_f32_u32 v{DX}, v{t}")
    b(f"v_mul_f32 v{DX}, 0x3a000000, v{DX}")
    selP = [0x03020100, 0x03020100, 0x0c0c0100, 0x01000c0c]
    selQ = [0x01000302, 0x01000302, 0x0c0c0302, 0x03020c0c]
    sgnQ = [0x80000000, 0x00008000, 0, 0]
    neg = [0, 0x80000000, 0, 0]
    def pick(dst, tbl):
        b(f"s_cmp_lt_u32 s{S_W}, 2")
        b(f"s_cselect_b32 s9, {hex(tbl[0])}, 0") if False else None
        b(f"s_mov_b32 s9, {hex(tbl[0])}"); b(f"s_mov_b32 s12, {hex(tbl[1])}")
        b("s_cselect_b32 s9, s9, s12")
        b(f"s_mov_b32 s13, {hex(tbl[2])}"); b(f"s_mov_b32 s12, {hex(tbl[3])}")
        b("s_cselect_b32 s13, s13, s12")
        b(f"s_cmp_eq_u32 s{S_IDX}, 0")
        b(f"s_cselect_b32 s{dst}, s13, s9")
    pick(S_TMP, selP); pick(S_TMP+1, selQ); pick(S_TMP+2, sgnQ); pick(S_TMP+3, neg)
    b(f"v_xor_b32 v{DX}, s{S_TMP+3}, v{DX}")
    b(f"s_lshl_b32 s6, s{S_W}, 12")
    b(f"s_add_u32 s6, s6, {MX}")
    b(f"v_add_u32 v{AD}, s6, v{V_L16}")
    b(f"v_lshlrev_b32 v{t}, 2, v{V_GQ}")
    b(f"v_cvt_f32_u32 v{t}, v{t}")
    for ks in range(2):
        if ks: b(f"v_add_f32 v{t}, 0x41800000, v{t}")
        b(f"v_mul_f32 v{X}, v{t}, v{DX}")
        for j in range(4):
            b(f"v_cos_f32 v{CO}, v{X}")
            b(f"v_sin_f32 v{SI}, v{X}")
            b(f"v_add_f32 v{X}, v{X}, v{DX}")
            b(f"v_cvt_pk_f16_f32 v{PK}, v{CO}, v{SI}")
            b(f"v_perm_b32 v{P+j}, v{PK}, v{PK}, s{S_TMP}")
            b(f"v_perm_b32 v{Q+j}, v{PK}, v{PK}, s{S_TMP+1}")
            b(f"v_xor_b32 v{Q+j}, s{S_TMP+2}, v{Q+j}")
        b(f"ds_write_b128 v{AD}, {v(P,4)} offset:{(ks*2+0)*1024}")
        b(f"ds_write_b128 v{AD}, {v(Q,4)} offset:{(ks*2+1)*1024}")

def m_read(b):
    out = []
    for lt in range(4):
        for ks in range(2):
            for pq in range(2):
                out.append(lambda lt=lt, ks=ks, pq=pq: b(f"ds_read_b128 {a(mreg(lt,ks,pq),4)}, v{V_G+4+lt} offset:{(ks*2+pq)*1024}", tag="m"))
    return out

def prefill_start(b):
    for r in range(4): b(f"v_mov_b32 v{V_NEG+r}, -1")
    b(f"s_add_u32 s7, s10, {16*Z_G}")
    b(f"buffer_store_dwordx4 {v(V_NEG,4)}, v{V_ZO1}, s[{R_WS}:{R_WS+3}], s10 offen sc1", tag="pre")
    b(f"buffer_store_dwordx4 {v(V_NEG,4)}, v{V_ZO1}, s[{R_WS}:{R_WS+3}], s7 offen sc1", tag="pre")
    own_line(b, 6)
    b(f"v_mov_b32 v{T}, 0")
    b("s_mov_b64 exec, 1")
    b(f"buffer_store_dword v{T}, v{T}, s[{R_WS}:{R_WS+3}], s6 offen sc1", tag="pre")
    b("s_mov_b64 exec, -1")

def arrive0(b):
    lab = b.newlabel("L_arr")
    b.notrack = True
    b(f"s_cmp_eq_u32 s{S_W}, 0")
    b(f"s_cbranch_scc0 {lab}")
    b("s_and_b32 s6, s2, 3")
    b("s_lshl_b32 s6, s6, 6")
    b(f"v_mov_b32 v{T}, 1")
    b(f"v_mov_b32 v{T+1}, 0")
    b("s_mov_b64 exec, 1")
    b(f"buffer_atomic_add v{T}, v{T+1}, s[{R_DBG}:{R_DBG+3}], s6 offen sc1")
    b("s_mov_b64 exec, -1")
    b.label(lab)
    b.notrack = False

V_B0 = 229 + 25
def b0_load(b, reg):
    b(f"v_and_b32 v{reg}, 3, v0")
    b(f"v_lshlrev_b32 v{reg}, 6, v{reg}")
    b(f"buffer_load_dword v{reg}, v{reg}, s[{R_DBG}:{R_DBG+3}], 0 offen sc1", tag="b0")

def b0_check(b, reg):
    b.wait_vm("b0")
    l2 = b.newlabel("L_b0"); l3 = b.newlabel("L_b0d")
    b("s_mov_b32 s12, 0")
    b.label(l2)
    b.notrack = True
    b(f"v_cmp_gt_u32 vcc, 63, v{reg}")
    b("s_cmp_eq_u64 vcc, 0")
    b(f"s_cbranch_scc1 {l3}")
    b("s_add_u32 s12, s12, 1")
    b("s_cmp_ge_u32 s12, 0x10000")
    b(f"s_cbranch_scc1 {l3}")
    b(f"v_and_b32 v{reg}, 3, v0")
    b(f"v_lshlrev_b32 v{reg}, 6, v{reg}")
    b(f"buffer_load_dword v{reg}, v{reg}, s[{R_DBG}:{R_DBG+3}], 0 offen sc1")
    b("s_waitcnt vmcnt(0)")
    b(f"s_branch {l2}")
    b.label(l3)
    b.notrack = False

def guarded(b, regs, reload, name):
    t0 = V_GT
    n = len(regs)
    def tree():
        b(f"v_max3_u32 v{t0}, v{regs[0]}, v{regs[1]}, v{regs[2]}")
        i = 3
        while i + 1 < n:
            b(f"v_max3_u32 v{t0}, v{t0}, v{regs[i]}, v{regs[i+1]}"); i += 2
        if i < n: b(f"v_max_u32 v{t0}, v{t0}, v{regs[i]}")
        b(f"v_cmp_eq_u32 vcc, -1, v{t0}")
        b("s_cmp_eq_u64 vcc, 0")
    slow = b.newlabel("L_slow"); back = b.newlabel("L_back")
    if cfg.x_noguard: return
    tree()
    b(f"s_cbranch_scc0 {slow}")
    b.label(back)
    b.slow.append((slow, back, reload, tree))

def emit_slow(b):
    for (slow, back, reload, tree) in b.slow:
        loop = b.newlabel("L_sl")
        b.label(slow)
        b.notrack = True
        b("s_mov_b32 s12, 0")
        b.label(loop)
        reload()
        b("s_waitcnt vmcnt(0)")
        tree()
        b(f"s_cbranch_scc1 {back}")
        b("s_add_u32 s12, s12, 1")
        b("s_cmp_lt_u32 s12, 0x4000")
        b(f"s_cbranch_scc1 {loop}")
        b(f"s_branch {back}")
        b.notrack = False

def w_prefetch(b):
    b("s_mul_i32 s6, s2, 7168")
    b(f"s_lshl_b32 s7, s{S_W}, 10")
    b("s_add_u32 s6, s6, s7")
    b("s_add_u32 s7, s6, 4096")
    for n in range(2):
        b(f"buffer_load_dwordx4 {a(A_PF + 8*n, 4)}, v{V_L16}, s[{R_W1}:{R_W1+3}], s{6+n} offen", tag="pf")
        b(f"buffer_load_dwordx4 {a(A_PF + 8*n + 4, 4)}, v{V_L16}, s[{R_W2}:{R_W2+3}], s{6+n} offen", tag="pf")

def touch_xres(b):
    b(f"v_mul_u32_u24 v{T}, 57344, v{V_C}")
    b(f"s_lshl_b32 s6, s{S_J}, 7")
    b(f"s_add_u32 s6, s6, s{S_XR}")
    b("s_mov_b64 exec, 0xffff")
    b(f"buffer_load_dword {a(254)}, v{T}, s[{R_X}:{R_X+3}], s6 offen", tag="tch")
    b("s_mov_b64 exec, -1")

V_TW1, V_TW2 = 8, 9
def touch_w_setup(b):
    b(f"v_lshrrev_b32 v{V_TW1}, 2, v0")
    b(f"v_mul_u32_u24 v{V_TW1}, 3584, v{V_TW1}")
    b(f"v_and_b32 v{V_TW2}, 3, v0")
    b(f"v_lshl_add_u32 v{V_TW1}, v{V_TW2}, 7, v{V_TW1}")
    b(f"v_lshlrev_b32 v{V_TW2}, 7, v0")
    b(f"s_lshr_b32 s6, s{S_IDX}, 3")
    b("s_mul_i32 s7, s6, 112")
    b(f"s_lshl_b32 s8, s{S_W}, 4")
    b("s_add_u32 s7, s7, s8")
    b("s_mul_i32 s7, s7, 3584")
    b(f"s_lshl_b32 s8, s{S_J}, 9")
    b("s_add_u32 s12, s7, s8")
    b("s_mul_i32 s7, s6, 448")
    b(f"s_lshl_b32 s8, s{S_W}, 6")
    b("s_add_u32 s7, s7, s8")
    b("s_lshl_b32 s7, s7, 7")
    b(f"s_mul_i32 s8, s{S_J}, 229376")
    b("s_add_u32 s13, s7, s8")
def touch_w_list(b):
    out = []
    for n in range(2):
        def f1(n=n):
            if n: b(f"s_add_u32 s12, s12, {64*3584}")
            b(f"buffer_load_dword {a(253)}, v{V_TW1}, s[{R_W1}:{R_W1+3}], s12 offen", tag="tch")
        out.append(f1)
    for n in range(2):
        def f2(n=n):
            if n: b(f"s_add_u32 s13, s13, {256*128}")
            b(f"buffer_load_dword {a(252)}, v{V_TW2}, s[{R_W2}:{R_W2+3}], s13 offen", tag="tch")
        out.append(f2)
    return out

def own_line(b, dst):
    b(f"s_mul_i32 s{dst}, s{S_IDX}, 7")
    b(f"s_add_u32 s{dst}, s{dst}, s{S_J}")
    b(f"s_lshl_b32 s{dst}, s{dst}, 2")
    b(f"s_add_u32 s{dst}, s{dst}, s{S_W}")
    b(f"s_lshl_b32 s{dst}, s{dst}, 7")
    b(f"s_add_u32 s{dst}, s{dst}, {WS_FL}")

def p2_scalars(b):
    b(f"s_and_b32 s6, s{S_W}, 1")
    b("s_lshl_b32 s7, s6, 1")
    for lt in range(4): b(f"s_xor_b32 s{S_TT+lt}, s7, {lt}")
    b(f"s_lshr_b32 s7, s{S_W}, 1")
    b("s_mul_i32 s7, s7, 7")
    b("s_lshl_b32 s9, s6, 2")
    b("s_add_u32 s9, s9, s7")
    b(f"s_mov_b32 s{S_PI}, s9")
    for p in range(1, 3): b(f"s_add_u32 s{S_PI+p}, s9, {p}")
    b(f"s_add_u32 s{S_PI+3}, s7, 3")
    b(f"s_mul_i32 s7, s{S_IDX}, {Z_G}")
    for p in range(4):
        b(f"s_lshl_b32 s8, s{S_PI+p}, 12")
        b(f"s_add_u32 s{S_ZL+p}, s7, s8")
        b(f"s_lshl_b32 s{S_P32+p}, s{S_PI+p}, 5")
    b(f"s_cmp_eq_u32 s{S_W}, 0")
    b(f"s_cselect_b32 s{S_MASK}, 0xffff, 0")
    b(f"s_mov_b32 s{S_MASK+1}, 0")
    b(f"s_mul_i32 s{S_RW}, s{S_W}, 24576")
    b(f"s_add_u32 s{S_RW}, s{S_RW}, {RING}")
    b(f"s_lshl_b32 s7, s{S_J}, 9")
    b(f"s_lshl_b32 s9, s{S_W}, 7")
    b(f"s_add_u32 s{S_W1B}, s7, s9")
    b(f"s_mov_b32 s{S_Z0}, s10")
    b(f"s_add_u32 s{S_Z1}, s10, {16*Z_G}")
    t0_of_tt(b, 8, S_W)
    b(f"s_mul_i32 s{S_XR}, s8, 896")

def inbox_scalars(b):
    b(f"s_mul_i32 s11, s{S_IDX}, {PB_G}")
    b(f"s_lshl_b32 s7, s{S_W}, 11")
    b("s_add_u32 s11, s11, s7")
    b(f"s_add_u32 s11, s11, {WS_PB}")
    b(f"s_lshl_b32 s13, s{S_J}, 13")
    b("s_add_u32 s13, s13, s11")
    for p in range(6):
        b(f"s_add_u32 s6, s{S_J}, {p+1}")
        b("s_sub_u32 s7, s6, 7")
        b("s_min_u32 s6, s6, s7")
        b(f"s_mul_i32 s7, s6, {7*8192}")
        b(f"s_add_u32 s{S_IN+p}, s13, s7")

def p2_scalars_late(b):
    b(f"s_lshl_b32 s{S_HWB}, s{S_W}, 13")
    b(f"s_lshl_b32 s6, s{S_J}, 8")
    b(f"s_lshl_b32 s7, s{S_W}, 6")
    b("s_add_u32 s6, s6, s7")
    b("s_mul_i32 s10, s6, 896")
    b(f"s_mul_i32 s11, s{S_IDX}, {PB_G}")
    b(f"s_lshl_b32 s7, s{S_W}, 11")
    b("s_add_u32 s11, s11, s7")
    b(f"s_add_u32 s11, s11, {WS_PB}")
    b(f"s_mul_i32 s12, s{S_J}, {7*8192}")
    b("s_add_u32 s12, s12, s11")
    for p in range(7):
        b(f"s_add_u32 s6, s{S_J}, {p+1}")
        b("s_sub_u32 s7, s6, 7")
        b("s_min_u32 s6, s6, s7")
        b("s_lshl_b32 s7, s6, 7")
        b(f"s_add_u32 s{S_W2+p}, s10, s7")
        if p < 6:
            b("s_lshl_b32 s7, s6, 13")
            b(f"s_add_u32 s{S_PB+p}, s12, s7")
    b(f"s_lshl_b32 s10, s{S_J}, 7")
    b(f"s_lshl_b32 s7, s{S_W}, 5")
    b("s_add_u32 s10, s10, s7")
    b(f"s_sub_u32 s8, 64, s{S_IDX}")
    b(f"s_cmp_eq_u32 s{S_IDX}, 0")
    b("s_cselect_b32 s8, 32, s8")
    for tt in range(4):
        src = f"s{S_IDX}" if tt < 2 else "s8"
        b(f"s_add_u32 s6, {src}, {1024*(tt&1)}")
        b("s_mul_i32 s6, s6, 896")
        b(f"s_add_u32 s{S_O+tt}, s6, s10")

def dma_addr(b):
    t = T
    b(f"v_lshrrev_b32 v{t}, 3, v0")
    b(f"v_bfe_u32 v{t+1}, v{t}, 1, 2")
    b(f"v_lshlrev_b32 v{t+1}, 1, v{t+1}")
    b(f"v_and_b32 v{t+2}, 7, v0")
    b(f"v_xor_b32 v{t+2}, v{t+2}, v{t+1}")
    b(f"v_lshlrev_b32 v{t+2}, 4, v{t+2}")
    b(f"v_mul_u32_u24 v{t+1}, 3584, v{t}")
    b(f"v_add_u32 v{V_W1O}, v{t+1}, v{t+2}")
    b(f"v_add_u32 v{V_W1O+1}, {8*3584 - 1024}, v{V_W1O}")
    b(f"v_sub_u32 v{t+3}, v{t+2}, v{t+1}")
    b(f"v_add_u32 v{V_W1O+2}, {15*3584 - 2048 + 4096}, v{t+3}")
    b(f"v_add_u32 v{V_W1O+3}, {7*3584 - 3072 + 4096}, v{t+3}")
    b(f"v_sub_u32 v{t+3}, 448, v{t}")
    b(f"v_mov_b32 v{t+4}, 224")
    b(f"v_cmp_eq_u32 vcc, 0, v{t}")
    b(f"v_mul_u32_u24 v{t+1}, 896, v{t}")
    b(f"v_cndmask_b32 v{t+3}, v{t+3}, v{t+4}, vcc")
    b(f"v_mul_u32_u24 v{t+3}, 3584, v{t+3}")
    b(f"v_add_u32 v{t+3}, v{t+3}, v{t+2}")
    b(f"v_subrev_u32 v{V_AUX}, 2048, v{t+3}")
    b(f"v_add_u32 v{V_W2O}, v{t+1}, v{t+2}")
    for n in range(1, 4):
        b(f"v_add_u32 v{V_W2O+n}, {n*(8*896 - 1024)}, v{V_W2O}")
    b(f"v_mul_u32_u24 v{t}, {XRS}, v{V_C}")
    b(f"v_lshl_add_u32 v{t}, v{V_GQ}, 4, v{t}")
    for lt in range(4):
        b(f"s_mul_i32 s6, s{S_TT+lt}, {16*XRS}")
        b(f"v_add_u32 v{V_XA+lt}, s6, v{t}")
    b(f"v_lshlrev_b32 v{t}, 3, v{V_GQ}")
    b(f"v_sub_u32 v{t+1}, v{V_C}, v{t}")
    b(f"v_sub_u32 v{t+2}, 16, v{V_C}")
    b(f"v_sub_u32 v{t+2}, v{t+2}, v{t}")
    b(f"v_mov_b32 v{t+3}, 0x3f80")
    b(f"v_mov_b32 v{t+4}, 0x3f800000")
    b(f"v_mov_b32 v{t+5}, 0")
    for (dst, src) in ((V_SEL1, t+1), (V_SEL2, t+2)):
        for m in range(4):
            b(f"v_cmp_eq_u32 vcc, {2*m}, v{src}")
            b(f"v_cmp_eq_u32 s[6:7], {2*m+1}, v{src}")
            b(f"v_cndmask_b32 v{dst+m}, v{t+5}, v{t+3}, vcc")
            b(f"v_cndmask_b32 v{dst+m}, v{dst+m}, v{t+4}, s[6:7]")
    for m in range(4):
        b(f"v_xor_b32 v{V_NSEL2+m}, 0x80008000, v{V_SEL2+m}")


def p2_addr(b):
    t = T
    for p in range(4): b(f"s_sub_u32 s{S_N32+p}, 864, s{S_P32+p}")
    b(f"v_lshlrev_b32 v{t}, 3, v{V_C}")
    b(f"v_lshl_add_u32 v{V_ZO}, v{V_GQ}, 9, v{t}")
    b(f"s_lshl_b32 s7, s{S_PI}, 12")
    b(f"s_lshl_b32 s8, s{S_PI+3}, 12")
    for lt in range(4):
        b(f"s_lshl_b32 s6, s{S_TT+lt}, 10")
        b("s_add_u32 s9, s6, s7")
        b(f"v_add_u32 v{V_HW+lt}, s9, v{V_L16}")
        if lt < 2:
            b("s_add_u32 s9, s6, s8")
            b(f"v_add_u32 v{V_HWS+lt}, s9, v{V_L16}")
        rot(b, 6, lt, 10)
        b(f"v_add_u32 v{V_HB+lt}, s6, v{V_L16}")
    b(f"v_lshrrev_b32 v{t}, 2, v{V_C}")
    b(f"v_lshl_add_u32 v{t}, v{V_GQ}, 2, v{t}")
    b(f"v_bfe_u32 v{t+1}, v{t}, 1, 2")
    b(f"v_and_b32 v{t+2}, 3, v0")
    b(f"v_lshlrev_b32 v{t+2}, 3, v{t+2}")
    b(f"v_lshl_add_u32 v{t+2}, v{t}, 7, v{t+2}")
    b(f"v_add_u32 v{t+4}, s{S_RW}, v{t+2}")
    for u in range(4):
        b(f"v_xor_b32 v{t+3}, {u}, v{t+1}")
        b(f"v_lshl_add_u32 v{V_TR1+u}, v{t+3}, 5, v{t+4}")
    b(f"v_xor_b32 v{t+3}, s{S_W}, v{t+1}")
    b(f"v_lshl_add_u32 v{t+3}, v{t+3}, 5, v{t+2}")
    b(f"v_add_u32 v{V_TR2}, {RING}, v{t+3}")
    b(f"v_add_u32 v{V_TR2+1}, {RING+49152}, v{t+3}")
    b(f"v_mov_b32 v{V_TR2H}, v{t+3}")

def hres_addr(b):
    t = T
    b(f"s_lshl_b32 s6, s{S_J}, 6")
    b(f"s_lshl_b32 s7, s{S_W}, 4")
    b("s_add_u32 s6, s6, s7")
    b(f"v_lshl_add_u32 v{t+4}, v{V_GQ}, 2, s6")
    b("s_lshl_b32 s6, s6, 8")
    b(f"v_add_u32 v{t+5}, s6, v{V_L16}")
    for r in range(4):
        A = V_HA + r
        b(f"v_add_u32 v{t}, {r}, v{t+4}") if r else b(f"v_mov_b32 v{t}, v{t+4}")
        b(f"v_sub_u32 v{t+2}, 448, v{t}")
        b(f"v_mov_b32 v{t+3}, 0")
        b(f"v_cmp_eq_u32 vcc, 224, v{t}")
        b(f"v_add_u32 v{t+1}, {2*r}, v{t+5}")
        b(f"v_cndmask_b32 v{t+2}, v{t+2}, v{t+3}, vcc")
        b(f"v_lshrrev_b32 v{t+3}, 4, v{t+2}")
        b(f"v_lshlrev_b32 v{A}, 12, v{t+3}")
        b(f"v_bfe_u32 v{t+3}, v{t+2}, 2, 2")
        b(f"v_lshl_add_u32 v{t+3}, v{t+3}, 4, v{V_C}")
        b(f"v_lshl_add_u32 v{A}, v{t+3}, 4, v{A}")
        b(f"v_and_b32 v{t+3}, 3, v{t+2}")
        b(f"v_lshl_add_u32 v{A}, v{t+3}, 1, v{A}")
        b(f"v_cmp_gt_u32 vcc, 224, v{t}")
        b(f"v_add_u32 v{A}, 8, v{A}")
        b(f"v_cndmask_b32 v{A}, v{A}, v{t+1}, vcc")

def p1_loop(b):
    stages = cfg.stages
    XBUF = [V_XF, V_XF + 16, V_G + 8]
    def xread(ks):
        ksp, par = ks >> 1, ks & 1
        return [(lambda ls=ls: b(f"ds_read_b128 {v(XBUF[ks % 3] + 4*ls, 4)}, v{V_XB + 2*ls + par} offset:{XL + ksp*8192}", tag=f"xf{ks}")) for ls in range(4)]
    pbp = pb_prefill(b) if (cfg.pre_at == "loop" and not cfg.x_nopre) else []
    rg = []
    for k in range(cfg.ring_early): rg += w1_groups(b, k)
    wk = (record(p2_addr) + record(dma_addr)) if cfg.addr_in_loop else []
    tw = touch_w_list(b) if cfg.touch_w else []
    for si, stg in enumerate(stages):
        b.wait_vm([f"x{stg[-1]}", "pre"])
        if si == 0 or (si == len(stages) - 1 and cfg.ring_early): b("s_waitcnt lgkmcnt(0)")
        b("s_barrier")
        if si == 0 and cfg.early_arrive is None: arrive0(b)
        stamp(b, 3 + si)
        kss = [k for p in stg for k in (2*p, 2*p+1)]
        for f in xread(kss[0]) + xread(kss[1]): f()
        if si == 0:
            fm = f_read(b) + ([] if cfg.m_late else m_read(b))
        for n, ks in enumerate(kss):
            nxt = kss[n+2] if n + 2 < len(kss) else None
            b.wait_lg(f"xf{ks}")
            xf = XBUF[ks % 3]
            wd = v(V_WD + 4*ks, 4)
            z = ks == 0
            mf = [f"{MF} {v(V_QQ,4)}, {v(xf,4)}, {v(xf,4)}, {'0' if z else v(V_QQ,4)}",
                  f"{MF} {v(V_SS,4)}, {v(V_ONE,4)}, {v(xf,4)}, {'0' if z else v(V_SS,4)}"]
            for ls in range(4):
                mf.append(f"{MF} {v(V_ACC + 4*ls, 4)}, {v(xf + 4*ls, 4)}, {wd}, {'0' if z else v(V_ACC + 4*ls, 4)}")
            fill = xread(nxt) if nxt is not None else []
            nf = 2 if cfg.m_late else 6
            fill = fill + fm[:nf]; fm = fm[nf:]
            if ks >= 2 and pbp: fill.append(pbp.pop(0))
            if tw and ks % 3 == 1: fill.append(tw.pop(0))
            if wk:
                nw = (len(wk) + 13 - ks) // (14 - ks)
                sched(b, mf, first=fill, misc=wk[:nw], cap=3); wk = wk[nw:]
            elif ks >= 8 and rg:
                n = (len(rg) + 13 - ks) // (14 - ks)
                sched(b, mf, first=fill, vm=rg[:n], cap=3); rg = rg[n:]
            else:
                weave(b, mf, fill, per=2)

def stats_core(b, SS, QQ, scale4):
    b(f"v_cndmask_b32 v{QQ}, v{QQ}, v{QQ+1}, s[{S_M1}:{S_M1+1}]")
    b(f"v_mul_f32 v{SS}, 0x3b124925, v{SS}")
    b(f"v_cndmask_b32 v{QQ}, v{QQ}, v{QQ+2}, s[{S_M1+2}:{S_M1+3}]")
    b(f"v_cndmask_b32 v{QQ}, v{QQ}, v{QQ+3}, s[{S_M1+4}:{S_M1+5}]")
    b(f"v_mul_f32 v{QQ}, 0x3b124925, v{QQ}")
    b(f"v_fma_f32 v{QQ}, -v{SS}, v{SS}, v{QQ}")
    b(f"v_max_f32 v{QQ}, 0, v{QQ}")
    if scale4:
        b(f"v_mul_f32 v{QQ}, 0x3e800000, v{QQ}")
    b(f"v_add_f32 v{QQ}, 0x3727c5ac, v{QQ}")
    b(f"v_rsq_f32 v{QQ}, v{QQ}")

def p1_tail(b, xl=None):
    t = T
    xl = xl if xl is not None else []
    def X():
        if xl: xl.pop(0)()
    stamp(b, 6)
    stats_core(b, V_SS, V_QQ, False)
    b(f"s_lshl_b32 s6, s{S_W}, 6")
    b(f"s_add_u32 s6, s6, {STAT}")
    b(f"v_lshl_add_u32 v{t}, v{V_C}, 2, s6")
    b(f"v_mul_f32 v{V_SS}, v{V_QQ}, v{V_SS}")
    b(f"v_add_f32 v{V_QQ}, v{V_QQ}, v{V_QQ}")
    b(f"v_mul_f32 v{V_SS}, -2.0, v{V_SS}")
    b(f"s_mov_b64 exec, s[{S_DIAG}:{S_DIAG+1}]")
    b(f"ds_write_b32 v{t}, v{V_QQ}")
    b(f"ds_write_b32 v{t}, v{V_SS} offset:256")
    b("s_mov_b64 exec, -1")
    b("s_waitcnt lgkmcnt(0)")
    b("s_barrier")
    for ls in range(4):
        b(f"ds_read_b128 {v(V_AB + 8*ls, 4)}, v{V_SA + ls}", tag=f"ab{ls}")
        b(f"ds_read_b128 {v(V_AB + 8*ls + 4, 4)}, v{V_SA + ls} offset:256", tag=f"ab{ls}")
    if xl:
        b(f"s_mul_i32 s96, s{S_W}, {16*XRS}")
    X()
    for ls in range(4):
        b.wait_lg(f"ab{ls}")
        al, be, ac = V_AB + 8*ls, V_AB + 8*ls + 4, V_ACC + 4*ls
        for h in range(2):
            b(f"v_pk_mul_f32 {v(be+2*h,2)}, {v(be+2*h,2)}, {v(V_CS1,2)} op_sel_hi:[1,0]")
        for h in range(2):
            b(f"v_pk_fma_f32 {v(ac+2*h,2)}, {v(al+2*h,2)}, {v(ac+2*h,2)}, {v(be+2*h,2)}")
        for h in range(2):
            b(f"v_cvt_pk_f16_f32 v{V_A + 2*ls + h}, v{ac+2*h}, v{ac+2*h+1}")
        if ls in (1, 3): X()
    stamp(b, 7)
    for gh in range(2):
        for sg in range(2):
            d = V_D2 + (gh*2 + sg)*4
            b(f"{MH} {v(d,4)}, {v(V_A,4)}, {v(V_F + ((gh*2+sg)*2)*4,4)}, 0")
    for gh in range(2):
        for sg in range(2):
            d = V_D2 + (gh*2 + sg)*4
            b(f"{MH} {v(d,4)}, {v(V_A+4,4)}, {v(V_F + ((gh*2+sg)*2+1)*4,4)}, {v(d,4)}")
    X()
    for gh in range(2):
        for r in range(4):
            b(f"v_cvt_pk_f16_f32 v{V_ZP + 4*gh + r}, v{V_D2 + (gh*2)*4 + r}, v{V_D2 + (gh*2+1)*4 + r}")
        b(f"buffer_store_dwordx4 {v(V_ZP + 4*gh, 4)}, v{V_ZO1}, s[{R_WS}:{R_WS+3}], s{S_Z0+gh} offen sc1", tag="zst")

def xres_pad(b):
    b(f"s_mul_i32 s96, s{S_W}, {16*XRS}")
    b(f"v_lshrrev_b32 v{T}, 1, v0")
    b(f"v_mul_u32_u24 v{T}, {XRS}, v{T}")
    b(f"v_and_b32 v{T+1}, 1, v0")
    b(f"v_lshl_add_u32 v{T}, v{T+1}, 4, v{T}")
    b(f"v_add_u32 v{T}, s96, v{T}")
    for r in range(4): b(f"v_mov_b32 v{T+4+r}, 0")
    b("s_mov_b32 exec_hi, 0")
    b(f"ds_write_b128 v{T}, {v(T+4,4)} offset:{XL+896}")
    b("s_mov_b32 exec_hi, -1")

def xres_list(b):
    out = []
    for c in range(16):
        def f(c=c):
            if cfg.xres_rot:
                b(f"s_lshl_b32 s12, s{S_J}, 1")
                b(f"s_add_u32 s12, s12, {c}")
                b("s_and_b32 s12, s12, 15")
                b(f"s_mul_i32 s13, s12, {XRS}")
                b("s_add_u32 s13, s13, s96")
                b(f"s_add_u32 m0, s13, {XL}") if XL else b("s_mov_b32 m0, s13")
                b("s_mul_i32 s12, s12, 57344")
                b(f"s_add_u32 s95, s{S_XR}, s12")
            else:
                b(f"s_add_u32 m0, s96, {XL + c*XRS}")
                b(f"s_add_u32 s95, s{S_XR}, {c*57344}")
            if not cfg.x_noexec: b("s_mov_b32 exec_hi, 0x00ffffff")
            b(f"buffer_load_dwordx4 v{V_L16}, s[{R_X}:{R_X+3}], s95 offen lds", tag="xres")
            if not cfg.x_noexec: b("s_mov_b32 exec_hi, -1")
        out.append(f)
    return out

def w1_groups(b, k):
    slot = k % 6
    out = []
    for n in range(4):
        pre = []
        if n == 0:
            pre = [f"s_add_u32 m0, s{S_RW}, {slot*4096}", (f"s_add_u32 s95, s{S_W1B}, {16*k*3584}" if k else f"s_mov_b32 s95, s{S_W1B}")]
        if n == 2 and not k == 0: pre = [f"s_add_u32 s96, s{S_W1B}, {(433 - 16*k)*3584 - 4096}"]
        if n == 3 and k == 0: pre = [f"s_add_u32 s96, s{S_W1B}, {(433 - 16*k)*3584 - 4096}"]
        def f(n=n):
            if n < 2: vo, so = V_W1O + n, "s95"
            elif k == 0 and n == 2: vo, so = V_AUX, f"s{S_W1B}"
            else: vo, so = V_W1O + n, "s96"
            off = f" offset:{1024*n}" if n else ""
            b(f"buffer_load_dwordx4 v{vo}, s[{R_W1}:{R_W1+3}], {so} offen{off} lds", tag=f"w1_{k}")
        out.append((pre, f))
    return out

def flat(gs):
    out = []
    for pre, op in gs: out += list(pre) + [op]
    return out
def w1_dma(b, k): return flat(w1_groups(b, k))

def units():
    return [(p, lt) for lt in range(4) for p in range(4) if not (p == 3 and lt >= 2)]
def preg(p, lt): return V_P + (p*4 + lt)*4 if p < 3 else V_PS + lt*4
def qreg(p, lt): return V_Q + (p*4 + lt)*4 if p < 3 else V_QS + lt*4

A_W = 64
def x_init(b, extra=()):
    us = units()
    AD = T
    def rd(i):
        p, lt = us[i]; w = A_W + 8*(i & 3)
        return [f"v_add_u32 v{AD + 2*(i&1)}, s{S_P32+p}, v{V_XA+lt}",
                f"v_add_u32 v{AD + 2*(i&1) + 1}, s{S_N32+p}, v{V_XA+lt}",
                lambda: b(f"ds_read_b128 {a(w,4)}, v{AD + 2*(i&1)} offset:{XL}", tag=f"xw{i}"),
                lambda: b(f"ds_read_b128 {a(w+4,4)}, v{AD + 2*(i&1) + 1} offset:{XL}", tag=f"xw{i}")]
    for lt in range(4):
        b(f"ds_read_b32 v{V_E + 4*lt}, v{V_XA+lt} offset:{XL+448}", tag="xe")
    for i in range(3):
        for f in rd(i): emit(b, f)
    extra = list(extra)
    for i, (p, lt) in enumerate(us):
        b.wait_lg(f"xw{i}")
        w = A_W + 8*(i & 3); P, Q = preg(p, lt), qreg(p, lt)
        mf = [f"{MF} {v(P,4)}, {v(V_SEL1,4)}, {a(w,4)}, 0",
              f"{MF} {v(Q,4)}, {v(V_SEL1,4)}, {a(w,4)}, 0",
              f"{MF} {v(P,4)}, {v(V_SEL2,4)}, {a(w+4,4)}, {v(P,4)}",
              f"{MF} {v(Q,4)}, {v(V_NSEL2,4)}, {a(w+4,4)}, {v(Q,4)}"]
        fill = rd(i+3) if i + 3 < len(us) else []
        ne = (len(extra) + len(us) - i - 1) // (len(us) - i)
        fill = extra[:ne] + fill; extra = extra[ne:]
        weave(b, mf, fill, per=2)
    b("s_nop 7")
    b(f"v_mov_b32 v{T+1}, 0")
    for lt in range(4):
        P, Q, E = preg(0, lt), qreg(0, lt), V_E + 4*lt
        b(f"v_add_f32 v{T}, v{P}, v{P}")
        b(f"v_cndmask_b32 v{Q}, v{Q}, v{T+1}, s[{S_MASK}:{S_MASK+1}]")
        b(f"v_cndmask_b32 v{P}, v{P}, v{T}, s[{S_MASK}:{S_MASK+1}]")
        b(f"v_lshlrev_b32 v{E}, 16, v{E}")
        b(f"v_add_f32 v{E}, v{E}, v{E}")

def z_load(b, p):
    for ks in range(2):
        for j in range(4):
            reg = V_Z + (p*2 + ks)*8 + 2*j
            b(f"buffer_load_dwordx2 {v(reg,2)}, v{V_ZO}, s[{R_WS}:{R_WS+3}], s{S_ZL+p} offen offset:{ks*2048 + j*128} sc1", tag=f"z{p}_{ks}")
def z_list(b):
    out = []
    if cfg.x_z4:
        b(f"v_and_b32 v{T+6}, 7, v{V_C}")
        b(f"v_lshlrev_b32 v{T+6}, 4, v{T+6}")
        b(f"v_lshrrev_b32 v{T+7}, 3, v{V_C}")
        b(f"v_lshl_add_u32 v{T+6}, v{T+7}, 7, v{T+6}")
        b(f"v_lshl_add_u32 v{T+6}, v{V_GQ}, 9, v{T+6}")
        for p in range(4):
            for ks in range(2):
                for j in range(2):
                    reg = V_Z + (p*2 + ks)*8 + 4*j
                    out.append(lambda p=p, ks=ks, j=j, reg=reg: b(f"buffer_load_dwordx4 {v(reg,4)}, v{T+6}, s[{R_WS}:{R_WS+3}], s{S_ZL+p} offen offset:{ks*2048 + j*256} sc1", tag=f"z{p}_{ks}"))
        return out
    for p in range(4):
        for ks in range(2):
            for j in range(4):
                reg = V_Z + (p*2 + ks)*8 + 2*j
                out.append(lambda p=p, ks=ks, j=j, reg=reg: b(f"buffer_load_dwordx2 {v(reg,2)}, v{V_ZO}, s[{R_WS}:{R_WS+3}], s{S_ZL+p} offen offset:{ks*2048 + j*128} sc1", tag=f"z{p}_{ks}"))
    return out

def pb_prefill(b):
    out = []
    for q in range(6):
        for h in range(2):
            out.append(lambda q=q, h=h: b(f"buffer_store_dwordx4 {v(V_NEG,4)}, v{V_L16}, s[{R_WS}:{R_WS+3}], s{S_IN+q} offen offset:{1024*h} sc1", tag="pbpre"))
    return out

def step_b(b, ring=()):
    def swaps(p, ks):
        z = V_Z + (p*2 + ks)*8
        return [f"v_swap_b32 v{z+1}, v{z+2}", f"v_swap_b32 v{z+2}, v{z+4}", f"v_swap_b32 v{z+3}, v{z+6}", f"v_swap_b32 v{z+5}, v{z+6}"]
    def epi(p, lt):
        P, Q = preg(p, lt), qreg(p, lt)
        fl = []
        for r in range(4):
            fl.append(f"v_add_f32 v{T+r}, v{P+r}, v{Q+r}")
            fl.append(f"v_sub_f32 v{T+4+r}, v{P+r}, v{Q+r}")
        if p == 0:
            fl.append(f"v_cndmask_b32 v{T}, v{T}, v{P}, s[{S_MASK}:{S_MASK+1}]")
            fl.append(f"v_cndmask_b32 v{T+4}, v{T+4}, v{V_E+4*lt}, s[{S_MASK}:{S_MASK+1}]")
        fl.append(f"v_cvt_pk_bf16_f32 v{P+0}, v{T+0}, v{T+1}")
        fl.append(f"v_cvt_pk_bf16_f32 v{P+1}, v{T+2}, v{T+3}")
        fl.append(f"v_cvt_pk_bf16_f32 v{P+2}, v{T+4}, v{T+5}")
        fl.append(f"v_cvt_pk_bf16_f32 v{P+3}, v{T+6}, v{T+7}")
        if p < 3:
            fl.append(lambda: b(f"ds_write_b128 v{V_HW+lt}, {v(P,4)} offset:{XL + p*4096}", tag="hw"))
        else:
            fl.append(lambda: b(f"ds_write_b128 v{V_HWS+lt}, {v(P,4)} offset:{XL}", tag="hw"))
        return fl
    def mf(p, lt):
        P, Q = preg(p, lt), qreg(p, lt)
        out = []
        for ks in range(2):
            z = V_Z + (p*2 + ks)*8
            out.append(f"{MH} {v(P,4)}, {v(z,4)}, {a(mreg(lt,ks,0),4)}, {v(P,4)}")
            out.append(f"{MH} {v(Q,4)}, {v(z+4,4)}, {a(mreg(lt,ks,1),4)}, {v(Q,4)}")
        return out
    order = [(p, lt) for p in range(4) for lt in range(4) if not (p == 3 and lt >= 2)]
    done = []
    pre = [] if cfg.x_noring else list(ring)
    nun = len(order)
    for iu, (p, lt) in enumerate(order):
        if lt == 0:
            b.wait_vm(f"z{p}_1")
            if cfg.fineb: stamp(b, 24 + p, True)
            guarded(b, [V_Z + p*16 + i for i in range(16)], lambda p=p: z_load(b, p), f"z{p}")
            for ks in range(2):
                for sw in swaps(p, ks): b(sw)
            if p == 0:
                lab = b.newlabel("L_noE")
                b(f"s_cmp_eq_u32 s{S_W}, 0")
                b(f"s_cbranch_scc0 {lab}")
                for ks in range(2):
                    for l2 in range(4):
                        z = V_Z + ks*8
                        b(f"{MH} {v(V_E+4*l2,4)}, {v(z+4,4)}, {a(mreg(l2,ks,0),4)}, {v(V_E+4*l2,4)}")
                b.label(lab)
        fl = epi(*done[-2]) if len(done) >= 2 else []
        nv = (len(pre) + (nun - iu) - 1) // (nun - iu)
        vm = pre[:nv]; pre = pre[nv:]
        sched(b, mf(p, lt), vm=vm, misc=fl, cap=5)
        done.append((p, lt))
    for f in epi(*done[-2]): emit(b, f)
    for f in epi(*done[-1]): emit(b, f)

def slab_buf(p):
    return {0: 1, 1: 2, 2: 0, 3: 1, 4: 2, 5: "H", 6: "S"}[p]

def w2_groups(b, p):
    sg = slab_buf(p)
    out = []
    for hf in range(2):
        for n in range(4):
            pre = []
            if n == 0:
                pre.append(f"s_add_u32 m0, s{S_HWB}, {XL + hf*4096}" if sg == "H" else f"s_add_u32 m0, s{S_RW}, {sg*8192 + hf*4096}")
                if hf: pre.append(f"s_add_u32 s95, s{S_W2+p}, {32*896}")
            def f(n=n, hf=hf):
                so = "s95" if hf else f"s{S_W2+p}"
                off = f" offset:{1024*n}" if n else ""
                b(f"buffer_load_dwordx4 v{V_W2O+n}, s[{R_W2}:{R_W2+3}], {so} offen{off} lds", tag=f"w2_{p}")
            out.append((pre, f))
    return out
def w2_dma(b, p): return flat(w2_groups(b, p))

S_S6 = 6
def w2_groups6(b):
    ga, gb = [], []
    for i in range(6):
        pre = []
        if i == 0:
            pre = [f"s_mul_i32 s95, s{S_W}, {16*896}", f"s_sub_u32 s95, s{S_W2+6}, s95",
                   f"s_mul_i32 s96, s{S_W}, 6144", f"s_add_u32 m0, s96, {XL + 32768}"]
        if i == 4:
            pre = [f"s_add_u32 s95, s95, {32*896}", f"s_add_u32 m0, s96, {XL + 32768 + 4096}"]
        n = i & 3
        def f(n=n):
            off = f" offset:{1024*n}" if n else ""
            b(f"buffer_load_dwordx4 v{V_W2O+n}, s[{R_W2}:{R_W2+3}], s95 offen{off} lds", tag="w2_6")
        ga.append((pre, f))
    for i in range(2):
        pre = []
        if i == 0:
            pre = [f"s_mul_i32 s95, s{S_W}, {48*896}", f"s_sub_u32 s95, s{S_W2+6}, s95", f"s_add_u32 s95, s95, {192*896}",
                   f"s_lshl_b32 s96, s{S_W}, 11", f"s_add_u32 m0, s96, {RING}"]
        def f(n=i):
            off = f" offset:{1024*n}" if n else ""
            b(f"buffer_load_dwordx4 v{V_W2O+n}, s[{R_W2}:{R_W2+3}], s95 offen{off} lds", tag="w2_6")
        gb.append((pre, f))
    return ga, gb

def cs_loads(b):
    out = []
    def hdr():
        b(f"s_lshl_b32 s6, s{S_J}, 10")
        b(f"s_lshl_b32 s7, s{S_W}, 8")
        b("s_add_u32 s6, s6, s7")
        b(f"s_add_u32 s{S_CSO}, s6, {WS_CS}")
        b(f"v_lshlrev_b32 v{V_CSA}, 4, v{V_GQ}")
    hdr()
    cs_reload(b)

def cs_reload(b):
    for ft in range(4):
        b(f"buffer_load_dwordx4 {v(V_CS+4*ft,4)}, v{V_CSA}, s[{R_WS}:{R_WS+3}], s{S_CSO} offen offset:{64*ft} sc1", tag="cs")

def gemm1(b):
    def reads(k):
        buf = k & 1; slot = k % 6
        out = []
        for lt in range(4):
            out.append(lambda lt=lt: b(f"ds_read_b128 {v(V_B1 + 16*buf + 4*lt, 4)}, v{V_HB+lt} offset:{XL + k*4096}", tag=f"r{k}"))
        for u in range(4):
            for hh in range(2):
                out.append(lambda u=u, hh=hh: b(f"ds_read_b64_tr_b16 {v(V_A1 + 16*buf + 4*u + 2*hh, 2)}, v{V_TR1+u} offset:{slot*4096 + hh*2048}", tag=f"r{k}"))
        return out
    late = record(epi_addr) + record(flag_setup)
    b.wait_vm("w1_0")
    for f in reads(0): f()
    hres = [f"v_mov_b32 v{V_HRES+k}, 0" for k in range(16)]
    hrd = [(lambda tt=tt, r=r: b(f"ds_read_u16_d16_hi v{V_HRES + tt*4 + r}, v{V_HA + r} offset:{XL + tt*1024}", tag="hres")) for tt in range(4) for r in range(4)]
    s0 = []
    for k2 in range(8):
        s0 += slab_read(b, 0, k2, lambda o, k2=k2: a(A_S0 + 4*k2 + o, 2), "s0")
    g0, g1, g2 = w2_groups(b, 0), w2_groups(b, 1), w2_groups(b, 2)
    for k in range(14):
        buf = k & 1
        if k == 12:
            b.wait_vm("w2_0")
            b.wait_lg(f"r{k}")
            b("s_barrier")
        else:
            b.wait_lg(f"r{k}")
        if cfg.fine: stamp(b, k)
        first, vm, misc = [], [], []
        if k + 1 < 14:
            first.append(lambda k=k: b.wait_vm(f"w1_{k+1}"))
            if not cfg.x_noreads: first += reads(k + 1)
        if k + 6 < 14 and not cfg.x_now1dma: vm += w1_groups(b, k + 6)
        if k == 8: misc += hres
        if k == 8: vm += g0[:4]
        if k == 9: vm += g0[4:]; misc += hrd[:8]
        if k == 10: vm += g1[:4]; misc += hrd[8:]
        if k == 11: vm += g1[4:]; misc.append(lambda: ready_set(b))
        if k == 12: vm += g2[:4]; misc += s0[:8]
        if k < 8:
            n = (len(late) + 7 - k) // (8 - k)
            misc += late[:n]; late = late[n:]
        bb = V_B1 + 16*buf
        z = k == 0
        mf = [f"{MF} {v(V_Q2,4)}, {v(bb,4)}, {v(bb,4)}, {'0' if z else v(V_Q2,4)}",
              f"{MF} {v(V_S2,4)}, {v(V_ONE2,4)}, {v(bb,4)}, {'0' if z else v(V_S2,4)}"]
        pairs = [(lt, u) for u in range(4) for lt in range(4)] if cfg.g1_umajor else [(lt, u) for lt in range(4) for u in range(4)]
        for lt, u in pairs:
            d = V_ACC1 + (u*4 + lt)*4
            mf.append(f"{MF} {v(d,4)}, {v(V_A1 + 16*buf + 4*u, 4)}, {v(bb + 4*lt, 4)}, {'0' if z else v(d,4)}")
        if k == 13:
            r = Rec()
            stats_core(r, V_S2, V_Q2, True)
            sf = r.l + [f"s_lshl_b32 s6, s{S_W}, 6", f"s_add_u32 s6, s6, {STAT}", f"v_lshl_add_u32 v{T}, v{V_C}, 2, s6",
                        f"v_sub_f32 v{V_S2}, 0, v{V_S2}", f"v_mul_f32 v{V_Q2}, 0.5, v{V_Q2}"]
            sched(b, mf[:6], first=s0[8:], vm=g2[4:5])
            sched(b, mf[6:], vm=g2[5:], misc=sf)
            b(f"s_mov_b64 exec, s[{S_DIAG}:{S_DIAG+1}]")
            b(f"ds_write_b32 v{T}, v{V_S2}")
            b(f"ds_write_b32 v{T}, v{V_S2} offset:256")
            b(f"ds_write_b32 v{T}, v{V_Q2} offset:512")
            b("s_mov_b64 exec, -1")
            b.g2rest = []
        else:
            sched(b, mf, first=first, vm=vm, misc=misc, misc_from=6)

def slab_read(b, p, k2, dst, tagp):
    sg = slab_buf(p)
    part = k2 >> 1
    if sg == "H":
        base = V_TR2H; off = XL + part*8192 + (k2 & 1)*4096
    elif sg == "S":
        if k2 < 6: base = V_TR2H; off = XL + 32768 + k2*4096
        else: base = V_TR2; off = (k2 - 6)*4096
    else:
        base = V_TR2 + (part >> 1)
        off = (part & 1)*24576 + sg*8192 + (k2 & 1)*4096
    return [(lambda hh=hh: b(f"ds_read_b64_tr_b16 {dst(2*hh)}, v{base} offset:{off + hh*2048}", tag=tagp)) for hh in range(2)]

V_NA = 54
V_SR = 36
def epi_addr(b):
    b(f"s_lshl_b32 s6, s{S_W}, 13")
    for l2 in range(4): b(f"v_add_u32 v{V_NA+l2}, s6, v{V_HB+l2}")
    b(f"v_lshlrev_b32 v{V_SR}, 2, v{V_C}")
    b(f"v_add_u32 v{V_SR}, {STAT}, v{V_SR}")
    b(f"s_lshl_b32 s6, s{S_W}, 6")
    b(f"v_add_u32 v{V_SR+1}, s6, v{V_SR}")

def gemm1_epi(b):
    b.wait_vm("w2_1")
    b("s_waitcnt lgkmcnt(0)")
    if cfg.finee: stamp(b, 24, True)
    b("s_barrier")
    if cfg.finee: stamp(b, 25, True)
    for lt in range(4):
        b(f"ds_read_b32 v{V_NM+2*lt}, v{V_SR+1} offset:{64*lt}", tag="nm")
    for tt in range(4):
        b(f"ds_read_b32 v{V_RR+tt}, v{V_SR} offset:{512 + 64*tt}", tag="rr")
    ready_load(b)
    b.wait_vm("cs")
    guarded(b, [V_CS + i for i in range(16)], lambda: cs_reload(b), "cs")
    b.wait_lg("nm")
    if cfg.finee: stamp(b, 26, True)
    main = []
    for lt in range(4):
        for fp in range(2):
            pk = V_PK + 4*((lt*2 + fp) & 3)
            for hh in range(2):
                d = V_ACC1 + ((2*fp + hh)*4 + lt)*4
                for h in range(2):
                    main.append(f"v_pk_fma_f32 {v(d+2*h,2)}, {v(V_CS+4*(2*fp+hh)+2*h,2)}, {v(V_NM+2*lt,2)}, {v(d+2*h,2)} op_sel_hi:[1,0,1]")
            for hh in range(2):
                d = V_ACC1 + ((2*fp + hh)*4 + lt)*4
                main.append(f"v_cvt_pk_bf16_f32 v{pk+2*hh}, v{d}, v{d+1}")
                main.append(f"v_cvt_pk_bf16_f32 v{pk+2*hh+1}, v{d+2}, v{d+3}")
            for q in range(4):
                main.append(f"v_pk_max_i16 v{pk+q}, v{pk+q}, 0")
            main.append(lambda lt=lt, fp=fp, pk=pk: b(f"ds_write_b128 v{V_NA+lt}, {v(pk,4)} offset:{XL + fp*4096}", tag="hidw"))
    g6a, b.g6b = w2_groups6(b)
    b.g6a = g6a
    dm = [flat([g]) for g in b.g2rest + ([] if cfg.late_w2 else w2_groups(b, 3))]
    dm = [(lambda l=l: [emit(b, x) for x in l]) for l in dm]
    s1 = []
    for k2 in range(8):
        s1 += slab_read(b, 1, k2, lambda o, k2=k2: a(A_S0 + 32 + 4*k2 + o, 2), "s1")
    multi_spread(b, main, [x for x in (dm, s1) if x])
    if cfg.finee: stamp(b, 27, True)
    if cfg.fewbar: b.wait_vm("w2_2")
    b("s_waitcnt lgkmcnt(0)")
    b("s_barrier")

V_INR = [160, 168, 176, 184, 208, 216]
def inbox_load(b, q):
    return [([], (lambda h=h: b(f"buffer_load_dwordx4 {v(V_INR[q]+4*h,4)}, v{V_L16}, s[{R_WS}:{R_WS+3}], s{S_IN+q} offen offset:{1024*h} sc1", tag=f"p{q}"))) for h in range(2)]

def gemm2(b):
    hb = []
    for k2 in range(8):
        for tt in range(4):
            hb.append((k2, lambda k2=k2, tt=tt: b(f"ds_read_b128 {a((k2*4 + tt)*4, 4)}, v{V_L16} offset:{XL + k2*4096 + tt*1024}", tag=f"hb{k2}")))
    def aread(p, k2):
        if p <= 1: return []
        return slab_read(b, p, k2, lambda o: v(V_A2 + 4*(k2 & 3) + o, 2), f"a{p}_{k2}")
    def aop(p, k2):
        return a(A_S0 + 32*p + 4*k2, 4) if p <= 1 else v(V_A2 + 4*(k2 & 3), 4)
    def epi(p):
        acc = V_ACC2 + 16*(p & 1)
        pk = V_PK + 8*(p & 1)
        cv, st = [], []
        for h in range(2):
            pre = []
            for tt in (2*h, 2*h+1):
                pre.append(f"v_cvt_pk_bf16_f32 v{pk+2*tt}, v{acc+4*tt}, v{acc+4*tt+1}")
                pre.append(f"v_cvt_pk_bf16_f32 v{pk+2*tt+1}, v{acc+4*tt+2}, v{acc+4*tt+3}")
            cv.append(pre)
            st.append(lambda h=h: b(f"buffer_store_dwordx4 {v(pk+4*h,4)}, v{V_L16}, s[{R_WS}:{R_WS+3}], s{S_PB+p} offen offset:{1024*h} sc1", tag=f"pst{p}") if not cfg.x_nostore else None)
        return cv, st
    def mfs(p, k2):
        acc = V_ACC2 + 16*(p & 1)
        return [f"{MF} {v(acc+4*tt,4)}, {aop(p, k2)}, {a((k2*4+tt)*4, 4)}, {v(acc+4*tt, 4) if k2 else '0'}" for tt in range(4)]
    W = {q: w2_groups(b, q) for q in (4, 5)}
    plan = {0: W[4], 1: W[5], 2: b.g6a, 3: b.g6b}
    if cfg.late_w2: plan = {0: w2_groups(b, 3), 1: W[4], 2: W[5], 3: b.g6a, 4: b.g6b}
    if cfg.early_in == 1:
        plan[5] = inbox_load(b, 5) + inbox_load(b, 4) + inbox_load(b, 3)
        plan[6] = inbox_load(b, 2)
    elif cfg.early_in == 2:
        plan[4] = inbox_load(b, 5)
        plan[5] = inbox_load(b, 4) + inbox_load(b, 3)
        plan[6] = inbox_load(b, 2)
    elif cfg.early_in == 3:
        plan[6] = inbox_load(b, 5) + inbox_load(b, 4) + inbox_load(b, 3)
    late_in = {5: [], 6: []}
    for (k2, f) in hb[:8]: f()
    tail = []
    for p in range(7):
        if cfg.fine: stamp(b, 24 + p)
        vm = list(plan.get(p, []))
        cv, st = epi(p - 1) if p >= 1 else ([], [])
        body = list(tail)
        firsts = []
        if p >= 1: firsts = aread(p, 0) + aread(p, 1)
        nt = len(tail)
        nvm_tail = min(len(vm), 2) if nt else 0
        if nt:
            b.wait_lg([f"a{p-1}_6"])
            sched(b, tail[:4], first=firsts[:2], vm=vm[:min(1, nvm_tail)])
            b.wait_lg([f"a{p-1}_7"])
            sched(b, tail[4:], first=firsts[2:], vm=vm[1:nvm_tail])
            vm = vm[nvm_tail:]
        if p == 1: ready_check(b)
        if p == 4 and cfg.trim:
            for tt in range(4): b(f"v_mov_b32 v{V_RR2+2*tt}, v{V_RR+tt}")
            for k in range(16): b.pending_half.append(f"v_mul_f32 v{V_HRES+k}, 0.5, v{V_HRES+k}")
        stg = [(cv[h], st[h]) for h in range(2)] if st else []
        order = (vm + stg) if ((cfg.early_in and p >= 4 and cfg.in_first) or (cfg.dma_first and p <= 3)) else stg + vm
        per = [[] for _ in range(6)]
        for i, g in enumerate(order): per[min(5, (i * 6) // max(len(order), 1))].append(g)
        for k2 in range(6):
            b.wait_lg([f"hb{k2}", f"a{p}_{k2}"])
            first = aread(p, k2 + 2)
            if p == 0: first += [f for (kk, f) in hb if kk == k2 + 2]
            gs = per[k2]
            if gs and len(gs[0][0]) > 2:
                sched(b, mfs(p, k2), first=first, misc=gs[0][0], cap=3)
                for g in gs[:1]: emit(b, g[1])
                for g in gs[1:]:
                    for x in g[0]: emit(b, x)
                    emit(b, g[1])
            else:
                hm = b.pending_half[:4]; b.pending_half = b.pending_half[4:]
                sched(b, mfs(p, k2), first=first, vm=gs, misc=hm)
        if p < 6:
            if cfg.fewbar:
                need = {0: 3, 2: 4, 3: None, 4: 5, 5: 6}.get(p)
                if p == 3: b.wait_vm("w2_4")
                if need: b.wait_vm(f"w2_{need}")
                if p in (0, 2): b("s_waitcnt lgkmcnt(0)")
                if p in (0, 2, 4, 5): b("s_barrier")
            else:
                if p + 1 >= 2: b.wait_vm(f"w2_{p+1}")
                if p in (0, 2): b("s_waitcnt lgkmcnt(0)")
                if not cfg.x_nobar2: b("s_barrier")
            tail = mfs(p, 6) + mfs(p, 7)
        else:
            b.wait_lg([f"a{p}_6", f"a{p}_7"])
            last = {0: [5, 4], 1: [1], 2: [1], 3: [2, 1]}[cfg.early_in]
            sched(b, mfs(p, 6) + mfs(p, 7), vm=[g for q in last for g in inbox_load(b, q)])

def flag_setup(b):
    t = T
    b(f"v_add_u32 v{t}, s{S_J}, v0")
    b(f"v_add_u32 v{t}, 1, v{t}")
    b(f"v_subrev_u32 v{t+1}, 7, v{t}")
    b(f"v_cmp_le_u32 vcc, 7, v{t}")
    b(f"s_mul_i32 s6, s{S_IDX}, 7")
    b(f"v_cndmask_b32 v{t}, v{t}, v{t+1}, vcc")
    b(f"v_add_u32 v{t}, s6, v{t}")
    b(f"v_lshlrev_b32 v{t}, 9, v{t}")
    b(f"s_lshl_b32 s6, s{S_W}, 7")
    b(f"s_add_u32 s6, s6, {WS_FL}")
    b(f"v_add_u32 v{t+6}, s6, v{t}")
    own_line(b, 13)
    b(f"v_mov_b32 v{t+5}, 1")
    b(f"v_mov_b32 v{t+4}, 0")

def ready_set(b):
    b.wait_vm("pbpre")
    b("s_mov_b64 exec, 1")
    b(f"buffer_store_dword v{T+5}, v{T+4}, s[{R_WS}:{R_WS+3}], s13 offen sc1", tag="rdy")
    b("s_mov_b64 exec, -1")

def ready_load(b):
    b("s_mov_b64 exec, 0x3f")
    b(f"buffer_load_dword v{T+7}, v{T+6}, s[{R_WS}:{R_WS+3}], 0 offen sc1", tag="rdl")
    b("s_mov_b64 exec, -1")

def ready_check(b):
    b.wait_vm("rdl")
    l2 = b.newlabel("L_rd"); l3 = b.newlabel("L_rdd")
    b.notrack = True
    b("s_mov_b32 s12, 0")
    b("s_mov_b64 exec, 0x3f")
    b.label(l2)
    b(f"v_cmp_ne_u32 vcc, 1, v{T+7}")
    b("s_cmp_eq_u64 vcc, 0")
    b(f"s_cbranch_scc1 {l3}")
    b("s_add_u32 s12, s12, 1")
    b("s_cmp_ge_u32 s12, 0x10000")
    b(f"s_cbranch_scc1 {l3}")
    b(f"buffer_load_dword v{T+7}, v{T+6}, s[{R_WS}:{R_WS+3}], 0 offen sc1")
    b("s_waitcnt vmcnt(0)")
    b(f"s_branch {l2}")
    b.label(l3)
    b("s_mov_b64 exec, -1")
    b.notrack = False

def final_reduce(b):
    t = T
    acc = V_ACC2
    for x in b.pending_half: b(x)
    b.pending_half = []
    def reload(q):
        for pre, op in inbox_load(b, q): op()
    for q in ((3, 2, 1, 0) if cfg.early_in == 0 else (0,)): reload(q)
    b(f"v_mul_u32_u24 v{t+4}, 57344, v{V_C}")
    b(f"v_lshl_add_u32 v{t+4}, v{V_GQ}, 3, v{t+4}")
    stamp(b, 20)
    for q in (5, 4, 3, 2, 1, 0):
        b.wait_vm(f"p{q}")
        guarded(b, [V_INR[q] + i for i in range(8)], lambda q=q: reload(q), f"p{q}")
        if cfg.finef: stamp(b, 24 + q, True)
        for tt in range(4):
            for m in range(2):
                src = V_INR[q] + 2*tt + m
                tt2 = t + 2*((2*tt + m) & 1)
                b(f"v_lshlrev_b32 v{tt2}, 16, v{src}")
                b(f"v_and_b32 v{tt2+1}, 0xffff0000, v{src}")
                b(f"v_pk_add_f32 {v(acc+4*tt+2*m,2)}, {v(acc+4*tt+2*m,2)}, {v(tt2,2)}")
    stamp(b, 22)
    for tt in range(4):
        if cfg.trim:
            for m in range(2):
                b(f"v_pk_fma_f32 {v(acc+4*tt+2*m,2)}, {v(acc+4*tt+2*m,2)}, {v(V_RR2+2*tt,2)}, {v(V_HRES+4*tt+2*m,2)} op_sel_hi:[1,0,1]")
        else:
            for r in range(4):
                b(f"v_mul_f32 v{acc+4*tt+r}, v{V_RR+tt}, v{acc+4*tt+r}")
            for m in range(2):
                b(f"v_pk_fma_f32 {v(acc+4*tt+2*m,2)}, {v(V_HRES+4*tt+2*m,2)}, 0.5, {v(acc+4*tt+2*m,2)} op_sel_hi:[1,0,1]")
        if cfg.x_off:
            for r in range(4): b(f"v_add_f32 v{acc+4*tt+r}, {fbits(cfg.x_off)}, v{acc+4*tt+r}")
        b(f"v_cvt_pk_bf16_f32 v{V_PK+2*tt}, v{acc+4*tt}, v{acc+4*tt+1}")
        b(f"v_cvt_pk_bf16_f32 v{V_PK+1+2*tt}, v{acc+4*tt+2}, v{acc+4*tt+3}")
        b(f"buffer_store_dwordx2 {v(V_PK+2*tt,2)}, v{t+4}, s[{R_OUT}:{R_OUT+3}], s{S_O+tt} offen {cfg.outflags}")

def cs_job(b):
    b("s_sub_u32 s6, s2, 224")
    b("s_lshl_b32 s7, s6, 7")
    b("v_and_b32 v1, 15, v9")
    b("v_lshrrev_b32 v2, 4, v9")
    b("v_mul_u32_u24 v3, 3584, v2")
    b("v_lshl_add_u32 v3, v1, 3, v3")
    b("v_and_b32 v6, 63, v9")
    b("v_lshlrev_b32 v6, 2, v6")
    b("v_mov_b32 v7, -1")
    b("s_lshl_b32 s9, s6, 8")
    b(f"s_add_u32 s9, s9, {WS_CS}")
    b(f"buffer_store_dword v7, v6, s[{R_WS}:{R_WS+3}], s9 offen sc1", tag="cspre")
    for n in range(28):
        b(f"s_add_u32 s8, s7, {n*57344}")
        b(f"buffer_load_dwordx2 {v(16 + 2*n, 2)}, v3, s[{R_W1}:{R_W1+3}], s8 offen", tag=f"c{n}")
    b.wait_vm("cspre")
    b("s_barrier")
    arrive0(b)
    b("s_sub_u32 s6, s2, 224")
    for r in range(4): b(f"v_mov_b32 v{76+r}, 0")
    for n in range(28):
        b.wait_vm(f"c{n}")
        for h in range(2):
            b(f"v_lshlrev_b32 v4, 16, v{16+2*n+h}")
            b(f"v_and_b32 v5, 0xffff0000, v{16+2*n+h}")
            b(f"v_pk_add_f32 {v(76+2*h,2)}, {v(76+2*h,2)}, v[4:5]")
    b("v_lshlrev_b32 v4, 8, v2")
    b("v_lshl_add_u32 v4, v1, 4, v4")
    b("ds_write_b128 v4, v[76:79]")
    b("s_waitcnt lgkmcnt(0)")
    b("s_barrier")
    b("v_and_b32 v1, 63, v9")
    b("v_lshlrev_b32 v1, 2, v1")
    for n in range(16): b(f"ds_read_b32 v{16+n}, v1 offset:{256*n}")
    b("s_waitcnt lgkmcnt(0)")
    for n in range(1, 16): b(f"v_add_f32 v16, v16, v{16+n}")
    b("s_lshl_b32 s7, s6, 8")
    b(f"s_add_u32 s7, s7, {WS_CS}")
    b(f"s_cmp_eq_u32 s{S_W}, 0")
    lab = b.newlabel("L_csk")
    b(f"s_cbranch_scc0 {lab}")
    b(f"buffer_store_dword v16, v1, s[{R_WS}:{R_WS+3}], s7 offen sc1", track=False)
    b.label(lab)

def build(name):
    b = Builder()
    b.slow = []
    b.pending_half = []
    b("s_cmp_ge_u32 s2, 252")
    b("s_cbranch_scc1 L_end")
    b("s_load_dwordx2 s[16:17], s[0:1], 0")
    b("s_load_dwordx8 s[28:35], s[0:1], 48")
    b("s_load_dwordx2 s[36:37], s[0:1], 80")
    if cfg.code_pf:
        b("s_getpc_b64 s[6:7]")
        b.label("L_pc")
        b("v_lshlrev_b32 v2, 7, v0")
        b("v_mov_b32 v5, s7")
        b("v_add_co_u32 v4, vcc, s6, v2")
        b("v_addc_co_u32 v5, vcc, 0, v5, vcc")
        b(f"v_cmp_gt_u32 vcc, L_code_end-L_pc, v2")
        b("s_and_saveexec_b64 s[8:9], vcc")
        lab = b.newlabel("L_nopf")
        b(f"s_cbranch_execz {lab}")
        b(f"global_load_dword {a(255)}, v[4:5], off", track=False)
        b.label(lab)
        b("s_mov_b64 exec, s[8:9]")
    b("v_mov_b32 v9, v0")
    b("v_lshrrev_b32 v1, 6, v0")
    b("v_and_b32 v0, 63, v0")
    b(f"v_readfirstlane_b32 s{S_W}, v1")
    b("s_cmp_ge_u32 s2, 224")
    b("s_cbranch_scc1 L_cs")
    decode(b)
    p1_addr(b)
    z_base(b)
    if not cfg.lean_start:
        p1_addr2(b)
        wd_setup(b)
    b("s_waitcnt lgkmcnt(0)")
    srd(b, R_X, P_X, X_BYTES)
    if cfg.x_first:
        x_dma(b)
        srd(b, R_WS, P_WS, WS_BYTES)
        prefill_start(b)
    else:
        srd(b, R_WS, P_WS, WS_BYTES)
        prefill_start(b)
        x_dma(b)
    srd(b, R_W1, P_W1, W_BYTES); srd(b, R_W2, P_W2, W_BYTES)
    srd(b, R_OUT, P_OUT, X_BYTES); srd(b, R_DBG, P_DBG, 256)
    stamp(b, 0)
    if cfg.lean_start:
        p1_addr2(b)
        wd_setup(b)
    move_masks(b)
    if cfg.w_prefetch: w_prefetch(b)
    p2_scalars(b)
    inbox_scalars(b)
    if cfg.touch_x: touch_xres(b)
    if cfg.pre_at == "start":
        for f in pb_prefill(b): f()
    stamp(b, 1)
    def early(ks):
        if cfg.early_arrive is not None and ks == cfg.early_arrive:
            b.wait_vm("pre")
            b("s_barrier")
            arrive0(b)
    wd_gen(b, early)
    f_gen(b)
    m_gen(b)
    fm_addr(b)
    if cfg.touch_w: touch_w_setup(b)
    if cfg.ring_early or not cfg.late_dma_addr: dma_addr(b)
    stamp(b, 2)
    p1_loop(b)
    xall = xres_list(b)
    xt = xall[:cfg.xres_tail]; xall = xall[cfg.xres_tail:]
    p1_tail(b, xt)
    for f in xt: f()
    stamp(b, 8)
    b0_load(b, V_B0)
    xres_pad(b)
    ring = []
    for k in range(cfg.ring_early, 6): ring += w1_groups(b, k)
    work = [] if cfg.addr_in_loop else record(p2_addr)
    if not cfg.ring_early and cfg.late_dma_addr and not cfg.addr_in_loop: work = work + record(dma_addr)
    pbq = pb_prefill(b) if cfg.pre_at == "spread" else []
    xl = xall
    if pbq: xl = xl[:8] + pbq[:1] + xl[8:] + pbq[1:2]; pbq = pbq[2:]
    if work: multi_spread(b, work, [xl] + ([m_read(b)] if cfg.m_late else []))
    else: multi_spread(b, xl, [m_read(b) if cfg.m_late else []] if cfg.m_late else [])
    stamp(b, 9)
    b0_check(b, V_B0)
    stamp(b, 12)
    zl = z_list(b)
    work = record(hres_addr) + record(p2_scalars_late)
    z1 = zl[:len(zl)//2]
    if pbq: z1 = z1[:len(z1)//2] + pbq[:1] + z1[len(z1)//2:] + pbq[1:2]; pbq = pbq[2:]
    multi_spread(b, work, [z1])
    b.wait_vm("xres")
    b("s_waitcnt lgkmcnt(0)")
    b("s_barrier")
    stamp(b, 10)
    z2 = zl[len(zl)//2:]
    if pbq: z2 = z2[:len(z2)//2] + pbq[:1] + z2[len(z2)//2:] + pbq[1:2]; pbq = pbq[2:]
    x_init(b, extra=z2)
    b(f"v_mov_b32 v{V_ONE2}, 0x3f803f80")
    for r in range(1, 4): b(f"v_mov_b32 v{V_ONE2+r}, v{V_ONE2}")
    stamp(b, 11)
    b("s_barrier")
    stamp(b, 14)
    if pbq:
        r2 = []
        for i, g in enumerate(ring):
            r2.append(g)
            if i % 4 == 3 and pbq: r2.append(([], pbq.pop(0)))
        ring = r2
    if cfg.pre_at == "stepb": ring = ring + [([], x) for x in pb_prefill(b)]
    step_b(b, ring)
    cs_loads(b)
    b("s_waitcnt lgkmcnt(0)")
    stamp(b, 15)
    b("s_barrier")
    b.finezone = True
    gemm1(b)
    stamp(b, 17)
    gemm1_epi(b)
    stamp(b, 18)
    gemm2(b)
    stamp(b, 19)
    b.finezone = False
    final_reduce(b)
    stamp(b, 23)
    stamp_store(b)
    b("s_endpgm")
    b.label("L_cs")
    b("s_waitcnt lgkmcnt(0)")
    srd(b, R_W1, P_W1, W_BYTES); srd(b, R_WS, P_WS, WS_BYTES); srd(b, R_DBG, P_DBG, 256)
    cs_job(b)
    b("s_endpgm")
    emit_slow(b)
    b.label("L_end")
    b.label("L_code_end")
    b("s_endpgm")
    txt = b.finalize()
    if cfg.align:
        import align
        hdr = '.amdgcn_target "amdgcn-amd-amdhsa--gfx950"\n.text\n' + kernel_header(name)
        lines, before, nw, nn, tot = align.align(txt.rstrip("\n").split("\n"), hdr, "", allow_nop=cfg.align_nop)
        print("misaligned 8-byte instructions before:", before, "widened:", nw, "nops:", nn, "residual cost:", tot)
        txt = "\n".join(lines) + "\n"
    s = f"""; FNet block (pre-LN, 2-D DFT mixing as a 64x32 two-step transform, ReLU FFN) - one persistent launch
; kernarg: A_x, dft_seq_re, dft_seq_im, dft_hid_re, dft_hid_im, B_x, B_w1, B_w2, out, debug, ws
; @launch grid=(252,1,1) block=(256,1,1) lds={LDS_TOTAL}
.amdgcn_target "amdgcn-amd-amdhsa--gfx950"
.text
""" + kernel_header(name) + txt + '\n.section .rodata,"a"\n' + kernel_desc(name, 512, 256)
    return s, b

if __name__ == "__main__":
    import sys
    for o in sys.argv[2:]:
        if o == "diag": cfg.diag = True
        elif "=" in o:
            k, val = o.split("=", 1)
            setattr(cfg, k, eval(val))
    s, b = build(NAME + "_kernel")
    open(sys.argv[1], "w").write(s)
    n = sum(1 for i in b.items if not isinstance(i, str))
    print("instructions", n, "auto nops", b.nnop)
```

```python
from asmb import *
import common
from common import NAME, kernel_header, kernel_desc, X_BYTES, W_BYTES, WS_BYTES, Z_G, PB_G
import struct

def fbits(x): return hex(struct.unpack("<I", struct.pack("<f", x))[0])

class Cfg:
    diag = False
    w_prefetch = True
    xflags = ""
    x_now1dma = False
    x_now2dma = False
    x_noreads = False
    x_nobar2 = False
    x_nostore = False
    fine = False
    cyc = False
    trim = True
    mfma_sum = True
    trim2 = True
    x_off = 0.0
    early_arrive = 10
    count_slow = False
    g1_umajor = False
    align = False
    align_nop = True
    addr_in_loop = False
    touch_x = False
    touch_w = False
    x_first = False
    fewbar = False
    dma_first = False
    xres_rot = False
    x_noexec = False
    late_w2 = False
    in_first = False
    early_in = 0
    xres_tail = 0
    stages = ((0,1,2,3,4,5,6),)
    m_late = True
    lean_start = True
    late_dma_addr = True
    outflags = ''
    finee = False
    ring_early = 0
    pre_at = 'spread'
    x_z4 = False
    x_noring = False
    x_nopre = False
    code_bytes = 26*1024
    code_pf = True
    finef = False
    x_noguard = False
    ring0 = 18
    buf4 = True
    fineb = False
cfg = Cfg()

WS_Z = 0
WS_CS = 0x200000
WS_CNT = 0x210000
WS_FL = 0x220000
WS_PB = 0x400000
WS_TS = 0x4000000

XL = 0
XRS = 928
RING = 64 * XRS
FX = RING
MX = RING + 8192
STAT = RING + 98304
LDS_TOTAL = STAT + 768

S_WG, S_W, S_IDX, S_J = 2, 3, 4, 5
P_X, P_W1, P_W2, P_OUT, P_DBG, P_WS = 16, 28, 30, 32, 34, 36
R_X, R_W1, R_W2, R_WS, R_OUT, R_DBG = 40, 44, 48, 52, 56, 60
S_TT = 16
S_PI = 20
S_ZL = 24
S_RW = 28
S_W1B = 29
S_Z0, S_Z1 = 30, 31
S_DIAG = 32
S_M1 = 34
S_MASK = 64
S_W2 = 66
S_PB = 73
S_IN = 79
S_XR = 85
S_O = 86
S_P32 = 90
S_TMP = 94
S_HWB = 94
S_N32 = 98
S_CSO = 97

V_C, V_GQ, V_TS = 1, 2, 58
T = 4
V_HB = 12
V_TR1 = 16
V_W1O = 20
V_W2O = 24
V_TR2 = 28
V_L16 = 30
V_ZO = 31
V_CSA = 31
V_HW = 32
V_HWS = 36
V_HA = 38
V_SEL1, V_SEL2, V_NSEL2 = 42, 46, 50
V_XA = 54
V_AUX = 3
V_TR2H = 59
V_NEG = 60
V_GT = 4
V_WD = 64
V_XF = 120
V_ACC = 152
V_SS = 168
V_QQ = 172
V_CS1 = 176
V_ONE = 180
V_F = 184
V_XB = 216
V_SA = 224
V_XO = 228
V_ZO1 = 229
V_G = 230
V_AB = V_XF
V_A = V_WD
V_D2 = V_WD + 8
V_ZP = V_WD + 24
A_PF = 128
A_S0 = 128
V_Z = 64
V_P, V_Q, V_PS, V_QS, V_E = 128, 176, 224, 232, 240
V_ACC1 = 128
V_A1 = 192
V_B1 = 224
V_CS = 64
V_HRES = 80
V_PK = 96
V_NM = 112
V_RR = 120
V_SUM = 224
V_RR2 = 112
V_S2 = 42
V_Q2 = 46
V_ONE2 = 50
V_A2 = 192
V_ACC2 = 128
V_IN = 160

def stamp(b, i, force=False):
    if not cfg.diag: return
    if cfg.fine and not force and i != 0 and not getattr(b, "finezone", False): return
    if i == 0 and not getattr(b, "tsinit", False):
        b(f"v_mov_b32 v{V_TS}, 0"); b.tsinit = True
        if cfg.fine: return
    b("s_memtime s[14:15]" if cfg.cyc else "s_memrealtime s[14:15]")
    b("s_waitcnt lgkmcnt(0)")
    b(f"v_writelane_b32 v{V_TS}, s14, {i}")
def stamp_store(b):
    if not cfg.diag: return
    b("s_waitcnt vmcnt(0)")
    stamp(b, 31, True)
    b("s_lshl_b32 s6, s2, 9")
    b(f"s_lshl_b32 s7, s{S_W}, 7")
    b("s_add_u32 s6, s6, s7")
    b(f"s_add_u32 s6, s6, {WS_TS}")
    b(f"v_lshlrev_b32 v{T}, 2, v0")
    b("s_mov_b32 exec_hi, 0")
    b(f"buffer_store_dword v{V_TS}, v{T}, s[{R_WS}:{R_WS+3}], s6 offen")
    b("s_waitcnt vmcnt(0)")
    b("s_mov_b64 exec, -1")

def srd(b, r, p, nbytes):
    b(f"s_mov_b32 s{r}, s{p}")
    b(f"s_mov_b32 s{r+1}, s{p+1}")
    b(f"s_mov_b32 s{r+2}, {hex(nbytes)}")
    b(f"s_mov_b32 s{r+3}, 0x00020000")

def emit(b, f):
    f() if callable(f) else b(f)

def weave(b, mfmas, fillers, per=2):
    k = 0; n = len(mfmas)
    for i, m in enumerate(mfmas):
        b(m)
        want = ((i + 1) * len(fillers) + n - 1) // n
        cnt = 0
        while k < len(fillers) and k < want and cnt < per:
            emit(b, fillers[k]); k += 1; cnt += 1
    while k < len(fillers):
        emit(b, fillers[k]); k += 1

class Rec:
    def __init__(self): self.l = []
    def __call__(self, s, tag=None, track=True):
        assert tag is None
        self.l.append(s)
def record(fn, *args):
    r = Rec(); fn(r, *args)
    out = []; i = 0; l = r.l
    while i < len(l):
        if l[i].startswith("s_cmp"):
            j = i + 1
            while j < len(l) and l[j].startswith(("s_cselect", "s_mov")): j += 1
            out.append("\n".join(l[i:j])); i = j
        else:
            out.append(l[i]); i += 1
    return out

def spread(b, main, extra, every):
    k = 0
    for i, m in enumerate(main):
        emit(b, m)
        if (i + 1) % every == 0 and k < len(extra):
            emit(b, extra[k]); k += 1
    while k < len(extra):
        emit(b, extra[k]); k += 1

def sched(b, mfmas, first=(), vm=(), misc=(), vm_from=0, vm_to=None, misc_from=0, cap=2):
    n = len(mfmas)
    slots = [[] for _ in range(n)]
    first = list(first); vm = list(vm); misc = list(misc)
    if vm_to is None: vm_to = n
    vpos = []
    if vm:
        span = vm_to - vm_from
        for i, (pre, op) in enumerate(vm):
            g = vm_from + min(span - 1, (i * span) // len(vm) + (1 if pre else 0))
            if vpos and g <= vpos[-1]: g = min(n - 1, vpos[-1] + 1)
            vpos.append(g)
            gp = max(0, g - 1)
            if vpos[:-1] and gp < vpos[-2]: gp = vpos[-2]
            slots[gp] += [("vm", x) for x in pre]
            slots[g].append(("vm", op))
    g = 0
    for f in first:
        while g < n - 1 and len(slots[g]) >= cap: g += 1
        slots[g].append(("first", f))
        if len(slots[g]) >= (cap if len(first) > n else 1 + sum(1 for t, _ in slots[g] if t == "vm")): g = min(n - 1, g + 1)
    free = [max(0, cap - len(slots[g])) if g >= misc_from else 0 for g in range(n)]
    tot = sum(free)
    k = 0; acc = 0
    for g in range(n):
        if k >= len(misc): break
        acc += free[g]
        want = len(misc) if tot == 0 else min(len(misc), -(-acc * len(misc) // tot)) if tot < len(misc) else (acc * len(misc) + tot - 1) // tot
        take = 0
        while k < len(misc) and k < want and (take < free[g] or tot < len(misc)):
            slots[g].append(("misc", misc[k])); k += 1; take += 1
            if tot < len(misc) and take >= free[g] + 1: break
    rest = misc[k:]
    for g in range(n):
        b(mfmas[g])
        for t, x in sorted(slots[g], key=lambda e: {"first": 0, "misc": 1, "vm": 2}[e[0]]): emit(b, x)
    for x in rest: emit(b, x)

def groups(closures_with_hdr):
    return closures_with_hdr

def multi_spread(b, main, lists):
    n = len(main)
    at = [[] for _ in range(n + 1)]
    for lst in lists:
        for i, x in enumerate(lst):
            at[min(n, ((2*i + 1) * n) // (2*len(lst)))].append(x)
    for i in range(n):
        for x in at[i]: emit(b, x)
        emit(b, main[i])
    for x in at[n]: emit(b, x)

MF = "v_mfma_f32_16x16x32_bf16"
MH = "v_mfma_f32_16x16x32_f16"

def decode(b):
    b("s_and_b32 s6, s2, 7")
    b("s_lshr_b32 s7, s2, 3")
    b("s_mul_i32 s8, s7, 37")
    b("s_lshr_b32 s8, s8, 8")
    b("s_mul_i32 s9, s8, 7")
    b(f"s_sub_u32 s{S_J}, s7, s9")
    b("s_lshl_b32 s8, s8, 3")
    b(f"s_add_u32 s{S_IDX}, s6, s8")

def rot(b, dst, ls, shift):
    if ls == 0:
        b(f"s_lshl_b32 s{dst}, s{S_W}, {shift}")
    else:
        b(f"s_add_u32 s{dst}, s{S_W}, {ls}")
        b(f"s_and_b32 s{dst}, s{dst}, 3")
        b(f"s_lshl_b32 s{dst}, s{dst}, {shift}")

def p1_addr(b):
    t = T
    b(f"v_and_b32 v{V_C}, 15, v0")
    b(f"v_lshrrev_b32 v{V_GQ}, 4, v0")
    b(f"v_lshlrev_b32 v{V_L16}, 4, v0")
    b(f"v_lshrrev_b32 v{t}, 3, v0")
    b(f"v_and_b32 v{t+1}, 7, v0")
    b(f"v_xor_b32 v{t+1}, v{t+1}, v{t}")
    b(f"v_lshlrev_b32 v{t+1}, 4, v{t+1}")
    b(f"v_mul_u32_u24 v{V_XO}, 28672, v{t}")
    b(f"v_add_u32 v{V_XO}, v{V_XO}, v{t+1}")
    b(f"s_lshl_b32 s6, s{S_W}, 9")
    b(f"s_add_u32 s6, s6, s{S_IDX}")
    b("s_mul_i32 s12, s6, 896")
    b("s_add_u32 s13, s12, 229376")
    b(f"s_lshl_b32 s11, s{S_W}, 11")

def x_dma(b):
    for ksp in range(7):
        for o2 in range(2):
            b(f"s_add_u32 m0, s11, {XL + o2*1024 + 8064*ksp}")
            b(f"buffer_load_dwordx4 v{V_XO}, s[{R_X}:{R_X+3}], s{12+o2} offen offset:{128*ksp} {cfg.xflags} lds", tag=f"x{ksp}")

def p1_addr2(b):
    t = T
    b(f"v_and_b32 v{t}, 7, v{V_C}")
    b(f"v_lshrrev_b32 v{t+1}, 3, v{V_C}")
    b(f"v_lshlrev_b32 v{t+1}, 10, v{t+1}")
    b(f"v_lshl_add_u32 v{t+1}, v{t}, 7, v{t+1}")
    for par in range(2):
        b(f"v_add_u32 v{t+2}, {4*par}, v{V_GQ}") if par else b(f"v_mov_b32 v{t+2}, v{V_GQ}")
        b(f"v_xor_b32 v{t+2}, v{t+2}, v{t}")
        b(f"v_lshl_add_u32 v{t+3+par}, v{t+2}, 4, v{t+1}")
    b(f"v_lshlrev_b32 v{t+5}, 4, v{V_GQ}")
    for ls in range(4):
        rot(b, 6, ls, 11)
        b(f"v_add_u32 v{V_XB + 2*ls}, s6, v{t+3}")
        b(f"v_add_u32 v{V_XB + 2*ls + 1}, s6, v{t+4}")
        b("s_lshr_b32 s6, s6, 5")
        b(f"s_add_u32 s6, s6, {STAT}")
        b(f"v_add_u32 v{V_SA + ls}, s6, v{t+5}")
    b(f"v_mov_b32 v{V_ONE}, 0x3f803f80")
    for r in range(1, 4): b(f"v_mov_b32 v{V_ONE + r}, v{V_ONE}")
    b(f"v_lshrrev_b32 v{t}, 2, v{V_C}")
    b(f"v_cmp_eq_u32 s[{S_TMP}:{S_TMP+1}], v{t}, v{V_GQ}")
    b(f"v_and_b32 v{t}, 3, v{V_C}")
    for r in range(1, 4):
        b(f"v_cmp_eq_u32 s[{S_TMP+2*r}:{S_TMP+2*r+1}], {r}, v{t}")

def move_masks(b):
    for k in range(8): b(f"s_mov_b32 s{S_DIAG+k}, s{S_TMP+k}")

def z_base(b):
    b(f"s_lshr_b32 s6, s{S_W}, 1")
    b(f"s_lshl_b32 s7, s{S_J}, 1")
    b("s_add_u32 s8, s6, s7")
    b(f"s_and_b32 s9, s{S_W}, 1")
    b("s_lshl_b32 s6, s8, 12")
    b(f"s_lshl_b32 s7, s{S_IDX}, 7")
    b("s_add_u32 s6, s6, s7")
    b("s_lshl_b32 s7, s9, 6")
    b("s_add_u32 s10, s6, s7")
    b(f"v_mul_u32_u24 v{V_ZO1}, {Z_G}, v{V_C}")
    b(f"v_lshl_add_u32 v{V_ZO1}, v{V_GQ}, 4, v{V_ZO1}")

def wd_setup(b):
    t = T
    E, X, STEP, K2 = V_G, V_G+1, V_G+2, V_G+3
    b(f"s_lshr_b32 s6, s{S_W}, 1")
    b(f"s_lshl_b32 s7, s{S_J}, 1")
    b("s_add_u32 s8, s6, s7")
    b(f"s_and_b32 s9, s{S_W}, 1")
    b("s_lshl_b32 s6, s8, 4")
    b("s_lshl_b32 s7, s9, 3")
    b("s_add_u32 s6, s6, s7")
    b(f"v_lshrrev_b32 v{t}, 1, v{V_C}")
    b(f"v_add_u32 v{t}, s6, v{t}")
    b(f"v_and_b32 v{t+1}, 1, v{V_C}")
    b(f"v_lshl_or_b32 v{t+2}, v{t}, 1, v{t+1}")
    b(f"v_mov_b32 v{t+3}, 224")
    b(f"v_cmp_eq_u32 vcc, 1, v{t+2}")
    b(f"v_mov_b32 v{t+4}, 0")
    b(f"v_cndmask_b32 v{t}, v{t}, v{t+3}, vcc")
    b(f"v_cndmask_b32 v{t+1}, v{t+1}, v{t+4}, vcc")
    b(f"v_cvt_f32_u32 v{t+5}, v{t+1}")
    b(f"v_mul_f32 v{t+5}, 0x3e800000, v{t+5}")
    b(f"v_cvt_f32_u32 v{E}, v{t}")
    b(f"v_mul_f32 v{E}, 0x3b124925, v{E}")
    b(f"v_mul_u32_u24 v{t+1}, 4682, v{t}")
    b(f"v_lshrrev_b32 v{t+1}, 16, v{t+1}")
    b(f"v_mul_u32_u24 v{t+1}, 14, v{t+1}")
    b(f"v_sub_u32 v{t+1}, v{t}, v{t+1}")
    b(f"v_cvt_f32_u32 v{STEP}, v{t+1}")
    b(f"v_mul_f32 v{STEP}, {fbits(1.0/14)}, v{STEP}")
    b(f"v_mul_u32_u24 v{t+1}, v{V_GQ}, v{t}")
    b(f"v_mul_u32_u24 v{t+2}, 1171, v{t+1}")
    b(f"v_lshrrev_b32 v{t+2}, 16, v{t+2}")
    b(f"v_mul_u32_u24 v{t+2}, 56, v{t+2}")
    b(f"v_sub_u32 v{t+1}, v{t+1}, v{t+2}")
    b(f"v_cvt_f32_u32 v{X}, v{t+1}")
    b(f"v_mul_f32 v{X}, {fbits(1.0/56)}, v{X}")
    b(f"v_cos_f32 v{K2}, v{E}")
    b(f"v_add_f32 v{X}, v{X}, v{t+5}")
    b(f"v_add_f32 v{K2}, v{K2}, v{K2}")

def wd_gen(b, hook=None):
    E, X, STEP, K2 = V_G, V_G+1, V_G+2, V_G+3
    C = [V_G + 4 + i for i in range(8)]
    X1 = V_G + 12
    for ks in range(14):
        b(f"v_cos_f32 v{C[0]}, v{X}")
        b(f"v_add_f32 v{X1}, v{X}, v{E}")
        b(f"v_cos_f32 v{C[1]}, v{X1}")
        if ks < 13:
            b(f"v_add_f32 v{X}, v{X}, v{STEP}")
            if not cfg.trim: b(f"v_fract_f32 v{X}, v{X}")
        else:
            b("s_nop 0")
        if ks > 0:
            c = "0" if ks == 1 else v(V_CS1, 4)
            b(f"{MF} {v(V_CS1,4)}, {v(V_ONE,4)}, {v(V_WD + 4*(ks-1),4)}, {c}")
        for n in range(2, 8):
            b(f"v_fma_f32 v{C[n]}, v{K2}, v{C[n-1]}, -v{C[n-2]}")
            if n % 2 == 1:
                b(f"v_cvt_pk_bf16_f32 v{V_WD + 4*ks + (n-3)//2}, v{C[n-3]}, v{C[n-2]}")
        b(f"v_cvt_pk_bf16_f32 v{V_WD + 4*ks + 3}, v{C[6]}, v{C[7]}")
        if hook: hook(ks)
    b("s_nop 0")
    b(f"{MF} {v(V_CS1,4)}, {v(V_ONE,4)}, {v(V_WD + 4*13,4)}, {v(V_CS1,4)}")

def f_gen(b):
    t = T
    S1, G, X, CO, SI, PK, AD = V_G, V_G+4, V_G+5, V_G+8, V_G+12, V_G+16, V_G+20
    b(f"s_lshl_b32 s6, s{S_W}, 4")
    b(f"v_lshl_add_u32 v{t}, v{V_GQ}, 2, s6")
    b(f"v_cvt_f32_u32 v{t}, v{t}")
    b(f"v_mul_f32 v{S1}, 0x3c800000, v{t}")
    for q in range(1, 4): b(f"v_add_f32 v{S1+q}, 0x3c800000, v{S1+q-1}")
    b(f"s_lshl_b32 s6, s{S_W}, 9")
    b(f"s_add_u32 s6, s6, {FX}")
    b(f"v_lshl_add_u32 v{AD}, v0, 3, s6")
    b(f"v_cvt_f32_u32 v{G}, v{V_C}")
    b(f"v_mov_b32 v{t+1}, 0xbc003c00")
    b(f"v_cmp_eq_u32 vcc, 0, v{V_C}")
    for gh in range(2):
        if gh: b(f"v_add_f32 v{G}, 0x41800000, v{G}")
        for q in range(4):
            b(f"v_mul_f32 v{X+(q&1)}, v{G}, v{S1+q}")
            b(f"v_cos_f32 v{CO+q}, v{X+(q&1)}")
            b(f"v_sin_f32 v{SI+q}, -v{X+(q&1)}")
        b(f"v_cvt_pk_f16_f32 v{PK}, v{CO}, v{CO+1}")
        b(f"v_cvt_pk_f16_f32 v{PK+1}, v{CO+2}, v{CO+3}")
        b(f"v_cvt_pk_f16_f32 v{PK+2}, v{SI}, v{SI+1}")
        b(f"v_cvt_pk_f16_f32 v{PK+3}, v{SI+2}, v{SI+3}")
        if gh == 0:
            b(f"v_cndmask_b32 v{PK+2}, v{PK+2}, v{t+1}, vcc")
            b(f"v_cndmask_b32 v{PK+3}, v{PK+3}, v{t+1}, vcc")
        b(f"ds_write_b64 v{AD}, {v(PK,2)} offset:{(gh*2+0)*2048}")
        b(f"ds_write_b64 v{AD}, {v(PK+2,2)} offset:{(gh*2+1)*2048}")

def fm_addr(b):
    for ls in range(4):
        rot(b, 6, ls, 9)
        b(f"s_add_u32 s6, s6, {FX}")
        b(f"v_lshl_add_u32 v{V_G+ls}, v0, 3, s6")
    for lt in range(4):
        b(f"s_lshl_b32 s6, s{S_TT+lt}, 12")
        b(f"s_add_u32 s6, s6, {MX}")
        b(f"v_add_u32 v{V_G+4+lt}, s6, v{V_L16}")

def f_read(b):
    out = []
    for ls in range(4):
        for gh in range(2):
            for sg in range(2):
                reg = V_F + ((gh*2 + sg)*2 + (ls >> 1))*4 + 2*(ls & 1)
                out.append(lambda reg=reg, ls=ls, o=(gh*2+sg)*2048: b(f"ds_read_b64 {v(reg,2)}, v{V_G+ls} offset:{o}", tag="f"))
    return out

def mreg(lt, ks, pq): return ((lt*2 + ks)*2 + pq)*4

def t0_of_tt(b, dst, tt_sreg):
    b(f"s_sub_u32 s{dst}, 64, s{S_IDX}")
    b(f"s_cmp_eq_u32 s{S_IDX}, 0")
    b(f"s_cselect_b32 s{dst}, 32, s{dst}")
    b(f"s_cmp_lt_u32 s{tt_sreg}, 2")
    b(f"s_cselect_b32 s{dst}, s{S_IDX}, s{dst}")
    b(f"s_and_b32 s9, s{tt_sreg}, 1")
    b("s_lshl_b32 s9, s9, 10")
    b(f"s_add_u32 s{dst}, s{dst}, s9")

def m_gen(b):
    t = T
    X, DX, CO, SI, PK, P, Q, AD = V_G, V_G+1, V_G+2, V_G+3, V_G+4, V_G+8, V_G+12, V_G+16
    t0_of_tt(b, 8, S_W)
    b(f"v_lshl_add_u32 v{t}, v{V_C}, 6, s8")
    b(f"v_cvt_f32_u32 v{DX}, v{t}")
    b(f"v_mul_f32 v{DX}, 0x3a000000, v{DX}")
    selP = [0x03020100, 0x03020100, 0x0c0c0100, 0x01000c0c]
    selQ = [0x01000302, 0x01000302, 0x0c0c0302, 0x03020c0c]
    sgnQ = [0x80000000, 0x00008000, 0, 0]
    neg = [0, 0x80000000, 0, 0]
    def pick(dst, tbl):
        b(f"s_cmp_lt_u32 s{S_W}, 2")
        b(f"s_cselect_b32 s9, {hex(tbl[0])}, 0") if False else None
        b(f"s_mov_b32 s9, {hex(tbl[0])}"); b(f"s_mov_b32 s12, {hex(tbl[1])}")
        b("s_cselect_b32 s9, s9, s12")
        b(f"s_mov_b32 s13, {hex(tbl[2])}"); b(f"s_mov_b32 s12, {hex(tbl[3])}")
        b("s_cselect_b32 s13, s13, s12")
        b(f"s_cmp_eq_u32 s{S_IDX}, 0")
        b(f"s_cselect_b32 s{dst}, s13, s9")
    pick(S_TMP, selP); pick(S_TMP+1, selQ); pick(S_TMP+2, sgnQ); pick(S_TMP+3, neg)
    b(f"v_xor_b32 v{DX}, s{S_TMP+3}, v{DX}")
    b(f"s_lshl_b32 s6, s{S_W}, 12")
    b(f"s_add_u32 s6, s6, {MX}")
    b(f"v_add_u32 v{AD}, s6, v{V_L16}")
    b(f"v_lshlrev_b32 v{t}, 2, v{V_GQ}")
    b(f"v_cvt_f32_u32 v{t}, v{t}")
    for ks in range(2):
        if ks: b(f"v_add_f32 v{t}, 0x41800000, v{t}")
        b(f"v_mul_f32 v{X}, v{t}, v{DX}")
        for j in range(4):
            b(f"v_cos_f32 v{CO}, v{X}")
            b(f"v_sin_f32 v{SI}, v{X}")
            b(f"v_add_f32 v{X}, v{X}, v{DX}")
            b(f"v_cvt_pk_f16_f32 v{PK}, v{CO}, v{SI}")
            b(f"v_perm_b32 v{P+j}, v{PK}, v{PK}, s{S_TMP}")
            b(f"v_perm_b32 v{Q+j}, v{PK}, v{PK}, s{S_TMP+1}")
            b(f"v_xor_b32 v{Q+j}, s{S_TMP+2}, v{Q+j}")
        b(f"ds_write_b128 v{AD}, {v(P,4)} offset:{(ks*2+0)*1024}")
        b(f"ds_write_b128 v{AD}, {v(Q,4)} offset:{(ks*2+1)*1024}")

def m_read(b):
    out = []
    for lt in range(4):
        for ks in range(2):
            for pq in range(2):
                out.append(lambda lt=lt, ks=ks, pq=pq: b(f"ds_read_b128 {a(mreg(lt,ks,pq),4)}, v{V_G+4+lt} offset:{(ks*2+pq)*1024}", tag="m"))
    return out

def prefill_start(b):
    for r in range(4): b(f"v_mov_b32 v{V_NEG+r}, -1")
    b(f"s_add_u32 s7, s10, {16*Z_G}")
    b(f"buffer_store_dwordx4 {v(V_NEG,4)}, v{V_ZO1}, s[{R_WS}:{R_WS+3}], s10 offen sc1", tag="pre")
    b(f"buffer_store_dwordx4 {v(V_NEG,4)}, v{V_ZO1}, s[{R_WS}:{R_WS+3}], s7 offen sc1", tag="pre")
    own_line(b, 6)
    b(f"v_mov_b32 v{T}, 0")
    b("s_mov_b64 exec, 1")
    b(f"buffer_store_dword v{T}, v{T}, s[{R_WS}:{R_WS+3}], s6 offen sc1", tag="pre")
    b("s_mov_b64 exec, -1")

def arrive0(b):
    lab = b.newlabel("L_arr")
    b.notrack = True
    b(f"s_cmp_eq_u32 s{S_W}, 0")
    b(f"s_cbranch_scc0 {lab}")
    b("s_and_b32 s6, s2, 3")
    b("s_lshl_b32 s6, s6, 6")
    b(f"v_mov_b32 v{T}, 1")
    b(f"v_mov_b32 v{T+1}, 0")
    b("s_mov_b64 exec, 1")
    b(f"buffer_atomic_add v{T}, v{T+1}, s[{R_DBG}:{R_DBG+3}], s6 offen sc1")
    b("s_mov_b64 exec, -1")
    b.label(lab)
    b.notrack = False

V_B0 = 229 + 25
def b0_load(b, reg):
    b(f"v_and_b32 v{reg}, 3, v0")
    b(f"v_lshlrev_b32 v{reg}, 6, v{reg}")
    b(f"buffer_load_dword v{reg}, v{reg}, s[{R_DBG}:{R_DBG+3}], 0 offen sc1", tag="b0")

def b0_check(b, reg):
    b.wait_vm("b0")
    l2 = b.newlabel("L_b0"); l3 = b.newlabel("L_b0d")
    b("s_mov_b32 s12, 0")
    b.label(l2)
    b.notrack = True
    b(f"v_cmp_gt_u32 vcc, 63, v{reg}")
    b("s_cmp_eq_u64 vcc, 0")
    b(f"s_cbranch_scc1 {l3}")
    b("s_add_u32 s12, s12, 1")
    b("s_cmp_ge_u32 s12, 0x10000")
    b(f"s_cbranch_scc1 {l3}")
    b(f"v_and_b32 v{reg}, 3, v0")
    b(f"v_lshlrev_b32 v{reg}, 6, v{reg}")
    b(f"buffer_load_dword v{reg}, v{reg}, s[{R_DBG}:{R_DBG+3}], 0 offen sc1")
    b("s_waitcnt vmcnt(0)")
    b(f"s_branch {l2}")
    b.label(l3)
    b.notrack = False

def guarded(b, regs, reload, name):
    t0 = V_GT
    n = len(regs)
    def tree():
        b(f"v_max3_u32 v{t0}, v{regs[0]}, v{regs[1]}, v{regs[2]}")
        i = 3
        while i + 1 < n:
            b(f"v_max3_u32 v{t0}, v{t0}, v{regs[i]}, v{regs[i+1]}"); i += 2
        if i < n: b(f"v_max_u32 v{t0}, v{t0}, v{regs[i]}")
        b(f"v_cmp_eq_u32 vcc, -1, v{t0}")
        b("s_cmp_eq_u64 vcc, 0")
    slow = b.newlabel("L_slow"); back = b.newlabel("L_back")
    if cfg.x_noguard: return
    tree()
    b(f"s_cbranch_scc0 {slow}")
    b.label(back)
    b.slow.append((slow, back, reload, tree))

def emit_slow(b):
    for (slow, back, reload, tree) in b.slow:
        loop = b.newlabel("L_sl")
        b.label(slow)
        b.notrack = True
        b("s_mov_b32 s12, 0")
        b.label(loop)
        if cfg.count_slow: b(f"s_add_u32 s98, s98, {1 << (4*min(b.slow.index((slow, back, reload, tree)), 7))}") if b.slow.index((slow, back, reload, tree)) < 8 else b("s_add_u32 s99, s99, " + str(1 << (4*(b.slow.index((slow, back, reload, tree)) - 8))))
        reload()
        b("s_waitcnt vmcnt(0)")
        tree()
        b(f"s_cbranch_scc1 {back}")
        b("s_add_u32 s12, s12, 1")
        b("s_cmp_lt_u32 s12, 0x4000")
        b(f"s_cbranch_scc1 {loop}")
        b(f"s_branch {back}")
        b.notrack = False

def w_prefetch(b):
    b("s_mul_i32 s6, s2, 7168")
    b(f"s_lshl_b32 s7, s{S_W}, 10")
    b("s_add_u32 s6, s6, s7")
    b("s_add_u32 s7, s6, 4096")
    for n in range(2):
        b(f"buffer_load_dwordx4 {a(A_PF + 8*n, 4)}, v{V_L16}, s[{R_W1}:{R_W1+3}], s{6+n} offen", tag="pf")
        b(f"buffer_load_dwordx4 {a(A_PF + 8*n + 4, 4)}, v{V_L16}, s[{R_W2}:{R_W2+3}], s{6+n} offen", tag="pf")

def touch_xres(b):
    b(f"v_mul_u32_u24 v{T}, 57344, v{V_C}")
    b(f"s_lshl_b32 s6, s{S_J}, 7")
    b(f"s_add_u32 s6, s6, s{S_XR}")
    b("s_mov_b64 exec, 0xffff")
    b(f"buffer_load_dword {a(254)}, v{T}, s[{R_X}:{R_X+3}], s6 offen", tag="tch")
    b("s_mov_b64 exec, -1")

V_TW1, V_TW2 = 8, 9
def touch_w_setup(b):
    b(f"v_lshrrev_b32 v{V_TW1}, 2, v0")
    b(f"v_mul_u32_u24 v{V_TW1}, 3584, v{V_TW1}")
    b(f"v_and_b32 v{V_TW2}, 3, v0")
    b(f"v_lshl_add_u32 v{V_TW1}, v{V_TW2}, 7, v{V_TW1}")
    b(f"v_lshlrev_b32 v{V_TW2}, 7, v0")
    b(f"s_lshr_b32 s6, s{S_IDX}, 3")
    b("s_mul_i32 s7, s6, 112")
    b(f"s_lshl_b32 s8, s{S_W}, 4")
    b("s_add_u32 s7, s7, s8")
    b("s_mul_i32 s7, s7, 3584")
    b(f"s_lshl_b32 s8, s{S_J}, 9")
    b("s_add_u32 s12, s7, s8")
    b("s_mul_i32 s7, s6, 448")
    b(f"s_lshl_b32 s8, s{S_W}, 6")
    b("s_add_u32 s7, s7, s8")
    b("s_lshl_b32 s7, s7, 7")
    b(f"s_mul_i32 s8, s{S_J}, 229376")
    b("s_add_u32 s13, s7, s8")
def touch_w_list(b):
    out = []
    for n in range(2):
        def f1(n=n):
            if n: b(f"s_add_u32 s12, s12, {64*3584}")
            b(f"buffer_load_dword {a(253)}, v{V_TW1}, s[{R_W1}:{R_W1+3}], s12 offen", tag="tch")
        out.append(f1)
    for n in range(2):
        def f2(n=n):
            if n: b(f"s_add_u32 s13, s13, {256*128}")
            b(f"buffer_load_dword {a(252)}, v{V_TW2}, s[{R_W2}:{R_W2+3}], s13 offen", tag="tch")
        out.append(f2)
    return out

def own_line(b, dst):
    b(f"s_mul_i32 s{dst}, s{S_IDX}, 7")
    b(f"s_add_u32 s{dst}, s{dst}, s{S_J}")
    b(f"s_lshl_b32 s{dst}, s{dst}, 2")
    b(f"s_add_u32 s{dst}, s{dst}, s{S_W}")
    b(f"s_lshl_b32 s{dst}, s{dst}, 7")
    b(f"s_add_u32 s{dst}, s{dst}, {WS_FL}")

def p2_scalars(b):
    b(f"s_and_b32 s6, s{S_W}, 1")
    b("s_lshl_b32 s7, s6, 1")
    for lt in range(4): b(f"s_xor_b32 s{S_TT+lt}, s7, {lt}")
    b(f"s_lshr_b32 s7, s{S_W}, 1")
    b("s_mul_i32 s7, s7, 7")
    b("s_lshl_b32 s9, s6, 2")
    b("s_add_u32 s9, s9, s7")
    b(f"s_mov_b32 s{S_PI}, s9")
    for p in range(1, 3): b(f"s_add_u32 s{S_PI+p}, s9, {p}")
    b(f"s_add_u32 s{S_PI+3}, s7, 3")
    b(f"s_mul_i32 s7, s{S_IDX}, {Z_G}")
    for p in range(4):
        b(f"s_lshl_b32 s8, s{S_PI+p}, 12")
        b(f"s_add_u32 s{S_ZL+p}, s7, s8")
        b(f"s_lshl_b32 s{S_P32+p}, s{S_PI+p}, 5")
    b(f"s_cmp_eq_u32 s{S_W}, 0")
    b(f"s_cselect_b32 s{S_MASK}, 0xffff, 0")
    b(f"s_mov_b32 s{S_MASK+1}, 0")
    b(f"s_mul_i32 s{S_RW}, s{S_W}, 24576")
    b(f"s_add_u32 s{S_RW}, s{S_RW}, {RING}")
    b(f"s_lshl_b32 s7, s{S_J}, 9")
    b(f"s_lshl_b32 s9, s{S_W}, 7")
    b(f"s_add_u32 s{S_W1B}, s7, s9")
    b(f"s_mov_b32 s{S_Z0}, s10")
    b(f"s_add_u32 s{S_Z1}, s10, {16*Z_G}")
    t0_of_tt(b, 8, S_W)
    b(f"s_mul_i32 s{S_XR}, s8, 896")

def inbox_scalars(b):
    b(f"s_mul_i32 s11, s{S_IDX}, {PB_G}")
    b(f"s_lshl_b32 s7, s{S_W}, 11")
    b("s_add_u32 s11, s11, s7")
    b(f"s_add_u32 s11, s11, {WS_PB}")
    b(f"s_lshl_b32 s13, s{S_J}, 13")
    b("s_add_u32 s13, s13, s11")
    for p in range(6):
        b(f"s_add_u32 s6, s{S_J}, {p+1}")
        b("s_sub_u32 s7, s6, 7")
        b("s_min_u32 s6, s6, s7")
        b(f"s_mul_i32 s7, s6, {7*8192}")
        b(f"s_add_u32 s{S_IN+p}, s13, s7")

def p2_scalars_late(b):
    b(f"s_lshl_b32 s{S_HWB}, s{S_W}, 13")
    b(f"s_lshl_b32 s6, s{S_J}, 8")
    b(f"s_lshl_b32 s7, s{S_W}, 6")
    b("s_add_u32 s6, s6, s7")
    b("s_mul_i32 s10, s6, 896")
    b(f"s_mul_i32 s11, s{S_IDX}, {PB_G}")
    b(f"s_lshl_b32 s7, s{S_W}, 11")
    b("s_add_u32 s11, s11, s7")
    b(f"s_add_u32 s11, s11, {WS_PB}")
    b(f"s_mul_i32 s12, s{S_J}, {7*8192}")
    b("s_add_u32 s12, s12, s11")
    for p in range(7):
        b(f"s_add_u32 s6, s{S_J}, {p+1}")
        b("s_sub_u32 s7, s6, 7")
        b("s_min_u32 s6, s6, s7")
        b("s_lshl_b32 s7, s6, 7")
        b(f"s_add_u32 s{S_W2+p}, s10, s7")
        if p < 6:
            b("s_lshl_b32 s7, s6, 13")
            b(f"s_add_u32 s{S_PB+p}, s12, s7")
    b(f"s_lshl_b32 s10, s{S_J}, 7")
    b(f"s_lshl_b32 s7, s{S_W}, 5")
    b("s_add_u32 s10, s10, s7")
    b(f"s_sub_u32 s8, 64, s{S_IDX}")
    b(f"s_cmp_eq_u32 s{S_IDX}, 0")
    b("s_cselect_b32 s8, 32, s8")
    for tt in range(4):
        src = f"s{S_IDX}" if tt < 2 else "s8"
        b(f"s_add_u32 s6, {src}, {1024*(tt&1)}")
        b("s_mul_i32 s6, s6, 896")
        b(f"s_add_u32 s{S_O+tt}, s6, s10")

def dma_addr(b):
    t = T
    b(f"v_lshrrev_b32 v{t}, 3, v0")
    b(f"v_bfe_u32 v{t+1}, v{t}, 1, 2")
    b(f"v_lshlrev_b32 v{t+1}, 1, v{t+1}")
    b(f"v_and_b32 v{t+2}, 7, v0")
    b(f"v_xor_b32 v{t+2}, v{t+2}, v{t+1}")
    b(f"v_lshlrev_b32 v{t+2}, 4, v{t+2}")
    b(f"v_mul_u32_u24 v{t+1}, 3584, v{t}")
    b(f"v_add_u32 v{V_W1O}, v{t+1}, v{t+2}")
    b(f"v_add_u32 v{V_W1O+1}, {8*3584 - 1024}, v{V_W1O}")
    b(f"v_sub_u32 v{t+3}, v{t+2}, v{t+1}")
    b(f"v_add_u32 v{V_W1O+2}, {15*3584 - 2048 + 4096}, v{t+3}")
    b(f"v_add_u32 v{V_W1O+3}, {7*3584 - 3072 + 4096}, v{t+3}")
    b(f"v_sub_u32 v{t+3}, 448, v{t}")
    b(f"v_mov_b32 v{t+4}, 224")
    b(f"v_cmp_eq_u32 vcc, 0, v{t}")
    b(f"v_mul_u32_u24 v{t+1}, 896, v{t}")
    b(f"v_cndmask_b32 v{t+3}, v{t+3}, v{t+4}, vcc")
    b(f"v_mul_u32_u24 v{t+3}, 3584, v{t+3}")
    b(f"v_add_u32 v{t+3}, v{t+3}, v{t+2}")
    b(f"v_subrev_u32 v{V_AUX}, 2048, v{t+3}")
    b(f"v_add_u32 v{V_W2O}, v{t+1}, v{t+2}")
    for n in range(1, 4):
        b(f"v_add_u32 v{V_W2O+n}, {n*(8*896 - 1024)}, v{V_W2O}")
    b(f"v_mul_u32_u24 v{t}, {XRS}, v{V_C}")
    b(f"v_lshl_add_u32 v{t}, v{V_GQ}, 4, v{t}")
    for lt in range(4):
        b(f"s_mul_i32 s6, s{S_TT+lt}, {16*XRS}")
        b(f"v_add_u32 v{V_XA+lt}, s6, v{t}")
    b(f"v_lshlrev_b32 v{t}, 3, v{V_GQ}")
    b(f"v_sub_u32 v{t+1}, v{V_C}, v{t}")
    b(f"v_sub_u32 v{t+2}, 16, v{V_C}")
    b(f"v_sub_u32 v{t+2}, v{t+2}, v{t}")
    b(f"v_mov_b32 v{t+3}, 0x3f80")
    b(f"v_mov_b32 v{t+4}, 0x3f800000")
    b(f"v_mov_b32 v{t+5}, 0")
    for (dst, src) in ((V_SEL1, t+1), (V_SEL2, t+2)):
        for m in range(4):
            b(f"v_cmp_eq_u32 vcc, {2*m}, v{src}")
            b(f"v_cmp_eq_u32 s[6:7], {2*m+1}, v{src}")
            b(f"v_cndmask_b32 v{dst+m}, v{t+5}, v{t+3}, vcc")
            b(f"v_cndmask_b32 v{dst+m}, v{dst+m}, v{t+4}, s[6:7]")
    for m in range(4):
        b(f"v_xor_b32 v{V_NSEL2+m}, 0x80008000, v{V_SEL2+m}")


def p2_addr(b):
    t = T
    for p in range(4): b(f"s_sub_u32 s{S_N32+p}, 864, s{S_P32+p}")
    b(f"v_lshlrev_b32 v{t}, 3, v{V_C}")
    b(f"v_lshl_add_u32 v{V_ZO}, v{V_GQ}, 9, v{t}")
    b(f"s_lshl_b32 s7, s{S_PI}, 12")
    b(f"s_lshl_b32 s8, s{S_PI+3}, 12")
    for lt in range(4):
        b(f"s_lshl_b32 s6, s{S_TT+lt}, 10")
        b("s_add_u32 s9, s6, s7")
        b(f"v_add_u32 v{V_HW+lt}, s9, v{V_L16}")
        if lt < 2:
            b("s_add_u32 s9, s6, s8")
            b(f"v_add_u32 v{V_HWS+lt}, s9, v{V_L16}")
        rot(b, 6, lt, 10)
        b(f"v_add_u32 v{V_HB+lt}, s6, v{V_L16}")
    b(f"v_lshrrev_b32 v{t}, 2, v{V_C}")
    b(f"v_lshl_add_u32 v{t}, v{V_GQ}, 2, v{t}")
    b(f"v_bfe_u32 v{t+1}, v{t}, 1, 2")
    b(f"v_and_b32 v{t+2}, 3, v0")
    b(f"v_lshlrev_b32 v{t+2}, 3, v{t+2}")
    b(f"v_lshl_add_u32 v{t+2}, v{t}, 7, v{t+2}")
    b(f"v_add_u32 v{t+4}, s{S_RW}, v{t+2}")
    for u in range(4):
        b(f"v_xor_b32 v{t+3}, {u}, v{t+1}")
        b(f"v_lshl_add_u32 v{V_TR1+u}, v{t+3}, 5, v{t+4}")
    b(f"v_xor_b32 v{t+3}, s{S_W}, v{t+1}")
    b(f"v_lshl_add_u32 v{t+3}, v{t+3}, 5, v{t+2}")
    b(f"v_add_u32 v{V_TR2}, {RING}, v{t+3}")
    b(f"v_add_u32 v{V_TR2+1}, {RING+49152}, v{t+3}")
    b(f"v_mov_b32 v{V_TR2H}, v{t+3}")

def hres_addr(b):
    t = T
    b(f"s_lshl_b32 s6, s{S_J}, 6")
    b(f"s_lshl_b32 s7, s{S_W}, 4")
    b("s_add_u32 s6, s6, s7")
    b(f"v_lshl_add_u32 v{t+4}, v{V_GQ}, 2, s6")
    b("s_lshl_b32 s6, s6, 8")
    b(f"v_add_u32 v{t+5}, s6, v{V_L16}")
    for r in range(4):
        A = V_HA + r
        b(f"v_add_u32 v{t}, {r}, v{t+4}") if r else b(f"v_mov_b32 v{t}, v{t+4}")
        b(f"v_sub_u32 v{t+2}, 448, v{t}")
        b(f"v_mov_b32 v{t+3}, 0")
        b(f"v_cmp_eq_u32 vcc, 224, v{t}")
        b(f"v_add_u32 v{t+1}, {2*r}, v{t+5}")
        b(f"v_cndmask_b32 v{t+2}, v{t+2}, v{t+3}, vcc")
        b(f"v_lshrrev_b32 v{t+3}, 4, v{t+2}")
        b(f"v_lshlrev_b32 v{A}, 12, v{t+3}")
        b(f"v_bfe_u32 v{t+3}, v{t+2}, 2, 2")
        b(f"v_lshl_add_u32 v{t+3}, v{t+3}, 4, v{V_C}")
        b(f"v_lshl_add_u32 v{A}, v{t+3}, 4, v{A}")
        b(f"v_and_b32 v{t+3}, 3, v{t+2}")
        b(f"v_lshl_add_u32 v{A}, v{t+3}, 1, v{A}")
        b(f"v_cmp_gt_u32 vcc, 224, v{t}")
        b(f"v_add_u32 v{A}, 8, v{A}")
        b(f"v_cndmask_b32 v{A}, v{A}, v{t+1}, vcc")

def p1_loop(b):
    stages = cfg.stages
    XBUF = [V_XF, V_XF + 16, V_G + 8]
    def xread(ks):
        ksp, par = ks >> 1, ks & 1
        return [(lambda ls=ls: b(f"ds_read_b128 {v(XBUF[ks % 3] + 4*ls, 4)}, v{V_XB + 2*ls + par} offset:{XL + ksp*8192}", tag=f"xf{ks}")) for ls in range(4)]
    pbp = pb_prefill(b) if (cfg.pre_at == "loop" and not cfg.x_nopre) else []
    rg = []
    for k in range(cfg.ring_early): rg += w1_groups(b, k)
    wk = (record(p2_addr) + record(dma_addr)) if cfg.addr_in_loop else []
    tw = touch_w_list(b) if cfg.touch_w else []
    for si, stg in enumerate(stages):
        b.wait_vm([f"x{stg[-1]}", "pre"])
        if si == 0 or (si == len(stages) - 1 and cfg.ring_early): b("s_waitcnt lgkmcnt(0)")
        b("s_barrier")
        if si == 0 and cfg.early_arrive is None: arrive0(b)
        stamp(b, 3 + si)
        kss = [k for p in stg for k in (2*p, 2*p+1)]
        for f in xread(kss[0]) + xread(kss[1]): f()
        if si == 0:
            fm = f_read(b) + ([] if cfg.m_late else m_read(b))
        for n, ks in enumerate(kss):
            nxt = kss[n+2] if n + 2 < len(kss) else None
            b.wait_lg(f"xf{ks}")
            xf = XBUF[ks % 3]
            wd = v(V_WD + 4*ks, 4)
            z = ks == 0
            mf = [f"{MF} {v(V_QQ,4)}, {v(xf,4)}, {v(xf,4)}, {'0' if z else v(V_QQ,4)}",
                  f"{MF} {v(V_SS,4)}, {v(V_ONE,4)}, {v(xf,4)}, {'0' if z else v(V_SS,4)}"]
            for ls in range(4):
                mf.append(f"{MF} {v(V_ACC + 4*ls, 4)}, {v(xf + 4*ls, 4)}, {wd}, {'0' if z else v(V_ACC + 4*ls, 4)}")
            fill = xread(nxt) if nxt is not None else []
            nf = 2 if cfg.m_late else 6
            fill = fill + fm[:nf]; fm = fm[nf:]
            if ks >= 2 and pbp: fill.append(pbp.pop(0))
            if tw and ks % 3 == 1: fill.append(tw.pop(0))
            if wk:
                nw = (len(wk) + 13 - ks) // (14 - ks)
                sched(b, mf, first=fill, misc=wk[:nw], cap=3); wk = wk[nw:]
            elif ks >= 8 and rg:
                n = (len(rg) + 13 - ks) // (14 - ks)
                sched(b, mf, first=fill, vm=rg[:n], cap=3); rg = rg[n:]
            else:
                weave(b, mf, fill, per=2)

def stats_core(b, SS, QQ, scale4):
    b(f"v_cndmask_b32 v{QQ}, v{QQ}, v{QQ+1}, s[{S_M1}:{S_M1+1}]")
    b(f"v_mul_f32 v{SS}, 0x3b124925, v{SS}")
    b(f"v_cndmask_b32 v{QQ}, v{QQ}, v{QQ+2}, s[{S_M1+2}:{S_M1+3}]")
    b(f"v_cndmask_b32 v{QQ}, v{QQ}, v{QQ+3}, s[{S_M1+4}:{S_M1+5}]")
    b(f"v_mul_f32 v{QQ}, 0x3b124925, v{QQ}")
    b(f"v_fma_f32 v{QQ}, -v{SS}, v{SS}, v{QQ}")
    b(f"v_max_f32 v{QQ}, 0, v{QQ}")
    if scale4:
        b(f"v_mul_f32 v{QQ}, 0x3e800000, v{QQ}")
    b(f"v_add_f32 v{QQ}, 0x3727c5ac, v{QQ}")
    b(f"v_rsq_f32 v{QQ}, v{QQ}")

def p1_tail(b, xl=None):
    t = T
    xl = xl if xl is not None else []
    def X():
        if xl: xl.pop(0)()
    stamp(b, 6)
    stats_core(b, V_SS, V_QQ, False)
    b(f"s_lshl_b32 s6, s{S_W}, 6")
    b(f"s_add_u32 s6, s6, {STAT}")
    b(f"v_lshl_add_u32 v{t}, v{V_C}, 2, s6")
    b(f"v_mul_f32 v{V_SS}, v{V_QQ}, v{V_SS}")
    b(f"v_add_f32 v{V_QQ}, v{V_QQ}, v{V_QQ}")
    b(f"v_mul_f32 v{V_SS}, -2.0, v{V_SS}")
    b(f"s_mov_b64 exec, s[{S_DIAG}:{S_DIAG+1}]")
    b(f"ds_write_b32 v{t}, v{V_QQ}")
    b(f"ds_write_b32 v{t}, v{V_SS} offset:256")
    b("s_mov_b64 exec, -1")
    b("s_waitcnt lgkmcnt(0)")
    b("s_barrier")
    for ls in range(4):
        b(f"ds_read_b128 {v(V_AB + 8*ls, 4)}, v{V_SA + ls}", tag=f"ab{ls}")
        b(f"ds_read_b128 {v(V_AB + 8*ls + 4, 4)}, v{V_SA + ls} offset:256", tag=f"ab{ls}")
    if xl:
        b(f"s_mul_i32 s96, s{S_W}, {16*XRS}")
    X()
    for ls in range(4):
        b.wait_lg(f"ab{ls}")
        al, be, ac = V_AB + 8*ls, V_AB + 8*ls + 4, V_ACC + 4*ls
        for h in range(2):
            b(f"v_pk_mul_f32 {v(be+2*h,2)}, {v(be+2*h,2)}, {v(V_CS1,2)} op_sel_hi:[1,0]")
        for h in range(2):
            b(f"v_pk_fma_f32 {v(ac+2*h,2)}, {v(al+2*h,2)}, {v(ac+2*h,2)}, {v(be+2*h,2)}")
        for h in range(2):
            b(f"v_cvt_pk_f16_f32 v{V_A + 2*ls + h}, v{ac+2*h}, v{ac+2*h+1}")
        if ls in (1, 3): X()
    stamp(b, 7)
    for gh in range(2):
        for sg in range(2):
            d = V_D2 + (gh*2 + sg)*4
            b(f"{MH} {v(d,4)}, {v(V_A,4)}, {v(V_F + ((gh*2+sg)*2)*4,4)}, 0")
    for gh in range(2):
        for sg in range(2):
            d = V_D2 + (gh*2 + sg)*4
            b(f"{MH} {v(d,4)}, {v(V_A+4,4)}, {v(V_F + ((gh*2+sg)*2+1)*4,4)}, {v(d,4)}")
    X()
    for gh in range(2):
        for r in range(4):
            b(f"v_cvt_pk_f16_f32 v{V_ZP + 4*gh + r}, v{V_D2 + (gh*2)*4 + r}, v{V_D2 + (gh*2+1)*4 + r}")
        b(f"buffer_store_dwordx4 {v(V_ZP + 4*gh, 4)}, v{V_ZO1}, s[{R_WS}:{R_WS+3}], s{S_Z0+gh} offen sc1", tag="zst")

def xres_pad(b):
    b(f"s_mul_i32 s96, s{S_W}, {16*XRS}")
    b(f"v_lshrrev_b32 v{T}, 1, v0")
    b(f"v_mul_u32_u24 v{T}, {XRS}, v{T}")
    b(f"v_and_b32 v{T+1}, 1, v0")
    b(f"v_lshl_add_u32 v{T}, v{T+1}, 4, v{T}")
    b(f"v_add_u32 v{T}, s96, v{T}")
    for r in range(4): b(f"v_mov_b32 v{T+4+r}, 0")
    b("s_mov_b32 exec_hi, 0")
    b(f"ds_write_b128 v{T}, {v(T+4,4)} offset:{XL+896}")
    b("s_mov_b32 exec_hi, -1")

def xres_list(b):
    out = []
    for c in range(16):
        def f(c=c):
            if cfg.xres_rot:
                b(f"s_lshl_b32 s12, s{S_J}, 1")
                b(f"s_add_u32 s12, s12, {c}")
                b("s_and_b32 s12, s12, 15")
                b(f"s_mul_i32 s13, s12, {XRS}")
                b("s_add_u32 s13, s13, s96")
                b(f"s_add_u32 m0, s13, {XL}") if XL else b("s_mov_b32 m0, s13")
                b("s_mul_i32 s12, s12, 57344")
                b(f"s_add_u32 s95, s{S_XR}, s12")
            else:
                b(f"s_add_u32 m0, s96, {XL + c*XRS}")
                b(f"s_add_u32 s95, s{S_XR}, {c*57344}")
            if not cfg.x_noexec: b("s_mov_b32 exec_hi, 0x00ffffff")
            b(f"buffer_load_dwordx4 v{V_L16}, s[{R_X}:{R_X+3}], s95 offen lds", tag="xres")
            if not cfg.x_noexec: b("s_mov_b32 exec_hi, -1")
        out.append(f)
    return out

def w1_groups(b, k):
    slot = k % 6
    out = []
    for n in range(4):
        pre = []
        if n == 0:
            pre = [f"s_add_u32 m0, s{S_RW}, {slot*4096}", (f"s_add_u32 s95, s{S_W1B}, {16*k*3584}" if k else f"s_mov_b32 s95, s{S_W1B}")]
        if n == 2 and not k == 0: pre = [f"s_add_u32 s96, s{S_W1B}, {(433 - 16*k)*3584 - 4096}"]
        if n == 3 and k == 0: pre = [f"s_add_u32 s96, s{S_W1B}, {(433 - 16*k)*3584 - 4096}"]
        def f(n=n):
            if n < 2: vo, so = V_W1O + n, "s95"
            elif k == 0 and n == 2: vo, so = V_AUX, f"s{S_W1B}"
            else: vo, so = V_W1O + n, "s96"
            off = f" offset:{1024*n}" if n else ""
            b(f"buffer_load_dwordx4 v{vo}, s[{R_W1}:{R_W1+3}], {so} offen{off} lds", tag=f"w1_{k}")
        out.append((pre, f))
    return out

def flat(gs):
    out = []
    for pre, op in gs: out += list(pre) + [op]
    return out
def w1_dma(b, k): return flat(w1_groups(b, k))

def units():
    return [(p, lt) for lt in range(4) for p in range(4) if not (p == 3 and lt >= 2)]
def preg(p, lt): return V_P + (p*4 + lt)*4 if p < 3 else V_PS + lt*4
def qreg(p, lt): return V_Q + (p*4 + lt)*4 if p < 3 else V_QS + lt*4

A_W = 64
def x_init(b, extra=()):
    us = units()
    AD = T
    def rd(i):
        p, lt = us[i]; w = A_W + 8*(i & 3)
        return [f"v_add_u32 v{AD + 2*(i&1)}, s{S_P32+p}, v{V_XA+lt}",
                f"v_add_u32 v{AD + 2*(i&1) + 1}, s{S_N32+p}, v{V_XA+lt}",
                lambda: b(f"ds_read_b128 {a(w,4)}, v{AD + 2*(i&1)} offset:{XL}", tag=f"xw{i}"),
                lambda: b(f"ds_read_b128 {a(w+4,4)}, v{AD + 2*(i&1) + 1} offset:{XL}", tag=f"xw{i}")]
    for lt in range(4):
        b(f"ds_read_b32 v{V_E + 4*lt}, v{V_XA+lt} offset:{XL+448}", tag="xe")
    for i in range(3):
        for f in rd(i): emit(b, f)
    extra = list(extra)
    for i, (p, lt) in enumerate(us):
        b.wait_lg(f"xw{i}")
        w = A_W + 8*(i & 3); P, Q = preg(p, lt), qreg(p, lt)
        mf = [f"{MF} {v(P,4)}, {v(V_SEL1,4)}, {a(w,4)}, 0",
              f"{MF} {v(Q,4)}, {v(V_SEL1,4)}, {a(w,4)}, 0",
              f"{MF} {v(P,4)}, {v(V_SEL2,4)}, {a(w+4,4)}, {v(P,4)}",
              f"{MF} {v(Q,4)}, {v(V_NSEL2,4)}, {a(w+4,4)}, {v(Q,4)}"]
        fill = rd(i+3) if i + 3 < len(us) else []
        ne = (len(extra) + len(us) - i - 1) // (len(us) - i)
        fill = extra[:ne] + fill; extra = extra[ne:]
        weave(b, mf, fill, per=2)
    b("s_nop 7")
    b(f"v_mov_b32 v{T+1}, 0")
    for lt in range(4):
        P, Q, E = preg(0, lt), qreg(0, lt), V_E + 4*lt
        b(f"v_add_f32 v{T}, v{P}, v{P}")
        b(f"v_cndmask_b32 v{Q}, v{Q}, v{T+1}, s[{S_MASK}:{S_MASK+1}]")
        b(f"v_cndmask_b32 v{P}, v{P}, v{T}, s[{S_MASK}:{S_MASK+1}]")
        b(f"v_lshlrev_b32 v{E}, 16, v{E}")
        b(f"v_add_f32 v{E}, v{E}, v{E}")

def z_load(b, p):
    for ks in range(2):
        for j in range(4):
            reg = V_Z + (p*2 + ks)*8 + 2*j
            b(f"buffer_load_dwordx2 {v(reg,2)}, v{V_ZO}, s[{R_WS}:{R_WS+3}], s{S_ZL+p} offen offset:{ks*2048 + j*128} sc1", tag=f"z{p}_{ks}")
def z_list(b):
    out = []
    if cfg.x_z4:
        b(f"v_and_b32 v{T+6}, 7, v{V_C}")
        b(f"v_lshlrev_b32 v{T+6}, 4, v{T+6}")
        b(f"v_lshrrev_b32 v{T+7}, 3, v{V_C}")
        b(f"v_lshl_add_u32 v{T+6}, v{T+7}, 7, v{T+6}")
        b(f"v_lshl_add_u32 v{T+6}, v{V_GQ}, 9, v{T+6}")
        for p in range(4):
            for ks in range(2):
                for j in range(2):
                    reg = V_Z + (p*2 + ks)*8 + 4*j
                    out.append(lambda p=p, ks=ks, j=j, reg=reg: b(f"buffer_load_dwordx4 {v(reg,4)}, v{T+6}, s[{R_WS}:{R_WS+3}], s{S_ZL+p} offen offset:{ks*2048 + j*256} sc1", tag=f"z{p}_{ks}"))
        return out
    for p in range(4):
        for ks in range(2):
            for j in range(4):
                reg = V_Z + (p*2 + ks)*8 + 2*j
                out.append(lambda p=p, ks=ks, j=j, reg=reg: b(f"buffer_load_dwordx2 {v(reg,2)}, v{V_ZO}, s[{R_WS}:{R_WS+3}], s{S_ZL+p} offen offset:{ks*2048 + j*128} sc1", tag=f"z{p}_{ks}"))
    return out

def pb_prefill(b):
    out = []
    for q in range(6):
        for h in range(2):
            out.append(lambda q=q, h=h: b(f"buffer_store_dwordx4 {v(V_NEG,4)}, v{V_L16}, s[{R_WS}:{R_WS+3}], s{S_IN+q} offen offset:{1024*h} sc1", tag="pbpre"))
    return out

def step_b(b, ring=()):
    def swaps(p, ks):
        z = V_Z + (p*2 + ks)*8
        return [f"v_swap_b32 v{z+1}, v{z+2}", f"v_swap_b32 v{z+2}, v{z+4}", f"v_swap_b32 v{z+3}, v{z+6}", f"v_swap_b32 v{z+5}, v{z+6}"]
    def epi(p, lt):
        P, Q = preg(p, lt), qreg(p, lt)
        fl = []
        for r in range(4):
            fl.append(f"v_add_f32 v{T+r}, v{P+r}, v{Q+r}")
            fl.append(f"v_sub_f32 v{T+4+r}, v{P+r}, v{Q+r}")
        if p == 0:
            fl.append(f"v_cndmask_b32 v{T}, v{T}, v{P}, s[{S_MASK}:{S_MASK+1}]")
            fl.append(f"v_cndmask_b32 v{T+4}, v{T+4}, v{V_E+4*lt}, s[{S_MASK}:{S_MASK+1}]")
        fl.append(f"v_cvt_pk_bf16_f32 v{P+0}, v{T+0}, v{T+1}")
        fl.append(f"v_cvt_pk_bf16_f32 v{P+1}, v{T+2}, v{T+3}")
        fl.append(f"v_cvt_pk_bf16_f32 v{P+2}, v{T+4}, v{T+5}")
        fl.append(f"v_cvt_pk_bf16_f32 v{P+3}, v{T+6}, v{T+7}")
        if p < 3:
            fl.append(lambda: b(f"ds_write_b128 v{V_HW+lt}, {v(P,4)} offset:{XL + p*4096}", tag="hw"))
        else:
            fl.append(lambda: b(f"ds_write_b128 v{V_HWS+lt}, {v(P,4)} offset:{XL}", tag="hw"))
        return fl
    def mf(p, lt):
        P, Q = preg(p, lt), qreg(p, lt)
        out = []
        for ks in range(2):
            z = V_Z + (p*2 + ks)*8
            out.append(f"{MH} {v(P,4)}, {v(z,4)}, {a(mreg(lt,ks,0),4)}, {v(P,4)}")
            out.append(f"{MH} {v(Q,4)}, {v(z+4,4)}, {a(mreg(lt,ks,1),4)}, {v(Q,4)}")
        return out
    order = [(p, lt) for p in range(4) for lt in range(4) if not (p == 3 and lt >= 2)]
    done = []
    pre = [] if cfg.x_noring else list(ring)
    nun = len(order)
    for iu, (p, lt) in enumerate(order):
        if lt == 0:
            b.wait_vm(f"z{p}_1")
            if cfg.fineb: stamp(b, 24 + p, True)
            guarded(b, [V_Z + p*16 + i for i in range(16)], lambda p=p: z_load(b, p), f"z{p}")
            for ks in range(2):
                for sw in swaps(p, ks): b(sw)
            if p == 0:
                lab = b.newlabel("L_noE")
                b(f"s_cmp_eq_u32 s{S_W}, 0")
                b(f"s_cbranch_scc0 {lab}")
                for ks in range(2):
                    for l2 in range(4):
                        z = V_Z + ks*8
                        b(f"{MH} {v(V_E+4*l2,4)}, {v(z+4,4)}, {a(mreg(l2,ks,0),4)}, {v(V_E+4*l2,4)}")
                b.label(lab)
        fl = epi(*done[-2]) if len(done) >= 2 else []
        nv = (len(pre) + (nun - iu) - 1) // (nun - iu)
        vm = pre[:nv]; pre = pre[nv:]
        sched(b, mf(p, lt), vm=vm, misc=fl, cap=5)
        done.append((p, lt))
    for f in epi(*done[-2]): emit(b, f)
    for f in epi(*done[-1]): emit(b, f)

def slab_buf(p):
    return {0: 1, 1: 2, 2: 0, 3: 1, 4: 2, 5: "H", 6: "S"}[p]

def w2_groups(b, p):
    sg = slab_buf(p)
    out = []
    for hf in range(2):
        for n in range(4):
            pre = []
            if n == 0:
                pre.append(f"s_add_u32 m0, s{S_HWB}, {XL + hf*4096}" if sg == "H" else f"s_add_u32 m0, s{S_RW}, {sg*8192 + hf*4096}")
                if hf: pre.append(f"s_add_u32 s95, s{S_W2+p}, {32*896}")
            def f(n=n, hf=hf):
                so = "s95" if hf else f"s{S_W2+p}"
                off = f" offset:{1024*n}" if n else ""
                b(f"buffer_load_dwordx4 v{V_W2O+n}, s[{R_W2}:{R_W2+3}], {so} offen{off} lds", tag=f"w2_{p}")
            out.append((pre, f))
    return out
def w2_dma(b, p): return flat(w2_groups(b, p))

S_S6 = 6
def w2_groups6(b):
    ga, gb = [], []
    for i in range(6):
        pre = []
        if i == 0:
            pre = [f"s_mul_i32 s95, s{S_W}, {16*896}", f"s_sub_u32 s95, s{S_W2+6}, s95",
                   f"s_mul_i32 s96, s{S_W}, 6144", f"s_add_u32 m0, s96, {XL + 32768}"]
        if i == 4:
            pre = [f"s_add_u32 s95, s95, {32*896}", f"s_add_u32 m0, s96, {XL + 32768 + 4096}"]
        n = i & 3
        def f(n=n):
            off = f" offset:{1024*n}" if n else ""
            b(f"buffer_load_dwordx4 v{V_W2O+n}, s[{R_W2}:{R_W2+3}], s95 offen{off} lds", tag="w2_6")
        ga.append((pre, f))
    for i in range(2):
        pre = []
        if i == 0:
            pre = [f"s_mul_i32 s95, s{S_W}, {48*896}", f"s_sub_u32 s95, s{S_W2+6}, s95", f"s_add_u32 s95, s95, {192*896}",
                   f"s_lshl_b32 s96, s{S_W}, 11", f"s_add_u32 m0, s96, {RING}"]
        def f(n=i):
            off = f" offset:{1024*n}" if n else ""
            b(f"buffer_load_dwordx4 v{V_W2O+n}, s[{R_W2}:{R_W2+3}], s95 offen{off} lds", tag="w2_6")
        gb.append((pre, f))
    return ga, gb

def cs_loads(b):
    out = []
    def hdr():
        b(f"s_lshl_b32 s6, s{S_J}, 10")
        b(f"s_lshl_b32 s7, s{S_W}, 8")
        b("s_add_u32 s6, s6, s7")
        b(f"s_add_u32 s{S_CSO}, s6, {WS_CS}")
        b(f"v_lshlrev_b32 v{V_CSA}, 4, v{V_GQ}")
    hdr()
    cs_reload(b)

def cs_groups(b):
    pre = [f"s_lshl_b32 s6, s{S_J}, 10", f"s_lshl_b32 s7, s{S_W}, 8", "s_add_u32 s6, s6, s7", f"s_add_u32 s{S_CSO}, s6, {WS_CS}", f"v_lshlrev_b32 v{V_CSA}, 4, v{V_GQ}"]
    out = []
    for ft in range(4):
        out.append(([], lambda ft=ft: b(f"buffer_load_dwordx4 {v(V_CS+4*ft,4)}, v{V_CSA}, s[{R_WS}:{R_WS+3}], s{S_CSO} offen offset:{64*ft} sc1", tag="cs")))
    return pre, out

def cs_reload(b):
    for ft in range(4):
        b(f"buffer_load_dwordx4 {v(V_CS+4*ft,4)}, v{V_CSA}, s[{R_WS}:{R_WS+3}], s{S_CSO} offen offset:{64*ft} sc1", tag="cs")

def gemm1_pre(b):
    b.wait_vm("w1_0")
    for u in range(4):
        for hh in range(2):
            b(f"ds_read_b64_tr_b16 {v(V_A1 + 4*u + 2*hh, 2)}, v{V_TR1+u} offset:{hh*2048}", tag="r0")

def gemm1(b):
    def reads(k):
        buf = k & 1; slot = k % 6
        out = []
        for lt in range(4):
            out.append(lambda lt=lt: b(f"ds_read_b128 {v(V_B1 + 16*buf + 4*lt, 4)}, v{V_HB+lt} offset:{XL + k*4096}", tag=f"r{k}"))
        for u in range(4):
            for hh in range(2):
                out.append(lambda u=u, hh=hh: b(f"ds_read_b64_tr_b16 {v(V_A1 + 16*buf + 4*u + 2*hh, 2)}, v{V_TR1+u} offset:{slot*4096 + hh*2048}", tag=f"r{k}"))
        return out
    late = record(epi_addr) + record(flag_setup)
    if cfg.trim2:
        for f in reads(0)[:4]: f()
    else:
        b.wait_vm("w1_0")
        for f in reads(0): f()
    csg = cs_groups(b)[1] if cfg.trim2 else []
    hres = [f"v_mov_b32 v{V_HRES+k}, 0" for k in range(16)]
    hrd = [(lambda tt=tt, r=r: b(f"ds_read_u16_d16_hi v{V_HRES + tt*4 + r}, v{V_HA + r} offset:{XL + tt*1024}", tag="hres")) for tt in range(4) for r in range(4)]
    s0 = []
    for k2 in range(8):
        s0 += slab_read(b, 0, k2, lambda o, k2=k2: a(A_S0 + 4*k2 + o, 2), "s0")
    g0, g1, g2 = w2_groups(b, 0), w2_groups(b, 1), w2_groups(b, 2)
    for k in range(14):
        buf = k & 1
        if k == 12:
            b.wait_vm("w2_0")
            b.wait_lg(f"r{k}")
            b("s_barrier")
        else:
            b.wait_lg(f"r{k}")
        if cfg.fine: stamp(b, k)
        first, vm, misc = [], [], []
        if k + 1 < 14:
            first.append(lambda k=k: b.wait_vm(f"w1_{k+1}"))
            if not cfg.x_noreads: first += reads(k + 1)
        if k + 6 < 14 and not cfg.x_now1dma: vm += w1_groups(b, k + 6)
        if csg and k < 4: vm.append(csg.pop(0))
        if k == 8: misc += hres
        if k == 8: vm += g0[:4]
        if csg and k in (12, 13) and False: pass
        if k == 9: vm += g0[4:]; misc += hrd[:8]
        if k == 10: vm += g1[:4]; misc += hrd[8:]
        if k == 11: vm += g1[4:]; misc.append(lambda: ready_set(b))
        if k == 12: vm += g2[:4]; misc += s0[:8]
        if k < 8:
            n = (len(late) + 7 - k) // (8 - k)
            misc += late[:n]; late = late[n:]
        bb = V_B1 + 16*buf
        z = k == 0
        mf = [f"{MF} {v(V_Q2,4)}, {v(bb,4)}, {v(bb,4)}, {'0' if z else v(V_Q2,4)}",
              f"{MF} {v(V_S2,4)}, {v(V_ONE2,4)}, {v(bb,4)}, {'0' if z else v(V_S2,4)}"]
        pairs = [(lt, u) for u in range(4) for lt in range(4)] if cfg.g1_umajor else [(lt, u) for lt in range(4) for u in range(4)]
        for lt, u in pairs:
            d = V_ACC1 + (u*4 + lt)*4
            mf.append(f"{MF} {v(d,4)}, {v(V_A1 + 16*buf + 4*u, 4)}, {v(bb + 4*lt, 4)}, {'0' if z else v(d,4)}")
        if k == 13:
            r = Rec()
            stats_core(r, V_S2, V_Q2, True)
            sf = r.l + [f"s_lshl_b32 s6, s{S_W}, 6", f"s_add_u32 s6, s6, {STAT}", f"v_lshl_add_u32 v{T}, v{V_C}, 2, s6",
                        f"v_sub_f32 v{V_S2}, 0, v{V_S2}", f"v_mul_f32 v{V_Q2}, 0.5, v{V_Q2}"]
            sched(b, mf[:6], first=s0[8:], vm=g2[4:5])
            sched(b, mf[6:], vm=g2[5:], misc=sf)
            b(f"s_mov_b64 exec, s[{S_DIAG}:{S_DIAG+1}]")
            b(f"ds_write_b32 v{T}, v{V_S2}")
            b(f"ds_write_b32 v{T}, v{V_S2} offset:256")
            b(f"ds_write_b32 v{T}, v{V_Q2} offset:512")
            b("s_mov_b64 exec, -1")
            b.g2rest = []
        else:
            sched(b, mf, first=first, vm=vm, misc=misc, misc_from=6)

def slab_read(b, p, k2, dst, tagp):
    sg = slab_buf(p)
    part = k2 >> 1
    if sg == "H":
        base = V_TR2H; off = XL + part*8192 + (k2 & 1)*4096
    elif sg == "S":
        if k2 < 6: base = V_TR2H; off = XL + 32768 + k2*4096
        else: base = V_TR2; off = (k2 - 6)*4096
    else:
        base = V_TR2 + (part >> 1)
        off = (part & 1)*24576 + sg*8192 + (k2 & 1)*4096
    return [(lambda hh=hh: b(f"ds_read_b64_tr_b16 {dst(2*hh)}, v{base} offset:{off + hh*2048}", tag=tagp)) for hh in range(2)]

V_NA = 54
V_SR = 36
def epi_addr(b):
    b(f"s_lshl_b32 s6, s{S_W}, 13")
    for l2 in range(4): b(f"v_add_u32 v{V_NA+l2}, s6, v{V_HB+l2}")
    b(f"v_lshlrev_b32 v{V_SR}, 2, v{V_C}")
    b(f"v_add_u32 v{V_SR}, {STAT}, v{V_SR}")
    b(f"s_lshl_b32 s6, s{S_W}, 6")
    b(f"v_add_u32 v{V_SR+1}, s6, v{V_SR}")

def gemm1_epi(b):
    b.wait_vm("w2_1")
    b("s_waitcnt lgkmcnt(0)")
    if cfg.finee: stamp(b, 24, True)
    b("s_barrier")
    if cfg.finee: stamp(b, 25, True)
    for lt in range(4):
        b(f"ds_read_b32 v{V_NM+2*lt}, v{V_SR+1} offset:{64*lt}", tag="nm")
    for tt in range(4):
        b(f"ds_read_b32 v{V_RR+tt}, v{V_SR} offset:{512 + 64*tt}", tag="rr")
    ready_load(b)
    b.wait_vm("cs")
    guarded(b, [V_CS + i for i in range(16)], lambda: cs_reload(b), "cs")
    b.wait_lg("nm")
    if cfg.finee: stamp(b, 26, True)
    main = []
    for lt in range(4):
        for fp in range(2):
            pk = V_PK + 4*((lt*2 + fp) & 3)
            for hh in range(2):
                d = V_ACC1 + ((2*fp + hh)*4 + lt)*4
                for h in range(2):
                    main.append(f"v_pk_fma_f32 {v(d+2*h,2)}, {v(V_CS+4*(2*fp+hh)+2*h,2)}, {v(V_NM+2*lt,2)}, {v(d+2*h,2)} op_sel_hi:[1,0,1]")
            for hh in range(2):
                d = V_ACC1 + ((2*fp + hh)*4 + lt)*4
                main.append(f"v_cvt_pk_bf16_f32 v{pk+2*hh}, v{d}, v{d+1}")
                main.append(f"v_cvt_pk_bf16_f32 v{pk+2*hh+1}, v{d+2}, v{d+3}")
            for q in range(4):
                main.append(f"v_pk_max_i16 v{pk+q}, v{pk+q}, 0")
            main.append(lambda lt=lt, fp=fp, pk=pk: b(f"ds_write_b128 v{V_NA+lt}, {v(pk,4)} offset:{XL + fp*4096}", tag="hidw"))
    g6a, b.g6b = w2_groups6(b)
    b.g6a = g6a
    dm = [flat([g]) for g in b.g2rest + ([] if cfg.late_w2 else w2_groups(b, 3))]
    dm = [(lambda l=l: [emit(b, x) for x in l]) for l in dm]
    s1 = []
    for k2 in range(8):
        s1 += slab_read(b, 1, k2, lambda o, k2=k2: a(A_S0 + 32 + 4*k2 + o, 2), "s1")
    multi_spread(b, main, [x for x in (dm, s1) if x])
    if cfg.finee: stamp(b, 27, True)
    if cfg.fewbar: b.wait_vm("w2_2")
    b("s_waitcnt lgkmcnt(0)")
    b("s_barrier")

V_INR = [160, 168, 176, 184, 208, 216]
def inbox_load(b, q):
    return [([], (lambda h=h: b(f"buffer_load_dwordx4 {v(V_INR[q]+4*h,4)}, v{V_L16}, s[{R_WS}:{R_WS+3}], s{S_IN+q} offen offset:{1024*h} sc1", tag=f"p{q}"))) for h in range(2)]

def gemm2(b):
    hb = []
    for k2 in range(8):
        for tt in range(4):
            hb.append((k2, lambda k2=k2, tt=tt: b(f"ds_read_b128 {a((k2*4 + tt)*4, 4)}, v{V_L16} offset:{XL + k2*4096 + tt*1024}", tag=f"hb{k2}")))
    def aread(p, k2):
        if p <= 1: return []
        return slab_read(b, p, k2, lambda o: v(V_A2 + 4*(k2 & 3) + o, 2), f"a{p}_{k2}")
    def aop(p, k2):
        return a(A_S0 + 32*p + 4*k2, 4) if p <= 1 else v(V_A2 + 4*(k2 & 3), 4)
    def epi(p):
        acc = V_ACC2 + 16*(p & 1)
        pk = V_PK + 8*(p & 1)
        cv, st = [], []
        for h in range(2):
            pre = []
            for tt in (2*h, 2*h+1):
                pre.append(f"v_cvt_pk_bf16_f32 v{pk+2*tt}, v{acc+4*tt}, v{acc+4*tt+1}")
                pre.append(f"v_cvt_pk_bf16_f32 v{pk+2*tt+1}, v{acc+4*tt+2}, v{acc+4*tt+3}")
            cv.append(pre)
            st.append(lambda h=h: b(f"buffer_store_dwordx4 {v(pk+4*h,4)}, v{V_L16}, s[{R_WS}:{R_WS+3}], s{S_PB+p} offen offset:{1024*h} sc1", tag=f"pst{p}") if not cfg.x_nostore else None)
        return cv, st
    def mfs(p, k2):
        acc = V_ACC2 + 16*(p & 1)
        return [f"{MF} {v(acc+4*tt,4)}, {aop(p, k2)}, {a((k2*4+tt)*4, 4)}, {v(acc+4*tt, 4) if k2 else '0'}" for tt in range(4)]
    W = {q: w2_groups(b, q) for q in (4, 5)}
    plan = {0: W[4], 1: W[5], 2: b.g6a, 3: b.g6b}
    if cfg.late_w2: plan = {0: w2_groups(b, 3), 1: W[4], 2: W[5], 3: b.g6a, 4: b.g6b}
    if cfg.early_in == 1:
        plan[5] = inbox_load(b, 5) + inbox_load(b, 4) + inbox_load(b, 3)
        plan[6] = inbox_load(b, 2)
    elif cfg.early_in == 2:
        plan[4] = inbox_load(b, 5)
        plan[5] = inbox_load(b, 4) + inbox_load(b, 3)
        plan[6] = inbox_load(b, 2)
    elif cfg.early_in == 3:
        plan[6] = inbox_load(b, 5) + inbox_load(b, 4) + inbox_load(b, 3)
    late_in = {5: [], 6: []}
    for (k2, f) in hb[:8]: f()
    tail = []
    for p in range(7):
        if cfg.fine: stamp(b, 24 + p)
        vm = list(plan.get(p, []))
        cv, st = epi(p - 1) if p >= 1 else ([], [])
        body = list(tail)
        firsts = []
        if p >= 1: firsts = aread(p, 0) + aread(p, 1)
        nt = len(tail)
        nvm_tail = min(len(vm), 2) if nt else 0
        if nt:
            b.wait_lg([f"a{p-1}_6"])
            sched(b, tail[:4], first=firsts[:2], vm=vm[:min(1, nvm_tail)])
            b.wait_lg([f"a{p-1}_7"])
            sched(b, tail[4:], first=firsts[2:], vm=vm[1:nvm_tail])
            vm = vm[nvm_tail:]
        if p == 1: ready_check(b)
        if p == 3 and cfg.mfma_sum: b.pending_half += record(sum_sel)
        if p == 4 and cfg.trim:
            for tt in range(4): b(f"v_mov_b32 v{V_RR2+2*tt}, v{V_RR+tt}")
            for k in range(16): b.pending_half.append(f"v_mul_f32 v{V_HRES+k}, 0.5, v{V_HRES+k}")
        stg = [(cv[h], st[h]) for h in range(2)] if st else []
        order = (vm + stg) if ((cfg.early_in and p >= 4 and cfg.in_first) or (cfg.dma_first and p <= 3)) else stg + vm
        per = [[] for _ in range(6)]
        for i, g in enumerate(order): per[min(5, (i * 6) // max(len(order), 1))].append(g)
        for k2 in range(6):
            b.wait_lg([f"hb{k2}", f"a{p}_{k2}"])
            first = aread(p, k2 + 2)
            if p == 0: first += [f for (kk, f) in hb if kk == k2 + 2]
            gs = per[k2]
            if gs and len(gs[0][0]) > 2:
                sched(b, mfs(p, k2), first=first, misc=gs[0][0], cap=3)
                for g in gs[:1]: emit(b, g[1])
                for g in gs[1:]:
                    for x in g[0]: emit(b, x)
                    emit(b, g[1])
            else:
                hm = b.pending_half[:4]; b.pending_half = b.pending_half[4:]
                sched(b, mfs(p, k2), first=first, vm=gs, misc=hm)
        if p < 6:
            if cfg.fewbar:
                need = {0: 3, 2: 4, 3: None, 4: 5, 5: 6}.get(p)
                if p == 3: b.wait_vm("w2_4")
                if need: b.wait_vm(f"w2_{need}")
                if p in (0, 2): b("s_waitcnt lgkmcnt(0)")
                if p in (0, 2, 4, 5): b("s_barrier")
            else:
                if p + 1 >= 2: b.wait_vm(f"w2_{p+1}")
                if p in (0, 2): b("s_waitcnt lgkmcnt(0)")
                if not cfg.x_nobar2: b("s_barrier")
            tail = mfs(p, 6) + mfs(p, 7)
        else:
            b.wait_lg([f"a{p}_6", f"a{p}_7"])
            last = {0: [5, 4], 1: [1], 2: [1], 3: [2, 1]}[cfg.early_in]
            sched(b, mfs(p, 6) + mfs(p, 7), vm=[g for q in last for g in inbox_load(b, q)])

def flag_setup(b):
    t = T
    b(f"v_add_u32 v{t}, s{S_J}, v0")
    b(f"v_add_u32 v{t}, 1, v{t}")
    b(f"v_subrev_u32 v{t+1}, 7, v{t}")
    b(f"v_cmp_le_u32 vcc, 7, v{t}")
    b(f"s_mul_i32 s6, s{S_IDX}, 7")
    b(f"v_cndmask_b32 v{t}, v{t}, v{t+1}, vcc")
    b(f"v_add_u32 v{t}, s6, v{t}")
    b(f"v_lshlrev_b32 v{t}, 9, v{t}")
    b(f"s_lshl_b32 s6, s{S_W}, 7")
    b(f"s_add_u32 s6, s6, {WS_FL}")
    b(f"v_add_u32 v{t+6}, s6, v{t}")
    own_line(b, 13)
    b(f"v_mov_b32 v{t+5}, 1")
    b(f"v_mov_b32 v{t+4}, 0")

def ready_set(b):
    b.wait_vm("pbpre")
    b("s_mov_b64 exec, 1")
    b(f"buffer_store_dword v{T+5}, v{T+4}, s[{R_WS}:{R_WS+3}], s13 offen sc1", tag="rdy")
    b("s_mov_b64 exec, -1")

def ready_load(b):
    b("s_mov_b64 exec, 0x3f")
    b(f"buffer_load_dword v{T+7}, v{T+6}, s[{R_WS}:{R_WS+3}], 0 offen sc1", tag="rdl")
    b("s_mov_b64 exec, -1")

def ready_check(b):
    b.wait_vm("rdl")
    l2 = b.newlabel("L_rd"); l3 = b.newlabel("L_rdd")
    b.notrack = True
    b("s_mov_b32 s12, 0")
    b("s_mov_b64 exec, 0x3f")
    b.label(l2)
    b(f"v_cmp_ne_u32 vcc, 1, v{T+7}")
    b("s_cmp_eq_u64 vcc, 0")
    b(f"s_cbranch_scc1 {l3}")
    b("s_add_u32 s12, s12, 1")
    b("s_cmp_ge_u32 s12, 0x10000")
    b(f"s_cbranch_scc1 {l3}")
    b(f"buffer_load_dword v{T+7}, v{T+6}, s[{R_WS}:{R_WS+3}], 0 offen sc1")
    b("s_waitcnt vmcnt(0)")
    b(f"s_branch {l2}")
    b.label(l3)
    b("s_mov_b64 exec, -1")
    b.notrack = False

def sum_sel(b):
    t = T
    b(f"v_lshlrev_b32 v{t}, 2, v{V_GQ}")
    b(f"v_sub_u32 v{t}, v{V_C}, v{t}")
    b(f"v_mov_b32 v{t+1}, 0x3f80")
    b(f"v_mov_b32 v{t+2}, 0x3f800000")
    b(f"v_mov_b32 v{V_SUM}, 0")
    b(f"v_mov_b32 v{V_SUM+1}, 0")
    b(f"v_mov_b32 v{V_SUM+4}, 0")
    b(f"v_mov_b32 v{V_SUM+5}, 0")
    for m in range(2):
        b(f"v_cmp_eq_u32 vcc, {2*m}, v{t}")
        b(f"v_cmp_eq_u32 s[6:7], {2*m+1}, v{t}")
        b(f"v_cndmask_b32 v{V_SUM+2+m}, v{V_SUM}, v{t+1}, vcc")
        b(f"v_cndmask_b32 v{V_SUM+2+m}, v{V_SUM+2+m}, v{t+2}, s[6:7]")

def final_reduce(b):
    t = T
    acc = V_ACC2
    for x in b.pending_half: b(x)
    b.pending_half = []
    def reload(q):
        for pre, op in inbox_load(b, q): op()
    for q in ((3, 2, 1, 0) if cfg.early_in == 0 else (0,)): reload(q)
    b(f"v_mul_u32_u24 v{t+4}, 57344, v{V_C}")
    b(f"v_lshl_add_u32 v{t+4}, v{V_GQ}, 3, v{t+4}")
    stamp(b, 20)
    for q in (5, 4, 3, 2, 1, 0):
        b.wait_vm(f"p{q}")
        guarded(b, [V_INR[q] + i for i in range(8)], lambda q=q: reload(q), f"p{q}")
        if cfg.finef: stamp(b, 24 + q, True)
        if cfg.mfma_sum:
            for h in range(2):
                fr = v(V_INR[q] + 4*h, 4)
                b(f"{MF} {v(acc+8*h,4)}, {v(V_SUM+2,4)}, {fr}, {v(acc+8*h,4)}")
                b(f"{MF} {v(acc+8*h+4,4)}, {v(V_SUM,4)}, {fr}, {v(acc+8*h+4,4)}")
            continue
        for tt in range(4):
            for m in range(2):
                src = V_INR[q] + 2*tt + m
                tt2 = t + 2*((2*tt + m) & 1)
                b(f"v_lshlrev_b32 v{tt2}, 16, v{src}")
                b(f"v_and_b32 v{tt2+1}, 0xffff0000, v{src}")
                b(f"v_pk_add_f32 {v(acc+4*tt+2*m,2)}, {v(acc+4*tt+2*m,2)}, {v(tt2,2)}")
    stamp(b, 22)
    for tt in range(4):
        if cfg.trim:
            for m in range(2):
                b(f"v_pk_fma_f32 {v(acc+4*tt+2*m,2)}, {v(acc+4*tt+2*m,2)}, {v(V_RR2+2*tt,2)}, {v(V_HRES+4*tt+2*m,2)} op_sel_hi:[1,0,1]")
        else:
            for r in range(4):
                b(f"v_mul_f32 v{acc+4*tt+r}, v{V_RR+tt}, v{acc+4*tt+r}")
            for m in range(2):
                b(f"v_pk_fma_f32 {v(acc+4*tt+2*m,2)}, {v(V_HRES+4*tt+2*m,2)}, 0.5, {v(acc+4*tt+2*m,2)} op_sel_hi:[1,0,1]")
        if cfg.x_off:
            for r in range(4): b(f"v_add_f32 v{acc+4*tt+r}, {fbits(cfg.x_off)}, v{acc+4*tt+r}")
        b(f"v_cvt_pk_bf16_f32 v{V_PK+2*tt}, v{acc+4*tt}, v{acc+4*tt+1}")
        b(f"v_cvt_pk_bf16_f32 v{V_PK+1+2*tt}, v{acc+4*tt+2}, v{acc+4*tt+3}")
        b(f"buffer_store_dwordx2 {v(V_PK+2*tt,2)}, v{t+4}, s[{R_OUT}:{R_OUT+3}], s{S_O+tt} offen {cfg.outflags}")

def cs_job(b):
    b("s_sub_u32 s6, s2, 224")
    b("s_lshl_b32 s7, s6, 7")
    b("v_and_b32 v1, 15, v9")
    b("v_lshrrev_b32 v2, 4, v9")
    b("v_mul_u32_u24 v3, 3584, v2")
    b("v_lshl_add_u32 v3, v1, 3, v3")
    b("v_and_b32 v6, 63, v9")
    b("v_lshlrev_b32 v6, 2, v6")
    b("v_mov_b32 v7, -1")
    b("s_lshl_b32 s9, s6, 8")
    b(f"s_add_u32 s9, s9, {WS_CS}")
    b(f"buffer_store_dword v7, v6, s[{R_WS}:{R_WS+3}], s9 offen sc1", tag="cspre")
    for n in range(28):
        b(f"s_add_u32 s8, s7, {n*57344}")
        b(f"buffer_load_dwordx2 {v(16 + 2*n, 2)}, v3, s[{R_W1}:{R_W1+3}], s8 offen", tag=f"c{n}")
    b.wait_vm("cspre")
    b("s_barrier")
    arrive0(b)
    b("s_sub_u32 s6, s2, 224")
    for r in range(4): b(f"v_mov_b32 v{76+r}, 0")
    for n in range(28):
        b.wait_vm(f"c{n}")
        for h in range(2):
            b(f"v_lshlrev_b32 v4, 16, v{16+2*n+h}")
            b(f"v_and_b32 v5, 0xffff0000, v{16+2*n+h}")
            b(f"v_pk_add_f32 {v(76+2*h,2)}, {v(76+2*h,2)}, v[4:5]")
    b("v_lshlrev_b32 v4, 8, v2")
    b("v_lshl_add_u32 v4, v1, 4, v4")
    b("ds_write_b128 v4, v[76:79]")
    b("s_waitcnt lgkmcnt(0)")
    b("s_barrier")
    b("v_and_b32 v1, 63, v9")
    b("v_lshlrev_b32 v1, 2, v1")
    for n in range(16): b(f"ds_read_b32 v{16+n}, v1 offset:{256*n}")
    b("s_waitcnt lgkmcnt(0)")
    for n in range(1, 16): b(f"v_add_f32 v16, v16, v{16+n}")
    b("s_lshl_b32 s7, s6, 8")
    b(f"s_add_u32 s7, s7, {WS_CS}")
    b(f"s_cmp_eq_u32 s{S_W}, 0")
    lab = b.newlabel("L_csk")
    b(f"s_cbranch_scc0 {lab}")
    b(f"buffer_store_dword v16, v1, s[{R_WS}:{R_WS+3}], s7 offen sc1", track=False)
    b.label(lab)

def build(name):
    b = Builder()
    b.slow = []
    b.pending_half = []
    b("s_cmp_ge_u32 s2, 252")
    b("s_cbranch_scc1 L_end")
    b("s_load_dwordx2 s[16:17], s[0:1], 0")
    b("s_load_dwordx8 s[28:35], s[0:1], 48")
    b("s_load_dwordx2 s[36:37], s[0:1], 80")
    if cfg.code_pf:
        b("s_getpc_b64 s[6:7]")
        b.label("L_pc")
        b("v_lshlrev_b32 v2, 7, v0")
        b("v_mov_b32 v5, s7")
        b("v_add_co_u32 v4, vcc, s6, v2")
        b("v_addc_co_u32 v5, vcc, 0, v5, vcc")
        b(f"v_cmp_gt_u32 vcc, L_code_end-L_pc, v2")
        b("s_and_saveexec_b64 s[8:9], vcc")
        lab = b.newlabel("L_nopf")
        b(f"s_cbranch_execz {lab}")
        b(f"global_load_dword {a(255)}, v[4:5], off", track=False)
        b.label(lab)
        b("s_mov_b64 exec, s[8:9]")
    b("v_mov_b32 v9, v0")
    b("v_lshrrev_b32 v1, 6, v0")
    b("v_and_b32 v0, 63, v0")
    b(f"v_readfirstlane_b32 s{S_W}, v1")
    b("s_cmp_ge_u32 s2, 224")
    b("s_cbranch_scc1 L_cs")
    decode(b)
    p1_addr(b)
    z_base(b)
    if not cfg.lean_start:
        p1_addr2(b)
        wd_setup(b)
    b("s_waitcnt lgkmcnt(0)")
    srd(b, R_X, P_X, X_BYTES)
    if cfg.x_first:
        x_dma(b)
        srd(b, R_WS, P_WS, WS_BYTES)
        prefill_start(b)
    else:
        srd(b, R_WS, P_WS, WS_BYTES)
        prefill_start(b)
        x_dma(b)
    srd(b, R_W1, P_W1, W_BYTES); srd(b, R_W2, P_W2, W_BYTES)
    srd(b, R_OUT, P_OUT, X_BYTES); srd(b, R_DBG, P_DBG, 256)
    stamp(b, 0)
    if cfg.lean_start:
        p1_addr2(b)
        wd_setup(b)
    move_masks(b)
    if cfg.w_prefetch: w_prefetch(b)
    p2_scalars(b)
    inbox_scalars(b)
    if cfg.touch_x: touch_xres(b)
    if cfg.pre_at == "start":
        for f in pb_prefill(b): f()
    stamp(b, 1)
    def early(ks):
        if cfg.early_arrive is not None and ks == cfg.early_arrive:
            b.wait_vm("pre")
            b("s_barrier")
            arrive0(b)
    wd_gen(b, early)
    f_gen(b)
    m_gen(b)
    fm_addr(b)
    if cfg.touch_w: touch_w_setup(b)
    if cfg.ring_early or not cfg.late_dma_addr: dma_addr(b)
    stamp(b, 2)
    p1_loop(b)
    xall = xres_list(b)
    xt = xall[:cfg.xres_tail]; xall = xall[cfg.xres_tail:]
    p1_tail(b, xt)
    for f in xt: f()
    stamp(b, 8)
    b0_load(b, V_B0)
    xres_pad(b)
    ring = []
    for k in range(cfg.ring_early, 6): ring += w1_groups(b, k)
    work = [] if cfg.addr_in_loop else record(p2_addr)
    if not cfg.ring_early and cfg.late_dma_addr and not cfg.addr_in_loop: work = work + record(dma_addr)
    pbq = pb_prefill(b) if cfg.pre_at == "spread" else []
    xl = xall
    if pbq: xl = xl[:8] + pbq[:1] + xl[8:] + pbq[1:2]; pbq = pbq[2:]
    if work: multi_spread(b, work, [xl] + ([m_read(b)] if cfg.m_late else []))
    else: multi_spread(b, xl, [m_read(b) if cfg.m_late else []] if cfg.m_late else [])
    stamp(b, 9)
    b0_check(b, V_B0)
    stamp(b, 12)
    zl = z_list(b)
    work = record(hres_addr) + record(p2_scalars_late)
    z1 = zl[:len(zl)//2]
    if pbq: z1 = z1[:len(z1)//2] + pbq[:1] + z1[len(z1)//2:] + pbq[1:2]; pbq = pbq[2:]
    multi_spread(b, work, [z1])
    b.wait_vm("xres")
    b("s_waitcnt lgkmcnt(0)")
    b("s_barrier")
    stamp(b, 10)
    z2 = zl[len(zl)//2:]
    if pbq: z2 = z2[:len(z2)//2] + pbq[:1] + z2[len(z2)//2:] + pbq[1:2]; pbq = pbq[2:]
    x_init(b, extra=z2)
    b(f"v_mov_b32 v{V_ONE2}, 0x3f803f80")
    for r in range(1, 4): b(f"v_mov_b32 v{V_ONE2+r}, v{V_ONE2}")
    stamp(b, 11)
    if cfg.count_slow:
        b("s_mov_b32 s98, 0"); b("s_mov_b32 s99, 0")
    b("s_barrier")
    stamp(b, 14)
    if pbq:
        r2 = []
        for i, g in enumerate(ring):
            r2.append(g)
            if i % 4 == 3 and pbq: r2.append(([], pbq.pop(0)))
        ring = r2
    if cfg.pre_at == "stepb": ring = ring + [([], x) for x in pb_prefill(b)]
    step_b(b, ring)
    if not cfg.trim2: cs_loads(b)
    else:
        for x in cs_groups(b)[0]: b(x)
        gemm1_pre(b)
    b("s_waitcnt lgkmcnt(12)" if False else "s_waitcnt lgkmcnt(0)")
    stamp(b, 15)
    b("s_barrier")
    b.finezone = True
    gemm1(b)
    stamp(b, 17)
    gemm1_epi(b)
    stamp(b, 18)
    gemm2(b)
    stamp(b, 19)
    b.finezone = False
    final_reduce(b)
    stamp(b, 23)
    if cfg.count_slow:
        b(f"v_writelane_b32 v{V_TS}, s98, 28")
        b(f"v_writelane_b32 v{V_TS}, s99, 29")
    stamp_store(b)
    b("s_endpgm")
    b.label("L_cs")
    b("s_waitcnt lgkmcnt(0)")
    srd(b, R_W1, P_W1, W_BYTES); srd(b, R_WS, P_WS, WS_BYTES); srd(b, R_DBG, P_DBG, 256)
    cs_job(b)
    b("s_endpgm")
    emit_slow(b)
    b.label("L_end")
    b.label("L_code_end")
    b("s_endpgm")
    txt = b.finalize()
    if cfg.align:
        import align
        hdr = '.amdgcn_target "amdgcn-amd-amdhsa--gfx950"\n.text\n' + kernel_header(name)
        lines, before, nw, nn, tot = align.align(txt.rstrip("\n").split("\n"), hdr, "", allow_nop=cfg.align_nop)
        print("misaligned 8-byte instructions before:", before, "widened:", nw, "nops:", nn, "residual cost:", tot)
        txt = "\n".join(lines) + "\n"
    s = f"""; FNet block (pre-LN, 2-D DFT mixing as a 64x32 two-step transform, ReLU FFN) - one persistent launch
; kernarg: A_x, dft_seq_re, dft_seq_im, dft_hid_re, dft_hid_im, B_x, B_w1, B_w2, out, debug, ws
; @launch grid=(252,1,1) block=(256,1,1) lds={LDS_TOTAL}
.amdgcn_target "amdgcn-amd-amdhsa--gfx950"
.text
""" + kernel_header(name) + txt + '\n.section .rodata,"a"\n' + kernel_desc(name, 512, 256)
    return s, b

if __name__ == "__main__":
    import sys
    for o in sys.argv[2:]:
        if o == "diag": cfg.diag = True
        elif "=" in o:
            k, val = o.split("=", 1)
            setattr(cfg, k, eval(val))
    s, b = build(NAME + "_kernel")
    open(sys.argv[1], "w").write(s)
    n = sum(1 for i in b.items if not isinstance(i, str))
    print("instructions", n, "auto nops", b.nnop)
```

```python
from asmb import *
import common
from common import NAME, kernel_header, kernel_desc, X_BYTES, W_BYTES, WS_BYTES, Z_G, PB_G
import struct

def fbits(x): return hex(struct.unpack("<I", struct.pack("<f", x))[0])

class Cfg:
    diag = False
    w_prefetch = True
    xflags = ""
    x_now1dma = False
    x_now2dma = False
    x_noreads = False
    x_nobar2 = False
    x_nostore = False
    fine = False
    cyc = False
    trim = True
    ws_base = 0
    touch_out = False
    mfma_sum = True
    trim2 = True
    x_off = 0.0
    early_arrive = 10
    count_slow = False
    g1_umajor = False
    align = False
    align_nop = True
    addr_in_loop = False
    touch_x = False
    touch_w = False
    x_first = False
    fewbar = False
    dma_first = False
    xres_rot = False
    x_noexec = False
    late_w2 = False
    in_first = False
    early_in = 0
    xres_tail = 0
    stages = ((0,1,2,3,4,5,6),)
    m_late = True
    lean_start = True
    late_dma_addr = True
    outflags = ''
    finee = False
    ring_early = 0
    pre_at = 'spread'
    x_z4 = False
    x_noring = False
    x_nopre = False
    code_bytes = 26*1024
    code_pf = True
    finef = False
    x_noguard = False
    ring0 = 18
    buf4 = True
    fineb = False
cfg = Cfg()

WS_Z = 0
WS_CS = 0x200000
WS_CNT = 0x210000
WS_FL = 0x220000
WS_PB = 0x400000
WS_TS = 0x4000000

XL = 0
XRS = 928
RING = 64 * XRS
FX = RING
MX = RING + 8192
STAT = RING + 98304
LDS_TOTAL = STAT + 768

S_WG, S_W, S_IDX, S_J = 2, 3, 4, 5
P_X, P_W1, P_W2, P_OUT, P_DBG, P_WS = 16, 28, 30, 32, 34, 36
R_X, R_W1, R_W2, R_WS, R_OUT, R_DBG = 40, 44, 48, 52, 56, 60
S_TT = 16
S_PI = 20
S_ZL = 24
S_RW = 28
S_W1B = 29
S_Z0, S_Z1 = 30, 31
S_DIAG = 32
S_M1 = 34
S_MASK = 64
S_W2 = 66
S_PB = 73
S_IN = 79
S_XR = 85
S_O = 86
S_P32 = 90
S_TMP = 94
S_HWB = 94
S_N32 = 98
S_CSO = 97

V_C, V_GQ, V_TS = 1, 2, 58
T = 4
V_HB = 12
V_TR1 = 16
V_W1O = 20
V_W2O = 24
V_TR2 = 28
V_L16 = 30
V_ZO = 31
V_CSA = 31
V_HW = 32
V_HWS = 36
V_HA = 38
V_SEL1, V_SEL2, V_NSEL2 = 42, 46, 50
V_XA = 54
V_AUX = 3
V_TR2H = 59
V_NEG = 60
V_GT = 4
V_WD = 64
V_XF = 120
V_ACC = 152
V_SS = 168
V_QQ = 172
V_CS1 = 176
V_ONE = 180
V_F = 184
V_XB = 216
V_SA = 224
V_XO = 228
V_ZO1 = 229
V_G = 230
V_AB = V_XF
V_A = V_WD
V_D2 = V_WD + 8
V_ZP = V_WD + 24
A_PF = 128
A_S0 = 128
V_Z = 64
V_P, V_Q, V_PS, V_QS, V_E = 128, 176, 224, 232, 240
V_ACC1 = 128
V_A1 = 192
V_B1 = 224
V_CS = 64
V_HRES = 80
V_PK = 96
V_NM = 112
V_RR = 120
V_SUM = 224
V_RR2 = 112
V_S2 = 42
V_Q2 = 46
V_ONE2 = 50
V_A2 = 192
V_ACC2 = 128
V_IN = 160

def stamp(b, i, force=False):
    if not cfg.diag: return
    if cfg.fine and not force and i != 0 and not getattr(b, "finezone", False): return
    if i == 0 and not getattr(b, "tsinit", False):
        b(f"v_mov_b32 v{V_TS}, 0"); b.tsinit = True
        if cfg.fine: return
    b("s_memtime s[14:15]" if cfg.cyc else "s_memrealtime s[14:15]")
    b("s_waitcnt lgkmcnt(0)")
    b(f"v_writelane_b32 v{V_TS}, s14, {i}")
def stamp_store(b):
    if not cfg.diag: return
    b("s_waitcnt vmcnt(0)")
    stamp(b, 31, True)
    b("s_lshl_b32 s6, s2, 9")
    b(f"s_lshl_b32 s7, s{S_W}, 7")
    b("s_add_u32 s6, s6, s7")
    b(f"s_add_u32 s6, s6, {WS_TS}")
    b(f"v_lshlrev_b32 v{T}, 2, v0")
    b("s_mov_b32 exec_hi, 0")
    b(f"buffer_store_dword v{V_TS}, v{T}, s[{R_WS}:{R_WS+3}], s6 offen")
    b("s_waitcnt vmcnt(0)")
    b("s_mov_b64 exec, -1")

def srd(b, r, p, nbytes):
    b(f"s_mov_b32 s{r}, s{p}")
    b(f"s_mov_b32 s{r+1}, s{p+1}")
    b(f"s_mov_b32 s{r+2}, {hex(nbytes)}")
    b(f"s_mov_b32 s{r+3}, 0x00020000")

def srd_ws(b):
    if cfg.ws_base:
        b(f"s_add_u32 s{R_WS}, s{P_WS}, {hex(cfg.ws_base)}")
        b(f"s_addc_u32 s{R_WS+1}, s{P_WS+1}, 0")
        b(f"s_mov_b32 s{R_WS+2}, {hex(WS_BYTES - cfg.ws_base)}")
        b(f"s_mov_b32 s{R_WS+3}, 0x00020000")
    else:
        srd(b, R_WS, P_WS, WS_BYTES)

def emit(b, f):
    f() if callable(f) else b(f)

def weave(b, mfmas, fillers, per=2):
    k = 0; n = len(mfmas)
    for i, m in enumerate(mfmas):
        b(m)
        want = ((i + 1) * len(fillers) + n - 1) // n
        cnt = 0
        while k < len(fillers) and k < want and cnt < per:
            emit(b, fillers[k]); k += 1; cnt += 1
    while k < len(fillers):
        emit(b, fillers[k]); k += 1

class Rec:
    def __init__(self): self.l = []
    def __call__(self, s, tag=None, track=True):
        assert tag is None
        self.l.append(s)
def record(fn, *args):
    r = Rec(); fn(r, *args)
    out = []; i = 0; l = r.l
    while i < len(l):
        if l[i].startswith("s_cmp"):
            j = i + 1
            while j < len(l) and l[j].startswith(("s_cselect", "s_mov")): j += 1
            out.append("\n".join(l[i:j])); i = j
        else:
            out.append(l[i]); i += 1
    return out

def spread(b, main, extra, every):
    k = 0
    for i, m in enumerate(main):
        emit(b, m)
        if (i + 1) % every == 0 and k < len(extra):
            emit(b, extra[k]); k += 1
    while k < len(extra):
        emit(b, extra[k]); k += 1

def sched(b, mfmas, first=(), vm=(), misc=(), vm_from=0, vm_to=None, misc_from=0, cap=2):
    n = len(mfmas)
    slots = [[] for _ in range(n)]
    first = list(first); vm = list(vm); misc = list(misc)
    if vm_to is None: vm_to = n
    vpos = []
    if vm:
        span = vm_to - vm_from
        for i, (pre, op) in enumerate(vm):
            g = vm_from + min(span - 1, (i * span) // len(vm) + (1 if pre else 0))
            if vpos and g <= vpos[-1]: g = min(n - 1, vpos[-1] + 1)
            vpos.append(g)
            gp = max(0, g - 1)
            if vpos[:-1] and gp < vpos[-2]: gp = vpos[-2]
            slots[gp] += [("vm", x) for x in pre]
            slots[g].append(("vm", op))
    g = 0
    for f in first:
        while g < n - 1 and len(slots[g]) >= cap: g += 1
        slots[g].append(("first", f))
        if len(slots[g]) >= (cap if len(first) > n else 1 + sum(1 for t, _ in slots[g] if t == "vm")): g = min(n - 1, g + 1)
    free = [max(0, cap - len(slots[g])) if g >= misc_from else 0 for g in range(n)]
    tot = sum(free)
    k = 0; acc = 0
    for g in range(n):
        if k >= len(misc): break
        acc += free[g]
        want = len(misc) if tot == 0 else min(len(misc), -(-acc * len(misc) // tot)) if tot < len(misc) else (acc * len(misc) + tot - 1) // tot
        take = 0
        while k < len(misc) and k < want and (take < free[g] or tot < len(misc)):
            slots[g].append(("misc", misc[k])); k += 1; take += 1
            if tot < len(misc) and take >= free[g] + 1: break
    rest = misc[k:]
    for g in range(n):
        b(mfmas[g])
        for t, x in sorted(slots[g], key=lambda e: {"first": 0, "misc": 1, "vm": 2}[e[0]]): emit(b, x)
    for x in rest: emit(b, x)

def groups(closures_with_hdr):
    return closures_with_hdr

def multi_spread(b, main, lists):
    n = len(main)
    at = [[] for _ in range(n + 1)]
    for lst in lists:
        for i, x in enumerate(lst):
            at[min(n, ((2*i + 1) * n) // (2*len(lst)))].append(x)
    for i in range(n):
        for x in at[i]: emit(b, x)
        emit(b, main[i])
    for x in at[n]: emit(b, x)

MF = "v_mfma_f32_16x16x32_bf16"
MH = "v_mfma_f32_16x16x32_f16"

def decode(b):
    b("s_and_b32 s6, s2, 7")
    b("s_lshr_b32 s7, s2, 3")
    b("s_mul_i32 s8, s7, 37")
    b("s_lshr_b32 s8, s8, 8")
    b("s_mul_i32 s9, s8, 7")
    b(f"s_sub_u32 s{S_J}, s7, s9")
    b("s_lshl_b32 s8, s8, 3")
    b(f"s_add_u32 s{S_IDX}, s6, s8")

def rot(b, dst, ls, shift):
    if ls == 0:
        b(f"s_lshl_b32 s{dst}, s{S_W}, {shift}")
    else:
        b(f"s_add_u32 s{dst}, s{S_W}, {ls}")
        b(f"s_and_b32 s{dst}, s{dst}, 3")
        b(f"s_lshl_b32 s{dst}, s{dst}, {shift}")

def p1_addr(b):
    t = T
    b(f"v_and_b32 v{V_C}, 15, v0")
    b(f"v_lshrrev_b32 v{V_GQ}, 4, v0")
    b(f"v_lshlrev_b32 v{V_L16}, 4, v0")
    b(f"v_lshrrev_b32 v{t}, 3, v0")
    b(f"v_and_b32 v{t+1}, 7, v0")
    b(f"v_xor_b32 v{t+1}, v{t+1}, v{t}")
    b(f"v_lshlrev_b32 v{t+1}, 4, v{t+1}")
    b(f"v_mul_u32_u24 v{V_XO}, 28672, v{t}")
    b(f"v_add_u32 v{V_XO}, v{V_XO}, v{t+1}")
    b(f"s_lshl_b32 s6, s{S_W}, 9")
    b(f"s_add_u32 s6, s6, s{S_IDX}")
    b("s_mul_i32 s12, s6, 896")
    b("s_add_u32 s13, s12, 229376")
    b(f"s_lshl_b32 s11, s{S_W}, 11")

def x_dma(b):
    for ksp in range(7):
        for o2 in range(2):
            b(f"s_add_u32 m0, s11, {XL + o2*1024 + 8064*ksp}")
            b(f"buffer_load_dwordx4 v{V_XO}, s[{R_X}:{R_X+3}], s{12+o2} offen offset:{128*ksp} {cfg.xflags} lds", tag=f"x{ksp}")

def p1_addr2(b):
    t = T
    b(f"v_and_b32 v{t}, 7, v{V_C}")
    b(f"v_lshrrev_b32 v{t+1}, 3, v{V_C}")
    b(f"v_lshlrev_b32 v{t+1}, 10, v{t+1}")
    b(f"v_lshl_add_u32 v{t+1}, v{t}, 7, v{t+1}")
    for par in range(2):
        b(f"v_add_u32 v{t+2}, {4*par}, v{V_GQ}") if par else b(f"v_mov_b32 v{t+2}, v{V_GQ}")
        b(f"v_xor_b32 v{t+2}, v{t+2}, v{t}")
        b(f"v_lshl_add_u32 v{t+3+par}, v{t+2}, 4, v{t+1}")
    b(f"v_lshlrev_b32 v{t+5}, 4, v{V_GQ}")
    for ls in range(4):
        rot(b, 6, ls, 11)
        b(f"v_add_u32 v{V_XB + 2*ls}, s6, v{t+3}")
        b(f"v_add_u32 v{V_XB + 2*ls + 1}, s6, v{t+4}")
        b("s_lshr_b32 s6, s6, 5")
        b(f"s_add_u32 s6, s6, {STAT}")
        b(f"v_add_u32 v{V_SA + ls}, s6, v{t+5}")
    b(f"v_mov_b32 v{V_ONE}, 0x3f803f80")
    for r in range(1, 4): b(f"v_mov_b32 v{V_ONE + r}, v{V_ONE}")
    b(f"v_lshrrev_b32 v{t}, 2, v{V_C}")
    b(f"v_cmp_eq_u32 s[{S_TMP}:{S_TMP+1}], v{t}, v{V_GQ}")
    b(f"v_and_b32 v{t}, 3, v{V_C}")
    for r in range(1, 4):
        b(f"v_cmp_eq_u32 s[{S_TMP+2*r}:{S_TMP+2*r+1}], {r}, v{t}")

def move_masks(b):
    for k in range(8): b(f"s_mov_b32 s{S_DIAG+k}, s{S_TMP+k}")

def z_base(b):
    b(f"s_lshr_b32 s6, s{S_W}, 1")
    b(f"s_lshl_b32 s7, s{S_J}, 1")
    b("s_add_u32 s8, s6, s7")
    b(f"s_and_b32 s9, s{S_W}, 1")
    b("s_lshl_b32 s6, s8, 12")
    b(f"s_lshl_b32 s7, s{S_IDX}, 7")
    b("s_add_u32 s6, s6, s7")
    b("s_lshl_b32 s7, s9, 6")
    b("s_add_u32 s10, s6, s7")
    b(f"v_mul_u32_u24 v{V_ZO1}, {Z_G}, v{V_C}")
    b(f"v_lshl_add_u32 v{V_ZO1}, v{V_GQ}, 4, v{V_ZO1}")

def wd_setup(b):
    t = T
    E, X, STEP, K2 = V_G, V_G+1, V_G+2, V_G+3
    b(f"s_lshr_b32 s6, s{S_W}, 1")
    b(f"s_lshl_b32 s7, s{S_J}, 1")
    b("s_add_u32 s8, s6, s7")
    b(f"s_and_b32 s9, s{S_W}, 1")
    b("s_lshl_b32 s6, s8, 4")
    b("s_lshl_b32 s7, s9, 3")
    b("s_add_u32 s6, s6, s7")
    b(f"v_lshrrev_b32 v{t}, 1, v{V_C}")
    b(f"v_add_u32 v{t}, s6, v{t}")
    b(f"v_and_b32 v{t+1}, 1, v{V_C}")
    b(f"v_lshl_or_b32 v{t+2}, v{t}, 1, v{t+1}")
    b(f"v_mov_b32 v{t+3}, 224")
    b(f"v_cmp_eq_u32 vcc, 1, v{t+2}")
    b(f"v_mov_b32 v{t+4}, 0")
    b(f"v_cndmask_b32 v{t}, v{t}, v{t+3}, vcc")
    b(f"v_cndmask_b32 v{t+1}, v{t+1}, v{t+4}, vcc")
    b(f"v_cvt_f32_u32 v{t+5}, v{t+1}")
    b(f"v_mul_f32 v{t+5}, 0x3e800000, v{t+5}")
    b(f"v_cvt_f32_u32 v{E}, v{t}")
    b(f"v_mul_f32 v{E}, 0x3b124925, v{E}")
    b(f"v_mul_u32_u24 v{t+1}, 4682, v{t}")
    b(f"v_lshrrev_b32 v{t+1}, 16, v{t+1}")
    b(f"v_mul_u32_u24 v{t+1}, 14, v{t+1}")
    b(f"v_sub_u32 v{t+1}, v{t}, v{t+1}")
    b(f"v_cvt_f32_u32 v{STEP}, v{t+1}")
    b(f"v_mul_f32 v{STEP}, {fbits(1.0/14)}, v{STEP}")
    b(f"v_mul_u32_u24 v{t+1}, v{V_GQ}, v{t}")
    b(f"v_mul_u32_u24 v{t+2}, 1171, v{t+1}")
    b(f"v_lshrrev_b32 v{t+2}, 16, v{t+2}")
    b(f"v_mul_u32_u24 v{t+2}, 56, v{t+2}")
    b(f"v_sub_u32 v{t+1}, v{t+1}, v{t+2}")
    b(f"v_cvt_f32_u32 v{X}, v{t+1}")
    b(f"v_mul_f32 v{X}, {fbits(1.0/56)}, v{X}")
    b(f"v_cos_f32 v{K2}, v{E}")
    b(f"v_add_f32 v{X}, v{X}, v{t+5}")
    b(f"v_add_f32 v{K2}, v{K2}, v{K2}")

def wd_gen(b, hook=None):
    E, X, STEP, K2 = V_G, V_G+1, V_G+2, V_G+3
    C = [V_G + 4 + i for i in range(8)]
    X1 = V_G + 12
    for ks in range(14):
        b(f"v_cos_f32 v{C[0]}, v{X}")
        b(f"v_add_f32 v{X1}, v{X}, v{E}")
        b(f"v_cos_f32 v{C[1]}, v{X1}")
        if ks < 13:
            b(f"v_add_f32 v{X}, v{X}, v{STEP}")
            if not cfg.trim: b(f"v_fract_f32 v{X}, v{X}")
        else:
            b("s_nop 0")
        if ks > 0:
            c = "0" if ks == 1 else v(V_CS1, 4)
            b(f"{MF} {v(V_CS1,4)}, {v(V_ONE,4)}, {v(V_WD + 4*(ks-1),4)}, {c}")
        for n in range(2, 8):
            b(f"v_fma_f32 v{C[n]}, v{K2}, v{C[n-1]}, -v{C[n-2]}")
            if n % 2 == 1:
                b(f"v_cvt_pk_bf16_f32 v{V_WD + 4*ks + (n-3)//2}, v{C[n-3]}, v{C[n-2]}")
        b(f"v_cvt_pk_bf16_f32 v{V_WD + 4*ks + 3}, v{C[6]}, v{C[7]}")
        if hook: hook(ks)
    b("s_nop 0")
    b(f"{MF} {v(V_CS1,4)}, {v(V_ONE,4)}, {v(V_WD + 4*13,4)}, {v(V_CS1,4)}")

def f_gen(b):
    t = T
    S1, G, X, CO, SI, PK, AD = V_G, V_G+4, V_G+5, V_G+8, V_G+12, V_G+16, V_G+20
    b(f"s_lshl_b32 s6, s{S_W}, 4")
    b(f"v_lshl_add_u32 v{t}, v{V_GQ}, 2, s6")
    b(f"v_cvt_f32_u32 v{t}, v{t}")
    b(f"v_mul_f32 v{S1}, 0x3c800000, v{t}")
    for q in range(1, 4): b(f"v_add_f32 v{S1+q}, 0x3c800000, v{S1+q-1}")
    b(f"s_lshl_b32 s6, s{S_W}, 9")
    b(f"s_add_u32 s6, s6, {FX}")
    b(f"v_lshl_add_u32 v{AD}, v0, 3, s6")
    b(f"v_cvt_f32_u32 v{G}, v{V_C}")
    b(f"v_mov_b32 v{t+1}, 0xbc003c00")
    b(f"v_cmp_eq_u32 vcc, 0, v{V_C}")
    for gh in range(2):
        if gh: b(f"v_add_f32 v{G}, 0x41800000, v{G}")
        for q in range(4):
            b(f"v_mul_f32 v{X+(q&1)}, v{G}, v{S1+q}")
            b(f"v_cos_f32 v{CO+q}, v{X+(q&1)}")
            b(f"v_sin_f32 v{SI+q}, -v{X+(q&1)}")
        b(f"v_cvt_pk_f16_f32 v{PK}, v{CO}, v{CO+1}")
        b(f"v_cvt_pk_f16_f32 v{PK+1}, v{CO+2}, v{CO+3}")
        b(f"v_cvt_pk_f16_f32 v{PK+2}, v{SI}, v{SI+1}")
        b(f"v_cvt_pk_f16_f32 v{PK+3}, v{SI+2}, v{SI+3}")
        if gh == 0:
            b(f"v_cndmask_b32 v{PK+2}, v{PK+2}, v{t+1}, vcc")
            b(f"v_cndmask_b32 v{PK+3}, v{PK+3}, v{t+1}, vcc")
        b(f"ds_write_b64 v{AD}, {v(PK,2)} offset:{(gh*2+0)*2048}")
        b(f"ds_write_b64 v{AD}, {v(PK+2,2)} offset:{(gh*2+1)*2048}")

def fm_addr(b):
    for ls in range(4):
        rot(b, 6, ls, 9)
        b(f"s_add_u32 s6, s6, {FX}")
        b(f"v_lshl_add_u32 v{V_G+ls}, v0, 3, s6")
    for lt in range(4):
        b(f"s_lshl_b32 s6, s{S_TT+lt}, 12")
        b(f"s_add_u32 s6, s6, {MX}")
        b(f"v_add_u32 v{V_G+4+lt}, s6, v{V_L16}")

def f_read(b):
    out = []
    for ls in range(4):
        for gh in range(2):
            for sg in range(2):
                reg = V_F + ((gh*2 + sg)*2 + (ls >> 1))*4 + 2*(ls & 1)
                out.append(lambda reg=reg, ls=ls, o=(gh*2+sg)*2048: b(f"ds_read_b64 {v(reg,2)}, v{V_G+ls} offset:{o}", tag="f"))
    return out

def mreg(lt, ks, pq): return ((lt*2 + ks)*2 + pq)*4

def t0_of_tt(b, dst, tt_sreg):
    b(f"s_sub_u32 s{dst}, 64, s{S_IDX}")
    b(f"s_cmp_eq_u32 s{S_IDX}, 0")
    b(f"s_cselect_b32 s{dst}, 32, s{dst}")
    b(f"s_cmp_lt_u32 s{tt_sreg}, 2")
    b(f"s_cselect_b32 s{dst}, s{S_IDX}, s{dst}")
    b(f"s_and_b32 s9, s{tt_sreg}, 1")
    b("s_lshl_b32 s9, s9, 10")
    b(f"s_add_u32 s{dst}, s{dst}, s9")

def m_gen(b):
    t = T
    X, DX, CO, SI, PK, P, Q, AD = V_G, V_G+1, V_G+2, V_G+3, V_G+4, V_G+8, V_G+12, V_G+16
    t0_of_tt(b, 8, S_W)
    b(f"v_lshl_add_u32 v{t}, v{V_C}, 6, s8")
    b(f"v_cvt_f32_u32 v{DX}, v{t}")
    b(f"v_mul_f32 v{DX}, 0x3a000000, v{DX}")
    selP = [0x03020100, 0x03020100, 0x0c0c0100, 0x01000c0c]
    selQ = [0x01000302, 0x01000302, 0x0c0c0302, 0x03020c0c]
    sgnQ = [0x80000000, 0x00008000, 0, 0]
    neg = [0, 0x80000000, 0, 0]
    def pick(dst, tbl):
        b(f"s_cmp_lt_u32 s{S_W}, 2")
        b(f"s_cselect_b32 s9, {hex(tbl[0])}, 0") if False else None
        b(f"s_mov_b32 s9, {hex(tbl[0])}"); b(f"s_mov_b32 s12, {hex(tbl[1])}")
        b("s_cselect_b32 s9, s9, s12")
        b(f"s_mov_b32 s13, {hex(tbl[2])}"); b(f"s_mov_b32 s12, {hex(tbl[3])}")
        b("s_cselect_b32 s13, s13, s12")
        b(f"s_cmp_eq_u32 s{S_IDX}, 0")
        b(f"s_cselect_b32 s{dst}, s13, s9")
    pick(S_TMP, selP); pick(S_TMP+1, selQ); pick(S_TMP+2, sgnQ); pick(S_TMP+3, neg)
    b(f"v_xor_b32 v{DX}, s{S_TMP+3}, v{DX}")
    b(f"s_lshl_b32 s6, s{S_W}, 12")
    b(f"s_add_u32 s6, s6, {MX}")
    b(f"v_add_u32 v{AD}, s6, v{V_L16}")
    b(f"v_lshlrev_b32 v{t}, 2, v{V_GQ}")
    b(f"v_cvt_f32_u32 v{t}, v{t}")
    for ks in range(2):
        if ks: b(f"v_add_f32 v{t}, 0x41800000, v{t}")
        b(f"v_mul_f32 v{X}, v{t}, v{DX}")
        for j in range(4):
            b(f"v_cos_f32 v{CO}, v{X}")
            b(f"v_sin_f32 v{SI}, v{X}")
            b(f"v_add_f32 v{X}, v{X}, v{DX}")
            b(f"v_cvt_pk_f16_f32 v{PK}, v{CO}, v{SI}")
            b(f"v_perm_b32 v{P+j}, v{PK}, v{PK}, s{S_TMP}")
            b(f"v_perm_b32 v{Q+j}, v{PK}, v{PK}, s{S_TMP+1}")
            b(f"v_xor_b32 v{Q+j}, s{S_TMP+2}, v{Q+j}")
        b(f"ds_write_b128 v{AD}, {v(P,4)} offset:{(ks*2+0)*1024}")
        b(f"ds_write_b128 v{AD}, {v(Q,4)} offset:{(ks*2+1)*1024}")

def m_read(b):
    out = []
    for lt in range(4):
        for ks in range(2):
            for pq in range(2):
                out.append(lambda lt=lt, ks=ks, pq=pq: b(f"ds_read_b128 {a(mreg(lt,ks,pq),4)}, v{V_G+4+lt} offset:{(ks*2+pq)*1024}", tag="m"))
    return out

def prefill_start(b):
    for r in range(4): b(f"v_mov_b32 v{V_NEG+r}, -1")
    b(f"s_add_u32 s7, s10, {16*Z_G}")
    b(f"buffer_store_dwordx4 {v(V_NEG,4)}, v{V_ZO1}, s[{R_WS}:{R_WS+3}], s10 offen sc1", tag="pre")
    b(f"buffer_store_dwordx4 {v(V_NEG,4)}, v{V_ZO1}, s[{R_WS}:{R_WS+3}], s7 offen sc1", tag="pre")
    own_line(b, 6)
    b(f"v_mov_b32 v{T}, 0")
    b("s_mov_b64 exec, 1")
    b(f"buffer_store_dword v{T}, v{T}, s[{R_WS}:{R_WS+3}], s6 offen sc1", tag="pre")
    b("s_mov_b64 exec, -1")

def arrive0(b):
    lab = b.newlabel("L_arr")
    b.notrack = True
    b(f"s_cmp_eq_u32 s{S_W}, 0")
    b(f"s_cbranch_scc0 {lab}")
    b("s_and_b32 s6, s2, 3")
    b("s_lshl_b32 s6, s6, 6")
    b(f"v_mov_b32 v{T}, 1")
    b(f"v_mov_b32 v{T+1}, 0")
    b("s_mov_b64 exec, 1")
    b(f"buffer_atomic_add v{T}, v{T+1}, s[{R_DBG}:{R_DBG+3}], s6 offen sc1")
    b("s_mov_b64 exec, -1")
    b.label(lab)
    b.notrack = False

V_B0 = 229 + 25
def b0_load(b, reg):
    b(f"v_and_b32 v{reg}, 3, v0")
    b(f"v_lshlrev_b32 v{reg}, 6, v{reg}")
    b(f"buffer_load_dword v{reg}, v{reg}, s[{R_DBG}:{R_DBG+3}], 0 offen sc1", tag="b0")

def b0_check(b, reg):
    b.wait_vm("b0")
    l2 = b.newlabel("L_b0"); l3 = b.newlabel("L_b0d")
    b("s_mov_b32 s12, 0")
    b.label(l2)
    b.notrack = True
    b(f"v_cmp_gt_u32 vcc, 63, v{reg}")
    b("s_cmp_eq_u64 vcc, 0")
    b(f"s_cbranch_scc1 {l3}")
    b("s_add_u32 s12, s12, 1")
    b("s_cmp_ge_u32 s12, 0x10000")
    b(f"s_cbranch_scc1 {l3}")
    b(f"v_and_b32 v{reg}, 3, v0")
    b(f"v_lshlrev_b32 v{reg}, 6, v{reg}")
    b(f"buffer_load_dword v{reg}, v{reg}, s[{R_DBG}:{R_DBG+3}], 0 offen sc1")
    b("s_waitcnt vmcnt(0)")
    b(f"s_branch {l2}")
    b.label(l3)
    b.notrack = False

def guarded(b, regs, reload, name):
    t0 = V_GT
    n = len(regs)
    def tree():
        b(f"v_max3_u32 v{t0}, v{regs[0]}, v{regs[1]}, v{regs[2]}")
        i = 3
        while i + 1 < n:
            b(f"v_max3_u32 v{t0}, v{t0}, v{regs[i]}, v{regs[i+1]}"); i += 2
        if i < n: b(f"v_max_u32 v{t0}, v{t0}, v{regs[i]}")
        b(f"v_cmp_eq_u32 vcc, -1, v{t0}")
        b("s_cmp_eq_u64 vcc, 0")
    slow = b.newlabel("L_slow"); back = b.newlabel("L_back")
    if cfg.x_noguard: return
    tree()
    b(f"s_cbranch_scc0 {slow}")
    b.label(back)
    b.slow.append((slow, back, reload, tree))

def emit_slow(b):
    for (slow, back, reload, tree) in b.slow:
        loop = b.newlabel("L_sl")
        b.label(slow)
        b.notrack = True
        b("s_mov_b32 s12, 0")
        b.label(loop)
        if cfg.count_slow: b(f"s_add_u32 s98, s98, {1 << (4*min(b.slow.index((slow, back, reload, tree)), 7))}") if b.slow.index((slow, back, reload, tree)) < 8 else b("s_add_u32 s99, s99, " + str(1 << (4*(b.slow.index((slow, back, reload, tree)) - 8))))
        reload()
        b("s_waitcnt vmcnt(0)")
        tree()
        b(f"s_cbranch_scc1 {back}")
        b("s_add_u32 s12, s12, 1")
        b("s_cmp_lt_u32 s12, 0x4000")
        b(f"s_cbranch_scc1 {loop}")
        b(f"s_branch {back}")
        b.notrack = False

def w_prefetch(b):
    b("s_mul_i32 s6, s2, 7168")
    b(f"s_lshl_b32 s7, s{S_W}, 10")
    b("s_add_u32 s6, s6, s7")
    b("s_add_u32 s7, s6, 4096")
    for n in range(2):
        b(f"buffer_load_dwordx4 {a(A_PF + 8*n, 4)}, v{V_L16}, s[{R_W1}:{R_W1+3}], s{6+n} offen", tag="pf")
        b(f"buffer_load_dwordx4 {a(A_PF + 8*n + 4, 4)}, v{V_L16}, s[{R_W2}:{R_W2+3}], s{6+n} offen", tag="pf")

def touch_xres(b):
    b(f"v_mul_u32_u24 v{T}, 57344, v{V_C}")
    b(f"s_lshl_b32 s6, s{S_J}, 7")
    b(f"s_add_u32 s6, s6, s{S_XR}")
    b("s_mov_b64 exec, 0xffff")
    b(f"buffer_load_dword {a(254)}, v{T}, s[{R_X}:{R_X+3}], s6 offen", tag="tch")
    b("s_mov_b64 exec, -1")

V_TW1, V_TW2 = 8, 9
def touch_w_setup(b):
    b(f"v_lshrrev_b32 v{V_TW1}, 2, v0")
    b(f"v_mul_u32_u24 v{V_TW1}, 3584, v{V_TW1}")
    b(f"v_and_b32 v{V_TW2}, 3, v0")
    b(f"v_lshl_add_u32 v{V_TW1}, v{V_TW2}, 7, v{V_TW1}")
    b(f"v_lshlrev_b32 v{V_TW2}, 7, v0")
    b(f"s_lshr_b32 s6, s{S_IDX}, 3")
    b("s_mul_i32 s7, s6, 112")
    b(f"s_lshl_b32 s8, s{S_W}, 4")
    b("s_add_u32 s7, s7, s8")
    b("s_mul_i32 s7, s7, 3584")
    b(f"s_lshl_b32 s8, s{S_J}, 9")
    b("s_add_u32 s12, s7, s8")
    b("s_mul_i32 s7, s6, 448")
    b(f"s_lshl_b32 s8, s{S_W}, 6")
    b("s_add_u32 s7, s7, s8")
    b("s_lshl_b32 s7, s7, 7")
    b(f"s_mul_i32 s8, s{S_J}, 229376")
    b("s_add_u32 s13, s7, s8")
def touch_w_list(b):
    out = []
    for n in range(2):
        def f1(n=n):
            if n: b(f"s_add_u32 s12, s12, {64*3584}")
            b(f"buffer_load_dword {a(253)}, v{V_TW1}, s[{R_W1}:{R_W1+3}], s12 offen", tag="tch")
        out.append(f1)
    for n in range(2):
        def f2(n=n):
            if n: b(f"s_add_u32 s13, s13, {256*128}")
            b(f"buffer_load_dword {a(252)}, v{V_TW2}, s[{R_W2}:{R_W2+3}], s13 offen", tag="tch")
        out.append(f2)
    return out

def own_line(b, dst):
    b(f"s_mul_i32 s{dst}, s{S_IDX}, 7")
    b(f"s_add_u32 s{dst}, s{dst}, s{S_J}")
    b(f"s_lshl_b32 s{dst}, s{dst}, 2")
    b(f"s_add_u32 s{dst}, s{dst}, s{S_W}")
    b(f"s_lshl_b32 s{dst}, s{dst}, 7")
    b(f"s_add_u32 s{dst}, s{dst}, {WS_FL}")

def p2_scalars(b):
    b(f"s_and_b32 s6, s{S_W}, 1")
    b("s_lshl_b32 s7, s6, 1")
    for lt in range(4): b(f"s_xor_b32 s{S_TT+lt}, s7, {lt}")
    b(f"s_lshr_b32 s7, s{S_W}, 1")
    b("s_mul_i32 s7, s7, 7")
    b("s_lshl_b32 s9, s6, 2")
    b("s_add_u32 s9, s9, s7")
    b(f"s_mov_b32 s{S_PI}, s9")
    for p in range(1, 3): b(f"s_add_u32 s{S_PI+p}, s9, {p}")
    b(f"s_add_u32 s{S_PI+3}, s7, 3")
    b(f"s_mul_i32 s7, s{S_IDX}, {Z_G}")
    for p in range(4):
        b(f"s_lshl_b32 s8, s{S_PI+p}, 12")
        b(f"s_add_u32 s{S_ZL+p}, s7, s8")
        b(f"s_lshl_b32 s{S_P32+p}, s{S_PI+p}, 5")
    b(f"s_cmp_eq_u32 s{S_W}, 0")
    b(f"s_cselect_b32 s{S_MASK}, 0xffff, 0")
    b(f"s_mov_b32 s{S_MASK+1}, 0")
    b(f"s_mul_i32 s{S_RW}, s{S_W}, 24576")
    b(f"s_add_u32 s{S_RW}, s{S_RW}, {RING}")
    b(f"s_lshl_b32 s7, s{S_J}, 9")
    b(f"s_lshl_b32 s9, s{S_W}, 7")
    b(f"s_add_u32 s{S_W1B}, s7, s9")
    b(f"s_mov_b32 s{S_Z0}, s10")
    b(f"s_add_u32 s{S_Z1}, s10, {16*Z_G}")
    t0_of_tt(b, 8, S_W)
    b(f"s_mul_i32 s{S_XR}, s8, 896")

def inbox_scalars(b):
    b(f"s_mul_i32 s11, s{S_IDX}, {PB_G}")
    b(f"s_lshl_b32 s7, s{S_W}, 11")
    b("s_add_u32 s11, s11, s7")
    b(f"s_add_u32 s11, s11, {WS_PB}")
    b(f"s_lshl_b32 s13, s{S_J}, 13")
    b("s_add_u32 s13, s13, s11")
    for p in range(6):
        b(f"s_add_u32 s6, s{S_J}, {p+1}")
        b("s_sub_u32 s7, s6, 7")
        b("s_min_u32 s6, s6, s7")
        b(f"s_mul_i32 s7, s6, {7*8192}")
        b(f"s_add_u32 s{S_IN+p}, s13, s7")

def p2_scalars_late(b):
    b(f"s_lshl_b32 s{S_HWB}, s{S_W}, 13")
    b(f"s_lshl_b32 s6, s{S_J}, 8")
    b(f"s_lshl_b32 s7, s{S_W}, 6")
    b("s_add_u32 s6, s6, s7")
    b("s_mul_i32 s10, s6, 896")
    b(f"s_mul_i32 s11, s{S_IDX}, {PB_G}")
    b(f"s_lshl_b32 s7, s{S_W}, 11")
    b("s_add_u32 s11, s11, s7")
    b(f"s_add_u32 s11, s11, {WS_PB}")
    b(f"s_mul_i32 s12, s{S_J}, {7*8192}")
    b("s_add_u32 s12, s12, s11")
    for p in range(7):
        b(f"s_add_u32 s6, s{S_J}, {p+1}")
        b("s_sub_u32 s7, s6, 7")
        b("s_min_u32 s6, s6, s7")
        b("s_lshl_b32 s7, s6, 7")
        b(f"s_add_u32 s{S_W2+p}, s10, s7")
        if p < 6:
            b("s_lshl_b32 s7, s6, 13")
            b(f"s_add_u32 s{S_PB+p}, s12, s7")
    b(f"s_lshl_b32 s10, s{S_J}, 7")
    b(f"s_lshl_b32 s7, s{S_W}, 5")
    b("s_add_u32 s10, s10, s7")
    b(f"s_sub_u32 s8, 64, s{S_IDX}")
    b(f"s_cmp_eq_u32 s{S_IDX}, 0")
    b("s_cselect_b32 s8, 32, s8")
    for tt in range(4):
        src = f"s{S_IDX}" if tt < 2 else "s8"
        b(f"s_add_u32 s6, {src}, {1024*(tt&1)}")
        b("s_mul_i32 s6, s6, 896")
        b(f"s_add_u32 s{S_O+tt}, s6, s10")

def dma_addr(b):
    t = T
    b(f"v_lshrrev_b32 v{t}, 3, v0")
    b(f"v_bfe_u32 v{t+1}, v{t}, 1, 2")
    b(f"v_lshlrev_b32 v{t+1}, 1, v{t+1}")
    b(f"v_and_b32 v{t+2}, 7, v0")
    b(f"v_xor_b32 v{t+2}, v{t+2}, v{t+1}")
    b(f"v_lshlrev_b32 v{t+2}, 4, v{t+2}")
    b(f"v_mul_u32_u24 v{t+1}, 3584, v{t}")
    b(f"v_add_u32 v{V_W1O}, v{t+1}, v{t+2}")
    b(f"v_add_u32 v{V_W1O+1}, {8*3584 - 1024}, v{V_W1O}")
    b(f"v_sub_u32 v{t+3}, v{t+2}, v{t+1}")
    b(f"v_add_u32 v{V_W1O+2}, {15*3584 - 2048 + 4096}, v{t+3}")
    b(f"v_add_u32 v{V_W1O+3}, {7*3584 - 3072 + 4096}, v{t+3}")
    b(f"v_sub_u32 v{t+3}, 448, v{t}")
    b(f"v_mov_b32 v{t+4}, 224")
    b(f"v_cmp_eq_u32 vcc, 0, v{t}")
    b(f"v_mul_u32_u24 v{t+1}, 896, v{t}")
    b(f"v_cndmask_b32 v{t+3}, v{t+3}, v{t+4}, vcc")
    b(f"v_mul_u32_u24 v{t+3}, 3584, v{t+3}")
    b(f"v_add_u32 v{t+3}, v{t+3}, v{t+2}")
    b(f"v_subrev_u32 v{V_AUX}, 2048, v{t+3}")
    b(f"v_add_u32 v{V_W2O}, v{t+1}, v{t+2}")
    for n in range(1, 4):
        b(f"v_add_u32 v{V_W2O+n}, {n*(8*896 - 1024)}, v{V_W2O}")
    b(f"v_mul_u32_u24 v{t}, {XRS}, v{V_C}")
    b(f"v_lshl_add_u32 v{t}, v{V_GQ}, 4, v{t}")
    for lt in range(4):
        b(f"s_mul_i32 s6, s{S_TT+lt}, {16*XRS}")
        b(f"v_add_u32 v{V_XA+lt}, s6, v{t}")
    b(f"v_lshlrev_b32 v{t}, 3, v{V_GQ}")
    b(f"v_sub_u32 v{t+1}, v{V_C}, v{t}")
    b(f"v_sub_u32 v{t+2}, 16, v{V_C}")
    b(f"v_sub_u32 v{t+2}, v{t+2}, v{t}")
    b(f"v_mov_b32 v{t+3}, 0x3f80")
    b(f"v_mov_b32 v{t+4}, 0x3f800000")
    b(f"v_mov_b32 v{t+5}, 0")
    for (dst, src) in ((V_SEL1, t+1), (V_SEL2, t+2)):
        for m in range(4):
            b(f"v_cmp_eq_u32 vcc, {2*m}, v{src}")
            b(f"v_cmp_eq_u32 s[6:7], {2*m+1}, v{src}")
            b(f"v_cndmask_b32 v{dst+m}, v{t+5}, v{t+3}, vcc")
            b(f"v_cndmask_b32 v{dst+m}, v{dst+m}, v{t+4}, s[6:7]")
    for m in range(4):
        b(f"v_xor_b32 v{V_NSEL2+m}, 0x80008000, v{V_SEL2+m}")


def p2_addr(b):
    t = T
    for p in range(4): b(f"s_sub_u32 s{S_N32+p}, 864, s{S_P32+p}")
    b(f"v_lshlrev_b32 v{t}, 3, v{V_C}")
    b(f"v_lshl_add_u32 v{V_ZO}, v{V_GQ}, 9, v{t}")
    b(f"s_lshl_b32 s7, s{S_PI}, 12")
    b(f"s_lshl_b32 s8, s{S_PI+3}, 12")
    for lt in range(4):
        b(f"s_lshl_b32 s6, s{S_TT+lt}, 10")
        b("s_add_u32 s9, s6, s7")
        b(f"v_add_u32 v{V_HW+lt}, s9, v{V_L16}")
        if lt < 2:
            b("s_add_u32 s9, s6, s8")
            b(f"v_add_u32 v{V_HWS+lt}, s9, v{V_L16}")
        rot(b, 6, lt, 10)
        b(f"v_add_u32 v{V_HB+lt}, s6, v{V_L16}")
    b(f"v_lshrrev_b32 v{t}, 2, v{V_C}")
    b(f"v_lshl_add_u32 v{t}, v{V_GQ}, 2, v{t}")
    b(f"v_bfe_u32 v{t+1}, v{t}, 1, 2")
    b(f"v_and_b32 v{t+2}, 3, v0")
    b(f"v_lshlrev_b32 v{t+2}, 3, v{t+2}")
    b(f"v_lshl_add_u32 v{t+2}, v{t}, 7, v{t+2}")
    b(f"v_add_u32 v{t+4}, s{S_RW}, v{t+2}")
    for u in range(4):
        b(f"v_xor_b32 v{t+3}, {u}, v{t+1}")
        b(f"v_lshl_add_u32 v{V_TR1+u}, v{t+3}, 5, v{t+4}")
    b(f"v_xor_b32 v{t+3}, s{S_W}, v{t+1}")
    b(f"v_lshl_add_u32 v{t+3}, v{t+3}, 5, v{t+2}")
    b(f"v_add_u32 v{V_TR2}, {RING}, v{t+3}")
    b(f"v_add_u32 v{V_TR2+1}, {RING+49152}, v{t+3}")
    b(f"v_mov_b32 v{V_TR2H}, v{t+3}")

def hres_addr(b):
    t = T
    b(f"s_lshl_b32 s6, s{S_J}, 6")
    b(f"s_lshl_b32 s7, s{S_W}, 4")
    b("s_add_u32 s6, s6, s7")
    b(f"v_lshl_add_u32 v{t+4}, v{V_GQ}, 2, s6")
    b("s_lshl_b32 s6, s6, 8")
    b(f"v_add_u32 v{t+5}, s6, v{V_L16}")
    for r in range(4):
        A = V_HA + r
        b(f"v_add_u32 v{t}, {r}, v{t+4}") if r else b(f"v_mov_b32 v{t}, v{t+4}")
        b(f"v_sub_u32 v{t+2}, 448, v{t}")
        b(f"v_mov_b32 v{t+3}, 0")
        b(f"v_cmp_eq_u32 vcc, 224, v{t}")
        b(f"v_add_u32 v{t+1}, {2*r}, v{t+5}")
        b(f"v_cndmask_b32 v{t+2}, v{t+2}, v{t+3}, vcc")
        b(f"v_lshrrev_b32 v{t+3}, 4, v{t+2}")
        b(f"v_lshlrev_b32 v{A}, 12, v{t+3}")
        b(f"v_bfe_u32 v{t+3}, v{t+2}, 2, 2")
        b(f"v_lshl_add_u32 v{t+3}, v{t+3}, 4, v{V_C}")
        b(f"v_lshl_add_u32 v{A}, v{t+3}, 4, v{A}")
        b(f"v_and_b32 v{t+3}, 3, v{t+2}")
        b(f"v_lshl_add_u32 v{A}, v{t+3}, 1, v{A}")
        b(f"v_cmp_gt_u32 vcc, 224, v{t}")
        b(f"v_add_u32 v{A}, 8, v{A}")
        b(f"v_cndmask_b32 v{A}, v{A}, v{t+1}, vcc")

def p1_loop(b):
    stages = cfg.stages
    XBUF = [V_XF, V_XF + 16, V_G + 8]
    def xread(ks):
        ksp, par = ks >> 1, ks & 1
        return [(lambda ls=ls: b(f"ds_read_b128 {v(XBUF[ks % 3] + 4*ls, 4)}, v{V_XB + 2*ls + par} offset:{XL + ksp*8192}", tag=f"xf{ks}")) for ls in range(4)]
    pbp = pb_prefill(b) if (cfg.pre_at == "loop" and not cfg.x_nopre) else []
    rg = []
    for k in range(cfg.ring_early): rg += w1_groups(b, k)
    wk = (record(p2_addr) + record(dma_addr)) if cfg.addr_in_loop else []
    tw = touch_w_list(b) if cfg.touch_w else []
    for si, stg in enumerate(stages):
        b.wait_vm([f"x{stg[-1]}", "pre"])
        if si == 0 or (si == len(stages) - 1 and cfg.ring_early): b("s_waitcnt lgkmcnt(0)")
        b("s_barrier")
        if si == 0 and cfg.early_arrive is None: arrive0(b)
        stamp(b, 3 + si)
        kss = [k for p in stg for k in (2*p, 2*p+1)]
        for f in xread(kss[0]) + xread(kss[1]): f()
        if si == 0:
            fm = f_read(b) + ([] if cfg.m_late else m_read(b))
        for n, ks in enumerate(kss):
            nxt = kss[n+2] if n + 2 < len(kss) else None
            b.wait_lg(f"xf{ks}")
            xf = XBUF[ks % 3]
            wd = v(V_WD + 4*ks, 4)
            z = ks == 0
            mf = [f"{MF} {v(V_QQ,4)}, {v(xf,4)}, {v(xf,4)}, {'0' if z else v(V_QQ,4)}",
                  f"{MF} {v(V_SS,4)}, {v(V_ONE,4)}, {v(xf,4)}, {'0' if z else v(V_SS,4)}"]
            for ls in range(4):
                mf.append(f"{MF} {v(V_ACC + 4*ls, 4)}, {v(xf + 4*ls, 4)}, {wd}, {'0' if z else v(V_ACC + 4*ls, 4)}")
            fill = xread(nxt) if nxt is not None else []
            nf = 2 if cfg.m_late else 6
            fill = fill + fm[:nf]; fm = fm[nf:]
            if ks >= 2 and pbp: fill.append(pbp.pop(0))
            if tw and ks % 3 == 1: fill.append(tw.pop(0))
            if wk:
                nw = (len(wk) + 13 - ks) // (14 - ks)
                sched(b, mf, first=fill, misc=wk[:nw], cap=3); wk = wk[nw:]
            elif ks >= 8 and rg:
                n = (len(rg) + 13 - ks) // (14 - ks)
                sched(b, mf, first=fill, vm=rg[:n], cap=3); rg = rg[n:]
            else:
                weave(b, mf, fill, per=2)

def stats_core(b, SS, QQ, scale4):
    b(f"v_cndmask_b32 v{QQ}, v{QQ}, v{QQ+1}, s[{S_M1}:{S_M1+1}]")
    b(f"v_mul_f32 v{SS}, 0x3b124925, v{SS}")
    b(f"v_cndmask_b32 v{QQ}, v{QQ}, v{QQ+2}, s[{S_M1+2}:{S_M1+3}]")
    b(f"v_cndmask_b32 v{QQ}, v{QQ}, v{QQ+3}, s[{S_M1+4}:{S_M1+5}]")
    b(f"v_mul_f32 v{QQ}, 0x3b124925, v{QQ}")
    b(f"v_fma_f32 v{QQ}, -v{SS}, v{SS}, v{QQ}")
    b(f"v_max_f32 v{QQ}, 0, v{QQ}")
    if scale4:
        b(f"v_mul_f32 v{QQ}, 0x3e800000, v{QQ}")
    b(f"v_add_f32 v{QQ}, 0x3727c5ac, v{QQ}")
    b(f"v_rsq_f32 v{QQ}, v{QQ}")

def p1_tail(b, xl=None):
    t = T
    xl = xl if xl is not None else []
    def X():
        if xl: xl.pop(0)()
    stamp(b, 6)
    stats_core(b, V_SS, V_QQ, False)
    b(f"s_lshl_b32 s6, s{S_W}, 6")
    b(f"s_add_u32 s6, s6, {STAT}")
    b(f"v_lshl_add_u32 v{t}, v{V_C}, 2, s6")
    b(f"v_mul_f32 v{V_SS}, v{V_QQ}, v{V_SS}")
    b(f"v_add_f32 v{V_QQ}, v{V_QQ}, v{V_QQ}")
    b(f"v_mul_f32 v{V_SS}, -2.0, v{V_SS}")
    b(f"s_mov_b64 exec, s[{S_DIAG}:{S_DIAG+1}]")
    b(f"ds_write_b32 v{t}, v{V_QQ}")
    b(f"ds_write_b32 v{t}, v{V_SS} offset:256")
    b("s_mov_b64 exec, -1")
    b("s_waitcnt lgkmcnt(0)")
    b("s_barrier")
    for ls in range(4):
        b(f"ds_read_b128 {v(V_AB + 8*ls, 4)}, v{V_SA + ls}", tag=f"ab{ls}")
        b(f"ds_read_b128 {v(V_AB + 8*ls + 4, 4)}, v{V_SA + ls} offset:256", tag=f"ab{ls}")
    if xl:
        b(f"s_mul_i32 s96, s{S_W}, {16*XRS}")
    X()
    for ls in range(4):
        b.wait_lg(f"ab{ls}")
        al, be, ac = V_AB + 8*ls, V_AB + 8*ls + 4, V_ACC + 4*ls
        for h in range(2):
            b(f"v_pk_mul_f32 {v(be+2*h,2)}, {v(be+2*h,2)}, {v(V_CS1,2)} op_sel_hi:[1,0]")
        for h in range(2):
            b(f"v_pk_fma_f32 {v(ac+2*h,2)}, {v(al+2*h,2)}, {v(ac+2*h,2)}, {v(be+2*h,2)}")
        for h in range(2):
            b(f"v_cvt_pk_f16_f32 v{V_A + 2*ls + h}, v{ac+2*h}, v{ac+2*h+1}")
        if ls in (1, 3): X()
    stamp(b, 7)
    for gh in range(2):
        for sg in range(2):
            d = V_D2 + (gh*2 + sg)*4
            b(f"{MH} {v(d,4)}, {v(V_A,4)}, {v(V_F + ((gh*2+sg)*2)*4,4)}, 0")
    for gh in range(2):
        for sg in range(2):
            d = V_D2 + (gh*2 + sg)*4
            b(f"{MH} {v(d,4)}, {v(V_A+4,4)}, {v(V_F + ((gh*2+sg)*2+1)*4,4)}, {v(d,4)}")
    X()
    for gh in range(2):
        for r in range(4):
            b(f"v_cvt_pk_f16_f32 v{V_ZP + 4*gh + r}, v{V_D2 + (gh*2)*4 + r}, v{V_D2 + (gh*2+1)*4 + r}")
        b(f"buffer_store_dwordx4 {v(V_ZP + 4*gh, 4)}, v{V_ZO1}, s[{R_WS}:{R_WS+3}], s{S_Z0+gh} offen sc1", tag="zst")

def xres_pad(b):
    b(f"s_mul_i32 s96, s{S_W}, {16*XRS}")
    b(f"v_lshrrev_b32 v{T}, 1, v0")
    b(f"v_mul_u32_u24 v{T}, {XRS}, v{T}")
    b(f"v_and_b32 v{T+1}, 1, v0")
    b(f"v_lshl_add_u32 v{T}, v{T+1}, 4, v{T}")
    b(f"v_add_u32 v{T}, s96, v{T}")
    for r in range(4): b(f"v_mov_b32 v{T+4+r}, 0")
    b("s_mov_b32 exec_hi, 0")
    b(f"ds_write_b128 v{T}, {v(T+4,4)} offset:{XL+896}")
    b("s_mov_b32 exec_hi, -1")

def xres_list(b):
    out = []
    for c in range(16):
        def f(c=c):
            if cfg.xres_rot:
                b(f"s_lshl_b32 s12, s{S_J}, 1")
                b(f"s_add_u32 s12, s12, {c}")
                b("s_and_b32 s12, s12, 15")
                b(f"s_mul_i32 s13, s12, {XRS}")
                b("s_add_u32 s13, s13, s96")
                b(f"s_add_u32 m0, s13, {XL}") if XL else b("s_mov_b32 m0, s13")
                b("s_mul_i32 s12, s12, 57344")
                b(f"s_add_u32 s95, s{S_XR}, s12")
            else:
                b(f"s_add_u32 m0, s96, {XL + c*XRS}")
                b(f"s_add_u32 s95, s{S_XR}, {c*57344}")
            if not cfg.x_noexec: b("s_mov_b32 exec_hi, 0x00ffffff")
            b(f"buffer_load_dwordx4 v{V_L16}, s[{R_X}:{R_X+3}], s95 offen lds", tag="xres")
            if not cfg.x_noexec: b("s_mov_b32 exec_hi, -1")
        out.append(f)
    return out

def w1_groups(b, k):
    slot = k % 6
    out = []
    for n in range(4):
        pre = []
        if n == 0:
            pre = [f"s_add_u32 m0, s{S_RW}, {slot*4096}", (f"s_add_u32 s95, s{S_W1B}, {16*k*3584}" if k else f"s_mov_b32 s95, s{S_W1B}")]
        if n == 2 and not k == 0: pre = [f"s_add_u32 s96, s{S_W1B}, {(433 - 16*k)*3584 - 4096}"]
        if n == 3 and k == 0: pre = [f"s_add_u32 s96, s{S_W1B}, {(433 - 16*k)*3584 - 4096}"]
        def f(n=n):
            if n < 2: vo, so = V_W1O + n, "s95"
            elif k == 0 and n == 2: vo, so = V_AUX, f"s{S_W1B}"
            else: vo, so = V_W1O + n, "s96"
            off = f" offset:{1024*n}" if n else ""
            b(f"buffer_load_dwordx4 v{vo}, s[{R_W1}:{R_W1+3}], {so} offen{off} lds", tag=f"w1_{k}")
        out.append((pre, f))
    return out

def flat(gs):
    out = []
    for pre, op in gs: out += list(pre) + [op]
    return out
def w1_dma(b, k): return flat(w1_groups(b, k))

def units():
    return [(p, lt) for lt in range(4) for p in range(4) if not (p == 3 and lt >= 2)]
def preg(p, lt): return V_P + (p*4 + lt)*4 if p < 3 else V_PS + lt*4
def qreg(p, lt): return V_Q + (p*4 + lt)*4 if p < 3 else V_QS + lt*4

A_W = 64
def x_init(b, extra=()):
    us = units()
    AD = T
    def rd(i):
        p, lt = us[i]; w = A_W + 8*(i & 3)
        return [f"v_add_u32 v{AD + 2*(i&1)}, s{S_P32+p}, v{V_XA+lt}",
                f"v_add_u32 v{AD + 2*(i&1) + 1}, s{S_N32+p}, v{V_XA+lt}",
                lambda: b(f"ds_read_b128 {a(w,4)}, v{AD + 2*(i&1)} offset:{XL}", tag=f"xw{i}"),
                lambda: b(f"ds_read_b128 {a(w+4,4)}, v{AD + 2*(i&1) + 1} offset:{XL}", tag=f"xw{i}")]
    for lt in range(4):
        b(f"ds_read_b32 v{V_E + 4*lt}, v{V_XA+lt} offset:{XL+448}", tag="xe")
    for i in range(3):
        for f in rd(i): emit(b, f)
    extra = list(extra)
    for i, (p, lt) in enumerate(us):
        b.wait_lg(f"xw{i}")
        w = A_W + 8*(i & 3); P, Q = preg(p, lt), qreg(p, lt)
        mf = [f"{MF} {v(P,4)}, {v(V_SEL1,4)}, {a(w,4)}, 0",
              f"{MF} {v(Q,4)}, {v(V_SEL1,4)}, {a(w,4)}, 0",
              f"{MF} {v(P,4)}, {v(V_SEL2,4)}, {a(w+4,4)}, {v(P,4)}",
              f"{MF} {v(Q,4)}, {v(V_NSEL2,4)}, {a(w+4,4)}, {v(Q,4)}"]
        fill = rd(i+3) if i + 3 < len(us) else []
        ne = (len(extra) + len(us) - i - 1) // (len(us) - i)
        fill = extra[:ne] + fill; extra = extra[ne:]
        weave(b, mf, fill, per=2)
    b("s_nop 7")
    b(f"v_mov_b32 v{T+1}, 0")
    for lt in range(4):
        P, Q, E = preg(0, lt), qreg(0, lt), V_E + 4*lt
        b(f"v_add_f32 v{T}, v{P}, v{P}")
        b(f"v_cndmask_b32 v{Q}, v{Q}, v{T+1}, s[{S_MASK}:{S_MASK+1}]")
        b(f"v_cndmask_b32 v{P}, v{P}, v{T}, s[{S_MASK}:{S_MASK+1}]")
        b(f"v_lshlrev_b32 v{E}, 16, v{E}")
        b(f"v_add_f32 v{E}, v{E}, v{E}")

def z_load(b, p):
    for ks in range(2):
        for j in range(4):
            reg = V_Z + (p*2 + ks)*8 + 2*j
            b(f"buffer_load_dwordx2 {v(reg,2)}, v{V_ZO}, s[{R_WS}:{R_WS+3}], s{S_ZL+p} offen offset:{ks*2048 + j*128} sc1", tag=f"z{p}_{ks}")
def z_list(b):
    out = []
    if cfg.x_z4:
        b(f"v_and_b32 v{T+6}, 7, v{V_C}")
        b(f"v_lshlrev_b32 v{T+6}, 4, v{T+6}")
        b(f"v_lshrrev_b32 v{T+7}, 3, v{V_C}")
        b(f"v_lshl_add_u32 v{T+6}, v{T+7}, 7, v{T+6}")
        b(f"v_lshl_add_u32 v{T+6}, v{V_GQ}, 9, v{T+6}")
        for p in range(4):
            for ks in range(2):
                for j in range(2):
                    reg = V_Z + (p*2 + ks)*8 + 4*j
                    out.append(lambda p=p, ks=ks, j=j, reg=reg: b(f"buffer_load_dwordx4 {v(reg,4)}, v{T+6}, s[{R_WS}:{R_WS+3}], s{S_ZL+p} offen offset:{ks*2048 + j*256} sc1", tag=f"z{p}_{ks}"))
        return out
    for p in range(4):
        for ks in range(2):
            for j in range(4):
                reg = V_Z + (p*2 + ks)*8 + 2*j
                out.append(lambda p=p, ks=ks, j=j, reg=reg: b(f"buffer_load_dwordx2 {v(reg,2)}, v{V_ZO}, s[{R_WS}:{R_WS+3}], s{S_ZL+p} offen offset:{ks*2048 + j*128} sc1", tag=f"z{p}_{ks}"))
    return out

def pb_prefill(b):
    out = []
    for q in range(6):
        for h in range(2):
            out.append(lambda q=q, h=h: b(f"buffer_store_dwordx4 {v(V_NEG,4)}, v{V_L16}, s[{R_WS}:{R_WS+3}], s{S_IN+q} offen offset:{1024*h} sc1", tag="pbpre"))
    return out

def step_b(b, ring=()):
    def swaps(p, ks):
        z = V_Z + (p*2 + ks)*8
        return [f"v_swap_b32 v{z+1}, v{z+2}", f"v_swap_b32 v{z+2}, v{z+4}", f"v_swap_b32 v{z+3}, v{z+6}", f"v_swap_b32 v{z+5}, v{z+6}"]
    def epi(p, lt):
        P, Q = preg(p, lt), qreg(p, lt)
        fl = []
        for r in range(4):
            fl.append(f"v_add_f32 v{T+r}, v{P+r}, v{Q+r}")
            fl.append(f"v_sub_f32 v{T+4+r}, v{P+r}, v{Q+r}")
        if p == 0:
            fl.append(f"v_cndmask_b32 v{T}, v{T}, v{P}, s[{S_MASK}:{S_MASK+1}]")
            fl.append(f"v_cndmask_b32 v{T+4}, v{T+4}, v{V_E+4*lt}, s[{S_MASK}:{S_MASK+1}]")
        fl.append(f"v_cvt_pk_bf16_f32 v{P+0}, v{T+0}, v{T+1}")
        fl.append(f"v_cvt_pk_bf16_f32 v{P+1}, v{T+2}, v{T+3}")
        fl.append(f"v_cvt_pk_bf16_f32 v{P+2}, v{T+4}, v{T+5}")
        fl.append(f"v_cvt_pk_bf16_f32 v{P+3}, v{T+6}, v{T+7}")
        if p < 3:
            fl.append(lambda: b(f"ds_write_b128 v{V_HW+lt}, {v(P,4)} offset:{XL + p*4096}", tag="hw"))
        else:
            fl.append(lambda: b(f"ds_write_b128 v{V_HWS+lt}, {v(P,4)} offset:{XL}", tag="hw"))
        return fl
    def mf(p, lt):
        P, Q = preg(p, lt), qreg(p, lt)
        out = []
        for ks in range(2):
            z = V_Z + (p*2 + ks)*8
            out.append(f"{MH} {v(P,4)}, {v(z,4)}, {a(mreg(lt,ks,0),4)}, {v(P,4)}")
            out.append(f"{MH} {v(Q,4)}, {v(z+4,4)}, {a(mreg(lt,ks,1),4)}, {v(Q,4)}")
        return out
    order = [(p, lt) for p in range(4) for lt in range(4) if not (p == 3 and lt >= 2)]
    done = []
    pre = [] if cfg.x_noring else list(ring)
    nun = len(order)
    for iu, (p, lt) in enumerate(order):
        if lt == 0:
            b.wait_vm(f"z{p}_1")
            if cfg.fineb: stamp(b, 24 + p, True)
            guarded(b, [V_Z + p*16 + i for i in range(16)], lambda p=p: z_load(b, p), f"z{p}")
            for ks in range(2):
                for sw in swaps(p, ks): b(sw)
            if p == 0:
                lab = b.newlabel("L_noE")
                b(f"s_cmp_eq_u32 s{S_W}, 0")
                b(f"s_cbranch_scc0 {lab}")
                for ks in range(2):
                    for l2 in range(4):
                        z = V_Z + ks*8
                        b(f"{MH} {v(V_E+4*l2,4)}, {v(z+4,4)}, {a(mreg(l2,ks,0),4)}, {v(V_E+4*l2,4)}")
                b.label(lab)
        fl = epi(*done[-2]) if len(done) >= 2 else []
        nv = (len(pre) + (nun - iu) - 1) // (nun - iu)
        vm = pre[:nv]; pre = pre[nv:]
        sched(b, mf(p, lt), vm=vm, misc=fl, cap=5)
        done.append((p, lt))
    for f in epi(*done[-2]): emit(b, f)
    for f in epi(*done[-1]): emit(b, f)

def slab_buf(p):
    return {0: 1, 1: 2, 2: 0, 3: 1, 4: 2, 5: "H", 6: "S"}[p]

def w2_groups(b, p):
    sg = slab_buf(p)
    out = []
    for hf in range(2):
        for n in range(4):
            pre = []
            if n == 0:
                pre.append(f"s_add_u32 m0, s{S_HWB}, {XL + hf*4096}" if sg == "H" else f"s_add_u32 m0, s{S_RW}, {sg*8192 + hf*4096}")
                if hf: pre.append(f"s_add_u32 s95, s{S_W2+p}, {32*896}")
            def f(n=n, hf=hf):
                so = "s95" if hf else f"s{S_W2+p}"
                off = f" offset:{1024*n}" if n else ""
                b(f"buffer_load_dwordx4 v{V_W2O+n}, s[{R_W2}:{R_W2+3}], {so} offen{off} lds", tag=f"w2_{p}")
            out.append((pre, f))
    return out
def w2_dma(b, p): return flat(w2_groups(b, p))

S_S6 = 6
def w2_groups6(b):
    ga, gb = [], []
    for i in range(6):
        pre = []
        if i == 0:
            pre = [f"s_mul_i32 s95, s{S_W}, {16*896}", f"s_sub_u32 s95, s{S_W2+6}, s95",
                   f"s_mul_i32 s96, s{S_W}, 6144", f"s_add_u32 m0, s96, {XL + 32768}"]
        if i == 4:
            pre = [f"s_add_u32 s95, s95, {32*896}", f"s_add_u32 m0, s96, {XL + 32768 + 4096}"]
        n = i & 3
        def f(n=n):
            off = f" offset:{1024*n}" if n else ""
            b(f"buffer_load_dwordx4 v{V_W2O+n}, s[{R_W2}:{R_W2+3}], s95 offen{off} lds", tag="w2_6")
        ga.append((pre, f))
    for i in range(2):
        pre = []
        if i == 0:
            pre = [f"s_mul_i32 s95, s{S_W}, {48*896}", f"s_sub_u32 s95, s{S_W2+6}, s95", f"s_add_u32 s95, s95, {192*896}",
                   f"s_lshl_b32 s96, s{S_W}, 11", f"s_add_u32 m0, s96, {RING}"]
        def f(n=i):
            off = f" offset:{1024*n}" if n else ""
            b(f"buffer_load_dwordx4 v{V_W2O+n}, s[{R_W2}:{R_W2+3}], s95 offen{off} lds", tag="w2_6")
        gb.append((pre, f))
    return ga, gb

def cs_loads(b):
    out = []
    def hdr():
        b(f"s_lshl_b32 s6, s{S_J}, 10")
        b(f"s_lshl_b32 s7, s{S_W}, 8")
        b("s_add_u32 s6, s6, s7")
        b(f"s_add_u32 s{S_CSO}, s6, {WS_CS}")
        b(f"v_lshlrev_b32 v{V_CSA}, 4, v{V_GQ}")
    hdr()
    cs_reload(b)

def cs_groups(b):
    pre = [f"s_lshl_b32 s6, s{S_J}, 10", f"s_lshl_b32 s7, s{S_W}, 8", "s_add_u32 s6, s6, s7", f"s_add_u32 s{S_CSO}, s6, {WS_CS}", f"v_lshlrev_b32 v{V_CSA}, 4, v{V_GQ}"]
    out = []
    for ft in range(4):
        out.append(([], lambda ft=ft: b(f"buffer_load_dwordx4 {v(V_CS+4*ft,4)}, v{V_CSA}, s[{R_WS}:{R_WS+3}], s{S_CSO} offen offset:{64*ft} sc1", tag="cs")))
    return pre, out

def cs_reload(b):
    for ft in range(4):
        b(f"buffer_load_dwordx4 {v(V_CS+4*ft,4)}, v{V_CSA}, s[{R_WS}:{R_WS+3}], s{S_CSO} offen offset:{64*ft} sc1", tag="cs")

def gemm1_pre(b):
    b.wait_vm("w1_0")
    for u in range(4):
        for hh in range(2):
            b(f"ds_read_b64_tr_b16 {v(V_A1 + 4*u + 2*hh, 2)}, v{V_TR1+u} offset:{hh*2048}", tag="r0")

def gemm1(b):
    def reads(k):
        buf = k & 1; slot = k % 6
        out = []
        for lt in range(4):
            out.append(lambda lt=lt: b(f"ds_read_b128 {v(V_B1 + 16*buf + 4*lt, 4)}, v{V_HB+lt} offset:{XL + k*4096}", tag=f"r{k}"))
        for u in range(4):
            for hh in range(2):
                out.append(lambda u=u, hh=hh: b(f"ds_read_b64_tr_b16 {v(V_A1 + 16*buf + 4*u + 2*hh, 2)}, v{V_TR1+u} offset:{slot*4096 + hh*2048}", tag=f"r{k}"))
        return out
    late = record(epi_addr) + record(flag_setup)
    if cfg.trim2:
        for f in reads(0)[:4]: f()
    else:
        b.wait_vm("w1_0")
        for f in reads(0): f()
    csg = cs_groups(b)[1] if cfg.trim2 else []
    hres = [f"v_mov_b32 v{V_HRES+k}, 0" for k in range(16)]
    hrd = [(lambda tt=tt, r=r: b(f"ds_read_u16_d16_hi v{V_HRES + tt*4 + r}, v{V_HA + r} offset:{XL + tt*1024}", tag="hres")) for tt in range(4) for r in range(4)]
    s0 = []
    for k2 in range(8):
        s0 += slab_read(b, 0, k2, lambda o, k2=k2: a(A_S0 + 4*k2 + o, 2), "s0")
    g0, g1, g2 = w2_groups(b, 0), w2_groups(b, 1), w2_groups(b, 2)
    for k in range(14):
        buf = k & 1
        if k == 12:
            b.wait_vm("w2_0")
            b.wait_lg(f"r{k}")
            b("s_barrier")
        else:
            b.wait_lg(f"r{k}")
        if cfg.fine: stamp(b, k)
        first, vm, misc = [], [], []
        if k + 1 < 14:
            first.append(lambda k=k: b.wait_vm(f"w1_{k+1}"))
            if not cfg.x_noreads: first += reads(k + 1)
        if k + 6 < 14 and not cfg.x_now1dma: vm += w1_groups(b, k + 6)
        if csg and k < 4: vm.append(csg.pop(0))
        if k == 8: misc += hres
        if k == 8: vm += g0[:4]
        if csg and k in (12, 13) and False: pass
        if k == 9: vm += g0[4:]; misc += hrd[:8]
        if k == 10: vm += g1[:4]; misc += hrd[8:]
        if k == 11: vm += g1[4:]; misc.append(lambda: ready_set(b))
        if k == 12: vm += g2[:4]; misc += s0[:8]
        if k < 8:
            n = (len(late) + 7 - k) // (8 - k)
            misc += late[:n]; late = late[n:]
        bb = V_B1 + 16*buf
        z = k == 0
        mf = [f"{MF} {v(V_Q2,4)}, {v(bb,4)}, {v(bb,4)}, {'0' if z else v(V_Q2,4)}",
              f"{MF} {v(V_S2,4)}, {v(V_ONE2,4)}, {v(bb,4)}, {'0' if z else v(V_S2,4)}"]
        pairs = [(lt, u) for u in range(4) for lt in range(4)] if cfg.g1_umajor else [(lt, u) for lt in range(4) for u in range(4)]
        for lt, u in pairs:
            d = V_ACC1 + (u*4 + lt)*4
            mf.append(f"{MF} {v(d,4)}, {v(V_A1 + 16*buf + 4*u, 4)}, {v(bb + 4*lt, 4)}, {'0' if z else v(d,4)}")
        if k == 13:
            r = Rec()
            stats_core(r, V_S2, V_Q2, True)
            sf = r.l + [f"s_lshl_b32 s6, s{S_W}, 6", f"s_add_u32 s6, s6, {STAT}", f"v_lshl_add_u32 v{T}, v{V_C}, 2, s6",
                        f"v_sub_f32 v{V_S2}, 0, v{V_S2}", f"v_mul_f32 v{V_Q2}, 0.5, v{V_Q2}"]
            sched(b, mf[:6], first=s0[8:], vm=g2[4:5])
            sched(b, mf[6:], vm=g2[5:], misc=sf)
            b(f"s_mov_b64 exec, s[{S_DIAG}:{S_DIAG+1}]")
            b(f"ds_write_b32 v{T}, v{V_S2}")
            b(f"ds_write_b32 v{T}, v{V_S2} offset:256")
            b(f"ds_write_b32 v{T}, v{V_Q2} offset:512")
            b("s_mov_b64 exec, -1")
            b.g2rest = []
        else:
            sched(b, mf, first=first, vm=vm, misc=misc, misc_from=6)

def slab_read(b, p, k2, dst, tagp):
    sg = slab_buf(p)
    part = k2 >> 1
    if sg == "H":
        base = V_TR2H; off = XL + part*8192 + (k2 & 1)*4096
    elif sg == "S":
        if k2 < 6: base = V_TR2H; off = XL + 32768 + k2*4096
        else: base = V_TR2; off = (k2 - 6)*4096
    else:
        base = V_TR2 + (part >> 1)
        off = (part & 1)*24576 + sg*8192 + (k2 & 1)*4096
    return [(lambda hh=hh: b(f"ds_read_b64_tr_b16 {dst(2*hh)}, v{base} offset:{off + hh*2048}", tag=tagp)) for hh in range(2)]

V_NA = 54
V_SR = 36
def epi_addr(b):
    b(f"s_lshl_b32 s6, s{S_W}, 13")
    for l2 in range(4): b(f"v_add_u32 v{V_NA+l2}, s6, v{V_HB+l2}")
    b(f"v_lshlrev_b32 v{V_SR}, 2, v{V_C}")
    b(f"v_add_u32 v{V_SR}, {STAT}, v{V_SR}")
    b(f"s_lshl_b32 s6, s{S_W}, 6")
    b(f"v_add_u32 v{V_SR+1}, s6, v{V_SR}")

def gemm1_epi(b):
    b.wait_vm("w2_1")
    b("s_waitcnt lgkmcnt(0)")
    if cfg.finee: stamp(b, 24, True)
    b("s_barrier")
    if cfg.finee: stamp(b, 25, True)
    for lt in range(4):
        b(f"ds_read_b32 v{V_NM+2*lt}, v{V_SR+1} offset:{64*lt}", tag="nm")
    for tt in range(4):
        b(f"ds_read_b32 v{V_RR+tt}, v{V_SR} offset:{512 + 64*tt}", tag="rr")
    ready_load(b)
    b.wait_vm("cs")
    guarded(b, [V_CS + i for i in range(16)], lambda: cs_reload(b), "cs")
    b.wait_lg("nm")
    if cfg.finee: stamp(b, 26, True)
    main = []
    for lt in range(4):
        for fp in range(2):
            pk = V_PK + 4*((lt*2 + fp) & 3)
            for hh in range(2):
                d = V_ACC1 + ((2*fp + hh)*4 + lt)*4
                for h in range(2):
                    main.append(f"v_pk_fma_f32 {v(d+2*h,2)}, {v(V_CS+4*(2*fp+hh)+2*h,2)}, {v(V_NM+2*lt,2)}, {v(d+2*h,2)} op_sel_hi:[1,0,1]")
            for hh in range(2):
                d = V_ACC1 + ((2*fp + hh)*4 + lt)*4
                main.append(f"v_cvt_pk_bf16_f32 v{pk+2*hh}, v{d}, v{d+1}")
                main.append(f"v_cvt_pk_bf16_f32 v{pk+2*hh+1}, v{d+2}, v{d+3}")
            for q in range(4):
                main.append(f"v_pk_max_i16 v{pk+q}, v{pk+q}, 0")
            main.append(lambda lt=lt, fp=fp, pk=pk: b(f"ds_write_b128 v{V_NA+lt}, {v(pk,4)} offset:{XL + fp*4096}", tag="hidw"))
    g6a, b.g6b = w2_groups6(b)
    b.g6a = g6a
    dm = [flat([g]) for g in b.g2rest + ([] if cfg.late_w2 else w2_groups(b, 3))]
    dm = [(lambda l=l: [emit(b, x) for x in l]) for l in dm]
    s1 = []
    for k2 in range(8):
        s1 += slab_read(b, 1, k2, lambda o, k2=k2: a(A_S0 + 32 + 4*k2 + o, 2), "s1")
    multi_spread(b, main, [x for x in (dm, s1) if x])
    if cfg.finee: stamp(b, 27, True)
    if cfg.fewbar: b.wait_vm("w2_2")
    b("s_waitcnt lgkmcnt(0)")
    b("s_barrier")

V_INR = [160, 168, 176, 184, 208, 216]
def inbox_load(b, q):
    return [([], (lambda h=h: b(f"buffer_load_dwordx4 {v(V_INR[q]+4*h,4)}, v{V_L16}, s[{R_WS}:{R_WS+3}], s{S_IN+q} offen offset:{1024*h} sc1", tag=f"p{q}"))) for h in range(2)]

def gemm2(b):
    hb = []
    for k2 in range(8):
        for tt in range(4):
            hb.append((k2, lambda k2=k2, tt=tt: b(f"ds_read_b128 {a((k2*4 + tt)*4, 4)}, v{V_L16} offset:{XL + k2*4096 + tt*1024}", tag=f"hb{k2}")))
    def aread(p, k2):
        if p <= 1: return []
        return slab_read(b, p, k2, lambda o: v(V_A2 + 4*(k2 & 3) + o, 2), f"a{p}_{k2}")
    def aop(p, k2):
        return a(A_S0 + 32*p + 4*k2, 4) if p <= 1 else v(V_A2 + 4*(k2 & 3), 4)
    def epi(p):
        acc = V_ACC2 + 16*(p & 1)
        pk = V_PK + 8*(p & 1)
        cv, st = [], []
        for h in range(2):
            pre = []
            for tt in (2*h, 2*h+1):
                pre.append(f"v_cvt_pk_bf16_f32 v{pk+2*tt}, v{acc+4*tt}, v{acc+4*tt+1}")
                pre.append(f"v_cvt_pk_bf16_f32 v{pk+2*tt+1}, v{acc+4*tt+2}, v{acc+4*tt+3}")
            cv.append(pre)
            st.append(lambda h=h: b(f"buffer_store_dwordx4 {v(pk+4*h,4)}, v{V_L16}, s[{R_WS}:{R_WS+3}], s{S_PB+p} offen offset:{1024*h} sc1", tag=f"pst{p}") if not cfg.x_nostore else None)
        return cv, st
    def mfs(p, k2):
        acc = V_ACC2 + 16*(p & 1)
        return [f"{MF} {v(acc+4*tt,4)}, {aop(p, k2)}, {a((k2*4+tt)*4, 4)}, {v(acc+4*tt, 4) if k2 else '0'}" for tt in range(4)]
    W = {q: w2_groups(b, q) for q in (4, 5)}
    plan = {0: W[4], 1: W[5], 2: b.g6a, 3: b.g6b}
    if cfg.late_w2: plan = {0: w2_groups(b, 3), 1: W[4], 2: W[5], 3: b.g6a, 4: b.g6b}
    if cfg.early_in == 1:
        plan[5] = inbox_load(b, 5) + inbox_load(b, 4) + inbox_load(b, 3)
        plan[6] = inbox_load(b, 2)
    elif cfg.early_in == 2:
        plan[4] = inbox_load(b, 5)
        plan[5] = inbox_load(b, 4) + inbox_load(b, 3)
        plan[6] = inbox_load(b, 2)
    elif cfg.early_in == 3:
        plan[6] = inbox_load(b, 5) + inbox_load(b, 4) + inbox_load(b, 3)
    late_in = {5: [], 6: []}
    for (k2, f) in hb[:8]: f()
    tail = []
    for p in range(7):
        if cfg.fine: stamp(b, 24 + p)
        vm = list(plan.get(p, []))
        cv, st = epi(p - 1) if p >= 1 else ([], [])
        body = list(tail)
        firsts = []
        if p >= 1: firsts = aread(p, 0) + aread(p, 1)
        nt = len(tail)
        nvm_tail = min(len(vm), 2) if nt else 0
        if nt:
            b.wait_lg([f"a{p-1}_6"])
            sched(b, tail[:4], first=firsts[:2], vm=vm[:min(1, nvm_tail)])
            b.wait_lg([f"a{p-1}_7"])
            sched(b, tail[4:], first=firsts[2:], vm=vm[1:nvm_tail])
            vm = vm[nvm_tail:]
        if p == 1: ready_check(b)
        if p == 4 and cfg.touch_out: touch_out(b)
        if p == 3 and cfg.mfma_sum: b.pending_half += record(sum_sel)
        if p == 4 and cfg.trim:
            for tt in range(4): b(f"v_mov_b32 v{V_RR2+2*tt}, v{V_RR+tt}")
            for k in range(16): b.pending_half.append(f"v_mul_f32 v{V_HRES+k}, 0.5, v{V_HRES+k}")
        stg = [(cv[h], st[h]) for h in range(2)] if st else []
        order = (vm + stg) if ((cfg.early_in and p >= 4 and cfg.in_first) or (cfg.dma_first and p <= 3)) else stg + vm
        per = [[] for _ in range(6)]
        for i, g in enumerate(order): per[min(5, (i * 6) // max(len(order), 1))].append(g)
        for k2 in range(6):
            b.wait_lg([f"hb{k2}", f"a{p}_{k2}"])
            first = aread(p, k2 + 2)
            if p == 0: first += [f for (kk, f) in hb if kk == k2 + 2]
            gs = per[k2]
            if gs and len(gs[0][0]) > 2:
                sched(b, mfs(p, k2), first=first, misc=gs[0][0], cap=3)
                for g in gs[:1]: emit(b, g[1])
                for g in gs[1:]:
                    for x in g[0]: emit(b, x)
                    emit(b, g[1])
            else:
                hm = b.pending_half[:4]; b.pending_half = b.pending_half[4:]
                sched(b, mfs(p, k2), first=first, vm=gs, misc=hm)
        if p < 6:
            if cfg.fewbar:
                need = {0: 3, 2: 4, 3: None, 4: 5, 5: 6}.get(p)
                if p == 3: b.wait_vm("w2_4")
                if need: b.wait_vm(f"w2_{need}")
                if p in (0, 2): b("s_waitcnt lgkmcnt(0)")
                if p in (0, 2, 4, 5): b("s_barrier")
            else:
                if p + 1 >= 2: b.wait_vm(f"w2_{p+1}")
                if p in (0, 2): b("s_waitcnt lgkmcnt(0)")
                if not cfg.x_nobar2: b("s_barrier")
            tail = mfs(p, 6) + mfs(p, 7)
        else:
            b.wait_lg([f"a{p}_6", f"a{p}_7"])
            last = {0: [5, 4], 1: [1], 2: [1], 3: [2, 1]}[cfg.early_in]
            sched(b, mfs(p, 6) + mfs(p, 7), vm=[g for q in last for g in inbox_load(b, q)])

def flag_setup(b):
    t = T
    b(f"v_add_u32 v{t}, s{S_J}, v0")
    b(f"v_add_u32 v{t}, 1, v{t}")
    b(f"v_subrev_u32 v{t+1}, 7, v{t}")
    b(f"v_cmp_le_u32 vcc, 7, v{t}")
    b(f"s_mul_i32 s6, s{S_IDX}, 7")
    b(f"v_cndmask_b32 v{t}, v{t}, v{t+1}, vcc")
    b(f"v_add_u32 v{t}, s6, v{t}")
    b(f"v_lshlrev_b32 v{t}, 9, v{t}")
    b(f"s_lshl_b32 s6, s{S_W}, 7")
    b(f"s_add_u32 s6, s6, {WS_FL}")
    b(f"v_add_u32 v{t+6}, s6, v{t}")
    own_line(b, 13)
    b(f"v_mov_b32 v{t+5}, 1")
    b(f"v_mov_b32 v{t+4}, 0")

def ready_set(b):
    b.wait_vm("pbpre")
    b("s_mov_b64 exec, 1")
    b(f"buffer_store_dword v{T+5}, v{T+4}, s[{R_WS}:{R_WS+3}], s13 offen sc1", tag="rdy")
    b("s_mov_b64 exec, -1")

def ready_load(b):
    b("s_mov_b64 exec, 0x3f")
    b(f"buffer_load_dword v{T+7}, v{T+6}, s[{R_WS}:{R_WS+3}], 0 offen sc1", tag="rdl")
    b("s_mov_b64 exec, -1")

def ready_check(b):
    b.wait_vm("rdl")
    l2 = b.newlabel("L_rd"); l3 = b.newlabel("L_rdd")
    b.notrack = True
    b("s_mov_b32 s12, 0")
    b("s_mov_b64 exec, 0x3f")
    b.label(l2)
    b(f"v_cmp_ne_u32 vcc, 1, v{T+7}")
    b("s_cmp_eq_u64 vcc, 0")
    b(f"s_cbranch_scc1 {l3}")
    b("s_add_u32 s12, s12, 1")
    b("s_cmp_ge_u32 s12, 0x10000")
    b(f"s_cbranch_scc1 {l3}")
    b(f"buffer_load_dword v{T+7}, v{T+6}, s[{R_WS}:{R_WS+3}], 0 offen sc1")
    b("s_waitcnt vmcnt(0)")
    b(f"s_branch {l2}")
    b.label(l3)
    b("s_mov_b64 exec, -1")
    b.notrack = False

def touch_out(b):
    b(f"v_mul_u32_u24 v{T+3}, 57344, v{V_C}")
    b(f"v_lshl_add_u32 v{T+3}, v{V_GQ}, 3, v{T+3}")
    b("s_mov_b64 exec, 0xffff")
    for tt in range(4):
        b(f"buffer_load_dword {a(248+tt)}, v{T+3}, s[{R_OUT}:{R_OUT+3}], s{S_O+tt} offen", tag="tch")
    b("s_mov_b64 exec, -1")

def sum_sel(b):
    t = T
    b(f"v_lshlrev_b32 v{t}, 2, v{V_GQ}")
    b(f"v_sub_u32 v{t}, v{V_C}, v{t}")
    b(f"v_mov_b32 v{t+1}, 0x3f80")
    b(f"v_mov_b32 v{t+2}, 0x3f800000")
    b(f"v_mov_b32 v{V_SUM}, 0")
    b(f"v_mov_b32 v{V_SUM+1}, 0")
    b(f"v_mov_b32 v{V_SUM+4}, 0")
    b(f"v_mov_b32 v{V_SUM+5}, 0")
    for m in range(2):
        b(f"v_cmp_eq_u32 vcc, {2*m}, v{t}")
        b(f"v_cmp_eq_u32 s[6:7], {2*m+1}, v{t}")
        b(f"v_cndmask_b32 v{V_SUM+2+m}, v{V_SUM}, v{t+1}, vcc")
        b(f"v_cndmask_b32 v{V_SUM+2+m}, v{V_SUM+2+m}, v{t+2}, s[6:7]")

def final_reduce(b):
    t = T
    acc = V_ACC2
    for x in b.pending_half: b(x)
    b.pending_half = []
    def reload(q):
        for pre, op in inbox_load(b, q): op()
    for q in ((3, 2, 1, 0) if cfg.early_in == 0 else (0,)): reload(q)
    b(f"v_mul_u32_u24 v{t+4}, 57344, v{V_C}")
    b(f"v_lshl_add_u32 v{t+4}, v{V_GQ}, 3, v{t+4}")
    stamp(b, 20)
    for q in (5, 4, 3, 2, 1, 0):
        b.wait_vm(f"p{q}")
        guarded(b, [V_INR[q] + i for i in range(8)], lambda q=q: reload(q), f"p{q}")
        if cfg.finef: stamp(b, 24 + q, True)
        if cfg.mfma_sum:
            for h in range(2):
                fr = v(V_INR[q] + 4*h, 4)
                b(f"{MF} {v(acc+8*h,4)}, {v(V_SUM+2,4)}, {fr}, {v(acc+8*h,4)}")
                b(f"{MF} {v(acc+8*h+4,4)}, {v(V_SUM,4)}, {fr}, {v(acc+8*h+4,4)}")
            continue
        for tt in range(4):
            for m in range(2):
                src = V_INR[q] + 2*tt + m
                tt2 = t + 2*((2*tt + m) & 1)
                b(f"v_lshlrev_b32 v{tt2}, 16, v{src}")
                b(f"v_and_b32 v{tt2+1}, 0xffff0000, v{src}")
                b(f"v_pk_add_f32 {v(acc+4*tt+2*m,2)}, {v(acc+4*tt+2*m,2)}, {v(tt2,2)}")
    stamp(b, 22)
    for tt in range(4):
        if cfg.trim:
            for m in range(2):
                b(f"v_pk_fma_f32 {v(acc+4*tt+2*m,2)}, {v(acc+4*tt+2*m,2)}, {v(V_RR2+2*tt,2)}, {v(V_HRES+4*tt+2*m,2)} op_sel_hi:[1,0,1]")
        else:
            for r in range(4):
                b(f"v_mul_f32 v{acc+4*tt+r}, v{V_RR+tt}, v{acc+4*tt+r}")
            for m in range(2):
                b(f"v_pk_fma_f32 {v(acc+4*tt+2*m,2)}, {v(V_HRES+4*tt+2*m,2)}, 0.5, {v(acc+4*tt+2*m,2)} op_sel_hi:[1,0,1]")
        if cfg.x_off:
            for r in range(4): b(f"v_add_f32 v{acc+4*tt+r}, {fbits(cfg.x_off)}, v{acc+4*tt+r}")
        b(f"v_cvt_pk_bf16_f32 v{V_PK+2*tt}, v{acc+4*tt}, v{acc+4*tt+1}")
        b(f"v_cvt_pk_bf16_f32 v{V_PK+1+2*tt}, v{acc+4*tt+2}, v{acc+4*tt+3}")
        b(f"buffer_store_dwordx2 {v(V_PK+2*tt,2)}, v{t+4}, s[{R_OUT}:{R_OUT+3}], s{S_O+tt} offen {cfg.outflags}")

def cs_job(b):
    b("s_sub_u32 s6, s2, 224")
    b("s_lshl_b32 s7, s6, 7")
    b("v_and_b32 v1, 15, v9")
    b("v_lshrrev_b32 v2, 4, v9")
    b("v_mul_u32_u24 v3, 3584, v2")
    b("v_lshl_add_u32 v3, v1, 3, v3")
    b("v_and_b32 v6, 63, v9")
    b("v_lshlrev_b32 v6, 2, v6")
    b("v_mov_b32 v7, -1")
    b("s_lshl_b32 s9, s6, 8")
    b(f"s_add_u32 s9, s9, {WS_CS}")
    b(f"buffer_store_dword v7, v6, s[{R_WS}:{R_WS+3}], s9 offen sc1", tag="cspre")
    for n in range(28):
        b(f"s_add_u32 s8, s7, {n*57344}")
        b(f"buffer_load_dwordx2 {v(16 + 2*n, 2)}, v3, s[{R_W1}:{R_W1+3}], s8 offen", tag=f"c{n}")
    b.wait_vm("cspre")
    b("s_barrier")
    arrive0(b)
    b("s_sub_u32 s6, s2, 224")
    for r in range(4): b(f"v_mov_b32 v{76+r}, 0")
    for n in range(28):
        b.wait_vm(f"c{n}")
        for h in range(2):
            b(f"v_lshlrev_b32 v4, 16, v{16+2*n+h}")
            b(f"v_and_b32 v5, 0xffff0000, v{16+2*n+h}")
            b(f"v_pk_add_f32 {v(76+2*h,2)}, {v(76+2*h,2)}, v[4:5]")
    b("v_lshlrev_b32 v4, 8, v2")
    b("v_lshl_add_u32 v4, v1, 4, v4")
    b("ds_write_b128 v4, v[76:79]")
    b("s_waitcnt lgkmcnt(0)")
    b("s_barrier")
    b("v_and_b32 v1, 63, v9")
    b("v_lshlrev_b32 v1, 2, v1")
    for n in range(16): b(f"ds_read_b32 v{16+n}, v1 offset:{256*n}")
    b("s_waitcnt lgkmcnt(0)")
    for n in range(1, 16): b(f"v_add_f32 v16, v16, v{16+n}")
    b("s_lshl_b32 s7, s6, 8")
    b(f"s_add_u32 s7, s7, {WS_CS}")
    b(f"s_cmp_eq_u32 s{S_W}, 0")
    lab = b.newlabel("L_csk")
    b(f"s_cbranch_scc0 {lab}")
    b(f"buffer_store_dword v16, v1, s[{R_WS}:{R_WS+3}], s7 offen sc1", track=False)
    b.label(lab)

def build(name):
    b = Builder()
    b.slow = []
    b.pending_half = []
    b("s_cmp_ge_u32 s2, 252")
    b("s_cbranch_scc1 L_end")
    b("s_load_dwordx2 s[16:17], s[0:1], 0")
    b("s_load_dwordx8 s[28:35], s[0:1], 48")
    b("s_load_dwordx2 s[36:37], s[0:1], 80")
    if cfg.code_pf:
        b("s_getpc_b64 s[6:7]")
        b.label("L_pc")
        b("v_lshlrev_b32 v2, 7, v0")
        b("v_mov_b32 v5, s7")
        b("v_add_co_u32 v4, vcc, s6, v2")
        b("v_addc_co_u32 v5, vcc, 0, v5, vcc")
        b(f"v_cmp_gt_u32 vcc, L_code_end-L_pc, v2")
        b("s_and_saveexec_b64 s[8:9], vcc")
        lab = b.newlabel("L_nopf")
        b(f"s_cbranch_execz {lab}")
        b(f"global_load_dword {a(255)}, v[4:5], off", track=False)
        b.label(lab)
        b("s_mov_b64 exec, s[8:9]")
    b("v_mov_b32 v9, v0")
    b("v_lshrrev_b32 v1, 6, v0")
    b("v_and_b32 v0, 63, v0")
    b(f"v_readfirstlane_b32 s{S_W}, v1")
    b("s_cmp_ge_u32 s2, 224")
    b("s_cbranch_scc1 L_cs")
    decode(b)
    p1_addr(b)
    z_base(b)
    if not cfg.lean_start:
        p1_addr2(b)
        wd_setup(b)
    b("s_waitcnt lgkmcnt(0)")
    srd(b, R_X, P_X, X_BYTES)
    if cfg.x_first:
        x_dma(b)
        srd_ws(b)
        prefill_start(b)
    else:
        srd_ws(b)
        prefill_start(b)
        x_dma(b)
    srd(b, R_W1, P_W1, W_BYTES); srd(b, R_W2, P_W2, W_BYTES)
    srd(b, R_OUT, P_OUT, X_BYTES); srd(b, R_DBG, P_DBG, 256)
    stamp(b, 0)
    if cfg.lean_start:
        p1_addr2(b)
        wd_setup(b)
    move_masks(b)
    if cfg.w_prefetch: w_prefetch(b)
    p2_scalars(b)
    inbox_scalars(b)
    if cfg.touch_x: touch_xres(b)
    if cfg.pre_at == "start":
        for f in pb_prefill(b): f()
    stamp(b, 1)
    def early(ks):
        if cfg.early_arrive is not None and ks == cfg.early_arrive:
            b.wait_vm("pre")
            b("s_barrier")
            arrive0(b)
    wd_gen(b, early)
    f_gen(b)
    m_gen(b)
    fm_addr(b)
    if cfg.touch_w: touch_w_setup(b)
    if cfg.ring_early or not cfg.late_dma_addr: dma_addr(b)
    stamp(b, 2)
    p1_loop(b)
    xall = xres_list(b)
    xt = xall[:cfg.xres_tail]; xall = xall[cfg.xres_tail:]
    p1_tail(b, xt)
    for f in xt: f()
    stamp(b, 8)
    b0_load(b, V_B0)
    xres_pad(b)
    ring = []
    for k in range(cfg.ring_early, 6): ring += w1_groups(b, k)
    work = [] if cfg.addr_in_loop else record(p2_addr)
    if not cfg.ring_early and cfg.late_dma_addr and not cfg.addr_in_loop: work = work + record(dma_addr)
    pbq = pb_prefill(b) if cfg.pre_at == "spread" else []
    xl = xall
    if pbq: xl = xl[:8] + pbq[:1] + xl[8:] + pbq[1:2]; pbq = pbq[2:]
    if work: multi_spread(b, work, [xl] + ([m_read(b)] if cfg.m_late else []))
    else: multi_spread(b, xl, [m_read(b) if cfg.m_late else []] if cfg.m_late else [])
    stamp(b, 9)
    b0_check(b, V_B0)
    stamp(b, 12)
    zl = z_list(b)
    work = record(hres_addr) + record(p2_scalars_late)
    z1 = zl[:len(zl)//2]
    if pbq: z1 = z1[:len(z1)//2] + pbq[:1] + z1[len(z1)//2:] + pbq[1:2]; pbq = pbq[2:]
    multi_spread(b, work, [z1])
    b.wait_vm("xres")
    b("s_waitcnt lgkmcnt(0)")
    b("s_barrier")
    stamp(b, 10)
    z2 = zl[len(zl)//2:]
    if pbq: z2 = z2[:len(z2)//2] + pbq[:1] + z2[len(z2)//2:] + pbq[1:2]; pbq = pbq[2:]
    x_init(b, extra=z2)
    b(f"v_mov_b32 v{V_ONE2}, 0x3f803f80")
    for r in range(1, 4): b(f"v_mov_b32 v{V_ONE2+r}, v{V_ONE2}")
    stamp(b, 11)
    if cfg.count_slow:
        b("s_mov_b32 s98, 0"); b("s_mov_b32 s99, 0")
    b("s_barrier")
    stamp(b, 14)
    if pbq:
        r2 = []
        for i, g in enumerate(ring):
            r2.append(g)
            if i % 4 == 3 and pbq: r2.append(([], pbq.pop(0)))
        ring = r2
    if cfg.pre_at == "stepb": ring = ring + [([], x) for x in pb_prefill(b)]
    step_b(b, ring)
    if not cfg.trim2: cs_loads(b)
    else:
        for x in cs_groups(b)[0]: b(x)
        gemm1_pre(b)
    b("s_waitcnt lgkmcnt(12)" if False else "s_waitcnt lgkmcnt(0)")
    stamp(b, 15)
    b("s_barrier")
    b.finezone = True
    gemm1(b)
    stamp(b, 17)
    gemm1_epi(b)
    stamp(b, 18)
    gemm2(b)
    stamp(b, 19)
    b.finezone = False
    final_reduce(b)
    stamp(b, 23)
    if cfg.count_slow:
        b(f"v_writelane_b32 v{V_TS}, s98, 28")
        b(f"v_writelane_b32 v{V_TS}, s99, 29")
    stamp_store(b)
    b("s_endpgm")
    b.label("L_cs")
    b("s_waitcnt lgkmcnt(0)")
    srd(b, R_W1, P_W1, W_BYTES); srd_ws(b); srd(b, R_DBG, P_DBG, 256)
    cs_job(b)
    b("s_endpgm")
    emit_slow(b)
    b.label("L_end")
    b.label("L_code_end")
    b("s_endpgm")
    txt = b.finalize()
    if cfg.align:
        import align
        hdr = '.amdgcn_target "amdgcn-amd-amdhsa--gfx950"\n.text\n' + kernel_header(name)
        lines, before, nw, nn, tot = align.align(txt.rstrip("\n").split("\n"), hdr, "", allow_nop=cfg.align_nop)
        print("misaligned 8-byte instructions before:", before, "widened:", nw, "nops:", nn, "residual cost:", tot)
        txt = "\n".join(lines) + "\n"
    s = f"""; FNet block (pre-LN, 2-D DFT mixing as a 64x32 two-step transform, ReLU FFN) - one persistent launch
; kernarg: A_x, dft_seq_re, dft_seq_im, dft_hid_re, dft_hid_im, B_x, B_w1, B_w2, out, debug, ws
; @launch grid=(252,1,1) block=(256,1,1) lds={LDS_TOTAL}
.amdgcn_target "amdgcn-amd-amdhsa--gfx950"
.text
""" + kernel_header(name) + txt + '\n.section .rodata,"a"\n' + kernel_desc(name, 512, 256)
    return s, b

if __name__ == "__main__":
    import sys
    for o in sys.argv[2:]:
        if o == "diag": cfg.diag = True
        elif "=" in o:
            k, val = o.split("=", 1)
            setattr(cfg, k, eval(val))
    s, b = build(NAME + "_kernel")
    open(sys.argv[1], "w").write(s)
    n = sum(1 for i in b.items if not isinstance(i, str))
    print("instructions", n, "auto nops", b.nnop)
```

```python
from asmb import *
import common
from common import NAME, kernel_header, kernel_desc, X_BYTES, W_BYTES, WS_BYTES, Z_G, PB_G
import struct

def fbits(x): return hex(struct.unpack("<I", struct.pack("<f", x))[0])

class Cfg:
    diag = False
    w_prefetch = True
    xflags = ""
    x_now1dma = False
    x_now2dma = False
    x_noreads = False
    x_nobar2 = False
    x_nostore = False
    fine = False
    cyc = False
    trim = True
    x_xlin = False
    ws_base = 0
    touch_out = False
    mfma_sum = True
    trim2 = True
    x_off = 0.0
    early_arrive = 10
    count_slow = False
    g1_umajor = False
    align = False
    align_nop = True
    addr_in_loop = False
    touch_x = False
    touch_w = False
    x_first = False
    fewbar = False
    dma_first = False
    xres_rot = False
    x_noexec = False
    late_w2 = False
    in_first = False
    early_in = 0
    xres_tail = 0
    stages = ((0,1,2,3,4,5,6),)
    m_late = True
    lean_start = True
    late_dma_addr = True
    outflags = ''
    finee = False
    ring_early = 0
    pre_at = 'spread'
    x_z4 = False
    x_noring = False
    x_nopre = False
    code_bytes = 26*1024
    code_pf = True
    finef = False
    x_noguard = False
    ring0 = 18
    buf4 = True
    fineb = False
cfg = Cfg()

WS_Z = 0
WS_CS = 0x200000
WS_CNT = 0x210000
WS_FL = 0x220000
WS_PB = 0x400000
WS_TS = 0x4000000

XL = 0
XRS = 928
RING = 64 * XRS
FX = RING
MX = RING + 8192
STAT = RING + 98304
LDS_TOTAL = STAT + 768

S_WG, S_W, S_IDX, S_J = 2, 3, 4, 5
P_X, P_W1, P_W2, P_OUT, P_DBG, P_WS = 16, 28, 30, 32, 34, 36
R_X, R_W1, R_W2, R_WS, R_OUT, R_DBG = 40, 44, 48, 52, 56, 60
S_TT = 16
S_PI = 20
S_ZL = 24
S_RW = 28
S_W1B = 29
S_Z0, S_Z1 = 30, 31
S_DIAG = 32
S_M1 = 34
S_MASK = 64
S_W2 = 66
S_PB = 73
S_IN = 79
S_XR = 85
S_O = 86
S_P32 = 90
S_TMP = 94
S_HWB = 94
S_N32 = 98
S_CSO = 97

V_C, V_GQ, V_TS = 1, 2, 58
T = 4
V_HB = 12
V_TR1 = 16
V_W1O = 20
V_W2O = 24
V_TR2 = 28
V_L16 = 30
V_ZO = 31
V_CSA = 31
V_HW = 32
V_HWS = 36
V_HA = 38
V_SEL1, V_SEL2, V_NSEL2 = 42, 46, 50
V_XA = 54
V_AUX = 3
V_TR2H = 59
V_NEG = 60
V_GT = 4
V_WD = 64
V_XF = 120
V_ACC = 152
V_SS = 168
V_QQ = 172
V_CS1 = 176
V_ONE = 180
V_F = 184
V_XB = 216
V_SA = 224
V_XO = 228
V_ZO1 = 229
V_G = 230
V_AB = V_XF
V_A = V_WD
V_D2 = V_WD + 8
V_ZP = V_WD + 24
A_PF = 128
A_S0 = 128
V_Z = 64
V_P, V_Q, V_PS, V_QS, V_E = 128, 176, 224, 232, 240
V_ACC1 = 128
V_A1 = 192
V_B1 = 224
V_CS = 64
V_HRES = 80
V_PK = 96
V_NM = 112
V_RR = 120
V_SUM = 224
V_RR2 = 112
V_S2 = 42
V_Q2 = 46
V_ONE2 = 50
V_A2 = 192
V_ACC2 = 128
V_IN = 160

def stamp(b, i, force=False):
    if not cfg.diag: return
    if cfg.fine and not force and i != 0 and not getattr(b, "finezone", False): return
    if i == 0 and not getattr(b, "tsinit", False):
        b(f"v_mov_b32 v{V_TS}, 0"); b.tsinit = True
        if cfg.fine: return
    b("s_memtime s[14:15]" if cfg.cyc else "s_memrealtime s[14:15]")
    b("s_waitcnt lgkmcnt(0)")
    b(f"v_writelane_b32 v{V_TS}, s14, {i}")
def stamp_store(b):
    if not cfg.diag: return
    b("s_waitcnt vmcnt(0)")
    stamp(b, 31, True)
    b("s_lshl_b32 s6, s2, 9")
    b(f"s_lshl_b32 s7, s{S_W}, 7")
    b("s_add_u32 s6, s6, s7")
    b(f"s_add_u32 s6, s6, {WS_TS}")
    b(f"v_lshlrev_b32 v{T}, 2, v0")
    b("s_mov_b32 exec_hi, 0")
    b(f"buffer_store_dword v{V_TS}, v{T}, s[{R_WS}:{R_WS+3}], s6 offen")
    b("s_waitcnt vmcnt(0)")
    b("s_mov_b64 exec, -1")

def srd(b, r, p, nbytes):
    b(f"s_mov_b32 s{r}, s{p}")
    b(f"s_mov_b32 s{r+1}, s{p+1}")
    b(f"s_mov_b32 s{r+2}, {hex(nbytes)}")
    b(f"s_mov_b32 s{r+3}, 0x00020000")

def srd_ws(b):
    if cfg.ws_base:
        b(f"s_add_u32 s{R_WS}, s{P_WS}, {hex(cfg.ws_base)}")
        b(f"s_addc_u32 s{R_WS+1}, s{P_WS+1}, 0")
        b(f"s_mov_b32 s{R_WS+2}, {hex(WS_BYTES - cfg.ws_base)}")
        b(f"s_mov_b32 s{R_WS+3}, 0x00020000")
    else:
        srd(b, R_WS, P_WS, WS_BYTES)

def emit(b, f):
    f() if callable(f) else b(f)

def weave(b, mfmas, fillers, per=2):
    k = 0; n = len(mfmas)
    for i, m in enumerate(mfmas):
        b(m)
        want = ((i + 1) * len(fillers) + n - 1) // n
        cnt = 0
        while k < len(fillers) and k < want and cnt < per:
            emit(b, fillers[k]); k += 1; cnt += 1
    while k < len(fillers):
        emit(b, fillers[k]); k += 1

class Rec:
    def __init__(self): self.l = []
    def __call__(self, s, tag=None, track=True):
        assert tag is None
        self.l.append(s)
def record(fn, *args):
    r = Rec(); fn(r, *args)
    out = []; i = 0; l = r.l
    while i < len(l):
        if l[i].startswith("s_cmp"):
            j = i + 1
            while j < len(l) and l[j].startswith(("s_cselect", "s_mov")): j += 1
            out.append("\n".join(l[i:j])); i = j
        else:
            out.append(l[i]); i += 1
    return out

def spread(b, main, extra, every):
    k = 0
    for i, m in enumerate(main):
        emit(b, m)
        if (i + 1) % every == 0 and k < len(extra):
            emit(b, extra[k]); k += 1
    while k < len(extra):
        emit(b, extra[k]); k += 1

def sched(b, mfmas, first=(), vm=(), misc=(), vm_from=0, vm_to=None, misc_from=0, cap=2):
    n = len(mfmas)
    slots = [[] for _ in range(n)]
    first = list(first); vm = list(vm); misc = list(misc)
    if vm_to is None: vm_to = n
    vpos = []
    if vm:
        span = vm_to - vm_from
        for i, (pre, op) in enumerate(vm):
            g = vm_from + min(span - 1, (i * span) // len(vm) + (1 if pre else 0))
            if vpos and g <= vpos[-1]: g = min(n - 1, vpos[-1] + 1)
            vpos.append(g)
            gp = max(0, g - 1)
            if vpos[:-1] and gp < vpos[-2]: gp = vpos[-2]
            slots[gp] += [("vm", x) for x in pre]
            slots[g].append(("vm", op))
    g = 0
    for f in first:
        while g < n - 1 and len(slots[g]) >= cap: g += 1
        slots[g].append(("first", f))
        if len(slots[g]) >= (cap if len(first) > n else 1 + sum(1 for t, _ in slots[g] if t == "vm")): g = min(n - 1, g + 1)
    free = [max(0, cap - len(slots[g])) if g >= misc_from else 0 for g in range(n)]
    tot = sum(free)
    k = 0; acc = 0
    for g in range(n):
        if k >= len(misc): break
        acc += free[g]
        want = len(misc) if tot == 0 else min(len(misc), -(-acc * len(misc) // tot)) if tot < len(misc) else (acc * len(misc) + tot - 1) // tot
        take = 0
        while k < len(misc) and k < want and (take < free[g] or tot < len(misc)):
            slots[g].append(("misc", misc[k])); k += 1; take += 1
            if tot < len(misc) and take >= free[g] + 1: break
    rest = misc[k:]
    for g in range(n):
        b(mfmas[g])
        for t, x in sorted(slots[g], key=lambda e: {"first": 0, "misc": 1, "vm": 2}[e[0]]): emit(b, x)
    for x in rest: emit(b, x)

def groups(closures_with_hdr):
    return closures_with_hdr

def multi_spread(b, main, lists):
    n = len(main)
    at = [[] for _ in range(n + 1)]
    for lst in lists:
        for i, x in enumerate(lst):
            at[min(n, ((2*i + 1) * n) // (2*len(lst)))].append(x)
    for i in range(n):
        for x in at[i]: emit(b, x)
        emit(b, main[i])
    for x in at[n]: emit(b, x)

MF = "v_mfma_f32_16x16x32_bf16"
MH = "v_mfma_f32_16x16x32_f16"

def decode(b):
    b("s_and_b32 s6, s2, 7")
    b("s_lshr_b32 s7, s2, 3")
    b("s_mul_i32 s8, s7, 37")
    b("s_lshr_b32 s8, s8, 8")
    b("s_mul_i32 s9, s8, 7")
    b(f"s_sub_u32 s{S_J}, s7, s9")
    b("s_lshl_b32 s8, s8, 3")
    b(f"s_add_u32 s{S_IDX}, s6, s8")

def rot(b, dst, ls, shift):
    if ls == 0:
        b(f"s_lshl_b32 s{dst}, s{S_W}, {shift}")
    else:
        b(f"s_add_u32 s{dst}, s{S_W}, {ls}")
        b(f"s_and_b32 s{dst}, s{dst}, 3")
        b(f"s_lshl_b32 s{dst}, s{dst}, {shift}")

def p1_addr(b):
    t = T
    b(f"v_and_b32 v{V_C}, 15, v0")
    b(f"v_lshrrev_b32 v{V_GQ}, 4, v0")
    b(f"v_lshlrev_b32 v{V_L16}, 4, v0")
    b(f"v_lshrrev_b32 v{t}, 3, v0")
    b(f"v_and_b32 v{t+1}, 7, v0")
    b(f"v_xor_b32 v{t+1}, v{t+1}, v{t}")
    b(f"v_lshlrev_b32 v{t+1}, 4, v{t+1}")
    b(f"v_mul_u32_u24 v{V_XO}, 28672, v{t}")
    b(f"v_add_u32 v{V_XO}, v{V_XO}, v{t+1}")
    b(f"s_lshl_b32 s6, s{S_W}, 9")
    b(f"s_add_u32 s6, s6, s{S_IDX}")
    b("s_mul_i32 s12, s6, 896")
    b("s_add_u32 s13, s12, 229376")
    b(f"s_lshl_b32 s11, s{S_W}, 11")

def x_dma(b):
    for ksp in range(7):
        for o2 in range(2):
            b(f"s_add_u32 m0, s11, {XL + o2*1024 + 8064*ksp}")
            b(f"buffer_load_dwordx4 v{V_XO}, s[{R_X}:{R_X+3}], s{12+o2} offen offset:{128*ksp} {cfg.xflags} lds", tag=f"x{ksp}")

def p1_addr2(b):
    t = T
    b(f"v_and_b32 v{t}, 7, v{V_C}")
    b(f"v_lshrrev_b32 v{t+1}, 3, v{V_C}")
    b(f"v_lshlrev_b32 v{t+1}, 10, v{t+1}")
    b(f"v_lshl_add_u32 v{t+1}, v{t}, 7, v{t+1}")
    for par in range(2):
        b(f"v_add_u32 v{t+2}, {4*par}, v{V_GQ}") if par else b(f"v_mov_b32 v{t+2}, v{V_GQ}")
        b(f"v_xor_b32 v{t+2}, v{t+2}, v{t}")
        b(f"v_lshl_add_u32 v{t+3+par}, v{t+2}, 4, v{t+1}")
    b(f"v_lshlrev_b32 v{t+5}, 4, v{V_GQ}")
    for ls in range(4):
        rot(b, 6, ls, 11)
        b(f"v_add_u32 v{V_XB + 2*ls}, s6, v{t+3}")
        b(f"v_add_u32 v{V_XB + 2*ls + 1}, s6, v{t+4}")
        b("s_lshr_b32 s6, s6, 5")
        b(f"s_add_u32 s6, s6, {STAT}")
        b(f"v_add_u32 v{V_SA + ls}, s6, v{t+5}")
    b(f"v_mov_b32 v{V_ONE}, 0x3f803f80")
    for r in range(1, 4): b(f"v_mov_b32 v{V_ONE + r}, v{V_ONE}")
    b(f"v_lshrrev_b32 v{t}, 2, v{V_C}")
    b(f"v_cmp_eq_u32 s[{S_TMP}:{S_TMP+1}], v{t}, v{V_GQ}")
    b(f"v_and_b32 v{t}, 3, v{V_C}")
    for r in range(1, 4):
        b(f"v_cmp_eq_u32 s[{S_TMP+2*r}:{S_TMP+2*r+1}], {r}, v{t}")

def move_masks(b):
    for k in range(8): b(f"s_mov_b32 s{S_DIAG+k}, s{S_TMP+k}")

def z_base(b):
    b(f"s_lshr_b32 s6, s{S_W}, 1")
    b(f"s_lshl_b32 s7, s{S_J}, 1")
    b("s_add_u32 s8, s6, s7")
    b(f"s_and_b32 s9, s{S_W}, 1")
    b("s_lshl_b32 s6, s8, 12")
    b(f"s_lshl_b32 s7, s{S_IDX}, 7")
    b("s_add_u32 s6, s6, s7")
    b("s_lshl_b32 s7, s9, 6")
    b("s_add_u32 s10, s6, s7")
    b(f"v_mul_u32_u24 v{V_ZO1}, {Z_G}, v{V_C}")
    b(f"v_lshl_add_u32 v{V_ZO1}, v{V_GQ}, 4, v{V_ZO1}")

def wd_setup(b):
    t = T
    E, X, STEP, K2 = V_G, V_G+1, V_G+2, V_G+3
    b(f"s_lshr_b32 s6, s{S_W}, 1")
    b(f"s_lshl_b32 s7, s{S_J}, 1")
    b("s_add_u32 s8, s6, s7")
    b(f"s_and_b32 s9, s{S_W}, 1")
    b("s_lshl_b32 s6, s8, 4")
    b("s_lshl_b32 s7, s9, 3")
    b("s_add_u32 s6, s6, s7")
    b(f"v_lshrrev_b32 v{t}, 1, v{V_C}")
    b(f"v_add_u32 v{t}, s6, v{t}")
    b(f"v_and_b32 v{t+1}, 1, v{V_C}")
    b(f"v_lshl_or_b32 v{t+2}, v{t}, 1, v{t+1}")
    b(f"v_mov_b32 v{t+3}, 224")
    b(f"v_cmp_eq_u32 vcc, 1, v{t+2}")
    b(f"v_mov_b32 v{t+4}, 0")
    b(f"v_cndmask_b32 v{t}, v{t}, v{t+3}, vcc")
    b(f"v_cndmask_b32 v{t+1}, v{t+1}, v{t+4}, vcc")
    b(f"v_cvt_f32_u32 v{t+5}, v{t+1}")
    b(f"v_mul_f32 v{t+5}, 0x3e800000, v{t+5}")
    b(f"v_cvt_f32_u32 v{E}, v{t}")
    b(f"v_mul_f32 v{E}, 0x3b124925, v{E}")
    b(f"v_mul_u32_u24 v{t+1}, 4682, v{t}")
    b(f"v_lshrrev_b32 v{t+1}, 16, v{t+1}")
    b(f"v_mul_u32_u24 v{t+1}, 14, v{t+1}")
    b(f"v_sub_u32 v{t+1}, v{t}, v{t+1}")
    b(f"v_cvt_f32_u32 v{STEP}, v{t+1}")
    b(f"v_mul_f32 v{STEP}, {fbits(1.0/14)}, v{STEP}")
    b(f"v_mul_u32_u24 v{t+1}, v{V_GQ}, v{t}")
    b(f"v_mul_u32_u24 v{t+2}, 1171, v{t+1}")
    b(f"v_lshrrev_b32 v{t+2}, 16, v{t+2}")
    b(f"v_mul_u32_u24 v{t+2}, 56, v{t+2}")
    b(f"v_sub_u32 v{t+1}, v{t+1}, v{t+2}")
    b(f"v_cvt_f32_u32 v{X}, v{t+1}")
    b(f"v_mul_f32 v{X}, {fbits(1.0/56)}, v{X}")
    b(f"v_cos_f32 v{K2}, v{E}")
    b(f"v_add_f32 v{X}, v{X}, v{t+5}")
    b(f"v_add_f32 v{K2}, v{K2}, v{K2}")

def wd_gen(b, hook=None):
    E, X, STEP, K2 = V_G, V_G+1, V_G+2, V_G+3
    C = [V_G + 4 + i for i in range(8)]
    X1 = V_G + 12
    for ks in range(14):
        b(f"v_cos_f32 v{C[0]}, v{X}")
        b(f"v_add_f32 v{X1}, v{X}, v{E}")
        b(f"v_cos_f32 v{C[1]}, v{X1}")
        if ks < 13:
            b(f"v_add_f32 v{X}, v{X}, v{STEP}")
            if not cfg.trim: b(f"v_fract_f32 v{X}, v{X}")
        else:
            b("s_nop 0")
        if ks > 0:
            c = "0" if ks == 1 else v(V_CS1, 4)
            b(f"{MF} {v(V_CS1,4)}, {v(V_ONE,4)}, {v(V_WD + 4*(ks-1),4)}, {c}")
        for n in range(2, 8):
            b(f"v_fma_f32 v{C[n]}, v{K2}, v{C[n-1]}, -v{C[n-2]}")
            if n % 2 == 1:
                b(f"v_cvt_pk_bf16_f32 v{V_WD + 4*ks + (n-3)//2}, v{C[n-3]}, v{C[n-2]}")
        b(f"v_cvt_pk_bf16_f32 v{V_WD + 4*ks + 3}, v{C[6]}, v{C[7]}")
        if hook: hook(ks)
    b("s_nop 0")
    b(f"{MF} {v(V_CS1,4)}, {v(V_ONE,4)}, {v(V_WD + 4*13,4)}, {v(V_CS1,4)}")

def f_gen(b):
    t = T
    S1, G, X, CO, SI, PK, AD = V_G, V_G+4, V_G+5, V_G+8, V_G+12, V_G+16, V_G+20
    b(f"s_lshl_b32 s6, s{S_W}, 4")
    b(f"v_lshl_add_u32 v{t}, v{V_GQ}, 2, s6")
    b(f"v_cvt_f32_u32 v{t}, v{t}")
    b(f"v_mul_f32 v{S1}, 0x3c800000, v{t}")
    for q in range(1, 4): b(f"v_add_f32 v{S1+q}, 0x3c800000, v{S1+q-1}")
    b(f"s_lshl_b32 s6, s{S_W}, 9")
    b(f"s_add_u32 s6, s6, {FX}")
    b(f"v_lshl_add_u32 v{AD}, v0, 3, s6")
    b(f"v_cvt_f32_u32 v{G}, v{V_C}")
    b(f"v_mov_b32 v{t+1}, 0xbc003c00")
    b(f"v_cmp_eq_u32 vcc, 0, v{V_C}")
    for gh in range(2):
        if gh: b(f"v_add_f32 v{G}, 0x41800000, v{G}")
        for q in range(4):
            b(f"v_mul_f32 v{X+(q&1)}, v{G}, v{S1+q}")
            b(f"v_cos_f32 v{CO+q}, v{X+(q&1)}")
            b(f"v_sin_f32 v{SI+q}, -v{X+(q&1)}")
        b(f"v_cvt_pk_f16_f32 v{PK}, v{CO}, v{CO+1}")
        b(f"v_cvt_pk_f16_f32 v{PK+1}, v{CO+2}, v{CO+3}")
        b(f"v_cvt_pk_f16_f32 v{PK+2}, v{SI}, v{SI+1}")
        b(f"v_cvt_pk_f16_f32 v{PK+3}, v{SI+2}, v{SI+3}")
        if gh == 0:
            b(f"v_cndmask_b32 v{PK+2}, v{PK+2}, v{t+1}, vcc")
            b(f"v_cndmask_b32 v{PK+3}, v{PK+3}, v{t+1}, vcc")
        b(f"ds_write_b64 v{AD}, {v(PK,2)} offset:{(gh*2+0)*2048}")
        b(f"ds_write_b64 v{AD}, {v(PK+2,2)} offset:{(gh*2+1)*2048}")

def fm_addr(b):
    for ls in range(4):
        rot(b, 6, ls, 9)
        b(f"s_add_u32 s6, s6, {FX}")
        b(f"v_lshl_add_u32 v{V_G+ls}, v0, 3, s6")
    for lt in range(4):
        b(f"s_lshl_b32 s6, s{S_TT+lt}, 12")
        b(f"s_add_u32 s6, s6, {MX}")
        b(f"v_add_u32 v{V_G+4+lt}, s6, v{V_L16}")

def f_read(b):
    out = []
    for ls in range(4):
        for gh in range(2):
            for sg in range(2):
                reg = V_F + ((gh*2 + sg)*2 + (ls >> 1))*4 + 2*(ls & 1)
                out.append(lambda reg=reg, ls=ls, o=(gh*2+sg)*2048: b(f"ds_read_b64 {v(reg,2)}, v{V_G+ls} offset:{o}", tag="f"))
    return out

def mreg(lt, ks, pq): return ((lt*2 + ks)*2 + pq)*4

def t0_of_tt(b, dst, tt_sreg):
    b(f"s_sub_u32 s{dst}, 64, s{S_IDX}")
    b(f"s_cmp_eq_u32 s{S_IDX}, 0")
    b(f"s_cselect_b32 s{dst}, 32, s{dst}")
    b(f"s_cmp_lt_u32 s{tt_sreg}, 2")
    b(f"s_cselect_b32 s{dst}, s{S_IDX}, s{dst}")
    b(f"s_and_b32 s9, s{tt_sreg}, 1")
    b("s_lshl_b32 s9, s9, 10")
    b(f"s_add_u32 s{dst}, s{dst}, s9")

def m_gen(b):
    t = T
    X, DX, CO, SI, PK, P, Q, AD = V_G, V_G+1, V_G+2, V_G+3, V_G+4, V_G+8, V_G+12, V_G+16
    t0_of_tt(b, 8, S_W)
    b(f"v_lshl_add_u32 v{t}, v{V_C}, 6, s8")
    b(f"v_cvt_f32_u32 v{DX}, v{t}")
    b(f"v_mul_f32 v{DX}, 0x3a000000, v{DX}")
    selP = [0x03020100, 0x03020100, 0x0c0c0100, 0x01000c0c]
    selQ = [0x01000302, 0x01000302, 0x0c0c0302, 0x03020c0c]
    sgnQ = [0x80000000, 0x00008000, 0, 0]
    neg = [0, 0x80000000, 0, 0]
    def pick(dst, tbl):
        b(f"s_cmp_lt_u32 s{S_W}, 2")
        b(f"s_cselect_b32 s9, {hex(tbl[0])}, 0") if False else None
        b(f"s_mov_b32 s9, {hex(tbl[0])}"); b(f"s_mov_b32 s12, {hex(tbl[1])}")
        b("s_cselect_b32 s9, s9, s12")
        b(f"s_mov_b32 s13, {hex(tbl[2])}"); b(f"s_mov_b32 s12, {hex(tbl[3])}")
        b("s_cselect_b32 s13, s13, s12")
        b(f"s_cmp_eq_u32 s{S_IDX}, 0")
        b(f"s_cselect_b32 s{dst}, s13, s9")
    pick(S_TMP, selP); pick(S_TMP+1, selQ); pick(S_TMP+2, sgnQ); pick(S_TMP+3, neg)
    b(f"v_xor_b32 v{DX}, s{S_TMP+3}, v{DX}")
    b(f"s_lshl_b32 s6, s{S_W}, 12")
    b(f"s_add_u32 s6, s6, {MX}")
    b(f"v_add_u32 v{AD}, s6, v{V_L16}")
    b(f"v_lshlrev_b32 v{t}, 2, v{V_GQ}")
    b(f"v_cvt_f32_u32 v{t}, v{t}")
    for ks in range(2):
        if ks: b(f"v_add_f32 v{t}, 0x41800000, v{t}")
        b(f"v_mul_f32 v{X}, v{t}, v{DX}")
        for j in range(4):
            b(f"v_cos_f32 v{CO}, v{X}")
            b(f"v_sin_f32 v{SI}, v{X}")
            b(f"v_add_f32 v{X}, v{X}, v{DX}")
            b(f"v_cvt_pk_f16_f32 v{PK}, v{CO}, v{SI}")
            b(f"v_perm_b32 v{P+j}, v{PK}, v{PK}, s{S_TMP}")
            b(f"v_perm_b32 v{Q+j}, v{PK}, v{PK}, s{S_TMP+1}")
            b(f"v_xor_b32 v{Q+j}, s{S_TMP+2}, v{Q+j}")
        b(f"ds_write_b128 v{AD}, {v(P,4)} offset:{(ks*2+0)*1024}")
        b(f"ds_write_b128 v{AD}, {v(Q,4)} offset:{(ks*2+1)*1024}")

def m_read(b):
    out = []
    for lt in range(4):
        for ks in range(2):
            for pq in range(2):
                out.append(lambda lt=lt, ks=ks, pq=pq: b(f"ds_read_b128 {a(mreg(lt,ks,pq),4)}, v{V_G+4+lt} offset:{(ks*2+pq)*1024}", tag="m"))
    return out

def prefill_start(b):
    for r in range(4): b(f"v_mov_b32 v{V_NEG+r}, -1")
    b(f"s_add_u32 s7, s10, {16*Z_G}")
    b(f"buffer_store_dwordx4 {v(V_NEG,4)}, v{V_ZO1}, s[{R_WS}:{R_WS+3}], s10 offen sc1", tag="pre")
    b(f"buffer_store_dwordx4 {v(V_NEG,4)}, v{V_ZO1}, s[{R_WS}:{R_WS+3}], s7 offen sc1", tag="pre")
    own_line(b, 6)
    b(f"v_mov_b32 v{T}, 0")
    b("s_mov_b64 exec, 1")
    b(f"buffer_store_dword v{T}, v{T}, s[{R_WS}:{R_WS+3}], s6 offen sc1", tag="pre")
    b("s_mov_b64 exec, -1")

def arrive0(b):
    lab = b.newlabel("L_arr")
    b.notrack = True
    b(f"s_cmp_eq_u32 s{S_W}, 0")
    b(f"s_cbranch_scc0 {lab}")
    b("s_and_b32 s6, s2, 3")
    b("s_lshl_b32 s6, s6, 6")
    b(f"v_mov_b32 v{T}, 1")
    b(f"v_mov_b32 v{T+1}, 0")
    b("s_mov_b64 exec, 1")
    b(f"buffer_atomic_add v{T}, v{T+1}, s[{R_DBG}:{R_DBG+3}], s6 offen sc1")
    b("s_mov_b64 exec, -1")
    b.label(lab)
    b.notrack = False

V_B0 = 229 + 25
def b0_load(b, reg):
    b(f"v_and_b32 v{reg}, 3, v0")
    b(f"v_lshlrev_b32 v{reg}, 6, v{reg}")
    b(f"buffer_load_dword v{reg}, v{reg}, s[{R_DBG}:{R_DBG+3}], 0 offen sc1", tag="b0")

def b0_check(b, reg):
    b.wait_vm("b0")
    l2 = b.newlabel("L_b0"); l3 = b.newlabel("L_b0d")
    b("s_mov_b32 s12, 0")
    b.label(l2)
    b.notrack = True
    b(f"v_cmp_gt_u32 vcc, 63, v{reg}")
    b("s_cmp_eq_u64 vcc, 0")
    b(f"s_cbranch_scc1 {l3}")
    b("s_add_u32 s12, s12, 1")
    b("s_cmp_ge_u32 s12, 0x10000")
    b(f"s_cbranch_scc1 {l3}")
    b(f"v_and_b32 v{reg}, 3, v0")
    b(f"v_lshlrev_b32 v{reg}, 6, v{reg}")
    b(f"buffer_load_dword v{reg}, v{reg}, s[{R_DBG}:{R_DBG+3}], 0 offen sc1")
    b("s_waitcnt vmcnt(0)")
    b(f"s_branch {l2}")
    b.label(l3)
    b.notrack = False

def guarded(b, regs, reload, name):
    t0 = V_GT
    n = len(regs)
    def tree():
        b(f"v_max3_u32 v{t0}, v{regs[0]}, v{regs[1]}, v{regs[2]}")
        i = 3
        while i + 1 < n:
            b(f"v_max3_u32 v{t0}, v{t0}, v{regs[i]}, v{regs[i+1]}"); i += 2
        if i < n: b(f"v_max_u32 v{t0}, v{t0}, v{regs[i]}")
        b(f"v_cmp_eq_u32 vcc, -1, v{t0}")
        b("s_cmp_eq_u64 vcc, 0")
    slow = b.newlabel("L_slow"); back = b.newlabel("L_back")
    if cfg.x_noguard: return
    tree()
    b(f"s_cbranch_scc0 {slow}")
    b.label(back)
    b.slow.append((slow, back, reload, tree))

def emit_slow(b):
    for (slow, back, reload, tree) in b.slow:
        loop = b.newlabel("L_sl")
        b.label(slow)
        b.notrack = True
        b("s_mov_b32 s12, 0")
        b.label(loop)
        if cfg.count_slow: b(f"s_add_u32 s98, s98, {1 << (4*min(b.slow.index((slow, back, reload, tree)), 7))}") if b.slow.index((slow, back, reload, tree)) < 8 else b("s_add_u32 s99, s99, " + str(1 << (4*(b.slow.index((slow, back, reload, tree)) - 8))))
        reload()
        b("s_waitcnt vmcnt(0)")
        tree()
        b(f"s_cbranch_scc1 {back}")
        b("s_add_u32 s12, s12, 1")
        b("s_cmp_lt_u32 s12, 0x4000")
        b(f"s_cbranch_scc1 {loop}")
        b(f"s_branch {back}")
        b.notrack = False

def w_prefetch(b):
    b("s_mul_i32 s6, s2, 7168")
    b(f"s_lshl_b32 s7, s{S_W}, 10")
    b("s_add_u32 s6, s6, s7")
    b("s_add_u32 s7, s6, 4096")
    for n in range(2):
        b(f"buffer_load_dwordx4 {a(A_PF + 8*n, 4)}, v{V_L16}, s[{R_W1}:{R_W1+3}], s{6+n} offen", tag="pf")
        b(f"buffer_load_dwordx4 {a(A_PF + 8*n + 4, 4)}, v{V_L16}, s[{R_W2}:{R_W2+3}], s{6+n} offen", tag="pf")

def touch_xres(b):
    b(f"v_mul_u32_u24 v{T}, 57344, v{V_C}")
    b(f"s_lshl_b32 s6, s{S_J}, 7")
    b(f"s_add_u32 s6, s6, s{S_XR}")
    b("s_mov_b64 exec, 0xffff")
    b(f"buffer_load_dword {a(254)}, v{T}, s[{R_X}:{R_X+3}], s6 offen", tag="tch")
    b("s_mov_b64 exec, -1")

V_TW1, V_TW2 = 8, 9
def touch_w_setup(b):
    b(f"v_lshrrev_b32 v{V_TW1}, 2, v0")
    b(f"v_mul_u32_u24 v{V_TW1}, 3584, v{V_TW1}")
    b(f"v_and_b32 v{V_TW2}, 3, v0")
    b(f"v_lshl_add_u32 v{V_TW1}, v{V_TW2}, 7, v{V_TW1}")
    b(f"v_lshlrev_b32 v{V_TW2}, 7, v0")
    b(f"s_lshr_b32 s6, s{S_IDX}, 3")
    b("s_mul_i32 s7, s6, 112")
    b(f"s_lshl_b32 s8, s{S_W}, 4")
    b("s_add_u32 s7, s7, s8")
    b("s_mul_i32 s7, s7, 3584")
    b(f"s_lshl_b32 s8, s{S_J}, 9")
    b("s_add_u32 s12, s7, s8")
    b("s_mul_i32 s7, s6, 448")
    b(f"s_lshl_b32 s8, s{S_W}, 6")
    b("s_add_u32 s7, s7, s8")
    b("s_lshl_b32 s7, s7, 7")
    b(f"s_mul_i32 s8, s{S_J}, 229376")
    b("s_add_u32 s13, s7, s8")
def touch_w_list(b):
    out = []
    for n in range(2):
        def f1(n=n):
            if n: b(f"s_add_u32 s12, s12, {64*3584}")
            b(f"buffer_load_dword {a(253)}, v{V_TW1}, s[{R_W1}:{R_W1+3}], s12 offen", tag="tch")
        out.append(f1)
    for n in range(2):
        def f2(n=n):
            if n: b(f"s_add_u32 s13, s13, {256*128}")
            b(f"buffer_load_dword {a(252)}, v{V_TW2}, s[{R_W2}:{R_W2+3}], s13 offen", tag="tch")
        out.append(f2)
    return out

def own_line(b, dst):
    b(f"s_mul_i32 s{dst}, s{S_IDX}, 7")
    b(f"s_add_u32 s{dst}, s{dst}, s{S_J}")
    b(f"s_lshl_b32 s{dst}, s{dst}, 2")
    b(f"s_add_u32 s{dst}, s{dst}, s{S_W}")
    b(f"s_lshl_b32 s{dst}, s{dst}, 7")
    b(f"s_add_u32 s{dst}, s{dst}, {WS_FL}")

def p2_scalars(b):
    b(f"s_and_b32 s6, s{S_W}, 1")
    b("s_lshl_b32 s7, s6, 1")
    for lt in range(4): b(f"s_xor_b32 s{S_TT+lt}, s7, {lt}")
    b(f"s_lshr_b32 s7, s{S_W}, 1")
    b("s_mul_i32 s7, s7, 7")
    b("s_lshl_b32 s9, s6, 2")
    b("s_add_u32 s9, s9, s7")
    b(f"s_mov_b32 s{S_PI}, s9")
    for p in range(1, 3): b(f"s_add_u32 s{S_PI+p}, s9, {p}")
    b(f"s_add_u32 s{S_PI+3}, s7, 3")
    b(f"s_mul_i32 s7, s{S_IDX}, {Z_G}")
    for p in range(4):
        b(f"s_lshl_b32 s8, s{S_PI+p}, 12")
        b(f"s_add_u32 s{S_ZL+p}, s7, s8")
        b(f"s_lshl_b32 s{S_P32+p}, s{S_PI+p}, 5")
    b(f"s_cmp_eq_u32 s{S_W}, 0")
    b(f"s_cselect_b32 s{S_MASK}, 0xffff, 0")
    b(f"s_mov_b32 s{S_MASK+1}, 0")
    b(f"s_mul_i32 s{S_RW}, s{S_W}, 24576")
    b(f"s_add_u32 s{S_RW}, s{S_RW}, {RING}")
    b(f"s_lshl_b32 s7, s{S_J}, 9")
    b(f"s_lshl_b32 s9, s{S_W}, 7")
    b(f"s_add_u32 s{S_W1B}, s7, s9")
    b(f"s_mov_b32 s{S_Z0}, s10")
    b(f"s_add_u32 s{S_Z1}, s10, {16*Z_G}")
    t0_of_tt(b, 8, S_W)
    b(f"s_mul_i32 s{S_XR}, s8, 896")

def inbox_scalars(b):
    b(f"s_mul_i32 s11, s{S_IDX}, {PB_G}")
    b(f"s_lshl_b32 s7, s{S_W}, 11")
    b("s_add_u32 s11, s11, s7")
    b(f"s_add_u32 s11, s11, {WS_PB}")
    b(f"s_lshl_b32 s13, s{S_J}, 13")
    b("s_add_u32 s13, s13, s11")
    for p in range(6):
        b(f"s_add_u32 s6, s{S_J}, {p+1}")
        b("s_sub_u32 s7, s6, 7")
        b("s_min_u32 s6, s6, s7")
        b(f"s_mul_i32 s7, s6, {7*8192}")
        b(f"s_add_u32 s{S_IN+p}, s13, s7")

def p2_scalars_late(b):
    b(f"s_lshl_b32 s{S_HWB}, s{S_W}, 13")
    b(f"s_lshl_b32 s6, s{S_J}, 8")
    b(f"s_lshl_b32 s7, s{S_W}, 6")
    b("s_add_u32 s6, s6, s7")
    b("s_mul_i32 s10, s6, 896")
    b(f"s_mul_i32 s11, s{S_IDX}, {PB_G}")
    b(f"s_lshl_b32 s7, s{S_W}, 11")
    b("s_add_u32 s11, s11, s7")
    b(f"s_add_u32 s11, s11, {WS_PB}")
    b(f"s_mul_i32 s12, s{S_J}, {7*8192}")
    b("s_add_u32 s12, s12, s11")
    for p in range(7):
        b(f"s_add_u32 s6, s{S_J}, {p+1}")
        b("s_sub_u32 s7, s6, 7")
        b("s_min_u32 s6, s6, s7")
        b("s_lshl_b32 s7, s6, 7")
        b(f"s_add_u32 s{S_W2+p}, s10, s7")
        if p < 6:
            b("s_lshl_b32 s7, s6, 13")
            b(f"s_add_u32 s{S_PB+p}, s12, s7")
    b(f"s_lshl_b32 s10, s{S_J}, 7")
    b(f"s_lshl_b32 s7, s{S_W}, 5")
    b("s_add_u32 s10, s10, s7")
    b(f"s_sub_u32 s8, 64, s{S_IDX}")
    b(f"s_cmp_eq_u32 s{S_IDX}, 0")
    b("s_cselect_b32 s8, 32, s8")
    for tt in range(4):
        src = f"s{S_IDX}" if tt < 2 else "s8"
        b(f"s_add_u32 s6, {src}, {1024*(tt&1)}")
        b("s_mul_i32 s6, s6, 896")
        b(f"s_add_u32 s{S_O+tt}, s6, s10")

def dma_addr(b):
    t = T
    b(f"v_lshrrev_b32 v{t}, 3, v0")
    b(f"v_bfe_u32 v{t+1}, v{t}, 1, 2")
    b(f"v_lshlrev_b32 v{t+1}, 1, v{t+1}")
    b(f"v_and_b32 v{t+2}, 7, v0")
    b(f"v_xor_b32 v{t+2}, v{t+2}, v{t+1}")
    b(f"v_lshlrev_b32 v{t+2}, 4, v{t+2}")
    b(f"v_mul_u32_u24 v{t+1}, 3584, v{t}")
    b(f"v_add_u32 v{V_W1O}, v{t+1}, v{t+2}")
    b(f"v_add_u32 v{V_W1O+1}, {8*3584 - 1024}, v{V_W1O}")
    b(f"v_sub_u32 v{t+3}, v{t+2}, v{t+1}")
    b(f"v_add_u32 v{V_W1O+2}, {15*3584 - 2048 + 4096}, v{t+3}")
    b(f"v_add_u32 v{V_W1O+3}, {7*3584 - 3072 + 4096}, v{t+3}")
    b(f"v_sub_u32 v{t+3}, 448, v{t}")
    b(f"v_mov_b32 v{t+4}, 224")
    b(f"v_cmp_eq_u32 vcc, 0, v{t}")
    b(f"v_mul_u32_u24 v{t+1}, 896, v{t}")
    b(f"v_cndmask_b32 v{t+3}, v{t+3}, v{t+4}, vcc")
    b(f"v_mul_u32_u24 v{t+3}, 3584, v{t+3}")
    b(f"v_add_u32 v{t+3}, v{t+3}, v{t+2}")
    b(f"v_subrev_u32 v{V_AUX}, 2048, v{t+3}")
    b(f"v_add_u32 v{V_W2O}, v{t+1}, v{t+2}")
    for n in range(1, 4):
        b(f"v_add_u32 v{V_W2O+n}, {n*(8*896 - 1024)}, v{V_W2O}")
    b(f"v_mul_u32_u24 v{t}, {XRS}, v{V_C}")
    b(f"v_lshl_add_u32 v{t}, v{V_GQ}, 4, v{t}")
    for lt in range(4):
        b(f"s_mul_i32 s6, s{S_TT+lt}, {16*XRS}")
        b(f"v_add_u32 v{V_XA+lt}, s6, v{t}")
    b(f"v_lshlrev_b32 v{t}, 3, v{V_GQ}")
    b(f"v_sub_u32 v{t+1}, v{V_C}, v{t}")
    b(f"v_sub_u32 v{t+2}, 16, v{V_C}")
    b(f"v_sub_u32 v{t+2}, v{t+2}, v{t}")
    b(f"v_mov_b32 v{t+3}, 0x3f80")
    b(f"v_mov_b32 v{t+4}, 0x3f800000")
    b(f"v_mov_b32 v{t+5}, 0")
    for (dst, src) in ((V_SEL1, t+1), (V_SEL2, t+2)):
        for m in range(4):
            b(f"v_cmp_eq_u32 vcc, {2*m}, v{src}")
            b(f"v_cmp_eq_u32 s[6:7], {2*m+1}, v{src}")
            b(f"v_cndmask_b32 v{dst+m}, v{t+5}, v{t+3}, vcc")
            b(f"v_cndmask_b32 v{dst+m}, v{dst+m}, v{t+4}, s[6:7]")
    for m in range(4):
        b(f"v_xor_b32 v{V_NSEL2+m}, 0x80008000, v{V_SEL2+m}")


def p2_addr(b):
    t = T
    for p in range(4): b(f"s_sub_u32 s{S_N32+p}, 864, s{S_P32+p}")
    b(f"v_lshlrev_b32 v{t}, 3, v{V_C}")
    b(f"v_lshl_add_u32 v{V_ZO}, v{V_GQ}, 9, v{t}")
    b(f"s_lshl_b32 s7, s{S_PI}, 12")
    b(f"s_lshl_b32 s8, s{S_PI+3}, 12")
    for lt in range(4):
        b(f"s_lshl_b32 s6, s{S_TT+lt}, 10")
        b("s_add_u32 s9, s6, s7")
        b(f"v_add_u32 v{V_HW+lt}, s9, v{V_L16}")
        if lt < 2:
            b("s_add_u32 s9, s6, s8")
            b(f"v_add_u32 v{V_HWS+lt}, s9, v{V_L16}")
        rot(b, 6, lt, 10)
        b(f"v_add_u32 v{V_HB+lt}, s6, v{V_L16}")
    b(f"v_lshrrev_b32 v{t}, 2, v{V_C}")
    b(f"v_lshl_add_u32 v{t}, v{V_GQ}, 2, v{t}")
    b(f"v_bfe_u32 v{t+1}, v{t}, 1, 2")
    b(f"v_and_b32 v{t+2}, 3, v0")
    b(f"v_lshlrev_b32 v{t+2}, 3, v{t+2}")
    b(f"v_lshl_add_u32 v{t+2}, v{t}, 7, v{t+2}")
    b(f"v_add_u32 v{t+4}, s{S_RW}, v{t+2}")
    for u in range(4):
        b(f"v_xor_b32 v{t+3}, {u}, v{t+1}")
        b(f"v_lshl_add_u32 v{V_TR1+u}, v{t+3}, 5, v{t+4}")
    b(f"v_xor_b32 v{t+3}, s{S_W}, v{t+1}")
    b(f"v_lshl_add_u32 v{t+3}, v{t+3}, 5, v{t+2}")
    b(f"v_add_u32 v{V_TR2}, {RING}, v{t+3}")
    b(f"v_add_u32 v{V_TR2+1}, {RING+49152}, v{t+3}")
    b(f"v_mov_b32 v{V_TR2H}, v{t+3}")

def hres_addr(b):
    t = T
    b(f"s_lshl_b32 s6, s{S_J}, 6")
    b(f"s_lshl_b32 s7, s{S_W}, 4")
    b("s_add_u32 s6, s6, s7")
    b(f"v_lshl_add_u32 v{t+4}, v{V_GQ}, 2, s6")
    b("s_lshl_b32 s6, s6, 8")
    b(f"v_add_u32 v{t+5}, s6, v{V_L16}")
    for r in range(4):
        A = V_HA + r
        b(f"v_add_u32 v{t}, {r}, v{t+4}") if r else b(f"v_mov_b32 v{t}, v{t+4}")
        b(f"v_sub_u32 v{t+2}, 448, v{t}")
        b(f"v_mov_b32 v{t+3}, 0")
        b(f"v_cmp_eq_u32 vcc, 224, v{t}")
        b(f"v_add_u32 v{t+1}, {2*r}, v{t+5}")
        b(f"v_cndmask_b32 v{t+2}, v{t+2}, v{t+3}, vcc")
        b(f"v_lshrrev_b32 v{t+3}, 4, v{t+2}")
        b(f"v_lshlrev_b32 v{A}, 12, v{t+3}")
        b(f"v_bfe_u32 v{t+3}, v{t+2}, 2, 2")
        b(f"v_lshl_add_u32 v{t+3}, v{t+3}, 4, v{V_C}")
        b(f"v_lshl_add_u32 v{A}, v{t+3}, 4, v{A}")
        b(f"v_and_b32 v{t+3}, 3, v{t+2}")
        b(f"v_lshl_add_u32 v{A}, v{t+3}, 1, v{A}")
        b(f"v_cmp_gt_u32 vcc, 224, v{t}")
        b(f"v_add_u32 v{A}, 8, v{A}")
        b(f"v_cndmask_b32 v{A}, v{A}, v{t+1}, vcc")

def p1_loop(b):
    stages = cfg.stages
    XBUF = [V_XF, V_XF + 16, V_G + 8]
    def xread(ks):
        ksp, par = ks >> 1, ks & 1
        return [(lambda ls=ls: b(f"ds_read_b128 {v(XBUF[ks % 3] + 4*ls, 4)}, v{V_XB + 2*ls + par} offset:{XL + ksp*8192}", tag=f"xf{ks}")) for ls in range(4)]
    pbp = pb_prefill(b) if (cfg.pre_at == "loop" and not cfg.x_nopre) else []
    rg = []
    for k in range(cfg.ring_early): rg += w1_groups(b, k)
    wk = (record(p2_addr) + record(dma_addr)) if cfg.addr_in_loop else []
    tw = touch_w_list(b) if cfg.touch_w else []
    for si, stg in enumerate(stages):
        b.wait_vm([f"x{stg[-1]}", "pre"])
        if si == 0 or (si == len(stages) - 1 and cfg.ring_early): b("s_waitcnt lgkmcnt(0)")
        b("s_barrier")
        if si == 0 and cfg.early_arrive is None: arrive0(b)
        stamp(b, 3 + si)
        kss = [k for p in stg for k in (2*p, 2*p+1)]
        for f in xread(kss[0]) + xread(kss[1]): f()
        if si == 0:
            fm = f_read(b) + ([] if cfg.m_late else m_read(b))
        for n, ks in enumerate(kss):
            nxt = kss[n+2] if n + 2 < len(kss) else None
            b.wait_lg(f"xf{ks}")
            xf = XBUF[ks % 3]
            wd = v(V_WD + 4*ks, 4)
            z = ks == 0
            mf = [f"{MF} {v(V_QQ,4)}, {v(xf,4)}, {v(xf,4)}, {'0' if z else v(V_QQ,4)}",
                  f"{MF} {v(V_SS,4)}, {v(V_ONE,4)}, {v(xf,4)}, {'0' if z else v(V_SS,4)}"]
            for ls in range(4):
                mf.append(f"{MF} {v(V_ACC + 4*ls, 4)}, {v(xf + 4*ls, 4)}, {wd}, {'0' if z else v(V_ACC + 4*ls, 4)}")
            fill = xread(nxt) if nxt is not None else []
            nf = 2 if cfg.m_late else 6
            fill = fill + fm[:nf]; fm = fm[nf:]
            if ks >= 2 and pbp: fill.append(pbp.pop(0))
            if tw and ks % 3 == 1: fill.append(tw.pop(0))
            if wk:
                nw = (len(wk) + 13 - ks) // (14 - ks)
                sched(b, mf, first=fill, misc=wk[:nw], cap=3); wk = wk[nw:]
            elif ks >= 8 and rg:
                n = (len(rg) + 13 - ks) // (14 - ks)
                sched(b, mf, first=fill, vm=rg[:n], cap=3); rg = rg[n:]
            else:
                weave(b, mf, fill, per=2)

def stats_core(b, SS, QQ, scale4):
    b(f"v_cndmask_b32 v{QQ}, v{QQ}, v{QQ+1}, s[{S_M1}:{S_M1+1}]")
    b(f"v_mul_f32 v{SS}, 0x3b124925, v{SS}")
    b(f"v_cndmask_b32 v{QQ}, v{QQ}, v{QQ+2}, s[{S_M1+2}:{S_M1+3}]")
    b(f"v_cndmask_b32 v{QQ}, v{QQ}, v{QQ+3}, s[{S_M1+4}:{S_M1+5}]")
    b(f"v_mul_f32 v{QQ}, 0x3b124925, v{QQ}")
    b(f"v_fma_f32 v{QQ}, -v{SS}, v{SS}, v{QQ}")
    b(f"v_max_f32 v{QQ}, 0, v{QQ}")
    if scale4:
        b(f"v_mul_f32 v{QQ}, 0x3e800000, v{QQ}")
    b(f"v_add_f32 v{QQ}, 0x3727c5ac, v{QQ}")
    b(f"v_rsq_f32 v{QQ}, v{QQ}")

def p1_tail(b, xl=None):
    t = T
    xl = xl if xl is not None else []
    def X():
        if xl: xl.pop(0)()
    stamp(b, 6)
    stats_core(b, V_SS, V_QQ, False)
    b(f"s_lshl_b32 s6, s{S_W}, 6")
    b(f"s_add_u32 s6, s6, {STAT}")
    b(f"v_lshl_add_u32 v{t}, v{V_C}, 2, s6")
    b(f"v_mul_f32 v{V_SS}, v{V_QQ}, v{V_SS}")
    b(f"v_add_f32 v{V_QQ}, v{V_QQ}, v{V_QQ}")
    b(f"v_mul_f32 v{V_SS}, -2.0, v{V_SS}")
    b(f"s_mov_b64 exec, s[{S_DIAG}:{S_DIAG+1}]")
    b(f"ds_write_b32 v{t}, v{V_QQ}")
    b(f"ds_write_b32 v{t}, v{V_SS} offset:256")
    b("s_mov_b64 exec, -1")
    b("s_waitcnt lgkmcnt(0)")
    b("s_barrier")
    for ls in range(4):
        b(f"ds_read_b128 {v(V_AB + 8*ls, 4)}, v{V_SA + ls}", tag=f"ab{ls}")
        b(f"ds_read_b128 {v(V_AB + 8*ls + 4, 4)}, v{V_SA + ls} offset:256", tag=f"ab{ls}")
    if xl:
        b(f"s_mul_i32 s96, s{S_W}, {16*XRS}")
    X()
    for ls in range(4):
        b.wait_lg(f"ab{ls}")
        al, be, ac = V_AB + 8*ls, V_AB + 8*ls + 4, V_ACC + 4*ls
        for h in range(2):
            b(f"v_pk_mul_f32 {v(be+2*h,2)}, {v(be+2*h,2)}, {v(V_CS1,2)} op_sel_hi:[1,0]")
        for h in range(2):
            b(f"v_pk_fma_f32 {v(ac+2*h,2)}, {v(al+2*h,2)}, {v(ac+2*h,2)}, {v(be+2*h,2)}")
        for h in range(2):
            b(f"v_cvt_pk_f16_f32 v{V_A + 2*ls + h}, v{ac+2*h}, v{ac+2*h+1}")
        if ls in (1, 3): X()
    stamp(b, 7)
    for gh in range(2):
        for sg in range(2):
            d = V_D2 + (gh*2 + sg)*4
            b(f"{MH} {v(d,4)}, {v(V_A,4)}, {v(V_F + ((gh*2+sg)*2)*4,4)}, 0")
    for gh in range(2):
        for sg in range(2):
            d = V_D2 + (gh*2 + sg)*4
            b(f"{MH} {v(d,4)}, {v(V_A+4,4)}, {v(V_F + ((gh*2+sg)*2+1)*4,4)}, {v(d,4)}")
    X()
    for gh in range(2):
        for r in range(4):
            b(f"v_cvt_pk_f16_f32 v{V_ZP + 4*gh + r}, v{V_D2 + (gh*2)*4 + r}, v{V_D2 + (gh*2+1)*4 + r}")
        b(f"buffer_store_dwordx4 {v(V_ZP + 4*gh, 4)}, v{V_ZO1}, s[{R_WS}:{R_WS+3}], s{S_Z0+gh} offen sc1", tag="zst")

def xres_pad(b):
    b(f"s_mul_i32 s96, s{S_W}, {16*XRS}")
    b(f"v_lshrrev_b32 v{T}, 1, v0")
    b(f"v_mul_u32_u24 v{T}, {XRS}, v{T}")
    b(f"v_and_b32 v{T+1}, 1, v0")
    b(f"v_lshl_add_u32 v{T}, v{T+1}, 4, v{T}")
    b(f"v_add_u32 v{T}, s96, v{T}")
    for r in range(4): b(f"v_mov_b32 v{T+4+r}, 0")
    b("s_mov_b32 exec_hi, 0")
    b(f"ds_write_b128 v{T}, {v(T+4,4)} offset:{XL+896}")
    b("s_mov_b32 exec_hi, -1")

def xres_list(b):
    out = []
    for c in range(16):
        def f(c=c):
            if cfg.xres_rot:
                b(f"s_lshl_b32 s12, s{S_J}, 1")
                b(f"s_add_u32 s12, s12, {c}")
                b("s_and_b32 s12, s12, 15")
                b(f"s_mul_i32 s13, s12, {XRS}")
                b("s_add_u32 s13, s13, s96")
                b(f"s_add_u32 m0, s13, {XL}") if XL else b("s_mov_b32 m0, s13")
                b("s_mul_i32 s12, s12, 57344")
                b(f"s_add_u32 s95, s{S_XR}, s12")
            else:
                b(f"s_add_u32 m0, s96, {XL + c*XRS}")
                b(f"s_add_u32 s95, s{S_XR}, {c*(896 if cfg.x_xlin else 57344)}")
            if not cfg.x_noexec: b("s_mov_b32 exec_hi, 0x00ffffff")
            b(f"buffer_load_dwordx4 v{V_L16}, s[{R_X}:{R_X+3}], s95 offen lds", tag="xres")
            if not cfg.x_noexec: b("s_mov_b32 exec_hi, -1")
        out.append(f)
    return out

def w1_groups(b, k):
    slot = k % 6
    out = []
    for n in range(4):
        pre = []
        if n == 0:
            pre = [f"s_add_u32 m0, s{S_RW}, {slot*4096}", (f"s_add_u32 s95, s{S_W1B}, {16*k*3584}" if k else f"s_mov_b32 s95, s{S_W1B}")]
        if n == 2 and not k == 0: pre = [f"s_add_u32 s96, s{S_W1B}, {(433 - 16*k)*3584 - 4096}"]
        if n == 3 and k == 0: pre = [f"s_add_u32 s96, s{S_W1B}, {(433 - 16*k)*3584 - 4096}"]
        def f(n=n):
            if n < 2: vo, so = V_W1O + n, "s95"
            elif k == 0 and n == 2: vo, so = V_AUX, f"s{S_W1B}"
            else: vo, so = V_W1O + n, "s96"
            off = f" offset:{1024*n}" if n else ""
            b(f"buffer_load_dwordx4 v{vo}, s[{R_W1}:{R_W1+3}], {so} offen{off} lds", tag=f"w1_{k}")
        out.append((pre, f))
    return out

def flat(gs):
    out = []
    for pre, op in gs: out += list(pre) + [op]
    return out
def w1_dma(b, k): return flat(w1_groups(b, k))

def units():
    return [(p, lt) for lt in range(4) for p in range(4) if not (p == 3 and lt >= 2)]
def preg(p, lt): return V_P + (p*4 + lt)*4 if p < 3 else V_PS + lt*4
def qreg(p, lt): return V_Q + (p*4 + lt)*4 if p < 3 else V_QS + lt*4

A_W = 64
def x_init(b, extra=()):
    us = units()
    AD = T
    def rd(i):
        p, lt = us[i]; w = A_W + 8*(i & 3)
        return [f"v_add_u32 v{AD + 2*(i&1)}, s{S_P32+p}, v{V_XA+lt}",
                f"v_add_u32 v{AD + 2*(i&1) + 1}, s{S_N32+p}, v{V_XA+lt}",
                lambda: b(f"ds_read_b128 {a(w,4)}, v{AD + 2*(i&1)} offset:{XL}", tag=f"xw{i}"),
                lambda: b(f"ds_read_b128 {a(w+4,4)}, v{AD + 2*(i&1) + 1} offset:{XL}", tag=f"xw{i}")]
    for lt in range(4):
        b(f"ds_read_b32 v{V_E + 4*lt}, v{V_XA+lt} offset:{XL+448}", tag="xe")
    for i in range(3):
        for f in rd(i): emit(b, f)
    extra = list(extra)
    for i, (p, lt) in enumerate(us):
        b.wait_lg(f"xw{i}")
        w = A_W + 8*(i & 3); P, Q = preg(p, lt), qreg(p, lt)
        mf = [f"{MF} {v(P,4)}, {v(V_SEL1,4)}, {a(w,4)}, 0",
              f"{MF} {v(Q,4)}, {v(V_SEL1,4)}, {a(w,4)}, 0",
              f"{MF} {v(P,4)}, {v(V_SEL2,4)}, {a(w+4,4)}, {v(P,4)}",
              f"{MF} {v(Q,4)}, {v(V_NSEL2,4)}, {a(w+4,4)}, {v(Q,4)}"]
        fill = rd(i+3) if i + 3 < len(us) else []
        ne = (len(extra) + len(us) - i - 1) // (len(us) - i)
        fill = extra[:ne] + fill; extra = extra[ne:]
        weave(b, mf, fill, per=2)
    b("s_nop 7")
    b(f"v_mov_b32 v{T+1}, 0")
    for lt in range(4):
        P, Q, E = preg(0, lt), qreg(0, lt), V_E + 4*lt
        b(f"v_add_f32 v{T}, v{P}, v{P}")
        b(f"v_cndmask_b32 v{Q}, v{Q}, v{T+1}, s[{S_MASK}:{S_MASK+1}]")
        b(f"v_cndmask_b32 v{P}, v{P}, v{T}, s[{S_MASK}:{S_MASK+1}]")
        b(f"v_lshlrev_b32 v{E}, 16, v{E}")
        b(f"v_add_f32 v{E}, v{E}, v{E}")

def z_load(b, p):
    for ks in range(2):
        for j in range(4):
            reg = V_Z + (p*2 + ks)*8 + 2*j
            b(f"buffer_load_dwordx2 {v(reg,2)}, v{V_ZO}, s[{R_WS}:{R_WS+3}], s{S_ZL+p} offen offset:{ks*2048 + j*128} sc1", tag=f"z{p}_{ks}")
def z_list(b):
    out = []
    if cfg.x_z4:
        b(f"v_and_b32 v{T+6}, 7, v{V_C}")
        b(f"v_lshlrev_b32 v{T+6}, 4, v{T+6}")
        b(f"v_lshrrev_b32 v{T+7}, 3, v{V_C}")
        b(f"v_lshl_add_u32 v{T+6}, v{T+7}, 7, v{T+6}")
        b(f"v_lshl_add_u32 v{T+6}, v{V_GQ}, 9, v{T+6}")
        for p in range(4):
            for ks in range(2):
                for j in range(2):
                    reg = V_Z + (p*2 + ks)*8 + 4*j
                    out.append(lambda p=p, ks=ks, j=j, reg=reg: b(f"buffer_load_dwordx4 {v(reg,4)}, v{T+6}, s[{R_WS}:{R_WS+3}], s{S_ZL+p} offen offset:{ks*2048 + j*256} sc1", tag=f"z{p}_{ks}"))
        return out
    for p in range(4):
        for ks in range(2):
            for j in range(4):
                reg = V_Z + (p*2 + ks)*8 + 2*j
                out.append(lambda p=p, ks=ks, j=j, reg=reg: b(f"buffer_load_dwordx2 {v(reg,2)}, v{V_ZO}, s[{R_WS}:{R_WS+3}], s{S_ZL+p} offen offset:{ks*2048 + j*128} sc1", tag=f"z{p}_{ks}"))
    return out

def pb_prefill(b):
    out = []
    for q in range(6):
        for h in range(2):
            out.append(lambda q=q, h=h: b(f"buffer_store_dwordx4 {v(V_NEG,4)}, v{V_L16}, s[{R_WS}:{R_WS+3}], s{S_IN+q} offen offset:{1024*h} sc1", tag="pbpre"))
    return out

def step_b(b, ring=()):
    def swaps(p, ks):
        z = V_Z + (p*2 + ks)*8
        return [f"v_swap_b32 v{z+1}, v{z+2}", f"v_swap_b32 v{z+2}, v{z+4}", f"v_swap_b32 v{z+3}, v{z+6}", f"v_swap_b32 v{z+5}, v{z+6}"]
    def epi(p, lt):
        P, Q = preg(p, lt), qreg(p, lt)
        fl = []
        for r in range(4):
            fl.append(f"v_add_f32 v{T+r}, v{P+r}, v{Q+r}")
            fl.append(f"v_sub_f32 v{T+4+r}, v{P+r}, v{Q+r}")
        if p == 0:
            fl.append(f"v_cndmask_b32 v{T}, v{T}, v{P}, s[{S_MASK}:{S_MASK+1}]")
            fl.append(f"v_cndmask_b32 v{T+4}, v{T+4}, v{V_E+4*lt}, s[{S_MASK}:{S_MASK+1}]")
        fl.append(f"v_cvt_pk_bf16_f32 v{P+0}, v{T+0}, v{T+1}")
        fl.append(f"v_cvt_pk_bf16_f32 v{P+1}, v{T+2}, v{T+3}")
        fl.append(f"v_cvt_pk_bf16_f32 v{P+2}, v{T+4}, v{T+5}")
        fl.append(f"v_cvt_pk_bf16_f32 v{P+3}, v{T+6}, v{T+7}")
        if p < 3:
            fl.append(lambda: b(f"ds_write_b128 v{V_HW+lt}, {v(P,4)} offset:{XL + p*4096}", tag="hw"))
        else:
            fl.append(lambda: b(f"ds_write_b128 v{V_HWS+lt}, {v(P,4)} offset:{XL}", tag="hw"))
        return fl
    def mf(p, lt):
        P, Q = preg(p, lt), qreg(p, lt)
        out = []
        for ks in range(2):
            z = V_Z + (p*2 + ks)*8
            out.append(f"{MH} {v(P,4)}, {v(z,4)}, {a(mreg(lt,ks,0),4)}, {v(P,4)}")
            out.append(f"{MH} {v(Q,4)}, {v(z+4,4)}, {a(mreg(lt,ks,1),4)}, {v(Q,4)}")
        return out
    order = [(p, lt) for p in range(4) for lt in range(4) if not (p == 3 and lt >= 2)]
    done = []
    pre = [] if cfg.x_noring else list(ring)
    nun = len(order)
    for iu, (p, lt) in enumerate(order):
        if lt == 0:
            b.wait_vm(f"z{p}_1")
            if cfg.fineb: stamp(b, 24 + p, True)
            guarded(b, [V_Z + p*16 + i for i in range(16)], lambda p=p: z_load(b, p), f"z{p}")
            for ks in range(2):
                for sw in swaps(p, ks): b(sw)
            if p == 0:
                lab = b.newlabel("L_noE")
                b(f"s_cmp_eq_u32 s{S_W}, 0")
                b(f"s_cbranch_scc0 {lab}")
                for ks in range(2):
                    for l2 in range(4):
                        z = V_Z + ks*8
                        b(f"{MH} {v(V_E+4*l2,4)}, {v(z+4,4)}, {a(mreg(l2,ks,0),4)}, {v(V_E+4*l2,4)}")
                b.label(lab)
        fl = epi(*done[-2]) if len(done) >= 2 else []
        nv = (len(pre) + (nun - iu) - 1) // (nun - iu)
        vm = pre[:nv]; pre = pre[nv:]
        sched(b, mf(p, lt), vm=vm, misc=fl, cap=5)
        done.append((p, lt))
    for f in epi(*done[-2]): emit(b, f)
    for f in epi(*done[-1]): emit(b, f)

def slab_buf(p):
    return {0: 1, 1: 2, 2: 0, 3: 1, 4: 2, 5: "H", 6: "S"}[p]

def w2_groups(b, p):
    sg = slab_buf(p)
    out = []
    for hf in range(2):
        for n in range(4):
            pre = []
            if n == 0:
                pre.append(f"s_add_u32 m0, s{S_HWB}, {XL + hf*4096}" if sg == "H" else f"s_add_u32 m0, s{S_RW}, {sg*8192 + hf*4096}")
                if hf: pre.append(f"s_add_u32 s95, s{S_W2+p}, {32*896}")
            def f(n=n, hf=hf):
                so = "s95" if hf else f"s{S_W2+p}"
                off = f" offset:{1024*n}" if n else ""
                b(f"buffer_load_dwordx4 v{V_W2O+n}, s[{R_W2}:{R_W2+3}], {so} offen{off} lds", tag=f"w2_{p}")
            out.append((pre, f))
    return out
def w2_dma(b, p): return flat(w2_groups(b, p))

S_S6 = 6
def w2_groups6(b):
    ga, gb = [], []
    for i in range(6):
        pre = []
        if i == 0:
            pre = [f"s_mul_i32 s95, s{S_W}, {16*896}", f"s_sub_u32 s95, s{S_W2+6}, s95",
                   f"s_mul_i32 s96, s{S_W}, 6144", f"s_add_u32 m0, s96, {XL + 32768}"]
        if i == 4:
            pre = [f"s_add_u32 s95, s95, {32*896}", f"s_add_u32 m0, s96, {XL + 32768 + 4096}"]
        n = i & 3
        def f(n=n):
            off = f" offset:{1024*n}" if n else ""
            b(f"buffer_load_dwordx4 v{V_W2O+n}, s[{R_W2}:{R_W2+3}], s95 offen{off} lds", tag="w2_6")
        ga.append((pre, f))
    for i in range(2):
        pre = []
        if i == 0:
            pre = [f"s_mul_i32 s95, s{S_W}, {48*896}", f"s_sub_u32 s95, s{S_W2+6}, s95", f"s_add_u32 s95, s95, {192*896}",
                   f"s_lshl_b32 s96, s{S_W}, 11", f"s_add_u32 m0, s96, {RING}"]
        def f(n=i):
            off = f" offset:{1024*n}" if n else ""
            b(f"buffer_load_dwordx4 v{V_W2O+n}, s[{R_W2}:{R_W2+3}], s95 offen{off} lds", tag="w2_6")
        gb.append((pre, f))
    return ga, gb

def cs_loads(b):
    out = []
    def hdr():
        b(f"s_lshl_b32 s6, s{S_J}, 10")
        b(f"s_lshl_b32 s7, s{S_W}, 8")
        b("s_add_u32 s6, s6, s7")
        b(f"s_add_u32 s{S_CSO}, s6, {WS_CS}")
        b(f"v_lshlrev_b32 v{V_CSA}, 4, v{V_GQ}")
    hdr()
    cs_reload(b)

def cs_groups(b):
    pre = [f"s_lshl_b32 s6, s{S_J}, 10", f"s_lshl_b32 s7, s{S_W}, 8", "s_add_u32 s6, s6, s7", f"s_add_u32 s{S_CSO}, s6, {WS_CS}", f"v_lshlrev_b32 v{V_CSA}, 4, v{V_GQ}"]
    out = []
    for ft in range(4):
        out.append(([], lambda ft=ft: b(f"buffer_load_dwordx4 {v(V_CS+4*ft,4)}, v{V_CSA}, s[{R_WS}:{R_WS+3}], s{S_CSO} offen offset:{64*ft} sc1", tag="cs")))
    return pre, out

def cs_reload(b):
    for ft in range(4):
        b(f"buffer_load_dwordx4 {v(V_CS+4*ft,4)}, v{V_CSA}, s[{R_WS}:{R_WS+3}], s{S_CSO} offen offset:{64*ft} sc1", tag="cs")

def gemm1_pre(b):
    b.wait_vm("w1_0")
    for u in range(4):
        for hh in range(2):
            b(f"ds_read_b64_tr_b16 {v(V_A1 + 4*u + 2*hh, 2)}, v{V_TR1+u} offset:{hh*2048}", tag="r0")

def gemm1(b):
    def reads(k):
        buf = k & 1; slot = k % 6
        out = []
        for lt in range(4):
            out.append(lambda lt=lt: b(f"ds_read_b128 {v(V_B1 + 16*buf + 4*lt, 4)}, v{V_HB+lt} offset:{XL + k*4096}", tag=f"r{k}"))
        for u in range(4):
            for hh in range(2):
                out.append(lambda u=u, hh=hh: b(f"ds_read_b64_tr_b16 {v(V_A1 + 16*buf + 4*u + 2*hh, 2)}, v{V_TR1+u} offset:{slot*4096 + hh*2048}", tag=f"r{k}"))
        return out
    late = record(epi_addr) + record(flag_setup)
    if cfg.trim2:
        for f in reads(0)[:4]: f()
    else:
        b.wait_vm("w1_0")
        for f in reads(0): f()
    csg = cs_groups(b)[1] if cfg.trim2 else []
    hres = [f"v_mov_b32 v{V_HRES+k}, 0" for k in range(16)]
    hrd = [(lambda tt=tt, r=r: b(f"ds_read_u16_d16_hi v{V_HRES + tt*4 + r}, v{V_HA + r} offset:{XL + tt*1024}", tag="hres")) for tt in range(4) for r in range(4)]
    s0 = []
    for k2 in range(8):
        s0 += slab_read(b, 0, k2, lambda o, k2=k2: a(A_S0 + 4*k2 + o, 2), "s0")
    g0, g1, g2 = w2_groups(b, 0), w2_groups(b, 1), w2_groups(b, 2)
    for k in range(14):
        buf = k & 1
        if k == 12:
            b.wait_vm("w2_0")
            b.wait_lg(f"r{k}")
            b("s_barrier")
        else:
            b.wait_lg(f"r{k}")
        if cfg.fine: stamp(b, k)
        first, vm, misc = [], [], []
        if k + 1 < 14:
            first.append(lambda k=k: b.wait_vm(f"w1_{k+1}"))
            if not cfg.x_noreads: first += reads(k + 1)
        if k + 6 < 14 and not cfg.x_now1dma: vm += w1_groups(b, k + 6)
        if csg and k < 4: vm.append(csg.pop(0))
        if k == 8: misc += hres
        if k == 8: vm += g0[:4]
        if csg and k in (12, 13) and False: pass
        if k == 9: vm += g0[4:]; misc += hrd[:8]
        if k == 10: vm += g1[:4]; misc += hrd[8:]
        if k == 11: vm += g1[4:]; misc.append(lambda: ready_set(b))
        if k == 12: vm += g2[:4]; misc += s0[:8]
        if k < 8:
            n = (len(late) + 7 - k) // (8 - k)
            misc += late[:n]; late = late[n:]
        bb = V_B1 + 16*buf
        z = k == 0
        mf = [f"{MF} {v(V_Q2,4)}, {v(bb,4)}, {v(bb,4)}, {'0' if z else v(V_Q2,4)}",
              f"{MF} {v(V_S2,4)}, {v(V_ONE2,4)}, {v(bb,4)}, {'0' if z else v(V_S2,4)}"]
        pairs = [(lt, u) for u in range(4) for lt in range(4)] if cfg.g1_umajor else [(lt, u) for lt in range(4) for u in range(4)]
        for lt, u in pairs:
            d = V_ACC1 + (u*4 + lt)*4
            mf.append(f"{MF} {v(d,4)}, {v(V_A1 + 16*buf + 4*u, 4)}, {v(bb + 4*lt, 4)}, {'0' if z else v(d,4)}")
        if k == 13:
            r = Rec()
            stats_core(r, V_S2, V_Q2, True)
            sf = r.l + [f"s_lshl_b32 s6, s{S_W}, 6", f"s_add_u32 s6, s6, {STAT}", f"v_lshl_add_u32 v{T}, v{V_C}, 2, s6",
                        f"v_sub_f32 v{V_S2}, 0, v{V_S2}", f"v_mul_f32 v{V_Q2}, 0.5, v{V_Q2}"]
            sched(b, mf[:6], first=s0[8:], vm=g2[4:5])
            sched(b, mf[6:], vm=g2[5:], misc=sf)
            b(f"s_mov_b64 exec, s[{S_DIAG}:{S_DIAG+1}]")
            b(f"ds_write_b32 v{T}, v{V_S2}")
            b(f"ds_write_b32 v{T}, v{V_S2} offset:256")
            b(f"ds_write_b32 v{T}, v{V_Q2} offset:512")
            b("s_mov_b64 exec, -1")
            b.g2rest = []
        else:
            sched(b, mf, first=first, vm=vm, misc=misc, misc_from=6)

def slab_read(b, p, k2, dst, tagp):
    sg = slab_buf(p)
    part = k2 >> 1
    if sg == "H":
        base = V_TR2H; off = XL + part*8192 + (k2 & 1)*4096
    elif sg == "S":
        if k2 < 6: base = V_TR2H; off = XL + 32768 + k2*4096
        else: base = V_TR2; off = (k2 - 6)*4096
    else:
        base = V_TR2 + (part >> 1)
        off = (part & 1)*24576 + sg*8192 + (k2 & 1)*4096
    return [(lambda hh=hh: b(f"ds_read_b64_tr_b16 {dst(2*hh)}, v{base} offset:{off + hh*2048}", tag=tagp)) for hh in range(2)]

V_NA = 54
V_SR = 36
def epi_addr(b):
    b(f"s_lshl_b32 s6, s{S_W}, 13")
    for l2 in range(4): b(f"v_add_u32 v{V_NA+l2}, s6, v{V_HB+l2}")
    b(f"v_lshlrev_b32 v{V_SR}, 2, v{V_C}")
    b(f"v_add_u32 v{V_SR}, {STAT}, v{V_SR}")
    b(f"s_lshl_b32 s6, s{S_W}, 6")
    b(f"v_add_u32 v{V_SR+1}, s6, v{V_SR}")

def gemm1_epi(b):
    b.wait_vm("w2_1")
    b("s_waitcnt lgkmcnt(0)")
    if cfg.finee: stamp(b, 24, True)
    b("s_barrier")
    if cfg.finee: stamp(b, 25, True)
    for lt in range(4):
        b(f"ds_read_b32 v{V_NM+2*lt}, v{V_SR+1} offset:{64*lt}", tag="nm")
    for tt in range(4):
        b(f"ds_read_b32 v{V_RR+tt}, v{V_SR} offset:{512 + 64*tt}", tag="rr")
    ready_load(b)
    b.wait_vm("cs")
    guarded(b, [V_CS + i for i in range(16)], lambda: cs_reload(b), "cs")
    b.wait_lg("nm")
    if cfg.finee: stamp(b, 26, True)
    main = []
    for lt in range(4):
        for fp in range(2):
            pk = V_PK + 4*((lt*2 + fp) & 3)
            for hh in range(2):
                d = V_ACC1 + ((2*fp + hh)*4 + lt)*4
                for h in range(2):
                    main.append(f"v_pk_fma_f32 {v(d+2*h,2)}, {v(V_CS+4*(2*fp+hh)+2*h,2)}, {v(V_NM+2*lt,2)}, {v(d+2*h,2)} op_sel_hi:[1,0,1]")
            for hh in range(2):
                d = V_ACC1 + ((2*fp + hh)*4 + lt)*4
                main.append(f"v_cvt_pk_bf16_f32 v{pk+2*hh}, v{d}, v{d+1}")
                main.append(f"v_cvt_pk_bf16_f32 v{pk+2*hh+1}, v{d+2}, v{d+3}")
            for q in range(4):
                main.append(f"v_pk_max_i16 v{pk+q}, v{pk+q}, 0")
            main.append(lambda lt=lt, fp=fp, pk=pk: b(f"ds_write_b128 v{V_NA+lt}, {v(pk,4)} offset:{XL + fp*4096}", tag="hidw"))
    g6a, b.g6b = w2_groups6(b)
    b.g6a = g6a
    dm = [flat([g]) for g in b.g2rest + ([] if cfg.late_w2 else w2_groups(b, 3))]
    dm = [(lambda l=l: [emit(b, x) for x in l]) for l in dm]
    s1 = []
    for k2 in range(8):
        s1 += slab_read(b, 1, k2, lambda o, k2=k2: a(A_S0 + 32 + 4*k2 + o, 2), "s1")
    multi_spread(b, main, [x for x in (dm, s1) if x])
    if cfg.finee: stamp(b, 27, True)
    if cfg.fewbar: b.wait_vm("w2_2")
    b("s_waitcnt lgkmcnt(0)")
    b("s_barrier")

V_INR = [160, 168, 176, 184, 208, 216]
def inbox_load(b, q):
    return [([], (lambda h=h: b(f"buffer_load_dwordx4 {v(V_INR[q]+4*h,4)}, v{V_L16}, s[{R_WS}:{R_WS+3}], s{S_IN+q} offen offset:{1024*h} sc1", tag=f"p{q}"))) for h in range(2)]

def gemm2(b):
    hb = []
    for k2 in range(8):
        for tt in range(4):
            hb.append((k2, lambda k2=k2, tt=tt: b(f"ds_read_b128 {a((k2*4 + tt)*4, 4)}, v{V_L16} offset:{XL + k2*4096 + tt*1024}", tag=f"hb{k2}")))
    def aread(p, k2):
        if p <= 1: return []
        return slab_read(b, p, k2, lambda o: v(V_A2 + 4*(k2 & 3) + o, 2), f"a{p}_{k2}")
    def aop(p, k2):
        return a(A_S0 + 32*p + 4*k2, 4) if p <= 1 else v(V_A2 + 4*(k2 & 3), 4)
    def epi(p):
        acc = V_ACC2 + 16*(p & 1)
        pk = V_PK + 8*(p & 1)
        cv, st = [], []
        for h in range(2):
            pre = []
            for tt in (2*h, 2*h+1):
                pre.append(f"v_cvt_pk_bf16_f32 v{pk+2*tt}, v{acc+4*tt}, v{acc+4*tt+1}")
                pre.append(f"v_cvt_pk_bf16_f32 v{pk+2*tt+1}, v{acc+4*tt+2}, v{acc+4*tt+3}")
            cv.append(pre)
            st.append(lambda h=h: b(f"buffer_store_dwordx4 {v(pk+4*h,4)}, v{V_L16}, s[{R_WS}:{R_WS+3}], s{S_PB+p} offen offset:{1024*h} sc1", tag=f"pst{p}") if not cfg.x_nostore else None)
        return cv, st
    def mfs(p, k2):
        acc = V_ACC2 + 16*(p & 1)
        return [f"{MF} {v(acc+4*tt,4)}, {aop(p, k2)}, {a((k2*4+tt)*4, 4)}, {v(acc+4*tt, 4) if k2 else '0'}" for tt in range(4)]
    W = {q: w2_groups(b, q) for q in (4, 5)}
    plan = {0: W[4], 1: W[5], 2: b.g6a, 3: b.g6b}
    if cfg.late_w2: plan = {0: w2_groups(b, 3), 1: W[4], 2: W[5], 3: b.g6a, 4: b.g6b}
    if cfg.early_in == 1:
        plan[5] = inbox_load(b, 5) + inbox_load(b, 4) + inbox_load(b, 3)
        plan[6] = inbox_load(b, 2)
    elif cfg.early_in == 2:
        plan[4] = inbox_load(b, 5)
        plan[5] = inbox_load(b, 4) + inbox_load(b, 3)
        plan[6] = inbox_load(b, 2)
    elif cfg.early_in == 3:
        plan[6] = inbox_load(b, 5) + inbox_load(b, 4) + inbox_load(b, 3)
    late_in = {5: [], 6: []}
    for (k2, f) in hb[:8]: f()
    tail = []
    for p in range(7):
        if cfg.fine: stamp(b, 24 + p)
        vm = list(plan.get(p, []))
        cv, st = epi(p - 1) if p >= 1 else ([], [])
        body = list(tail)
        firsts = []
        if p >= 1: firsts = aread(p, 0) + aread(p, 1)
        nt = len(tail)
        nvm_tail = min(len(vm), 2) if nt else 0
        if nt:
            b.wait_lg([f"a{p-1}_6"])
            sched(b, tail[:4], first=firsts[:2], vm=vm[:min(1, nvm_tail)])
            b.wait_lg([f"a{p-1}_7"])
            sched(b, tail[4:], first=firsts[2:], vm=vm[1:nvm_tail])
            vm = vm[nvm_tail:]
        if p == 1: ready_check(b)
        if p == 4 and cfg.touch_out: touch_out(b)
        if p == 3 and cfg.mfma_sum: b.pending_half += record(sum_sel)
        if p == 4 and cfg.trim:
            for tt in range(4): b(f"v_mov_b32 v{V_RR2+2*tt}, v{V_RR+tt}")
            for k in range(16): b.pending_half.append(f"v_mul_f32 v{V_HRES+k}, 0.5, v{V_HRES+k}")
        stg = [(cv[h], st[h]) for h in range(2)] if st else []
        order = (vm + stg) if ((cfg.early_in and p >= 4 and cfg.in_first) or (cfg.dma_first and p <= 3)) else stg + vm
        per = [[] for _ in range(6)]
        for i, g in enumerate(order): per[min(5, (i * 6) // max(len(order), 1))].append(g)
        for k2 in range(6):
            b.wait_lg([f"hb{k2}", f"a{p}_{k2}"])
            first = aread(p, k2 + 2)
            if p == 0: first += [f for (kk, f) in hb if kk == k2 + 2]
            gs = per[k2]
            if gs and len(gs[0][0]) > 2:
                sched(b, mfs(p, k2), first=first, misc=gs[0][0], cap=3)
                for g in gs[:1]: emit(b, g[1])
                for g in gs[1:]:
                    for x in g[0]: emit(b, x)
                    emit(b, g[1])
            else:
                hm = b.pending_half[:4]; b.pending_half = b.pending_half[4:]
                sched(b, mfs(p, k2), first=first, vm=gs, misc=hm)
        if p < 6:
            if cfg.fewbar:
                need = {0: 3, 2: 4, 3: None, 4: 5, 5: 6}.get(p)
                if p == 3: b.wait_vm("w2_4")
                if need: b.wait_vm(f"w2_{need}")
                if p in (0, 2): b("s_waitcnt lgkmcnt(0)")
                if p in (0, 2, 4, 5): b("s_barrier")
            else:
                if p + 1 >= 2: b.wait_vm(f"w2_{p+1}")
                if p in (0, 2): b("s_waitcnt lgkmcnt(0)")
                if not cfg.x_nobar2: b("s_barrier")
            tail = mfs(p, 6) + mfs(p, 7)
        else:
            b.wait_lg([f"a{p}_6", f"a{p}_7"])
            last = {0: [5, 4], 1: [1], 2: [1], 3: [2, 1]}[cfg.early_in]
            sched(b, mfs(p, 6) + mfs(p, 7), vm=[g for q in last for g in inbox_load(b, q)])

def flag_setup(b):
    t = T
    b(f"v_add_u32 v{t}, s{S_J}, v0")
    b(f"v_add_u32 v{t}, 1, v{t}")
    b(f"v_subrev_u32 v{t+1}, 7, v{t}")
    b(f"v_cmp_le_u32 vcc, 7, v{t}")
    b(f"s_mul_i32 s6, s{S_IDX}, 7")
    b(f"v_cndmask_b32 v{t}, v{t}, v{t+1}, vcc")
    b(f"v_add_u32 v{t}, s6, v{t}")
    b(f"v_lshlrev_b32 v{t}, 9, v{t}")
    b(f"s_lshl_b32 s6, s{S_W}, 7")
    b(f"s_add_u32 s6, s6, {WS_FL}")
    b(f"v_add_u32 v{t+6}, s6, v{t}")
    own_line(b, 13)
    b(f"v_mov_b32 v{t+5}, 1")
    b(f"v_mov_b32 v{t+4}, 0")

def ready_set(b):
    b.wait_vm("pbpre")
    b("s_mov_b64 exec, 1")
    b(f"buffer_store_dword v{T+5}, v{T+4}, s[{R_WS}:{R_WS+3}], s13 offen sc1", tag="rdy")
    b("s_mov_b64 exec, -1")

def ready_load(b):
    b("s_mov_b64 exec, 0x3f")
    b(f"buffer_load_dword v{T+7}, v{T+6}, s[{R_WS}:{R_WS+3}], 0 offen sc1", tag="rdl")
    b("s_mov_b64 exec, -1")

def ready_check(b):
    b.wait_vm("rdl")
    l2 = b.newlabel("L_rd"); l3 = b.newlabel("L_rdd")
    b.notrack = True
    b("s_mov_b32 s12, 0")
    b("s_mov_b64 exec, 0x3f")
    b.label(l2)
    b(f"v_cmp_ne_u32 vcc, 1, v{T+7}")
    b("s_cmp_eq_u64 vcc, 0")
    b(f"s_cbranch_scc1 {l3}")
    b("s_add_u32 s12, s12, 1")
    b("s_cmp_ge_u32 s12, 0x10000")
    b(f"s_cbranch_scc1 {l3}")
    b(f"buffer_load_dword v{T+7}, v{T+6}, s[{R_WS}:{R_WS+3}], 0 offen sc1")
    b("s_waitcnt vmcnt(0)")
    b(f"s_branch {l2}")
    b.label(l3)
    b("s_mov_b64 exec, -1")
    b.notrack = False

def touch_out(b):
    b(f"v_mul_u32_u24 v{T+3}, 57344, v{V_C}")
    b(f"v_lshl_add_u32 v{T+3}, v{V_GQ}, 3, v{T+3}")
    b("s_mov_b64 exec, 0xffff")
    for tt in range(4):
        b(f"buffer_load_dword {a(248+tt)}, v{T+3}, s[{R_OUT}:{R_OUT+3}], s{S_O+tt} offen", tag="tch")
    b("s_mov_b64 exec, -1")

def sum_sel(b):
    t = T
    b(f"v_lshlrev_b32 v{t}, 2, v{V_GQ}")
    b(f"v_sub_u32 v{t}, v{V_C}, v{t}")
    b(f"v_mov_b32 v{t+1}, 0x3f80")
    b(f"v_mov_b32 v{t+2}, 0x3f800000")
    b(f"v_mov_b32 v{V_SUM}, 0")
    b(f"v_mov_b32 v{V_SUM+1}, 0")
    b(f"v_mov_b32 v{V_SUM+4}, 0")
    b(f"v_mov_b32 v{V_SUM+5}, 0")
    for m in range(2):
        b(f"v_cmp_eq_u32 vcc, {2*m}, v{t}")
        b(f"v_cmp_eq_u32 s[6:7], {2*m+1}, v{t}")
        b(f"v_cndmask_b32 v{V_SUM+2+m}, v{V_SUM}, v{t+1}, vcc")
        b(f"v_cndmask_b32 v{V_SUM+2+m}, v{V_SUM+2+m}, v{t+2}, s[6:7]")

def final_reduce(b):
    t = T
    acc = V_ACC2
    for x in b.pending_half: b(x)
    b.pending_half = []
    def reload(q):
        for pre, op in inbox_load(b, q): op()
    for q in ((3, 2, 1, 0) if cfg.early_in == 0 else (0,)): reload(q)
    b(f"v_mul_u32_u24 v{t+4}, 57344, v{V_C}")
    b(f"v_lshl_add_u32 v{t+4}, v{V_GQ}, 3, v{t+4}")
    stamp(b, 20)
    for q in (5, 4, 3, 2, 1, 0):
        b.wait_vm(f"p{q}")
        guarded(b, [V_INR[q] + i for i in range(8)], lambda q=q: reload(q), f"p{q}")
        if cfg.finef: stamp(b, 24 + q, True)
        if cfg.mfma_sum:
            for h in range(2):
                fr = v(V_INR[q] + 4*h, 4)
                b(f"{MF} {v(acc+8*h,4)}, {v(V_SUM+2,4)}, {fr}, {v(acc+8*h,4)}")
                b(f"{MF} {v(acc+8*h+4,4)}, {v(V_SUM,4)}, {fr}, {v(acc+8*h+4,4)}")
            continue
        for tt in range(4):
            for m in range(2):
                src = V_INR[q] + 2*tt + m
                tt2 = t + 2*((2*tt + m) & 1)
                b(f"v_lshlrev_b32 v{tt2}, 16, v{src}")
                b(f"v_and_b32 v{tt2+1}, 0xffff0000, v{src}")
                b(f"v_pk_add_f32 {v(acc+4*tt+2*m,2)}, {v(acc+4*tt+2*m,2)}, {v(tt2,2)}")
    stamp(b, 22)
    for tt in range(4):
        if cfg.trim:
            for m in range(2):
                b(f"v_pk_fma_f32 {v(acc+4*tt+2*m,2)}, {v(acc+4*tt+2*m,2)}, {v(V_RR2+2*tt,2)}, {v(V_HRES+4*tt+2*m,2)} op_sel_hi:[1,0,1]")
        else:
            for r in range(4):
                b(f"v_mul_f32 v{acc+4*tt+r}, v{V_RR+tt}, v{acc+4*tt+r}")
            for m in range(2):
                b(f"v_pk_fma_f32 {v(acc+4*tt+2*m,2)}, {v(V_HRES+4*tt+2*m,2)}, 0.5, {v(acc+4*tt+2*m,2)} op_sel_hi:[1,0,1]")
        if cfg.x_off:
            for r in range(4): b(f"v_add_f32 v{acc+4*tt+r}, {fbits(cfg.x_off)}, v{acc+4*tt+r}")
        b(f"v_cvt_pk_bf16_f32 v{V_PK+2*tt}, v{acc+4*tt}, v{acc+4*tt+1}")
        b(f"v_cvt_pk_bf16_f32 v{V_PK+1+2*tt}, v{acc+4*tt+2}, v{acc+4*tt+3}")
        b(f"buffer_store_dwordx2 {v(V_PK+2*tt,2)}, v{t+4}, s[{R_OUT}:{R_OUT+3}], s{S_O+tt} offen {cfg.outflags}")

def cs_job(b):
    b("s_sub_u32 s6, s2, 224")
    b("s_lshl_b32 s7, s6, 7")
    b("v_and_b32 v1, 15, v9")
    b("v_lshrrev_b32 v2, 4, v9")
    b("v_mul_u32_u24 v3, 3584, v2")
    b("v_lshl_add_u32 v3, v1, 3, v3")
    b("v_and_b32 v6, 63, v9")
    b("v_lshlrev_b32 v6, 2, v6")
    b("v_mov_b32 v7, -1")
    b("s_lshl_b32 s9, s6, 8")
    b(f"s_add_u32 s9, s9, {WS_CS}")
    b(f"buffer_store_dword v7, v6, s[{R_WS}:{R_WS+3}], s9 offen sc1", tag="cspre")
    for n in range(28):
        b(f"s_add_u32 s8, s7, {n*57344}")
        b(f"buffer_load_dwordx2 {v(16 + 2*n, 2)}, v3, s[{R_W1}:{R_W1+3}], s8 offen", tag=f"c{n}")
    b.wait_vm("cspre")
    b("s_barrier")
    arrive0(b)
    b("s_sub_u32 s6, s2, 224")
    for r in range(4): b(f"v_mov_b32 v{76+r}, 0")
    for n in range(28):
        b.wait_vm(f"c{n}")
        for h in range(2):
            b(f"v_lshlrev_b32 v4, 16, v{16+2*n+h}")
            b(f"v_and_b32 v5, 0xffff0000, v{16+2*n+h}")
            b(f"v_pk_add_f32 {v(76+2*h,2)}, {v(76+2*h,2)}, v[4:5]")
    b("v_lshlrev_b32 v4, 8, v2")
    b("v_lshl_add_u32 v4, v1, 4, v4")
    b("ds_write_b128 v4, v[76:79]")
    b("s_waitcnt lgkmcnt(0)")
    b("s_barrier")
    b("v_and_b32 v1, 63, v9")
    b("v_lshlrev_b32 v1, 2, v1")
    for n in range(16): b(f"ds_read_b32 v{16+n}, v1 offset:{256*n}")
    b("s_waitcnt lgkmcnt(0)")
    for n in range(1, 16): b(f"v_add_f32 v16, v16, v{16+n}")
    b("s_lshl_b32 s7, s6, 8")
    b(f"s_add_u32 s7, s7, {WS_CS}")
    b(f"s_cmp_eq_u32 s{S_W}, 0")
    lab = b.newlabel("L_csk")
    b(f"s_cbranch_scc0 {lab}")
    b(f"buffer_store_dword v16, v1, s[{R_WS}:{R_WS+3}], s7 offen sc1", track=False)
    b.label(lab)

def build(name):
    b = Builder()
    b.slow = []
    b.pending_half = []
    b("s_cmp_ge_u32 s2, 252")
    b("s_cbranch_scc1 L_end")
    b("s_load_dwordx2 s[16:17], s[0:1], 0")
    b("s_load_dwordx8 s[28:35], s[0:1], 48")
    b("s_load_dwordx2 s[36:37], s[0:1], 80")
    if cfg.code_pf:
        b("s_getpc_b64 s[6:7]")
        b.label("L_pc")
        b("v_lshlrev_b32 v2, 7, v0")
        b("v_mov_b32 v5, s7")
        b("v_add_co_u32 v4, vcc, s6, v2")
        b("v_addc_co_u32 v5, vcc, 0, v5, vcc")
        b(f"v_cmp_gt_u32 vcc, L_code_end-L_pc, v2")
        b("s_and_saveexec_b64 s[8:9], vcc")
        lab = b.newlabel("L_nopf")
        b(f"s_cbranch_execz {lab}")
        b(f"global_load_dword {a(255)}, v[4:5], off", track=False)
        b.label(lab)
        b("s_mov_b64 exec, s[8:9]")
    b("v_mov_b32 v9, v0")
    b("v_lshrrev_b32 v1, 6, v0")
    b("v_and_b32 v0, 63, v0")
    b(f"v_readfirstlane_b32 s{S_W}, v1")
    b("s_cmp_ge_u32 s2, 224")
    b("s_cbranch_scc1 L_cs")
    decode(b)
    p1_addr(b)
    z_base(b)
    if not cfg.lean_start:
        p1_addr2(b)
        wd_setup(b)
    b("s_waitcnt lgkmcnt(0)")
    srd(b, R_X, P_X, X_BYTES)
    if cfg.x_first:
        x_dma(b)
        srd_ws(b)
        prefill_start(b)
    else:
        srd_ws(b)
        prefill_start(b)
        x_dma(b)
    srd(b, R_W1, P_W1, W_BYTES); srd(b, R_W2, P_W2, W_BYTES)
    srd(b, R_OUT, P_OUT, X_BYTES); srd(b, R_DBG, P_DBG, 256)
    stamp(b, 0)
    if cfg.lean_start:
        p1_addr2(b)
        wd_setup(b)
    move_masks(b)
    if cfg.w_prefetch: w_prefetch(b)
    p2_scalars(b)
    inbox_scalars(b)
    if cfg.touch_x: touch_xres(b)
    if cfg.pre_at == "start":
        for f in pb_prefill(b): f()
    stamp(b, 1)
    def early(ks):
        if cfg.early_arrive is not None and ks == cfg.early_arrive:
            b.wait_vm("pre")
            b("s_barrier")
            arrive0(b)
    wd_gen(b, early)
    f_gen(b)
    m_gen(b)
    fm_addr(b)
    if cfg.touch_w: touch_w_setup(b)
    if cfg.ring_early or not cfg.late_dma_addr: dma_addr(b)
    stamp(b, 2)
    p1_loop(b)
    xall = xres_list(b)
    xt = xall[:cfg.xres_tail]; xall = xall[cfg.xres_tail:]
    p1_tail(b, xt)
    for f in xt: f()
    stamp(b, 8)
    b0_load(b, V_B0)
    xres_pad(b)
    ring = []
    for k in range(cfg.ring_early, 6): ring += w1_groups(b, k)
    work = [] if cfg.addr_in_loop else record(p2_addr)
    if not cfg.ring_early and cfg.late_dma_addr and not cfg.addr_in_loop: work = work + record(dma_addr)
    pbq = pb_prefill(b) if cfg.pre_at == "spread" else []
    xl = xall
    if pbq: xl = xl[:8] + pbq[:1] + xl[8:] + pbq[1:2]; pbq = pbq[2:]
    if work: multi_spread(b, work, [xl] + ([m_read(b)] if cfg.m_late else []))
    else: multi_spread(b, xl, [m_read(b) if cfg.m_late else []] if cfg.m_late else [])
    stamp(b, 9)
    b0_check(b, V_B0)
    stamp(b, 12)
    zl = z_list(b)
    work = record(hres_addr) + record(p2_scalars_late)
    z1 = zl[:len(zl)//2]
    if pbq: z1 = z1[:len(z1)//2] + pbq[:1] + z1[len(z1)//2:] + pbq[1:2]; pbq = pbq[2:]
    multi_spread(b, work, [z1])
    b.wait_vm("xres")
    b("s_waitcnt lgkmcnt(0)")
    b("s_barrier")
    stamp(b, 10)
    z2 = zl[len(zl)//2:]
    if pbq: z2 = z2[:len(z2)//2] + pbq[:1] + z2[len(z2)//2:] + pbq[1:2]; pbq = pbq[2:]
    x_init(b, extra=z2)
    b(f"v_mov_b32 v{V_ONE2}, 0x3f803f80")
    for r in range(1, 4): b(f"v_mov_b32 v{V_ONE2+r}, v{V_ONE2}")
    stamp(b, 11)
    if cfg.count_slow:
        b("s_mov_b32 s98, 0"); b("s_mov_b32 s99, 0")
    b("s_barrier")
    stamp(b, 14)
    if pbq:
        r2 = []
        for i, g in enumerate(ring):
            r2.append(g)
            if i % 4 == 3 and pbq: r2.append(([], pbq.pop(0)))
        ring = r2
    if cfg.pre_at == "stepb": ring = ring + [([], x) for x in pb_prefill(b)]
    step_b(b, ring)
    if not cfg.trim2: cs_loads(b)
    else:
        for x in cs_groups(b)[0]: b(x)
        gemm1_pre(b)
    b("s_waitcnt lgkmcnt(12)" if False else "s_waitcnt lgkmcnt(0)")
    stamp(b, 15)
    b("s_barrier")
    b.finezone = True
    gemm1(b)
    stamp(b, 17)
    gemm1_epi(b)
    stamp(b, 18)
    gemm2(b)
    stamp(b, 19)
    b.finezone = False
    final_reduce(b)
    stamp(b, 23)
    if cfg.count_slow:
        b(f"v_writelane_b32 v{V_TS}, s98, 28")
        b(f"v_writelane_b32 v{V_TS}, s99, 29")
    stamp_store(b)
    b("s_endpgm")
    b.label("L_cs")
    b("s_waitcnt lgkmcnt(0)")
    srd(b, R_W1, P_W1, W_BYTES); srd_ws(b); srd(b, R_DBG, P_DBG, 256)
    cs_job(b)
    b("s_endpgm")
    emit_slow(b)
    b.label("L_end")
    b.label("L_code_end")
    b("s_endpgm")
    txt = b.finalize()
    if cfg.align:
        import align
        hdr = '.amdgcn_target "amdgcn-amd-amdhsa--gfx950"\n.text\n' + kernel_header(name)
        lines, before, nw, nn, tot = align.align(txt.rstrip("\n").split("\n"), hdr, "", allow_nop=cfg.align_nop)
        print("misaligned 8-byte instructions before:", before, "widened:", nw, "nops:", nn, "residual cost:", tot)
        txt = "\n".join(lines) + "\n"
    s = f"""; FNet block: h = x + Re(DFT_seq(DFT_hid(LN(x)))),  out = h + relu(LN(h) W1) W2.   One persistent launch, 252 workgroups.
; kernarg: A_x, dft_seq_re, dft_seq_im, dft_hid_re, dft_hid_im, B_x, B_w1, B_w2, out, debug, ws
;
; The four DFT matrices are constants of the problem; their entries are generated in the kernel (v_cos / v_sin).
; With s = 32 s1 + s2 and t = t1 + 64 t2 the 2048-point transform is done in two steps (64-point over s1, then over s2); the
; real-input symmetries keep 448 real columns (a(e), b(e), e < 224; a(224) sits in the slot of b(0)) and 32 row groups.
;  phase 1, workgroup (s2, column chunk): 64 rows of x -> LayerNorm statistics by MFMA, hidden DFT, 64-point step -> Z (fp16) in ws
;  phase 2, workgroup (row group g, FFN chunk j): second DFT step + residual -> h (64 rows), LayerNorm folded into the GEMM epilogue,
;           hid = relu(.) for 256 hidden units, partial outputs for the seven 64-column slabs; six go to their owners through ws,
;           the own slab stays in registers and is completed with the six incoming ones.
;  workgroups 224..251: column sums of W1 (mean term of the folded LayerNorm).
; Hand-offs: every hand-off word is first set to 0xffffffff by the kernel itself (write-through stores); a counter barrier in d_debug
; (Z, column sums) or a ready flag per wave (partials) tells that this happened; readers use sc1 loads and re-read while they see the
; marker.  All waits are bounded.  The first load of the kernel touches its own code once so that instruction fetch finds it in L2.
; @launch grid=(252,1,1) block=(256,1,1) lds={LDS_TOTAL}
.amdgcn_target "amdgcn-amd-amdhsa--gfx950"
.text
""" + kernel_header(name) + txt + '\n.section .rodata,"a"\n' + kernel_desc(name, 512, 256)
    return s, b

if __name__ == "__main__":
    import sys
    for o in sys.argv[2:]:
        if o == "diag": cfg.diag = True
        elif "=" in o:
            k, val = o.split("=", 1)
            setattr(cfg, k, eval(val))
    s, b = build(NAME + "_kernel")
    open(sys.argv[1], "w").write(s)
    n = sum(1 for i in b.items if not isinstance(i, str))
    print("instructions", n, "auto nops", b.nnop)
```
